```python
import torch

def _softmax(x, axis=-1):
    return torch.softmax(x, dim=axis)
def _gelu(x):
    return torch.nn.functional.gelu(x, approximate="tanh")
def _silu(x):
    return torch.nn.functional.silu(x)
def _sigmoid(x):
    return torch.sigmoid(x)
def _layernorm(x, axis=-1, eps=1e-5):
    m = x.mean(dim=axis, keepdim=True)
    v = x.var(dim=axis, keepdim=True, unbiased=False)
    return (x - m) / torch.sqrt(v + eps)
def _scatter_add(tgt, idx, src, axis=0):
    return tgt.clone().index_add_(axis, idx, src)
def _segment_sum(src, seg, n):
    out = torch.zeros((n,) + src.shape[1:], dtype=src.dtype)
    return out.index_add_(0, seg, src)
def _pad(x, pw):
    flat = tuple(v for pair in reversed(pw) for v in pair)
    return torch.nn.functional.pad(x, flat)

kernel_name = 'sequential_preLN__compressed_kv_cla__glu_gated_glu__decode'

def setup_inputs():

    _w = (lambda a: (lambda t: t.to(torch.bfloat16) if t.is_floating_point() else t)(torch.as_tensor(a)))
    def _A_setup():
        B, H, Sq, Sk, D, M = 1, 32, 1, 4096, 192, 640
        Dc = 4 * D
        return {
            "x": _w((lambda *s: torch.randn(*s, dtype=torch.bfloat16) * 0.05)(B, Sq, M)),
            "c_kv": _w((lambda *s: torch.randn(*s, dtype=torch.bfloat16) * 0.4)(B, Sk, Dc)),
            "w_q": _w((lambda *s: torch.randn(*s, dtype=torch.bfloat16) * 3.2)(M, H, D) * (M ** -0.5)),
            "w_uk": _w((lambda *s: torch.randn(*s, dtype=torch.bfloat16) * 3.2)(Dc, H, D) * (Dc ** -0.5)),
            "w_uv": _w((lambda *s: torch.randn(*s, dtype=torch.bfloat16) * 0.4)(Dc, H, D) * (Dc ** -0.5)),
            "w_o": _w((lambda *s: torch.randn(*s, dtype=torch.bfloat16) * 0.4)(H, D, M) * ((H * D) ** -0.5)),
        }
    _A_in = _A_setup()

    def _B_setup():
        B, S, D, F = 1, 1, 640, 1536
        return {
            "x": _w((lambda *s: torch.randn(*s, dtype=torch.bfloat16) * 0.05)(B, S, D)),
            "w_gate": _w((lambda *s: torch.randn(*s, dtype=torch.bfloat16) * 0.05)(D, F)),
            "w_up": _w((lambda *s: torch.randn(*s, dtype=torch.bfloat16) * 0.05)(D, F)),
            "w_down": _w((lambda *s: torch.randn(*s, dtype=torch.bfloat16) * 0.05)(F, D)),
        }
    _B_in = _B_setup()

    return {
        "A_x": _A_in["x"],
        "A_c_kv": _A_in["c_kv"],
        "A_w_q": _A_in["w_q"],
        "A_w_uk": _A_in["w_uk"],
        "A_w_uv": _A_in["w_uv"],
        "A_w_o": _A_in["w_o"],
        "B_x": _B_in["x"],
        "B_w_gate": _B_in["w_gate"],
        "B_w_up": _B_in["w_up"],
        "B_w_down": _B_in["w_down"],
    }

def reference(A_x, A_c_kv, A_w_q, A_w_uk, A_w_uv, A_w_o, B_x, B_w_gate, B_w_up, B_w_down):
    def _A_ref(x, c_kv, w_q, w_uk, w_uv, w_o):
        B, Sq, M = x.shape[0], x.shape[1], x.shape[2]
        Sk = c_kv.shape[1]
        H, D = w_q.shape[1], w_q.shape[2]
        q = torch.einsum("bqm,mhd->bhqd", x, w_q)
        k = torch.einsum("bkc,chd->bhkd", c_kv, w_uk)
        v = torch.einsum("bkc,chd->bhkd", c_kv, w_uv)
        scores = torch.einsum("bhqd,bhkd->bhqk", q, k) * (D ** -0.5)
        off = Sk - Sq
        qi = torch.arange(Sq)[:, None]
        kj = torch.arange(Sk)[None, :]
        cmask = kj <= (qi + off)
        scores = torch.where(cmask[None, None], scores, -1e9)
        p = _softmax(scores, axis=-1)
        ctx = torch.einsum("bhqk,bhkd->bhqd", p, v)
        return torch.einsum("bhqd,hdm->bqm", ctx, w_o)

    def _B_ref(x, w_gate, w_up, w_down):
        g = torch.einsum("bsd,df->bsf", x, w_gate)
        u = torch.einsum("bsd,df->bsf", x, w_up)
        h = _sigmoid(g) * u
        return torch.einsum("bsf,fd->bsd", h, w_down)

    x = A_x
    h = x + _A_ref(_layernorm(x, axis=-1), A_c_kv, A_w_q, A_w_uk, A_w_uv, A_w_o)
    h2 = h + _B_ref(_layernorm(h, axis=-1), B_w_gate, B_w_up, B_w_down)
    return h2
```

```python
import sys, math, struct
def F(x): return "0x%08x" % struct.unpack("<I", struct.pack("<f", x))[0]
NAME = "sequential_preLN__compressed_kv_cla__glu_gated_glu__decode"

OPT = dict(stamps=0, ynt=1, xnt=1, spin=1 << 16, cpv_early=1, prefetch_code=1)
for a in sys.argv[2:]:
    k, v = a.split("="); OPT[k] = int(v)

L = []
def e(s): L.append("    " + s)
def lab(s): L.append(s + ":")
def cm(s): L.append("    ; " + s)
_uid = [0]
def uid(p):
    _uid[0] += 1
    return f"{p}_{_uid[0]}"

WS_EPOCH = 0
WS_E1 = 0x10000
WS_QA = 0x40000
WS_PS = 0x60000
WS_MT = 0xE0000
WS_E3 = 0x100000
WS_ML = 0x1C0000
WS_E4 = 0x1D0000
WS_E5 = 0x1F0000
WS_E6 = 0x200000
WS_ST = 0x300000
WS_SIZE = 0x400000

WAVE, X, J, TAG, H, R = "s3", "s4", "s5", "s6", "s7", "s8"
HH, KC = "s7", "s8"
P_X, P_CKV, P_WQ, P_WUK, P_WUV, P_WO, P_WG, P_WU, P_WD, P_OUT, P_WS = 16, 18, 20, 22, 24, 26, 30, 32, 34, 36, 40
WS, SA, SB, SC_, SD = 44, 48, 52, 56, 60
def sr(b, n=4): return f"s[{b}:{b+n-1}]"
def vr(b, n): return f"v[{b}:{b+n-1}]" if n > 1 else f"v{b}"
STAMP0 = 70
LANE, G, L15, VTAG = "v1", "v2", "v3", "v4"

def srd(b, ptr, size):
    e(f"s_mov_b32 s{b}, s{ptr}")
    e(f"s_mov_b32 s{b+1}, s{ptr+1}")
    e(f"s_mov_b32 s{b+2}, {size}")
    e(f"s_mov_b32 s{b+3}, 0x00020000")

nstamp = [0]
def stamp(name):
    if not OPT["stamps"]: return
    i = nstamp[0]; nstamp[0] += 1
    cm(f"stamp {i}: {name}")
    e(f"s_memrealtime s[{STAMP0+2*i}:{STAMP0+2*i+1}]")
    e("s_waitcnt lgkmcnt(0)")
def stamp_flush(n):
    if not OPT["stamps"]: return
    skip = uid("STF")
    e(f"s_cmp_lg_u32 {WAVE}, 0"); e(f"s_cbranch_scc1 {skip}")
    e("s_mov_b64 exec, 1")
    e("s_lshl_b32 s9, s2, 8"); e(f"s_add_u32 s9, s9, {WS_ST}")
    e("v_mov_b32 v5, 0")
    for i in range(n):
        e(f"v_mov_b32 v6, s{STAMP0+2*i}"); e(f"v_mov_b32 v7, s{STAMP0+2*i+1}")
        e(f"buffer_store_dwordx2 v[6:7], v5, {sr(WS)}, s9 offen offset:{8*i}")
        e("s_nop 1")
    e("s_mov_b64 exec, -1")
    lab(skip)

def barrier():
    e("s_waitcnt lgkmcnt(0)")
    e("s_barrier")

def divmagic(T):
    return {12: (43, 9), 6: (43, 8), 3: (86, 8), 1: (1, 0)}[T]

def dma_pattern(vd, T, S, sp, t0, t1):
    M, sh = divmagic(T)
    e(f"v_lshrrev_b32 v{t0}, 3, {LANE}")
    if sp is not None:
        e(f"s_lshl_b32 s9, {sp}, 3")
        e(f"v_add_u32 v{t0}, s9, v{t0}")
    if T == 1:
        e(f"v_mov_b32 v{t1}, v{t0}")
        e(f"v_mov_b32 v{t0}, 0")
    else:
        e(f"v_mul_u32_u24 v{t1}, {M}, v{t0}")
        e(f"v_lshrrev_b32 v{t1}, {sh}, v{t1}")
        e(f"v_mul_u32_u24 v{vd}, {T}, v{t1}")
        e(f"v_sub_u32 v{t0}, v{t0}, v{vd}")
    e(f"v_lshlrev_b32 v{t1}, 2, v{t1}")
    e(f"v_bfe_u32 v{vd}, {LANE}, 1, 2")
    e(f"v_add_u32 v{t1}, v{t1}, v{vd}")
    e(f"s_mov_b32 s9, {S}")
    e(f"v_mul_lo_u32 v{t1}, v{t1}, s9")
    e(f"v_lshlrev_b32 v{t0}, 5, v{t0}")
    e(f"v_and_b32 v{vd}, 1, {LANE}")
    e(f"v_lshlrev_b32 v{vd}, 4, v{vd}")
    e(f"v_add3_u32 v{vd}, v{vd}, v{t0}, v{t1}")

def dma_loop(vd, srdb, s_m0, s_off, n, step_m, step_s, nt):
    lp = uid("DMA")
    e(f"s_mov_b32 s12, {n}")
    lab(lp)
    e(f"s_mov_b32 m0, s{s_m0}")
    e(f"s_add_u32 s{s_m0}, s{s_m0}, {step_m}")
    e(f"buffer_load_dwordx4 v{vd}, {sr(srdb)}, s{s_off} offen{' nt' if nt else ''} lds")
    e(f"s_add_u32 s{s_off}, s{s_off}, {step_s}")
    e("s_sub_u32 s12, s12, 1")
    e("s_cmp_lg_u32 s12, 0")
    e(f"s_cbranch_scc1 {lp}")

def row16_allreduce(op, v, nregs=1):
    for sh in (8, 4, 2, 1):
        if nregs < 3: e("s_nop 1")
        for i in range(nregs):
            e(f"{op}_dpp v{v+i}, v{v+i}, v{v+i} row_ror:{sh} row_mask:0xf bank_mask:0xf")
def cross16(op, v, t):
    e(f"v_mov_b32 v{t}, v{v}"); e("s_nop 1")
    e(f"v_permlane16_swap_b32 v{v}, v{t}"); e("s_nop 1")
    e(f"{op} v{v}, v{v}, v{t}")
def cross32(op, v, t):
    e(f"v_mov_b32 v{t}, v{v}"); e("s_nop 1")
    e(f"v_permlane32_swap_b32 v{v}, v{t}"); e("s_nop 1")
    e(f"{op} v{v}, v{v}, v{t}")
def wave_allreduce(op, v, t):
    e("s_nop 1")
    row16_allreduce(op, v)
    e("s_nop 1")
    cross16(op, v, t)
    cross32(op, v, t)

def poll(loads, tagregs, vt):
    lp = uid("POLL"); dn = uid("PDONE")
    e("s_mov_b32 s13, 0")
    lab(lp)
    for s in loads: e(s)
    e("s_waitcnt vmcnt(0)")
    first = True
    tr = list(tagregs)
    while tr:
        a = tr.pop(0)
        e(f"v_xor_b32 v{vt+1}, {TAG}, v{a}")
        if tr:
            b = tr.pop(0)
            e(f"v_xor_b32 v{vt+2}, {TAG}, v{b}")
            if first: e(f"v_or_b32 v{vt}, v{vt+1}, v{vt+2}")
            else: e(f"v_or3_b32 v{vt}, v{vt+1}, v{vt+2}, v{vt}")
        else:
            if first: e(f"v_mov_b32 v{vt}, v{vt+1}")
            else: e(f"v_or_b32 v{vt}, v{vt+1}, v{vt}")
        first = False
    e(f"v_cmp_ne_u32 vcc, 0, v{vt}")
    e("s_add_u32 s13, s13, 1")
    e("s_cmp_eq_u64 vcc, 0")
    e(f"s_cbranch_scc1 {dn}")
    e(f"s_cmp_lt_u32 s13, {OPT['spin']}")
    e(f"s_cbranch_scc1 {lp}")
    lab(dn)

def mfma(d, a, b, c=None):
    cs = vr(d, 4) if c is None else c
    e(f"v_mfma_f32_16x16x32_bf16 {vr(d,4)}, {vr(a,4)}, {vr(b,4)}, {cs}")

SCG = " sc1"
EXEC_L15_0 = 0x0001000100010001

def set_exec64(val):
    lo, hi = val & 0xffffffff, val >> 32
    e(f"s_mov_b32 exec_lo, {lo:#x}"); e(f"s_mov_b32 exec_hi, {hi:#x}")
def exec_all(): e("s_mov_b64 exec, -1")

def prologue():
    e("s_cmp_ge_u32 s2, 256")
    e("s_cbranch_scc1 L_END")
    e("s_load_dwordx16 s[16:31], s[0:1], 0")
    e("s_load_dwordx8 s[32:39], s[0:1], 64")
    e("s_load_dwordx2 s[40:41], s[0:1], 96")
    e(f"v_lshrrev_b32 v5, 6, v0")
    e(f"v_and_b32 {LANE}, 63, v0")
    e(f"v_readfirstlane_b32 {WAVE}, v5")
    e(f"v_lshrrev_b32 {G}, 4, {LANE}")
    e(f"v_and_b32 {L15}, 15, {LANE}")
    e(f"s_and_b32 {X}, s2, 7")
    e(f"s_lshr_b32 {J}, s2, 3")
    e(f"s_mul_i32 s64, {WAVE}, 11"); e("s_lshr_b32 s64, s64, 5")
    e("s_mul_i32 s65, s64, 3"); e(f"s_sub_u32 s65, {WAVE}, s65")
    e("s_waitcnt lgkmcnt(0)")
    e(f"s_load_dword {TAG}, s[{P_WS}:{P_WS+1}], 0 glc")
    srd(WS, P_WS, WS_SIZE)
    e(f"s_cmp_ge_u32 {J}, 16")
    e("s_cbranch_scc1 L_Y")

def get_tag():
    e("s_waitcnt lgkmcnt(0)")
    e(f"s_mul_i32 {TAG}, {TAG}, 1664525")
    e(f"s_add_u32 {TAG}, {TAG}, 1013904223")
    e(f"v_mov_b32 {VTAG}, {TAG}")

XL_U, XL_O, XL_S = 0, 73728, 147456
XL_XN = XL_S
XL_Q = XL_S + 1280
XL_F = XL_S + 2048
XL_W = XL_S + 8192
XL_R = XL_S + 8448
XL_H = XL_S + 11008
XL_R2 = XL_S + 11264

def x_program():
    lab("L_X")
    e(f"s_lshr_b32 s9, {J}, 2"); e(f"s_lshl_b32 {H}, {X}, 2"); e(f"s_add_u32 {H}, {H}, s9")
    e(f"s_and_b32 {R}, {J}, 3")
    srd(SA, P_WQ, 7864320); srd(SB, P_WUK, 9437184); srd(SC_, P_X, 1280)
    e(f"s_cmp_eq_u32 {WAVE}, 15"); e("s_cbranch_scc1 X_LN")
    dma_pattern(16, 12, 12288, "s65", 17, 18)
    e("v_mov_b32 v15, v16")
    e(f"s_mul_i32 s10, {R}, 160"); e("s_lshl_b32 s11, s64, 3"); e("s_add_u32 s10, s10, s11")
    e("s_mul_i32 s11, s10, 12288"); e(f"s_mul_i32 s10, {H}, 384"); e("s_add_u32 s11, s11, s10")
    e(f"s_lshl_b32 s10, {WAVE}, 10")
    dma_loop(15, SA, 10, 11, 4, 15 * 1024, 40 * 12288, OPT["xnt"])
    e(f"s_cmp_ge_u32 {WAVE}, 12"); e("s_cbranch_scc1 X_W1")
    e("s_mov_b32 s9, 12288")
    e(f"v_mul_lo_u32 v14, {L15}, s9"); e(f"v_lshl_add_u32 v14, {G}, 4, v14")
    e(f"s_mul_i32 s66, {R}, 192"); e(f"s_lshl_b32 s10, {WAVE}, 4"); e("s_add_u32 s66, s66, s10")
    e("s_mul_i32 s66, s66, 12288"); e(f"s_mul_i32 s10, {H}, 384"); e("s_add_u32 s66, s66, s10")
    nt = " nt" if OPT["xnt"] else ""
    for ks in range(3):
        e(f"buffer_load_dwordx4 {vr(16+4*ks,4)}, v14, {sr(SB)}, s66 offen offset:{64*ks}{nt}")
    e("s_waitcnt vmcnt(3)")
    e("s_branch X_B1")
    lab("X_W1")
    e("s_waitcnt vmcnt(0)")
    e("s_branch X_B1")
    lab("X_LN")
    e(f"v_lshlrev_b32 v5, 2, {LANE}")
    for i in range(5):
        e(f"buffer_load_dword v{16+i}, v5, {sr(SC_)}, 0 offen offset:{256*i}")
    e("s_waitcnt vmcnt(0)")
    for i in range(5):
        e(f"v_lshlrev_b32 v{21+2*i}, 16, v{16+i}")
        e(f"v_and_b32 v{22+2*i}, 0xffff0000, v{16+i}")
    e("v_add_f32 v31, v21, v22")
    for i in range(23, 31): e(f"v_add_f32 v31, v31, v{i}")
    wave_allreduce("v_add_f32", 31, 32)
    e(f"v_mul_f32 v31, {F(1.0/640.0)}, v31")
    for i in range(21, 31): e(f"v_sub_f32 v{i}, v{i}, v31")
    e("v_mul_f32 v33, v21, v21")
    for i in range(22, 31): e(f"v_fmac_f32 v33, v{i}, v{i}")
    wave_allreduce("v_add_f32", 33, 32)
    e(f"v_mov_b32 v32, {F(1e-5)}")
    e(f"v_fmac_f32 v32, {F(1.0/640.0)}, v33")
    e("v_rsq_f32 v32, v32"); e("s_nop 0")
    for i in range(21, 31): e(f"v_mul_f32 v{i}, v{i}, v32")
    for i in range(5): e(f"v_cvt_pk_bf16_f32 v{16+i}, v{21+2*i}, v{22+2*i}")
    e(f"v_add_u32 v5, {XL_XN}, v5")
    for i in range(5): e(f"ds_write_b32 v5, v{16+i} offset:{256*i}")
    lab("X_B1")
    get_tag()
    stamp("x: wq landed")
    barrier()
    e(f"s_cmp_ge_u32 {WAVE}, 12"); e("s_cbranch_scc1 X_B2")
    e(f"v_mul_u32_u24 v5, 3072, {G}"); e(f"v_lshl_add_u32 v5, {L15}, 3, v5")
    e(f"s_lshl_b32 s9, {WAVE}, 7"); e("v_add_u32 v13, s9, v5")
    e(f"s_mul_i32 s9, {R}, 320"); e(f"s_add_u32 s9, s9, {XL_XN}")
    e(f"v_lshl_add_u32 v6, {G}, 4, s9")
    for ks in range(5):
        e(f"ds_read_b128 {vr(64+4*ks,4)}, v6 offset:{64*ks}")
        e(f"ds_read_b64_tr_b16 {vr(40+4*ks,2)}, v13 offset:{XL_U+ks*12288}")
        e(f"ds_read_b64_tr_b16 {vr(42+4*ks,2)}, v13 offset:{XL_U+ks*12288+1536}")
    for ks in range(5):
        e(f"s_waitcnt lgkmcnt({3*(4-ks)})")
        mfma(88, 64 + 4 * ks, 40 + 4 * ks, "0" if ks == 0 else None)
    e(f"s_lshl_b32 s9, {H}, 2"); e(f"s_add_u32 s9, s9, {R}"); e("s_mul_i32 s9, s9, 1536")
    e(f"s_lshl_b32 s10, {WAVE}, 7"); e("s_add_u32 s9, s9, s10"); e(f"s_add_u32 s9, s9, {WS_E1}")
    e(f"v_lshlrev_b32 v5, 3, {L15}")
    e("s_nop 4")
    e(f"v_mov_b32 v89, {VTAG}")
    e("s_mov_b64 exec, 0xffff")
    e(f"buffer_store_dwordx2 v[88:89], v5, {sr(WS)}, s9 offen{SCG}")
    exec_all()
    for ks in range(3, 6):
        e(f"buffer_load_dwordx4 {vr(16+4*ks,4)}, v14, {sr(SB)}, s66 offen offset:{64*ks}{nt}")
    lab("X_B2")
    stamp("x: q published")
    barrier()
    e(f"s_cmp_lt_u32 {WAVE}, 12"); e("s_cbranch_scc1 X_B3")
    e(f"s_cmp_ge_u32 {WAVE}, 14"); e("s_cbranch_scc1 X_B3")
    e(f"s_sub_u32 s9, {WAVE}, 12"); e("s_lshl_b32 s9, s9, 6"); e(f"v_add_u32 v5, s9, {LANE}")
    e("v_cmp_gt_u32 vcc, 96, v5"); e("s_and_saveexec_b64 s[14:15], vcc")
    e("v_lshlrev_b32 v6, 4, v5")
    e(f"s_mul_i32 s9, {H}, 6144"); e(f"s_add_u32 s9, s9, {WS_E1}")
    e("s_add_u32 s10, s9, 3072")
    poll([f"buffer_load_dwordx4 v[92:95], v6, {sr(WS)}, s9 offen sc1",
          f"buffer_load_dwordx4 v[96:99], v6, {sr(WS)}, s9 offen offset:1536 sc1",
          f"buffer_load_dwordx4 v[100:103], v6, {sr(WS)}, s10 offen sc1",
          f"buffer_load_dwordx4 v[104:107], v6, {sr(WS)}, s10 offen offset:1536 sc1"],
         [93, 95, 97, 99, 101, 103, 105, 107], 108)
    e("v_add_f32 v92, v92, v96"); e("v_add_f32 v94, v94, v98")
    e("v_add_f32 v100, v100, v104"); e("v_add_f32 v102, v102, v106")
    e("v_add_f32 v92, v92, v100"); e("v_add_f32 v94, v94, v102")
    qs = 192 ** -0.5 * math.log2(math.e)
    e(f"v_mul_f32 v92, {F(qs)}, v92"); e(f"v_mul_f32 v94, {F(qs)}, v94")
    e("v_cvt_pk_bf16_f32 v92, v92, v94")
    e("v_lshlrev_b32 v6, 2, v5"); e(f"v_add_u32 v6, {XL_Q}, v6")
    e("ds_write_b32 v6, v92")
    e("s_mov_b64 exec, s[14:15]")
    lab("X_B3")
    barrier()
    stamp("x: q gathered")
    e(f"s_cmp_ge_u32 {WAVE}, 12"); e("s_cbranch_scc1 X_P2D")
    e(f"v_lshlrev_b32 v6, 4, {G}"); e(f"v_add_u32 v6, {XL_Q}, v6")
    for ks in range(6): e(f"ds_read_b128 {vr(64+4*ks,4)}, v6 offset:{64*ks}")
    e("s_waitcnt vmcnt(0)")
    for ks in range(6):
        e(f"s_waitcnt lgkmcnt({5-ks})")
        mfma(88, 16 + 4 * ks, 64 + 4 * ks, "0" if ks == 0 else None)
    e(f"s_mul_i32 s9, {H}, 3072"); e(f"s_mul_i32 s10, {R}, 768"); e("s_add_u32 s9, s9, s10")
    e(f"s_lshl_b32 s10, {WAVE}, 6"); e("s_add_u32 s9, s9, s10"); e(f"s_add_u32 s9, s9, {WS_QA}")
    e(f"v_lshlrev_b32 v5, 4, {G}")
    e("s_nop 4")
    e("v_cvt_pk_bf16_f32 v92, v88, v89"); e(f"v_mov_b32 v93, {VTAG}")
    e("v_cvt_pk_bf16_f32 v94, v90, v91"); e(f"v_mov_b32 v95, {VTAG}")
    set_exec64(EXEC_L15_0)
    e(f"buffer_store_dwordx4 v[92:95], v5, {sr(WS)}, s9 offen{SCG}")
    exec_all()
    lab("X_P2D")
    stamp("x: qabs published")
    srd(SA, P_WUV, 9437184); srd(SB, P_WO, 7864320)
    e(f"s_cmp_ge_u32 {WAVE}, 12"); e("s_cbranch_scc1 X_B4")
    e(f"s_mul_i32 s10, {R}, 192"); e("s_lshl_b32 s11, s64, 3"); e("s_add_u32 s10, s10, s11")
    e("s_mul_i32 s11, s10, 12288"); e(f"s_mul_i32 s10, {H}, 384"); e("s_add_u32 s11, s11, s10")
    e(f"s_lshl_b32 s10, {WAVE}, 10"); e(f"s_add_u32 s10, s10, {XL_U}")
    dma_loop(15, SA, 10, 11, 6, 12 * 1024, 32 * 12288, OPT["xnt"])
    dma_pattern(12, 3, 1280, "s65", 17, 18)
    e(f"s_mul_i32 s10, {X}, 768"); e("s_lshl_b32 s11, s64, 5"); e("s_add_u32 s10, s10, s11")
    e("s_mul_i32 s11, s10, 1280"); e(f"s_mul_i32 s10, {J}, 80"); e("s_add_u32 s11, s11, s10")
    e(f"s_lshl_b32 s10, {WAVE}, 10"); e(f"s_add_u32 s10, s10, {XL_O}")
    dma_loop(12, SB, 10, 11, 6, 12 * 1024, 128 * 1280, 0)
    lab("X_B4")
    e("s_waitcnt vmcnt(0)")
    stamp("x: burst2 landed")
    barrier()
    e(f"s_cmp_ge_u32 {WAVE}, 12"); e("s_cbranch_scc1 X_PRD")
    for ks in range(6):
        e(f"ds_read_b64_tr_b16 {vr(40+4*ks,2)}, v13 offset:{XL_U+ks*12288}")
        e(f"ds_read_b64_tr_b16 {vr(42+4*ks,2)}, v13 offset:{XL_U+ks*12288+1536}")
    e("s_waitcnt lgkmcnt(0)")
    e(f"v_mul_u32_u24 v5, 768, {G}"); e(f"v_lshl_add_u32 v5, {L15}, 3, v5")
    e(f"s_mul_i32 s9, {WAVE}, 6144"); e(f"s_add_u32 s9, s9, {XL_O}"); e("v_add_u32 v5, s9, v5")
    for ksl in range(2):
        for t in range(3):
            b = 64 + (ksl * 3 + t) * 4
            e(f"ds_read_b64_tr_b16 {vr(b,2)}, v5 offset:{ksl*3072+t*128}")
            e(f"ds_read_b64_tr_b16 {vr(b+2,2)}, v5 offset:{ksl*3072+384+t*128}")
    lab("X_PRD")
    e(f"s_cmp_ge_u32 {WAVE}, 7"); e("s_cbranch_scc1 X_B5")
    e(f"s_cmp_eq_u32 {WAVE}, 6"); e("s_cbranch_scc1 X_ML")
    e(f"v_and_b32 v5, 7, {LANE}"); e("v_mul_u32_u24 v5, 3072, v5"); e(f"v_lshl_add_u32 v5, {G}, 5, v5")
    e(f"s_mul_i32 s9, {H}, 24576"); e(f"s_mul_i32 s10, {R}, 768"); e("s_add_u32 s9, s9, s10")
    e(f"s_lshl_b32 s10, {WAVE}, 7"); e("s_add_u32 s9, s9, s10"); e(f"s_add_u32 s9, s9, {WS_E3}")
    poll([f"buffer_load_dwordx4 v[92:95], v5, {sr(WS)}, s9 offen sc1",
          f"buffer_load_dwordx4 v[96:99], v5, {sr(WS)}, s9 offen offset:16 sc1"], [93, 95, 97, 99], 108)
    e("v_mov_b32 v93, v94"); e("v_mov_b32 v94, v96"); e("v_mov_b32 v95, v98")
    e(f"v_lshlrev_b32 v5, 4, {LANE}"); e(f"s_lshl_b32 s9, {WAVE}, 10"); e(f"s_add_u32 s9, s9, {XL_F}")
    e("v_add_u32 v5, s9, v5")
    e("ds_write_b128 v5, v[92:95]")
    e("s_branch X_B5")
    lab("X_ML")
    e(f"v_and_b32 v5, 7, {LANE}"); e("v_lshlrev_b32 v5, 4, v5")
    e(f"s_lshl_b32 s9, {H}, 7"); e(f"s_add_u32 s9, s9, {WS_ML}")
    poll([f"buffer_load_dwordx4 v[92:95], v5, {sr(WS)}, s9 offen sc1"], [93, 95], 108)
    e("v_mov_b32 v96, v92")
    for pat in ("quad_perm:[1,0,3,2]", "quad_perm:[2,3,0,1]", "row_half_mirror"):
        e("s_nop 1")
        e(f"v_max_f32_dpp v96, v96, v96 {pat} row_mask:0xf bank_mask:0xf")
    e("v_sub_f32 v92, v92, v96"); e("v_exp_f32 v92, v92"); e("s_nop 0")
    e("v_mul_f32 v94, v92, v94")
    for pat in ("quad_perm:[1,0,3,2]", "quad_perm:[2,3,0,1]", "row_half_mirror"):
        e("s_nop 1")
        e(f"v_add_f32_dpp v94, v94, v94 {pat} row_mask:0xf bank_mask:0xf")
    e("v_rcp_f32 v94, v94"); e("s_nop 0")
    e("v_mul_f32 v92, v92, v94")
    e(f"v_cmp_gt_u32 vcc, 8, {L15}"); e("s_nop 1")
    e("v_cndmask_b32 v92, 0, v92, vcc")
    e(f"v_lshlrev_b32 v5, 2, {L15}"); e(f"v_add_u32 v5, {XL_W}, v5")
    e("s_mov_b64 exec, 0xffff")
    e("ds_write_b32 v5, v92")
    exec_all()
    lab("X_B5")
    barrier()
    stamp("x: E3 gathered")
    e(f"s_cmp_ge_u32 {WAVE}, 12"); e("s_cbranch_scc1 X_B6")
    e(f"v_lshlrev_b32 v5, 4, {LANE}"); e(f"v_add_u32 v5, {XL_F}, v5")
    e(f"v_lshlrev_b32 v6, 2, {L15}"); e(f"v_add_u32 v6, {XL_W}, v6")
    for ks in range(6): e(f"ds_read_b128 {vr(92+4*ks,4)}, v5 offset:{1024*ks}")
    e("ds_read_b32 v116, v6")
    for ks in range(6):
        e(f"s_waitcnt lgkmcnt({6-ks})")
        mfma(88, 40 + 4 * ks, 92 + 4 * ks, "0" if ks == 0 else None)
    e(f"s_lshl_b32 s9, {X}, 2"); e(f"s_add_u32 s9, s9, {R}"); e("s_mul_i32 s9, s9, 3072")
    e(f"s_and_b32 s10, {H}, 3"); e("s_mul_i32 s10, s10, 768"); e("s_add_u32 s9, s9, s10")
    e(f"s_lshl_b32 s10, {WAVE}, 6"); e("s_add_u32 s9, s9, s10"); e(f"s_add_u32 s9, s9, {WS_E4}")
    e(f"v_lshlrev_b32 v5, 4, {G}")
    e("s_waitcnt lgkmcnt(0)")
    e("s_nop 4")
    for i in range(4): e(f"v_mul_f32 v{88+i}, v{88+i}, v116")
    row16_allreduce("v_add_f32", 88, 4)
    e("v_cvt_pk_bf16_f32 v92, v88, v89"); e(f"v_mov_b32 v93, {VTAG}")
    e("v_cvt_pk_bf16_f32 v94, v90, v91"); e(f"v_mov_b32 v95, {VTAG}")
    set_exec64(EXEC_L15_0)
    e(f"buffer_store_dwordx4 v[92:95], v5, {sr(WS)}, s9 offen{SCG}")
    exec_all()
    stamp("x: ctx published")
    e(f"v_and_b32 v5, 3, {LANE}"); e("v_mul_u32_u24 v5, 3072, v5"); e(f"v_lshl_add_u32 v5, {G}, 5, v5")
    e(f"s_mul_i32 s9, {X}, 12288"); e(f"s_lshl_b32 s10, {WAVE}, 8"); e("s_add_u32 s9, s9, s10")
    e(f"s_add_u32 s9, s9, {WS_E4}")
    poll([f"buffer_load_dwordx4 v[92:95], v5, {sr(WS)}, s9 offen sc1",
          f"buffer_load_dwordx4 v[96:99], v5, {sr(WS)}, s9 offen offset:16 sc1",
          f"buffer_load_dwordx4 v[100:103], v5, {sr(WS)}, s9 offen offset:128 sc1",
          f"buffer_load_dwordx4 v[104:107], v5, {sr(WS)}, s9 offen offset:144 sc1"],
         [93, 95, 97, 99, 101, 103, 105, 107], 108)
    e("v_mov_b32 v93, v94"); e("v_mov_b32 v94, v96"); e("v_mov_b32 v95, v98")
    e("v_mov_b32 v101, v102"); e("v_mov_b32 v102, v104"); e("v_mov_b32 v103, v106")
    e("s_nop 1")
    for t in range(3): mfma(108 + 4 * t, 64 + 4 * t, 92, "0")
    for t in range(3): mfma(108 + 4 * t, 64 + 12 + 4 * t, 100)
    e(f"v_lshlrev_b32 v5, 4, {G}"); e(f"s_mul_i32 s9, {WAVE}, 192"); e(f"s_add_u32 s9, s9, {XL_R}")
    e("v_add_u32 v5, s9, v5")
    e("s_nop 7")
    for pat in ("quad_perm:[1,0,3,2]", "quad_perm:[2,3,0,1]"):
        for i in range(12):
            e(f"v_add_f32_dpp v{108+i}, v{108+i}, v{108+i} {pat} row_mask:0xf bank_mask:0xf")
    set_exec64(EXEC_L15_0)
    for t in range(3): e(f"ds_write_b128 v5, {vr(108+4*t,4)} offset:{64*t}")
    exec_all()
    lab("X_B6")
    barrier()
    e(f"s_cmp_lg_u32 {WAVE}, 0"); e("s_cbranch_scc1 X_P5D")
    e(f"v_lshlrev_b32 v5, 3, {LANE}"); e(f"v_add_u32 v6, {XL_R}, v5")
    e("s_mov_b64 exec, 0xfffff")
    for w in range(12): e(f"ds_read_b64 {vr(92+2*w,2)}, v6 offset:{192*w}")
    e("s_waitcnt lgkmcnt(0)")
    for w in range(1, 12):
        e(f"v_add_f32 v92, v92, v{92+2*w}"); e(f"v_add_f32 v93, v93, v{93+2*w}")
    e("v_cvt_pk_bf16_f32 v92, v92, v93"); e(f"v_mov_b32 v93, {VTAG}")
    e(f"s_mul_i32 s9, {X}, 2560"); e(f"s_mul_i32 s10, {J}, 160"); e("s_add_u32 s9, s9, s10")
    e(f"s_add_u32 s9, s9, {WS_E5}")
    e(f"buffer_store_dwordx2 v[92:93], v5, {sr(WS)}, s9 offen{SCG}")
    exec_all()
    lab("X_P5D")
    stamp("x: attn partial published")
    e(f"s_cmp_ge_u32 {J}, 5"); e("s_cbranch_scc1 X_END")
    e(f"s_mul_i32 s66, {X}, 5"); e(f"s_add_u32 s66, s66, {J}")
    e(f"s_cmp_ge_u32 {WAVE}, 13"); e("s_cbranch_scc1 X_B7")
    e(f"s_cmp_eq_u32 {WAVE}, 12"); e("s_cbranch_scc1 X_FH")
    e(f"v_lshrrev_b32 v5, 3, {LANE}"); e("v_mul_u32_u24 v5, 5120, v5")
    e(f"v_and_b32 v6, 7, {LANE}"); e("v_lshl_add_u32 v5, v6, 4, v5")
    e(f"s_mul_i32 s9, {WAVE}, 40960"); e("s_lshl_b32 s10, s66, 7"); e("s_add_u32 s9, s9, s10")
    e(f"s_add_u32 s9, s9, {WS_E6}")
    poll([f"buffer_load_dwordx4 v[92:95], v5, {sr(WS)}, s9 offen sc1"], [93, 95], 108)
    e("v_mov_b32 v93, v94")
    e("s_nop 1")
    for i in range(2):
        e(f"v_add_f32_dpp v{92+i}, v{92+i}, v{92+i} row_ror:8 row_mask:0xf bank_mask:0xf")
    for i in range(2):
        cross16("v_add_f32", 92 + i, 96); cross32("v_add_f32", 92 + i, 96)
    e("v_lshlrev_b32 v6, 3, v6"); e(f"s_lshl_b32 s9, {WAVE}, 6"); e(f"s_add_u32 s9, s9, {XL_R2}")
    e("v_add_u32 v6, s9, v6")
    e("s_mov_b64 exec, 0xff")
    e("ds_write_b64 v6, v[92:93]")
    exec_all()
    e("s_branch X_B7")
    lab("X_FH")
    e(f"v_bfe_u32 v5, {LANE}, 2, 3"); e("v_mul_u32_u24 v5, 2560, v5")
    e(f"v_and_b32 v6, 3, {LANE}"); e("v_lshl_add_u32 v5, v6, 4, v5")
    e("s_lshl_b32 s9, s66, 6"); e(f"s_add_u32 s9, s9, {WS_E5}")
    e("v_lshlrev_b32 v7, 3, v6"); e("s_lshl_b32 s10, s66, 5")
    e(f"buffer_load_dwordx2 v[104:105], v7, {sr(SC_)}, s10 offen")
    poll([f"buffer_load_dwordx4 v[92:95], v5, {sr(WS)}, s9 offen sc1"], [93, 95], 108)
    e("v_lshlrev_b32 v96, 16, v92"); e("v_and_b32 v97, 0xffff0000, v92")
    e("v_lshlrev_b32 v98, 16, v94"); e("v_and_b32 v99, 0xffff0000, v94")
    e("s_nop 1")
    for sh in (4, 8):
        for i in range(4):
            e(f"v_add_f32_dpp v{96+i}, v{96+i}, v{96+i} row_ror:{sh} row_mask:0xf bank_mask:0xf")
    for i in range(4): cross16("v_add_f32", 96 + i, 100)
    e("v_lshlrev_b32 v100, 16, v104"); e("v_and_b32 v101, 0xffff0000, v104")
    e("v_lshlrev_b32 v102, 16, v105"); e("v_and_b32 v103, 0xffff0000, v105")
    for i in range(4): e(f"v_add_f32 v{96+i}, v{96+i}, v{100+i}")
    e("v_lshlrev_b32 v6, 4, v6"); e(f"v_add_u32 v6, {XL_H}, v6")
    e("s_mov_b64 exec, 0xf")
    e("ds_write_b128 v6, v[96:99]")
    exec_all()
    lab("X_B7")
    barrier()
    e(f"s_cmp_lg_u32 {WAVE}, 0"); e("s_cbranch_scc1 X_END")
    e(f"v_lshlrev_b32 v5, 3, {LANE}"); e(f"v_add_u32 v6, {XL_R2}, v5"); e(f"v_add_u32 v7, {XL_H}, v5")
    e("s_mov_b64 exec, 0xff")
    for w in range(12): e(f"ds_read_b64 {vr(92+2*w,2)}, v6 offset:{64*w}")
    e("ds_read_b64 v[116:117], v7")
    e("s_waitcnt lgkmcnt(0)")
    for w in range(1, 12):
        e(f"v_add_f32 v92, v92, v{92+2*w}"); e(f"v_add_f32 v93, v93, v{93+2*w}")
    e("v_add_f32 v92, v92, v116"); e("v_add_f32 v93, v93, v117")
    e("v_cvt_pk_bf16_f32 v92, v92, v93")
    srd(SD, P_OUT, 1280)
    e(f"v_lshlrev_b32 v5, 2, {LANE}"); e("s_lshl_b32 s9, s66, 5")
    e(f"buffer_store_dword v92, v5, {sr(SD)}, s9 offen")
    e("s_cmp_lg_u32 s66, 0"); e("s_cbranch_scc1 X_EP")
    e("s_mov_b64 exec, 1")
    e("v_mov_b32 v5, 0")
    e(f"buffer_store_dword {VTAG}, v5, {sr(WS)}, 0 offen sc1")
    lab("X_EP")
    exec_all()
    lab("X_END")
    stamp("x: end")
    stamp_flush(nstamp[0])
    e("s_endpgm")

YL_CPV = 0
YL_QA = 98304
YL_SP = 123136
YL_PF = 140544
YL_S = 156928
YL_H = YL_S
YL_ST = YL_S + 2560
YL_G = YL_S + 2688
YL_HH = YL_S + 4096
YL_MG, YL_MU, YL_MD = 0, 20480, 40960

def y_program():
    nstamp[0] = 0
    lab("L_Y")
    e(f"s_sub_u32 {J}, {J}, 16")
    e(f"s_and_b32 {HH}, {J}, 1"); e(f"s_lshr_b32 {KC}, {J}, 1")
    srd(SA, P_CKV, 6291456)
    ynt = " nt" if OPT["ynt"] else ""
    if OPT["prefetch_code"]:
        e(f"s_cmp_lg_u32 {WAVE}, 15"); e("s_cbranch_scc1 Y_NPF")
        e("s_getpc_b64 s[10:11]")
        lab("Y_PC")
        e(f"s_sub_u32 s10, s10, Y_PC-{NAME}_kernel"); e("s_subb_u32 s11, s11, 0")
        e(f"s_lshl_b32 s9, {J}, 10")
        e(f"v_lshl_add_u32 v5, {LANE}, 4, s9")
        e(f"s_mov_b32 s9, L_END-{NAME}_kernel-16")
        e("v_min_u32 v5, s9, v5")
        e("global_load_dwordx4 v[120:123], v5, s[10:11]")
        lab("Y_NPF")
    e(f"s_and_b32 s67, {WAVE}, 3"); e(f"s_lshr_b32 s68, {WAVE}, 2")
    e(f"v_mul_u32_u24 v5, 1536, {L15}"); e(f"v_lshl_add_u32 v5, {G}, 4, v5")
    e(f"s_lshl_b32 s9, {X}, 9"); e(f"s_lshl_b32 s10, {KC}, 6"); e("s_add_u32 s9, s9, s10")
    e("s_lshl_b32 s10, s67, 4"); e("s_add_u32 s9, s9, s10"); e("s_mul_i32 s9, s9, 1536")
    e("s_mul_i32 s10, s68, 384"); e("s_add_u32 s9, s9, s10")
    for ks in range(6):
        e(f"buffer_load_dwordx4 {vr(16+4*ks,4)}, v5, {sr(SA)}, s9 offen offset:{64*ks}{ynt}")
    def cpv_dma():
        sk = uid("YCPV")
        e(f"s_cmp_ge_u32 {WAVE}, 12"); e(f"s_cbranch_scc1 {sk}")
        dma_pattern(15, 6, 1536, "s65", 40, 41)
        e(f"s_lshl_b32 s10, {X}, 9"); e("s_lshl_b32 s11, s64, 4"); e("s_add_u32 s10, s10, s11")
        e("s_mul_i32 s11, s10, 1536"); e(f"s_mul_i32 s10, {KC}, 192"); e("s_add_u32 s11, s11, s10")
        e(f"s_lshl_b32 s10, {WAVE}, 10"); e(f"s_add_u32 s10, s10, {YL_CPV}")
        dma_loop(15, SA, 10, 11, 8, 12 * 1024, 64 * 1536, OPT["ynt"])
        lab(sk)
    if OPT["cpv_early"]: cpv_dma()
    for n in range(3):
        e(f"v_add_u32 v{6+n}, {1024*n}, v0")
        e(f"s_mov_b32 s9, 43691")
        e(f"v_mul_lo_u32 v{9+n}, v{6+n}, s9"); e(f"v_lshrrev_b32 v{9+n}, 23, v{9+n}")
        e(f"v_mul_u32_u24 v12, 192, v{9+n}"); e(f"v_sub_u32 v12, v{6+n}, v12")
        e(f"v_mul_u32_u24 v{9+n}, 1552, v{9+n}"); e(f"v_lshl_add_u32 v{9+n}, v12, 3, v{9+n}")
        e(f"v_add_u32 v{9+n}, {YL_QA}, v{9+n}")
        e(f"v_lshlrev_b32 v{6+n}, 4, v{6+n}")
    get_tag()
    e("s_waitcnt vmcnt(0)")
    stamp("y: burst1 landed")
    e(f"s_mul_i32 s9, {HH}, 49152"); e(f"s_add_u32 s9, s9, {WS_QA}")
    poll([f"buffer_load_dwordx4 {vr(68+4*n,4)}, v{6+n}, {sr(WS)}, s9 offen sc1" for n in range(3)],
         [69, 71, 73, 75, 77, 79], 80)
    for n in range(3):
        e(f"v_mov_b32 v{69+4*n}, v{70+4*n}")
        e(f"ds_write_b64 v{9+n}, {vr(68+4*n,2)}")
    if not OPT["cpv_early"]: cpv_dma()
    stamp("y: qabs gathered")
    barrier()
    e(f"v_mul_u32_u24 v5, 1552, {L15}"); e(f"v_lshl_add_u32 v5, {G}, 4, v5")
    e(f"s_mul_i32 s9, s68, 384"); e(f"s_add_u32 s9, s9, {YL_QA}"); e("v_add_u32 v5, s9, v5")
    for ks in range(6): e(f"ds_read_b128 {vr(40+4*ks,4)}, v5 offset:{64*ks}")
    for ks in range(6):
        e(f"s_waitcnt lgkmcnt({5-ks})")
        mfma(64, 16 + 4 * ks, 40 + 4 * ks, "0" if ks == 0 else None)
    e(f"v_mul_u32_u24 v5, 272, {G}"); e(f"v_lshl_add_u32 v5, {L15}, 4, v5")
    e(f"s_mul_i32 s9, {WAVE}, 1088"); e(f"s_add_u32 s9, s9, {YL_SP}"); e("v_add_u32 v5, s9, v5")
    e("s_nop 5")
    e("ds_write_b128 v5, v[64:67]")
    barrier()
    e(f"v_mul_u32_u24 v5, 1088, {G}")
    e(f"v_bfe_u32 v6, {LANE}, 2, 2"); e("v_mul_u32_u24 v6, 272, v6")
    e(f"v_and_b32 v7, 3, {LANE}"); e("v_lshlrev_b32 v7, 2, v7")
    e("v_add3_u32 v5, v5, v6, v7")
    e(f"s_lshl_b32 s9, {WAVE}, 4"); e(f"s_add_u32 s9, s9, {YL_SP}"); e("v_add_u32 v5, s9, v5")
    for q in range(4): e(f"ds_read_b32 v{64+q}, v5 offset:{4352*q}")
    e(f"s_lshl_b32 s9, {X}, 1"); e(f"s_add_u32 s9, s9, {HH}")
    e(f"s_lshl_b32 s10, s9, 15"); e(f"s_lshl_b32 s11, {KC}, 12"); e("s_add_u32 s10, s10, s11")
    e(f"s_lshl_b32 s11, {WAVE}, 7"); e("s_add_u32 s10, s10, s11"); e(f"s_add_u32 s10, s10, {WS_PS}")
    e(f"v_lshrrev_b32 v6, 5, {LANE}"); e("v_lshlrev_b32 v6, 11, v6")
    e(f"v_and_b32 v7, 31, {LANE}"); e("v_lshl_add_u32 v6, v7, 2, v6")
    e(f"s_lshl_b32 s11, s9, 10"); e(f"s_lshl_b32 s14, {WAVE}, 6"); e("s_add_u32 s11, s11, s14")
    e(f"s_lshl_b32 s14, {KC}, 3"); e("s_add_u32 s11, s11, s14"); e(f"s_add_u32 s11, s11, {WS_MT}")
    e("s_waitcnt lgkmcnt(0)")
    e("v_add_f32 v64, v64, v65"); e("v_add_f32 v66, v66, v67"); e("v_add_f32 v64, v64, v66")
    e("v_mov_b32 v68, v64")
    wave_allreduce("v_max_f32", 68, 69)
    e("v_sub_f32 v64, v64, v68"); e("v_exp_f32 v64, v64"); e("s_nop 1")
    e("v_mov_b32_dpp v65, v64 quad_perm:[1,1,3,3] row_mask:0xf bank_mask:0xf")
    e("v_cvt_pk_bf16_f32 v64, v64, v65"); e(f"v_mov_b32 v65, {VTAG}")
    e(f"v_mov_b32 v69, {VTAG}")
    set_exec64(0x5555555555555555)
    e(f"buffer_store_dwordx2 v[64:65], v6, {sr(WS)}, s10 offen{SCG}")
    e("s_mov_b64 exec, 1")
    e("v_mov_b32 v7, 0")
    e(f"buffer_store_dwordx2 v[68:69], v7, {sr(WS)}, s11 offen{SCG}")
    exec_all()
    stamp("y: P published")
    e("s_waitcnt vmcnt(0)")
    barrier()
    e(f"s_cmp_ge_u32 {WAVE}, 6"); e("s_cbranch_scc1 Y_PRD")
    e(f"v_mul_u32_u24 v5, 1536, {G}"); e(f"v_lshl_add_u32 v5, {L15}, 3, v5")
    e(f"s_lshl_b32 s9, {WAVE}, 7"); e("v_add_u32 v5, s9, v5"); e(f"v_add_u32 v6, 49152, v5")
    for ks in range(16):
        base = "v5" if ks < 8 else "v6"
        o = YL_CPV + (ks % 8) * 6144
        e(f"ds_read_b64_tr_b16 {vr(16+4*ks,2)}, {base} offset:{o}")
        e(f"ds_read_b64_tr_b16 {vr(18+4*ks,2)}, {base} offset:{o+768}")
        if ks % 4 == 3: e("s_waitcnt lgkmcnt(0)")
    lab("Y_PRD")
    e(f"v_lshlrev_b32 v5, 7, {L15}"); e(f"v_lshl_add_u32 v5, {G}, 5, v5")
    e(f"v_lshlrev_b32 v6, 6, {L15}"); e(f"v_lshl_add_u32 v7, {G}, 4, v6")
    e(f"s_lshl_b32 s9, {X}, 1"); e(f"s_add_u32 s9, s9, {HH}")
    e(f"s_lshl_b32 s10, s9, 15"); e(f"s_lshl_b32 s11, {WAVE}, 11"); e("s_add_u32 s10, s10, s11")
    e(f"s_add_u32 s10, s10, {WS_PS}")
    e(f"s_lshl_b32 s11, s9, 10"); e(f"s_add_u32 s11, s11, {WS_MT}")
    e(f"s_lshr_b32 s14, {WAVE}, 1"); e("s_lshl_b32 s14, s14, 3"); e("s_add_u32 s14, s14, s11")
    poll([f"buffer_load_dwordx4 v[80:83], v5, {sr(WS)}, s10 offen sc1",
          f"buffer_load_dwordx4 v[84:87], v5, {sr(WS)}, s10 offen offset:16 sc1",
          f"buffer_load_dwordx4 v[88:91], v7, {sr(WS)}, s11 offen sc1",
          f"buffer_load_dwordx2 v[92:93], v6, {sr(WS)}, s14 offen sc1"],
         [81, 83, 85, 87, 89, 91, 93], 94)
    e("v_max_f32 v116, v88, v90")
    cross16("v_max_f32", 116, 97); cross32("v_max_f32", 116, 97)
    e("v_sub_f32 v92, v92, v116"); e("v_exp_f32 v92, v92"); e("s_nop 0")
    for i, src in enumerate((80, 82, 84, 86)):
        e(f"v_lshlrev_b32 v98, 16, v{src}"); e(f"v_and_b32 v99, 0xffff0000, v{src}")
        e("v_mul_f32 v98, v98, v92"); e("v_mul_f32 v99, v99, v92")
        e(f"v_cvt_pk_bf16_f32 v{100+i}, v98, v99")
    e(f"v_lshlrev_b32 v5, 4, {LANE}"); e(f"s_lshl_b32 s9, {WAVE}, 10"); e(f"s_add_u32 s9, s9, {YL_PF}")
    e("v_add_u32 v5, s9, v5")
    e("ds_write_b128 v5, v[100:103]")
    stamp("y: P gathered")
    barrier()
    e(f"s_cmp_ge_u32 {WAVE}, 7"); e("s_cbranch_scc1 Y_P3D")
    e(f"v_lshlrev_b32 v5, 4, {LANE}"); e(f"v_add_u32 v5, {YL_PF}, v5")
    e(f"s_cmp_eq_u32 {WAVE}, 6"); e("s_cbranch_scc1 Y_ONES")
    for half in range(2):
        for k in range(8): e(f"ds_read_b128 {vr(80+4*k,4)}, v5 offset:{1024*(8*half+k)}")
        for k in range(8):
            ks = 8 * half + k
            e(f"s_waitcnt lgkmcnt({7-k})")
            mfma(112, 16 + 4 * ks, 80 + 4 * k, "0" if ks == 0 else None)
    e(f"v_mul_u32_u24 v5, 24576, {L15}"); e(f"v_lshl_add_u32 v5, {G}, 4, v5")
    e(f"s_mul_i32 s9, {HH}, 393216"); e(f"s_mul_i32 s10, {X}, 3072"); e("s_add_u32 s9, s9, s10")
    e(f"s_mul_i32 s10, {KC}, 384"); e("s_add_u32 s9, s9, s10")
    e(f"s_lshl_b32 s10, {WAVE}, 6"); e("s_add_u32 s9, s9, s10"); e(f"s_add_u32 s9, s9, {WS_E3}")
    e("s_nop 4")
    e("v_cvt_pk_bf16_f32 v80, v112, v113"); e(f"v_mov_b32 v81, {VTAG}")
    e("v_cvt_pk_bf16_f32 v82, v114, v115"); e(f"v_mov_b32 v83, {VTAG}")
    e(f"buffer_store_dwordx4 v[80:83], v5, {sr(WS)}, s9 offen{SCG}")
    e("s_branch Y_P3D")
    lab("Y_ONES")
    e(f"s_cmp_lg_u32 {KC}, 0"); e("s_cbranch_scc1 Y_P3D")
    for i in range(4): e(f"v_mov_b32 v{16+i}, 0x3f803f80")
    for half in range(2):
        for k in range(8): e(f"ds_read_b128 {vr(80+4*k,4)}, v5 offset:{1024*(8*half+k)}")
        for k in range(8):
            ks = 8 * half + k
            e(f"s_waitcnt lgkmcnt({7-k})")
            mfma(112, 16, 80 + 4 * k, "0" if ks == 0 else None)
    e(f"v_lshlrev_b32 v5, 7, {L15}")
    e(f"s_lshl_b32 s9, {HH}, 11"); e(f"s_lshl_b32 s10, {X}, 4"); e("s_add_u32 s9, s9, s10")
    e(f"s_add_u32 s9, s9, {WS_ML}")
    e("s_nop 4")
    e("v_mov_b32 v80, v116"); e(f"v_mov_b32 v81, {VTAG}"); e("v_mov_b32 v82, v112"); e(f"v_mov_b32 v83, {VTAG}")
    e("s_mov_b64 exec, 0xffff")
    e(f"buffer_store_dwordx4 v[80:83], v5, {sr(WS)}, s9 offen{SCG}")
    exec_all()
    lab("Y_P3D")
    stamp("y: ctxlat published")
    e(f"s_cmp_ge_u32 {J}, 12"); e("s_cbranch_scc1 Y_END")
    e(f"s_mul_i32 s66, {X}, 12"); e(f"s_add_u32 s66, s66, {J}")
    srd(SA, P_WG, 1966080); srd(SB, P_WU, 1966080); srd(SC_, P_WD, 1966080); srd(SD, P_X, 1280)
    e(f"s_cmp_ge_u32 {WAVE}, 10"); e("s_cbranch_scc1 Y_MD")
    dma_pattern(15, 1, 3072, None, 40, 41)
    e(f"s_lshl_b32 s11, {WAVE}, 6"); e("s_mul_i32 s11, s11, 3072"); e("s_lshl_b32 s10, s66, 5"); e("s_add_u32 s11, s11, s10")
    e("s_mov_b32 s14, s11")
    e(f"s_lshl_b32 s10, {WAVE}, 11"); e(f"s_add_u32 s10, s10, {YL_MG}")
    dma_loop(15, SA, 10, 11, 2, 1024, 32 * 3072, 0)
    e(f"s_lshl_b32 s10, {WAVE}, 11"); e(f"s_add_u32 s10, s10, {YL_MU}")
    dma_loop(15, SB, 10, 14, 2, 1024, 32 * 3072, 0)
    lab("Y_MD")
    e(f"s_cmp_lt_u32 {WAVE}, 10"); e("s_cbranch_scc1 Y_MW")
    e(f"s_cmp_ge_u32 {WAVE}, 15"); e("s_cbranch_scc1 Y_MW")
    e(f"v_bfe_u32 v5, {LANE}, 1, 2"); e("v_mul_u32_u24 v5, 1280, v5")
    e(f"v_lshrrev_b32 v6, 3, {LANE}"); e("v_lshl_add_u32 v5, v6, 5, v5")
    e(f"v_and_b32 v6, 1, {LANE}"); e("v_lshl_add_u32 v15, v6, 4, v5")
    e(f"s_sub_u32 s9, {WAVE}, 10")
    e("s_lshl_b32 s11, s66, 4"); e("s_mul_i32 s11, s11, 1280"); e("s_lshl_b32 s10, s9, 8"); e("s_add_u32 s11, s11, s10")
    e("s_lshl_b32 s10, s9, 10"); e(f"s_add_u32 s10, s10, {YL_MD}")
    dma_loop(15, SC_, 10, 11, 4, 5 * 1024, 4 * 1280, OPT["ynt"])
    lab("Y_MW")
    e(f"v_lshlrev_b32 v5, 2, {LANE}"); e(f"s_lshl_b32 s9, {WAVE}, 8")
    e(f"s_cmp_ge_u32 {WAVE}, 5"); e("s_cbranch_scc1 Y_NX")
    e(f"buffer_load_dword v110, v5, {sr(SD)}, s9 offen")
    lab("Y_NX")
    e("s_waitcnt vmcnt(0)")
    stamp("y: mlp landed")
    barrier()
    e(f"s_cmp_ge_u32 {WAVE}, 10"); e("s_cbranch_scc1 Y_MPD")
    e(f"v_lshlrev_b32 v5, 8, {G}"); e(f"v_lshl_add_u32 v5, {L15}, 3, v5")
    e(f"s_lshl_b32 s9, {WAVE}, 11"); e("v_add_u32 v5, s9, v5")
    for ksl in range(2):
        e(f"ds_read_b64_tr_b16 {vr(16+4*ksl,2)}, v5 offset:{YL_MG+ksl*1024}")
        e(f"ds_read_b64_tr_b16 {vr(18+4*ksl,2)}, v5 offset:{YL_MG+ksl*1024+128}")
        e(f"ds_read_b64_tr_b16 {vr(24+4*ksl,2)}, v5 offset:{YL_MU+ksl*1024}")
        e(f"ds_read_b64_tr_b16 {vr(26+4*ksl,2)}, v5 offset:{YL_MU+ksl*1024+128}")
    e(f"v_mul_u32_u24 v5, 5120, {G}"); e(f"v_lshl_add_u32 v5, {L15}, 3, v5")
    e(f"s_lshl_b32 s9, {WAVE}, 9"); e("v_add_u32 v5, s9, v5")
    for a in range(4): e(f"ds_read_b64_tr_b16 {vr(32+2*a,2)}, v5 offset:{YL_MD+128*a}")
    lab("Y_MPD")
    e(f"s_cmp_ge_u32 {WAVE}, 5"); e("s_cbranch_scc1 Y_B6")
    e(f"v_lshlrev_b32 v5, 3, {LANE}")
    e(f"s_lshl_b32 s9, {WAVE}, 9"); e(f"s_add_u32 s9, s9, {WS_E5}")
    e("s_add_u32 s10, s9, 5120"); e("s_add_u32 s11, s9, 10240"); e("s_add_u32 s14, s9, 15360")
    sos = ["s9", "s10", "s11", "s14"]
    poll([f"buffer_load_dwordx2 {vr(80+2*xp,2)}, v5, {sr(WS)}, {sos[xp//2]} offen offset:{2560*(xp%2)} sc1" for xp in range(8)],
         [81 + 2 * xp for xp in range(8)], 96)
    e("v_lshlrev_b32 v100, 16, v110"); e("v_and_b32 v101, 0xffff0000, v110")
    for xp in range(8):
        e(f"v_lshlrev_b32 v98, 16, v{80+2*xp}"); e(f"v_and_b32 v99, 0xffff0000, v{80+2*xp}")
        e("v_add_f32 v100, v100, v98"); e("v_add_f32 v101, v101, v99")
    e(f"s_lshl_b32 s9, {WAVE}, 9"); e(f"s_add_u32 s9, s9, {YL_H}"); e("v_add_u32 v5, s9, v5")
    e("ds_write_b64 v5, v[100:101]")
    e("v_add_f32 v102, v100, v101")
    e("v_mul_f32 v103, v100, v100"); e("v_fmac_f32 v103, v101, v101")
    e("s_nop 1")
    row16_allreduce("v_add_f32", 102, 2)
    e("s_nop 1")
    for i in range(2): cross16("v_add_f32", 102 + i, 104); cross32("v_add_f32", 102 + i, 104)
    e(f"s_lshl_b32 s9, {WAVE}, 3"); e(f"s_add_u32 s9, s9, {YL_ST}"); e("v_mov_b32 v5, s9")
    e("s_mov_b64 exec, 1")
    e("ds_write_b64 v5, v[102:103]")
    exec_all()
    lab("Y_B6")
    stamp("y: h gathered")
    barrier()
    e(f"s_cmp_ge_u32 {WAVE}, 10"); e("s_cbranch_scc1 Y_B7")
    e(f"v_mov_b32 v5, {YL_ST}")
    e("ds_read_b128 v[80:83], v5"); e("ds_read_b128 v[84:87], v5 offset:16"); e("ds_read_b64 v[88:89], v5 offset:32")
    e(f"v_lshlrev_b32 v6, 5, {G}"); e(f"s_lshl_b32 s9, {WAVE}, 8"); e(f"s_add_u32 s9, s9, {YL_H}"); e("v_add_u32 v6, s9, v6")
    for ksl in range(2):
        e(f"ds_read_b128 {vr(92+8*ksl,4)}, v6 offset:{128*ksl}")
        e(f"ds_read_b128 {vr(96+8*ksl,4)}, v6 offset:{128*ksl+16}")
    e("s_waitcnt lgkmcnt(4)")
    for a, b in ((82, 83), (84, 85), (86, 87), (88, 89)):
        e(f"v_add_f32 v80, v80, v{a}"); e(f"v_add_f32 v81, v81, v{b}")
    e(f"v_mul_f32 v80, {F(1.0/640.0)}, v80")
    e(f"v_mul_f32 v81, {F(1.0/640.0)}, v81")
    e("v_fma_f32 v81, -v80, v80, v81")
    e("v_max_f32 v81, 0, v81")
    e(f"v_add_f32 v81, {F(1e-5)}, v81")
    e("v_rsq_f32 v81, v81"); e("s_nop 0")
    e("v_mul_f32 v80, v80, v81");
    e("s_waitcnt lgkmcnt(0)")
    for i in range(16): e(f"v_fma_f32 v{92+i}, v{92+i}, v81, -v80")
    for ksl in range(2):
        for i in range(4): e(f"v_cvt_pk_bf16_f32 v{108+4*ksl+i}, v{92+8*ksl+2*i}, v{93+8*ksl+2*i}")
    e("s_nop 1")
    mfma(80, 108, 16, "0"); mfma(84, 108, 24, "0"); mfma(80, 112, 20); mfma(84, 112, 28)
    e(f"v_lshlrev_b32 v5, 2, {L15}"); e(f"s_lshl_b32 s9, {WAVE}, 7"); e(f"s_add_u32 s9, s9, {YL_G}"); e("v_add_u32 v5, s9, v5")
    e("s_nop 5")
    e("s_mov_b64 exec, 0xffff")
    e("ds_write_b32 v5, v80"); e("ds_write_b32 v5, v84 offset:64")
    exec_all()
    lab("Y_B7")
    barrier()
    e(f"s_cmp_lg_u32 {WAVE}, 0"); e("s_cbranch_scc1 Y_B8")
    e(f"v_lshlrev_b32 v5, 7, {G}"); e(f"v_lshl_add_u32 v5, {L15}, 2, v5"); e(f"v_add_u32 v5, {YL_G}, v5")
    e("ds_read_b32 v80, v5"); e("ds_read_b32 v81, v5 offset:64")
    e("ds_read_b32 v82, v5 offset:512"); e("ds_read_b32 v83, v5 offset:576")
    e("ds_read_b32 v84, v5 offset:1024"); e("ds_read_b32 v85, v5 offset:1088")
    e(f"v_cmp_gt_u32 vcc, 2, {G}")
    e("s_nop 1")
    e("s_waitcnt lgkmcnt(0)")
    e("v_cndmask_b32 v84, 0, v84, vcc"); e("v_cndmask_b32 v85, 0, v85, vcc")
    e("v_add_f32 v80, v80, v82"); e("v_add_f32 v81, v81, v83")
    e("v_add_f32 v80, v80, v84"); e("v_add_f32 v81, v81, v85")
    for i in range(2): cross16("v_add_f32", 80 + i, 86); cross32("v_add_f32", 80 + i, 86)
    e(f"v_mul_f32 v80, {F(-math.log2(math.e))}, v80"); e("v_exp_f32 v80, v80"); e("s_nop 0")
    e("v_add_f32 v80, 1.0, v80"); e("v_rcp_f32 v80, v80"); e("s_nop 0")
    e("v_mul_f32 v80, v80, v81")
    e("v_cvt_pk_bf16_f32 v80, v80, v80")
    e(f"v_lshlrev_b32 v5, 1, {L15}"); e(f"v_add_u32 v5, {YL_HH}, v5")
    e("s_mov_b64 exec, 0xffff")
    e("ds_write_b16 v5, v80")
    exec_all()
    lab("Y_B8")
    barrier()
    e(f"s_cmp_ge_u32 {WAVE}, 10"); e("s_cbranch_scc1 Y_END")
    e(f"v_lshlrev_b32 v5, 3, {G}"); e(f"v_add_u32 v5, {YL_HH}, v5")
    e("ds_read_b64 v[80:81], v5")
    e("s_waitcnt lgkmcnt(0)")
    for a in range(4):
        e(f"v_mfma_f32_16x16x16_bf16 {vr(84+4*a,4)}, v[80:81], {vr(32+2*a,2)}, 0")
    e(f"v_lshlrev_b32 v5, 3, {LANE}")
    e("s_mul_i32 s9, s66, 5120"); e(f"s_lshl_b32 s10, {WAVE}, 9"); e("s_add_u32 s9, s9, s10"); e(f"s_add_u32 s9, s9, {WS_E6}")
    e(f"v_cmp_eq_u32 vcc, 1, {G}"); e(f"v_cmp_eq_u32 s[10:11], 2, {G}"); e(f"v_cmp_eq_u32 s[14:15], 3, {G}")
    e("s_nop 7")
    e("v_cndmask_b32 v84, v84, v88, vcc"); e("v_cndmask_b32 v84, v84, v92, s[10:11]"); e("v_cndmask_b32 v84, v84, v96, s[14:15]")
    e(f"v_mov_b32 v85, {VTAG}")
    e(f"buffer_store_dwordx2 v[84:85], v5, {sr(WS)}, s9 offen{SCG}")
    lab("Y_END")
    stamp("y: end")
    stamp_flush(nstamp[0])
    e("s_endpgm")

hdr = f"""; Kernarg layout (104 bytes): d_in[0..9], d_out, d_debug, d_ws
; @launch grid=(256,1,1) block=(1024,1,1) lds=163840
.amdgcn_target "amdgcn-amd-amdhsa--gfx950"
.text
.globl {NAME}_kernel
.p2align 8
.type {NAME}_kernel,@function
{NAME}_kernel:
"""
prologue()
x_program()
y_program()
lab("L_END")
e("s_endpgm")
ftr = f""".section .rodata,"a"
.p2align 6
.amdhsa_kernel {NAME}_kernel
  .amdhsa_next_free_vgpr 128
  .amdhsa_next_free_sgpr 102
  .amdhsa_accum_offset 128
  .amdhsa_group_segment_fixed_size 0
  .amdhsa_kernarg_size 104
  .amdhsa_user_sgpr_count 2
  .amdhsa_user_sgpr_kernarg_segment_ptr 1
  .amdhsa_system_sgpr_workgroup_id_x 1
.end_amdhsa_kernel
"""
open(sys.argv[1], "w").write(hdr + "\n".join(L) + "\n" + ftr)
```

```python
import sys, math, struct
def F(x): return "0x%08x" % struct.unpack("<I", struct.pack("<f", x))[0]
NAME = "sequential_preLN__compressed_kv_cla__glu_gated_glu__decode"

OPT = dict(stamps=0, ynt=1, xnt=1, spin=1 << 16, cpv_early=1, prefetch_code=1)
for a in sys.argv[2:]:
    k, v = a.split("="); OPT[k] = int(v)

L = []
def e(s): L.append("    " + s)
def lab(s): L.append(s + ":")
def cm(s): L.append("    ; " + s)
_uid = [0]
def uid(p):
    _uid[0] += 1
    return f"{p}_{_uid[0]}"

WS_EPOCH = 0
WS_E1 = 0x10000
WS_QA = 0x40000
WS_PS = 0x60000
WS_MT = 0xE0000
WS_E3 = 0x100000
WS_ML = 0x1C0000
WS_E4 = 0x1D0000
WS_E5 = 0x1F0000
WS_E6 = 0x200000
WS_ST = 0x300000
WS_SIZE = 0x400000

WAVE, X, J, TAG, H, R = "s3", "s4", "s5", "s6", "s7", "s8"
HH, KC = "s7", "s8"
P_X, P_CKV, P_WQ, P_WUK, P_WUV, P_WO, P_WG, P_WU, P_WD, P_OUT, P_WS = 16, 18, 20, 22, 24, 26, 30, 32, 34, 36, 40
WS, SA, SB, SC_, SD = 44, 48, 52, 56, 60
def sr(b, n=4): return f"s[{b}:{b+n-1}]"
def vr(b, n): return f"v[{b}:{b+n-1}]" if n > 1 else f"v{b}"
STAMP0 = 72
LANE, G, L15, VTAG = "v1", "v2", "v3", "v4"

def srd(b, ptr, size):
    e(f"s_mov_b32 s{b}, s{ptr}")
    e(f"s_mov_b32 s{b+1}, s{ptr+1}")
    e(f"s_mov_b32 s{b+2}, {size}")
    e(f"s_mov_b32 s{b+3}, 0x00020000")

nstamp = [0]
def stamp(name, grp=1):
    if not (OPT["stamps"] & grp): return
    i = nstamp[0]; nstamp[0] += 1
    cm(f"stamp {i}: {name}")
    sk = uid("STK")
    e(f"s_cmp_lg_u32 {WAVE}, {OPT.get('stampwave',0)}"); e(f"s_cbranch_scc1 {sk}")
    if i == 0:
        e("s_memrealtime s[98:99]")
    e(f"s_memtime s[{STAMP0+2*i}:{STAMP0+2*i+1}]")
    e("s_waitcnt lgkmcnt(0)")
    lab(sk)
def stamp_val(name, sreg, grp=1):
    if not (OPT["stamps"] & grp): return
    i = nstamp[0]; nstamp[0] += 1
    cm(f"stamp {i}: VALUE {name}")
    e(f"s_mov_b32 s{STAMP0+2*i}, {sreg}"); e(f"s_mov_b32 s{STAMP0+2*i+1}, 0x7fffffff")
def stamp_flush(n):
    if not OPT["stamps"]: return
    skip = uid("STF")
    e(f"s_cmp_lg_u32 {WAVE}, {OPT.get('stampwave',0)}"); e(f"s_cbranch_scc1 {skip}")
    e("s_mov_b64 exec, 1")
    e("s_lshl_b32 s9, s2, 8"); e(f"s_add_u32 s9, s9, {WS_ST}")
    e("v_mov_b32 v5, 0")
    for i in range(n):
        e(f"v_mov_b32 v6, s{STAMP0+2*i}"); e(f"v_mov_b32 v7, s{STAMP0+2*i+1}")
        e(f"buffer_store_dwordx2 v[6:7], v5, {sr(WS)}, s9 offen offset:{8*i}")
        e("s_nop 1")
    e("v_mov_b32 v6, s98"); e("v_mov_b32 v7, s99")
    e(f"buffer_store_dwordx2 v[6:7], v5, {sr(WS)}, s9 offen offset:248")
    e("s_mov_b64 exec, -1")
    lab(skip)

def barrier():
    e("s_waitcnt lgkmcnt(0)")
    e("s_barrier")

def divmagic(T):
    return {12: (43, 9), 6: (43, 8), 3: (86, 8), 1: (1, 0)}[T]

def dma_pattern(vd, T, S, sp, t0, t1):
    M, sh = divmagic(T)
    e(f"v_lshrrev_b32 v{t0}, 3, {LANE}")
    if sp is not None:
        e(f"s_lshl_b32 s9, {sp}, 3")
        e(f"v_add_u32 v{t0}, s9, v{t0}")
    if T == 1:
        e(f"v_mov_b32 v{t1}, v{t0}")
        e(f"v_mov_b32 v{t0}, 0")
    else:
        e(f"v_mul_u32_u24 v{t1}, {M}, v{t0}")
        e(f"v_lshrrev_b32 v{t1}, {sh}, v{t1}")
        e(f"v_mul_u32_u24 v{vd}, {T}, v{t1}")
        e(f"v_sub_u32 v{t0}, v{t0}, v{vd}")
    e(f"v_lshlrev_b32 v{t1}, 2, v{t1}")
    e(f"v_bfe_u32 v{vd}, {LANE}, 1, 2")
    e(f"v_add_u32 v{t1}, v{t1}, v{vd}")
    e(f"s_mov_b32 s9, {S}")
    e(f"v_mul_lo_u32 v{t1}, v{t1}, s9")
    e(f"v_lshlrev_b32 v{t0}, 5, v{t0}")
    e(f"v_and_b32 v{vd}, 1, {LANE}")
    e(f"v_lshlrev_b32 v{vd}, 4, v{vd}")
    e(f"v_add3_u32 v{vd}, v{vd}, v{t0}, v{t1}")

def dma_loop(vd, srdb, s_m0, s_off, n, step_m, step_s, nt):
    lp = uid("DMA")
    e(f"s_mov_b32 s12, {n}")
    lab(lp)
    e(f"s_mov_b32 m0, s{s_m0}")
    e(f"s_add_u32 s{s_m0}, s{s_m0}, {step_m}")
    e(f"buffer_load_dwordx4 v{vd}, {sr(srdb)}, s{s_off} offen{' nt' if nt else ''} lds")
    e(f"s_add_u32 s{s_off}, s{s_off}, {step_s}")
    e("s_sub_u32 s12, s12, 1")
    e("s_cmp_lg_u32 s12, 0")
    e(f"s_cbranch_scc1 {lp}")

def row16_allreduce(op, v, nregs=1):
    for sh in (8, 4, 2, 1):
        if nregs < 3: e("s_nop 1")
        for i in range(nregs):
            e(f"{op}_dpp v{v+i}, v{v+i}, v{v+i} row_ror:{sh} row_mask:0xf bank_mask:0xf")
def cross16(op, v, t):
    e(f"v_mov_b32 v{t}, v{v}"); e("s_nop 1")
    e(f"v_permlane16_swap_b32 v{v}, v{t}"); e("s_nop 1")
    e(f"{op} v{v}, v{v}, v{t}")
def cross32(op, v, t):
    e(f"v_mov_b32 v{t}, v{v}"); e("s_nop 1")
    e(f"v_permlane32_swap_b32 v{v}, v{t}"); e("s_nop 1")
    e(f"{op} v{v}, v{v}, v{t}")
def wave_allreduce(op, v, t):
    e("s_nop 1")
    row16_allreduce(op, v)
    e("s_nop 1")
    cross16(op, v, t)
    cross32(op, v, t)

def poll(loads, tagregs, vt):
    lp = uid("POLL"); dn = uid("PDONE")
    e("s_mov_b32 s13, 0")
    lab(lp)
    for s in loads: e(s)
    e("s_waitcnt vmcnt(0)")
    first = True
    tr = list(tagregs)
    while tr:
        a = tr.pop(0)
        e(f"v_xor_b32 v{vt+1}, {TAG}, v{a}")
        if tr:
            b = tr.pop(0)
            e(f"v_xor_b32 v{vt+2}, {TAG}, v{b}")
            if first: e(f"v_or_b32 v{vt}, v{vt+1}, v{vt+2}")
            else: e(f"v_or3_b32 v{vt}, v{vt+1}, v{vt+2}, v{vt}")
        else:
            if first: e(f"v_mov_b32 v{vt}, v{vt+1}")
            else: e(f"v_or_b32 v{vt}, v{vt+1}, v{vt}")
        first = False
    e(f"v_cmp_ne_u32 vcc, 0, v{vt}")
    e("s_add_u32 s13, s13, 1")
    e("s_cmp_eq_u64 vcc, 0")
    e(f"s_cbranch_scc1 {dn}")
    if OPT.get("psleep", 0): e(f"s_sleep {OPT['psleep']}")
    e(f"s_cmp_lt_u32 s13, {OPT['spin']}")
    e(f"s_cbranch_scc1 {lp}")
    lab(dn)

def mfma(d, a, b, c=None):
    cs = vr(d, 4) if c is None else c
    e(f"v_mfma_f32_16x16x32_bf16 {vr(d,4)}, {vr(a,4)}, {vr(b,4)}, {cs}")

SCG = " sc1"
EXEC_L15_0 = 0x0001000100010001

def set_exec64(val):
    lo, hi = val & 0xffffffff, val >> 32
    e(f"s_mov_b32 exec_lo, {lo:#x}"); e(f"s_mov_b32 exec_hi, {hi:#x}")
def exec_all(): e("s_mov_b64 exec, -1")

def prologue():
    e("s_cmp_ge_u32 s2, 256")
    e("s_cbranch_scc1 L_END")
    e("s_load_dwordx16 s[16:31], s[0:1], 0")
    e("s_load_dwordx8 s[32:39], s[0:1], 64")
    e("s_load_dwordx2 s[40:41], s[0:1], 96")
    e(f"v_lshrrev_b32 v5, 6, v0")
    e(f"v_and_b32 {LANE}, 63, v0")
    e(f"v_readfirstlane_b32 {WAVE}, v5")
    e(f"v_lshrrev_b32 {G}, 4, {LANE}")
    e(f"v_and_b32 {L15}, 15, {LANE}")
    e(f"s_and_b32 {X}, s2, 7")
    e(f"s_lshr_b32 {J}, s2, 3")
    e(f"s_mul_i32 s64, {WAVE}, 11"); e("s_lshr_b32 s64, s64, 5")
    e("s_mul_i32 s65, s64, 3"); e(f"s_sub_u32 s65, {WAVE}, s65")
    e("s_waitcnt lgkmcnt(0)")
    e(f"s_load_dword {TAG}, s[{P_WS}:{P_WS+1}], 0")
    srd(WS, P_WS, WS_SIZE)
    e(f"s_cmp_ge_u32 {J}, 16")
    e("s_cbranch_scc1 L_Y")

def get_tag():
    e("s_waitcnt lgkmcnt(0)")
    e(f"s_mul_i32 {TAG}, {TAG}, 1664525")
    e(f"s_add_u32 {TAG}, {TAG}, 1013904223")
    e(f"v_mov_b32 {VTAG}, {TAG}")

XL_U, XL_O, XL_S = 0, 73728, 147456
XL_XN = XL_S
XL_Q = XL_S + 1280
XL_F = XL_S + 2048
XL_W = XL_S + 8192
XL_R = XL_S + 8448
XL_H = XL_S + 11008
XL_R2 = XL_S + 11264

def x_program():
    lab("L_X")
    e(f"s_lshr_b32 s9, {J}, 2"); e(f"s_lshl_b32 {H}, {X}, 2"); e(f"s_add_u32 {H}, {H}, s9")
    e(f"s_and_b32 {R}, {J}, 3")
    stamp("x: start", 3|4)
    srd(SA, P_WQ, 7864320); srd(SB, P_WUK, 9437184); srd(SC_, P_X, 1280)
    e(f"s_cmp_eq_u32 {WAVE}, 15"); e("s_cbranch_scc1 X_LN")
    dma_pattern(16, 12, 12288, "s65", 17, 18)
    e("v_mov_b32 v15, v16")
    e(f"s_mul_i32 s10, {R}, 160"); e("s_lshl_b32 s11, s64, 3"); e("s_add_u32 s10, s10, s11")
    e("s_mul_i32 s11, s10, 12288"); e(f"s_mul_i32 s10, {H}, 384"); e("s_add_u32 s11, s11, s10")
    e(f"s_lshl_b32 s10, {WAVE}, 10")
    dma_loop(15, SA, 10, 11, 4, 15 * 1024, 40 * 12288, OPT["xnt"])
    e(f"s_cmp_ge_u32 {WAVE}, 12"); e("s_cbranch_scc1 X_W1")
    e("s_mov_b32 s9, 12288")
    e(f"v_mul_lo_u32 v14, {L15}, s9"); e(f"v_lshl_add_u32 v14, {G}, 4, v14")
    e(f"s_mul_i32 s66, {R}, 192"); e(f"s_lshl_b32 s10, {WAVE}, 4"); e("s_add_u32 s66, s66, s10")
    e("s_mul_i32 s66, s66, 12288"); e(f"s_mul_i32 s10, {H}, 384"); e("s_add_u32 s66, s66, s10")
    nt = " nt" if OPT["xnt"] else ""
    for ks in range(3):
        e(f"buffer_load_dwordx4 {vr(16+4*ks,4)}, v14, {sr(SB)}, s66 offen offset:{64*ks}{nt}")
    e("s_waitcnt vmcnt(3)")
    e("s_branch X_B1")
    lab("X_W1")
    e("s_waitcnt vmcnt(0)")
    e("s_branch X_B1")
    lab("X_LN")
    e(f"v_lshlrev_b32 v5, 2, {LANE}")
    for i in range(5):
        e(f"buffer_load_dword v{16+i}, v5, {sr(SC_)}, 0 offen offset:{256*i}")
    e("s_waitcnt vmcnt(0)")
    for i in range(5):
        e(f"v_lshlrev_b32 v{21+2*i}, 16, v{16+i}")
        e(f"v_and_b32 v{22+2*i}, 0xffff0000, v{16+i}")
    e("v_add_f32 v31, v21, v22")
    for i in range(23, 31): e(f"v_add_f32 v31, v31, v{i}")
    wave_allreduce("v_add_f32", 31, 32)
    e(f"v_mul_f32 v31, {F(1.0/640.0)}, v31")
    for i in range(21, 31): e(f"v_sub_f32 v{i}, v{i}, v31")
    e("v_mul_f32 v33, v21, v21")
    for i in range(22, 31): e(f"v_fmac_f32 v33, v{i}, v{i}")
    wave_allreduce("v_add_f32", 33, 32)
    e(f"v_mov_b32 v32, {F(1e-5)}")
    e(f"v_fmac_f32 v32, {F(1.0/640.0)}, v33")
    e("v_rsq_f32 v32, v32"); e("s_nop 0")
    for i in range(21, 31): e(f"v_mul_f32 v{i}, v{i}, v32")
    for i in range(5): e(f"v_cvt_pk_bf16_f32 v{16+i}, v{21+2*i}, v{22+2*i}")
    e(f"v_add_u32 v5, {XL_XN}, v5")
    for i in range(5): e(f"ds_write_b32 v5, v{16+i} offset:{256*i}")
    lab("X_B1")
    get_tag()
    stamp("x: wq landed")
    barrier()
    e(f"s_cmp_ge_u32 {WAVE}, 12"); e("s_cbranch_scc1 X_B2")
    e(f"v_mul_u32_u24 v5, 3072, {G}"); e(f"v_lshl_add_u32 v5, {L15}, 3, v5")
    e(f"s_lshl_b32 s9, {WAVE}, 7"); e("v_add_u32 v13, s9, v5")
    e(f"s_mul_i32 s9, {R}, 320"); e(f"s_add_u32 s9, s9, {XL_XN}")
    e(f"v_lshl_add_u32 v6, {G}, 4, s9")
    for ks in range(5):
        e(f"ds_read_b128 {vr(64+4*ks,4)}, v6 offset:{64*ks}")
        e(f"ds_read_b64_tr_b16 {vr(40+4*ks,2)}, v13 offset:{XL_U+ks*12288}")
        e(f"ds_read_b64_tr_b16 {vr(42+4*ks,2)}, v13 offset:{XL_U+ks*12288+1536}")
    for ks in range(5):
        e(f"s_waitcnt lgkmcnt({3*(4-ks)})")
        mfma(88, 64 + 4 * ks, 40 + 4 * ks, "0" if ks == 0 else None)
    e(f"s_lshl_b32 s9, {H}, 2"); e(f"s_add_u32 s9, s9, {R}"); e("s_mul_i32 s9, s9, 1536")
    e(f"s_lshl_b32 s10, {WAVE}, 7"); e("s_add_u32 s9, s9, s10"); e(f"s_add_u32 s9, s9, {WS_E1}")
    e(f"v_lshlrev_b32 v5, 3, {L15}")
    e("s_nop 4")
    e(f"v_mov_b32 v89, {VTAG}")
    e("s_mov_b64 exec, 0xffff")
    e(f"buffer_store_dwordx2 v[88:89], v5, {sr(WS)}, s9 offen{SCG}")
    exec_all()
    for ks in range(3, 6):
        e(f"buffer_load_dwordx4 {vr(16+4*ks,4)}, v14, {sr(SB)}, s66 offen offset:{64*ks}{nt}")
    lab("X_B2")
    stamp("x: q published")
    barrier()
    e(f"s_cmp_lt_u32 {WAVE}, 12"); e("s_cbranch_scc1 X_B3")
    e(f"s_cmp_ge_u32 {WAVE}, 14"); e("s_cbranch_scc1 X_B3")
    e(f"s_sub_u32 s9, {WAVE}, 12"); e("s_lshl_b32 s9, s9, 6"); e(f"v_add_u32 v5, s9, {LANE}")
    e("v_cmp_gt_u32 vcc, 96, v5"); e("s_and_saveexec_b64 s[14:15], vcc")
    e("v_lshlrev_b32 v6, 4, v5")
    e(f"s_mul_i32 s9, {H}, 6144"); e(f"s_add_u32 s9, s9, {WS_E1}")
    e("s_add_u32 s10, s9, 3072")
    poll([f"buffer_load_dwordx4 v[92:95], v6, {sr(WS)}, s9 offen sc1",
          f"buffer_load_dwordx4 v[96:99], v6, {sr(WS)}, s9 offen offset:1536 sc1",
          f"buffer_load_dwordx4 v[100:103], v6, {sr(WS)}, s10 offen sc1",
          f"buffer_load_dwordx4 v[104:107], v6, {sr(WS)}, s10 offen offset:1536 sc1"],
         [93, 95, 97, 99, 101, 103, 105, 107], 108)
    e("v_add_f32 v92, v92, v96"); e("v_add_f32 v94, v94, v98")
    e("v_add_f32 v100, v100, v104"); e("v_add_f32 v102, v102, v106")
    e("v_add_f32 v92, v92, v100"); e("v_add_f32 v94, v94, v102")
    qs = 192 ** -0.5 * math.log2(math.e)
    e(f"v_mul_f32 v92, {F(qs)}, v92"); e(f"v_mul_f32 v94, {F(qs)}, v94")
    e("v_cvt_pk_bf16_f32 v92, v92, v94")
    e("v_lshlrev_b32 v6, 2, v5"); e(f"v_add_u32 v6, {XL_Q}, v6")
    e("ds_write_b32 v6, v92")
    e("s_mov_b64 exec, s[14:15]")
    lab("X_B3")
    barrier()
    stamp("x: q gathered")
    e(f"s_cmp_ge_u32 {WAVE}, 12"); e("s_cbranch_scc1 X_P2D")
    e(f"v_lshlrev_b32 v6, 4, {G}"); e(f"v_add_u32 v6, {XL_Q}, v6")
    for ks in range(6): e(f"ds_read_b128 {vr(64+4*ks,4)}, v6 offset:{64*ks}")
    e("s_waitcnt vmcnt(0)")
    for ks in range(6):
        e(f"s_waitcnt lgkmcnt({5-ks})")
        mfma(88, 16 + 4 * ks, 64 + 4 * ks, "0" if ks == 0 else None)
    e(f"s_mul_i32 s9, {H}, 3072"); e(f"s_mul_i32 s10, {R}, 768"); e("s_add_u32 s9, s9, s10")
    e(f"s_lshl_b32 s10, {WAVE}, 6"); e("s_add_u32 s9, s9, s10"); e(f"s_add_u32 s9, s9, {WS_QA}")
    e(f"v_lshlrev_b32 v5, 4, {G}")
    e("s_nop 4")
    e("v_cvt_pk_bf16_f32 v92, v88, v89"); e(f"v_mov_b32 v93, {VTAG}")
    e("v_cvt_pk_bf16_f32 v94, v90, v91"); e(f"v_mov_b32 v95, {VTAG}")
    set_exec64(EXEC_L15_0)
    e(f"buffer_store_dwordx4 v[92:95], v5, {sr(WS)}, s9 offen{SCG}")
    exec_all()
    lab("X_P2D")
    stamp("x: qabs published", 5)
    if OPT["stamps"] & 4:
        e("s_waitcnt vmcnt(0)"); stamp("x: qabs store complete", 4)
    if OPT.get("xstop", 0) == 1:
        e("s_waitcnt vmcnt(0)"); barrier(); stamp("x: all waves done"); e("s_branch X_END")
    srd(SA, P_WUV, 9437184); srd(SB, P_WO, 7864320)
    e(f"s_cmp_ge_u32 {WAVE}, 12"); e("s_cbranch_scc1 X_B4")
    e(f"s_mul_i32 s10, {R}, 192"); e("s_lshl_b32 s11, s64, 3"); e("s_add_u32 s10, s10, s11")
    e("s_mul_i32 s11, s10, 12288"); e(f"s_mul_i32 s10, {H}, 384"); e("s_add_u32 s11, s11, s10")
    e(f"s_lshl_b32 s10, {WAVE}, 10"); e(f"s_add_u32 s10, s10, {XL_U}")
    dma_loop(15, SA, 10, 11, 6, 12 * 1024, 32 * 12288, OPT["xnt"])
    dma_pattern(12, 3, 1280, "s65", 17, 18)
    e(f"s_mul_i32 s10, {X}, 768"); e("s_lshl_b32 s11, s64, 5"); e("s_add_u32 s10, s10, s11")
    e("s_mul_i32 s11, s10, 1280"); e(f"s_mul_i32 s10, {J}, 80"); e("s_add_u32 s11, s11, s10")
    e(f"s_lshl_b32 s10, {WAVE}, 10"); e(f"s_add_u32 s10, s10, {XL_O}")
    dma_loop(12, SB, 10, 11, 6, 12 * 1024, 128 * 1280, 0)
    lab("X_B4")
    e("s_waitcnt vmcnt(0)")
    stamp("x: burst2 landed")
    barrier()
    e(f"s_cmp_ge_u32 {WAVE}, 12"); e("s_cbranch_scc1 X_PRD")
    for ks in range(6):
        e(f"ds_read_b64_tr_b16 {vr(40+4*ks,2)}, v13 offset:{XL_U+ks*12288}")
        e(f"ds_read_b64_tr_b16 {vr(42+4*ks,2)}, v13 offset:{XL_U+ks*12288+1536}")
    e("s_waitcnt lgkmcnt(0)")
    e(f"v_mul_u32_u24 v5, 768, {G}"); e(f"v_lshl_add_u32 v5, {L15}, 3, v5")
    e(f"s_mul_i32 s9, {WAVE}, 6144"); e(f"s_add_u32 s9, s9, {XL_O}"); e("v_add_u32 v5, s9, v5")
    for ksl in range(2):
        for t in range(3):
            b = 64 + (ksl * 3 + t) * 4
            e(f"ds_read_b64_tr_b16 {vr(b,2)}, v5 offset:{ksl*3072+t*128}")
            e(f"ds_read_b64_tr_b16 {vr(b+2,2)}, v5 offset:{ksl*3072+384+t*128}")
    lab("X_PRD")
    e(f"s_cmp_ge_u32 {WAVE}, 7"); e("s_cbranch_scc1 X_B5")
    e(f"s_cmp_eq_u32 {WAVE}, 6"); e("s_cbranch_scc1 X_ML")
    e(f"v_and_b32 v5, 7, {LANE}"); e("v_mul_u32_u24 v5, 3072, v5"); e(f"v_lshl_add_u32 v5, {G}, 5, v5")
    e(f"s_mul_i32 s9, {H}, 24576"); e(f"s_mul_i32 s10, {R}, 768"); e("s_add_u32 s9, s9, s10")
    e(f"s_lshl_b32 s10, {WAVE}, 7"); e("s_add_u32 s9, s9, s10"); e(f"s_add_u32 s9, s9, {WS_E3}")
    poll([f"buffer_load_dwordx4 v[92:95], v5, {sr(WS)}, s9 offen sc1",
          f"buffer_load_dwordx4 v[96:99], v5, {sr(WS)}, s9 offen offset:16 sc1"], [93, 95, 97, 99], 108)
    e("v_mov_b32 v93, v94"); e("v_mov_b32 v94, v96"); e("v_mov_b32 v95, v98")
    e(f"v_lshlrev_b32 v5, 4, {LANE}"); e(f"s_lshl_b32 s9, {WAVE}, 10"); e(f"s_add_u32 s9, s9, {XL_F}")
    e("v_add_u32 v5, s9, v5")
    e("ds_write_b128 v5, v[92:95]")
    e("s_branch X_B5")
    lab("X_ML")
    e(f"v_and_b32 v5, 7, {LANE}"); e("v_lshlrev_b32 v5, 4, v5")
    e(f"s_lshl_b32 s9, {H}, 7"); e(f"s_add_u32 s9, s9, {WS_ML}")
    poll([f"buffer_load_dwordx4 v[92:95], v5, {sr(WS)}, s9 offen sc1"], [93, 95], 108)
    e("v_mov_b32 v96, v92")
    for pat in ("quad_perm:[1,0,3,2]", "quad_perm:[2,3,0,1]", "row_half_mirror"):
        e("s_nop 1")
        e(f"v_max_f32_dpp v96, v96, v96 {pat} row_mask:0xf bank_mask:0xf")
    e("v_sub_f32 v92, v92, v96"); e("v_exp_f32 v92, v92"); e("s_nop 0")
    e("v_mul_f32 v94, v92, v94")
    for pat in ("quad_perm:[1,0,3,2]", "quad_perm:[2,3,0,1]", "row_half_mirror"):
        e("s_nop 1")
        e(f"v_add_f32_dpp v94, v94, v94 {pat} row_mask:0xf bank_mask:0xf")
    e("v_rcp_f32 v94, v94"); e("s_nop 0")
    e("v_mul_f32 v92, v92, v94")
    e(f"v_cmp_gt_u32 vcc, 8, {L15}"); e("s_nop 1")
    e("v_cndmask_b32 v92, 0, v92, vcc")
    e(f"v_lshlrev_b32 v5, 2, {L15}"); e(f"v_add_u32 v5, {XL_W}, v5")
    e("s_mov_b64 exec, 0xffff")
    e("ds_write_b32 v5, v92")
    exec_all()
    lab("X_B5")
    barrier()
    stamp("x: E3 gathered")
    e(f"s_cmp_ge_u32 {WAVE}, 12"); e("s_cbranch_scc1 X_B6")
    e(f"v_lshlrev_b32 v5, 4, {LANE}"); e(f"v_add_u32 v5, {XL_F}, v5")
    e(f"v_lshlrev_b32 v6, 2, {L15}"); e(f"v_add_u32 v6, {XL_W}, v6")
    for ks in range(6): e(f"ds_read_b128 {vr(92+4*ks,4)}, v5 offset:{1024*ks}")
    e("ds_read_b32 v116, v6")
    for ks in range(6):
        e(f"s_waitcnt lgkmcnt({6-ks})")
        mfma(88, 40 + 4 * ks, 92 + 4 * ks, "0" if ks == 0 else None)
    e(f"s_lshl_b32 s9, {X}, 2"); e(f"s_add_u32 s9, s9, {R}"); e("s_mul_i32 s9, s9, 3072")
    e(f"s_and_b32 s10, {H}, 3"); e("s_mul_i32 s10, s10, 768"); e("s_add_u32 s9, s9, s10")
    e(f"s_lshl_b32 s10, {WAVE}, 6"); e("s_add_u32 s9, s9, s10"); e(f"s_add_u32 s9, s9, {WS_E4}")
    e(f"v_lshlrev_b32 v5, 4, {G}")
    e("s_waitcnt lgkmcnt(0)")
    e("s_nop 4")
    for i in range(4): e(f"v_mul_f32 v{88+i}, v{88+i}, v116")
    row16_allreduce("v_add_f32", 88, 4)
    e("v_cvt_pk_bf16_f32 v92, v88, v89"); e(f"v_mov_b32 v93, {VTAG}")
    e("v_cvt_pk_bf16_f32 v94, v90, v91"); e(f"v_mov_b32 v95, {VTAG}")
    set_exec64(EXEC_L15_0)
    e(f"buffer_store_dwordx4 v[92:95], v5, {sr(WS)}, s9 offen{SCG}")
    exec_all()
    stamp("x: ctx published")
    e(f"v_and_b32 v5, 3, {LANE}"); e("v_mul_u32_u24 v5, 3072, v5"); e(f"v_lshl_add_u32 v5, {G}, 5, v5")
    e(f"s_mul_i32 s9, {X}, 12288"); e(f"s_lshl_b32 s10, {WAVE}, 8"); e("s_add_u32 s9, s9, s10")
    e(f"s_add_u32 s9, s9, {WS_E4}")
    poll([f"buffer_load_dwordx4 v[92:95], v5, {sr(WS)}, s9 offen sc1",
          f"buffer_load_dwordx4 v[96:99], v5, {sr(WS)}, s9 offen offset:16 sc1",
          f"buffer_load_dwordx4 v[100:103], v5, {sr(WS)}, s9 offen offset:128 sc1",
          f"buffer_load_dwordx4 v[104:107], v5, {sr(WS)}, s9 offen offset:144 sc1"],
         [93, 95, 97, 99, 101, 103, 105, 107], 108)
    e("v_mov_b32 v93, v94"); e("v_mov_b32 v94, v96"); e("v_mov_b32 v95, v98")
    e("v_mov_b32 v101, v102"); e("v_mov_b32 v102, v104"); e("v_mov_b32 v103, v106")
    e("s_nop 1")
    for t in range(3): mfma(108 + 4 * t, 64 + 4 * t, 92, "0")
    for t in range(3): mfma(108 + 4 * t, 64 + 12 + 4 * t, 100)
    e(f"v_lshlrev_b32 v5, 4, {G}"); e(f"s_mul_i32 s9, {WAVE}, 192"); e(f"s_add_u32 s9, s9, {XL_R}")
    e("v_add_u32 v5, s9, v5")
    e("s_nop 7")
    for pat in ("quad_perm:[1,0,3,2]", "quad_perm:[2,3,0,1]"):
        for i in range(12):
            e(f"v_add_f32_dpp v{108+i}, v{108+i}, v{108+i} {pat} row_mask:0xf bank_mask:0xf")
    set_exec64(EXEC_L15_0)
    for t in range(3): e(f"ds_write_b128 v5, {vr(108+4*t,4)} offset:{64*t}")
    exec_all()
    lab("X_B6")
    barrier()
    e(f"s_cmp_lg_u32 {WAVE}, 0"); e("s_cbranch_scc1 X_P5D")
    e(f"v_lshlrev_b32 v5, 3, {LANE}"); e(f"v_add_u32 v6, {XL_R}, v5")
    e("s_mov_b64 exec, 0xfffff")
    for w in range(12): e(f"ds_read_b64 {vr(92+2*w,2)}, v6 offset:{192*w}")
    e("s_waitcnt lgkmcnt(0)")
    for w in range(1, 12):
        e(f"v_add_f32 v92, v92, v{92+2*w}"); e(f"v_add_f32 v93, v93, v{93+2*w}")
    e("v_cvt_pk_bf16_f32 v92, v92, v93"); e(f"v_mov_b32 v93, {VTAG}")
    e(f"s_mul_i32 s9, {X}, 2560"); e(f"s_mul_i32 s10, {J}, 160"); e("s_add_u32 s9, s9, s10")
    e(f"s_add_u32 s9, s9, {WS_E5}")
    e(f"buffer_store_dwordx2 v[92:93], v5, {sr(WS)}, s9 offen{SCG}")
    exec_all()
    lab("X_P5D")
    stamp("x: attn partial published")
    e(f"s_cmp_ge_u32 {J}, 5"); e("s_cbranch_scc1 X_END")
    e(f"s_mul_i32 s66, {X}, 5"); e(f"s_add_u32 s66, s66, {J}")
    e(f"s_cmp_ge_u32 {WAVE}, 13"); e("s_cbranch_scc1 X_B7")
    e(f"s_cmp_eq_u32 {WAVE}, 12"); e("s_cbranch_scc1 X_FH")
    e(f"v_lshrrev_b32 v5, 3, {LANE}"); e("v_mul_u32_u24 v5, 5120, v5")
    e(f"v_and_b32 v6, 7, {LANE}"); e("v_lshl_add_u32 v5, v6, 4, v5")
    e(f"s_mul_i32 s9, {WAVE}, 40960"); e("s_lshl_b32 s10, s66, 7"); e("s_add_u32 s9, s9, s10")
    e(f"s_add_u32 s9, s9, {WS_E6}")
    poll([f"buffer_load_dwordx4 v[92:95], v5, {sr(WS)}, s9 offen sc1"], [93, 95], 108)
    e("v_mov_b32 v93, v94")
    e("s_nop 1")
    for i in range(2):
        e(f"v_add_f32_dpp v{92+i}, v{92+i}, v{92+i} row_ror:8 row_mask:0xf bank_mask:0xf")
    for i in range(2):
        cross16("v_add_f32", 92 + i, 96); cross32("v_add_f32", 92 + i, 96)
    e("v_lshlrev_b32 v6, 3, v6"); e(f"s_lshl_b32 s9, {WAVE}, 6"); e(f"s_add_u32 s9, s9, {XL_R2}")
    e("v_add_u32 v6, s9, v6")
    e("s_mov_b64 exec, 0xff")
    e("ds_write_b64 v6, v[92:93]")
    exec_all()
    e("s_branch X_B7")
    lab("X_FH")
    e(f"v_bfe_u32 v5, {LANE}, 2, 3"); e("v_mul_u32_u24 v5, 2560, v5")
    e(f"v_and_b32 v6, 3, {LANE}"); e("v_lshl_add_u32 v5, v6, 4, v5")
    e("s_lshl_b32 s9, s66, 6"); e(f"s_add_u32 s9, s9, {WS_E5}")
    e("v_lshlrev_b32 v7, 3, v6"); e("s_lshl_b32 s10, s66, 5")
    e(f"buffer_load_dwordx2 v[104:105], v7, {sr(SC_)}, s10 offen")
    poll([f"buffer_load_dwordx4 v[92:95], v5, {sr(WS)}, s9 offen sc1"], [93, 95], 108)
    e("v_lshlrev_b32 v96, 16, v92"); e("v_and_b32 v97, 0xffff0000, v92")
    e("v_lshlrev_b32 v98, 16, v94"); e("v_and_b32 v99, 0xffff0000, v94")
    e("s_nop 1")
    for sh in (4, 8):
        for i in range(4):
            e(f"v_add_f32_dpp v{96+i}, v{96+i}, v{96+i} row_ror:{sh} row_mask:0xf bank_mask:0xf")
    for i in range(4): cross16("v_add_f32", 96 + i, 100)
    e("v_lshlrev_b32 v100, 16, v104"); e("v_and_b32 v101, 0xffff0000, v104")
    e("v_lshlrev_b32 v102, 16, v105"); e("v_and_b32 v103, 0xffff0000, v105")
    for i in range(4): e(f"v_add_f32 v{96+i}, v{96+i}, v{100+i}")
    e("v_lshlrev_b32 v6, 4, v6"); e(f"v_add_u32 v6, {XL_H}, v6")
    e("s_mov_b64 exec, 0xf")
    e("ds_write_b128 v6, v[96:99]")
    exec_all()
    lab("X_B7")
    barrier()
    e(f"s_cmp_lg_u32 {WAVE}, 0"); e("s_cbranch_scc1 X_END")
    e(f"v_lshlrev_b32 v5, 3, {LANE}"); e(f"v_add_u32 v6, {XL_R2}, v5"); e(f"v_add_u32 v7, {XL_H}, v5")
    e("s_mov_b64 exec, 0xff")
    for w in range(12): e(f"ds_read_b64 {vr(92+2*w,2)}, v6 offset:{64*w}")
    e("ds_read_b64 v[116:117], v7")
    e("s_waitcnt lgkmcnt(0)")
    for w in range(1, 12):
        e(f"v_add_f32 v92, v92, v{92+2*w}"); e(f"v_add_f32 v93, v93, v{93+2*w}")
    e("v_add_f32 v92, v92, v116"); e("v_add_f32 v93, v93, v117")
    e("v_cvt_pk_bf16_f32 v92, v92, v93")
    srd(SD, P_OUT, 1280)
    e(f"v_lshlrev_b32 v5, 2, {LANE}"); e("s_lshl_b32 s9, s66, 5")
    e(f"buffer_store_dword v92, v5, {sr(SD)}, s9 offen")
    e("s_cmp_lg_u32 s66, 0"); e("s_cbranch_scc1 X_EP")
    e("s_mov_b64 exec, 1")
    e("v_mov_b32 v5, 0")
    e(f"buffer_store_dword {VTAG}, v5, {sr(WS)}, 0 offen sc1")
    lab("X_EP")
    exec_all()
    lab("X_END")
    stamp("x: end")
    stamp_flush(nstamp[0])
    e("s_endpgm")

YL_CPV = 0
YL_QA = 98304
YL_SP = 123136
YL_PF = 140544
YL_S = 156928
YL_H = YL_S
YL_ST = YL_S + 2560
YL_G = YL_S + 2688
YL_HH = YL_S + 4096
YL_MG, YL_MU, YL_MD = 0, 20480, 40960

def y_program():
    nstamp[0] = 0
    lab("L_Y")
    e(f"s_sub_u32 {J}, {J}, 16")
    e(f"s_and_b32 {HH}, {J}, 1"); e(f"s_lshr_b32 {KC}, {J}, 1")
    stamp("y: start", 3|4)
    if OPT.get("ystop", 0) == 1: e("s_branch Y_END")
    srd(SA, P_CKV, 6291456)
    ynt = " nt" if OPT["ynt"] else ""
    if OPT["prefetch_code"]:
        e(f"s_cmp_lg_u32 {WAVE}, 15"); e("s_cbranch_scc1 Y_NPF")
        e("s_getpc_b64 s[10:11]")
        lab("Y_PC")
        e(f"s_sub_u32 s10, s10, Y_PC-{NAME}_kernel"); e("s_subb_u32 s11, s11, 0")
        e(f"s_lshl_b32 s9, {J}, 10")
        e(f"v_lshl_add_u32 v5, {LANE}, 4, s9")
        e(f"s_mov_b32 s9, L_END-{NAME}_kernel-16")
        e("v_min_u32 v5, s9, v5")
        e("global_load_dwordx4 v[120:123], v5, s[10:11]")
        lab("Y_NPF")
    e(f"s_and_b32 s67, {WAVE}, 3"); e(f"s_lshr_b32 s68, {WAVE}, 2")
    e(f"v_mul_u32_u24 v5, 1536, {L15}"); e(f"v_lshl_add_u32 v5, {G}, 4, v5")
    e(f"s_lshl_b32 s9, {X}, 9"); e(f"s_lshl_b32 s10, {KC}, 6"); e("s_add_u32 s9, s9, s10")
    e("s_lshl_b32 s10, s67, 4"); e("s_add_u32 s9, s9, s10"); e("s_mul_i32 s9, s9, 1536")
    e("s_mul_i32 s10, s68, 384"); e("s_add_u32 s9, s9, s10")
    for ks in range(6):
        e(f"buffer_load_dwordx4 {vr(16+4*ks,4)}, v5, {sr(SA)}, s9 offen offset:{64*ks}{ynt}")
    def cpv_dma():
        sk = uid("YCPV")
        e(f"s_cmp_ge_u32 {WAVE}, 12"); e(f"s_cbranch_scc1 {sk}")
        dma_pattern(15, 6, 1536, "s65", 40, 41)
        e(f"s_lshl_b32 s10, {X}, 9"); e("s_lshl_b32 s11, s64, 4"); e("s_add_u32 s10, s10, s11")
        e("s_mul_i32 s11, s10, 1536"); e(f"s_mul_i32 s10, {KC}, 192"); e("s_add_u32 s11, s11, s10")
        e(f"s_lshl_b32 s10, {WAVE}, 10"); e(f"s_add_u32 s10, s10, {YL_CPV}")
        dma_loop(15, SA, 10, 11, 8, 12 * 1024, 64 * 1536, OPT["ynt"])
        lab(sk)
    if OPT["cpv_early"]: cpv_dma()
    for n in range(3):
        e(f"v_add_u32 v{6+n}, {1024*n}, v0")
        e(f"s_mov_b32 s9, 43691")
        e(f"v_mul_lo_u32 v{9+n}, v{6+n}, s9"); e(f"v_lshrrev_b32 v{9+n}, 23, v{9+n}")
        e(f"v_mul_u32_u24 v12, 192, v{9+n}"); e(f"v_sub_u32 v12, v{6+n}, v12")
        e(f"v_mul_u32_u24 v{9+n}, 1552, v{9+n}"); e(f"v_lshl_add_u32 v{9+n}, v12, 3, v{9+n}")
        e(f"v_add_u32 v{9+n}, {YL_QA}, v{9+n}")
        e(f"v_lshlrev_b32 v{6+n}, 4, v{6+n}")
    get_tag()
    e("s_waitcnt vmcnt(0)")
    stamp("y: burst1 landed")
    if OPT.get("ystop", 0) == 2:
        barrier(); stamp("y: all landed"); e("s_branch Y_END")
    e(f"s_mul_i32 s9, {HH}, 49152"); e(f"s_add_u32 s9, s9, {WS_QA}")
    stamp("y: E2 poll start", 4)
    poll([f"buffer_load_dwordx4 {vr(68+4*n,4)}, v{6+n}, {sr(WS)}, s9 offen sc1" for n in range(3)],
         [69, 71, 73, 75, 77, 79], 80)
    stamp("y: E2 poll end", 4); stamp_val("E2 iters", "s13", 4)
    for n in range(3):
        e(f"v_mov_b32 v{69+4*n}, v{70+4*n}")
        e(f"ds_write_b64 v{9+n}, {vr(68+4*n,2)}")
    if not OPT["cpv_early"]: cpv_dma()
    stamp("y: qabs gathered", 3)
    barrier()
    stamp("y: after B1", 2)
    e(f"v_mul_u32_u24 v5, 1552, {L15}"); e(f"v_lshl_add_u32 v5, {G}, 4, v5")
    e(f"s_mul_i32 s9, s68, 384"); e(f"s_add_u32 s9, s9, {YL_QA}"); e("v_add_u32 v5, s9, v5")
    for ks in range(6): e(f"ds_read_b128 {vr(40+4*ks,4)}, v5 offset:{64*ks}")
    for ks in range(6):
        e(f"s_waitcnt lgkmcnt({5-ks})")
        mfma(64, 16 + 4 * ks, 40 + 4 * ks, "0" if ks == 0 else None)
    e(f"v_mul_u32_u24 v5, 272, {G}"); e(f"v_lshl_add_u32 v5, {L15}, 4, v5")
    e(f"s_mul_i32 s9, {WAVE}, 1088"); e(f"s_add_u32 s9, s9, {YL_SP}"); e("v_add_u32 v5, s9, v5")
    e("s_nop 5")
    stamp("y: mfma done", 2)
    e("ds_write_b128 v5, v[64:67]")
    barrier()
    stamp("y: after B2", 2)
    e(f"v_mul_u32_u24 v5, 1088, {G}")
    e(f"v_bfe_u32 v6, {LANE}, 2, 2"); e("v_mul_u32_u24 v6, 272, v6")
    e(f"v_and_b32 v7, 3, {LANE}"); e("v_lshlrev_b32 v7, 2, v7")
    e("v_add3_u32 v5, v5, v6, v7")
    e(f"s_lshl_b32 s9, {WAVE}, 4"); e(f"s_add_u32 s9, s9, {YL_SP}"); e("v_add_u32 v5, s9, v5")
    for q in range(4): e(f"ds_read_b32 v{64+q}, v5 offset:{4352*q}")
    e(f"s_lshl_b32 s9, {X}, 1"); e(f"s_add_u32 s9, s9, {HH}")
    e(f"s_lshl_b32 s10, s9, 15"); e(f"s_lshl_b32 s11, {KC}, 12"); e("s_add_u32 s10, s10, s11")
    e(f"s_lshl_b32 s11, {WAVE}, 7"); e("s_add_u32 s10, s10, s11"); e(f"s_add_u32 s10, s10, {WS_PS}")
    e(f"v_lshrrev_b32 v6, 5, {LANE}"); e("v_lshlrev_b32 v6, 11, v6")
    e(f"v_and_b32 v7, 31, {LANE}"); e("v_lshl_add_u32 v6, v7, 2, v6")
    e(f"s_lshl_b32 s11, s9, 10"); e(f"s_lshl_b32 s14, {WAVE}, 6"); e("s_add_u32 s11, s11, s14")
    e(f"s_lshl_b32 s14, {KC}, 3"); e("s_add_u32 s11, s11, s14"); e(f"s_add_u32 s11, s11, {WS_MT}")
    e("s_waitcnt lgkmcnt(0)")
    e("v_add_f32 v64, v64, v65"); e("v_add_f32 v66, v66, v67"); e("v_add_f32 v64, v64, v66")
    stamp("y: S read", 2)
    e("v_mov_b32 v68, v64")
    wave_allreduce("v_max_f32", 68, 69)
    stamp("y: max done", 2)
    e("v_sub_f32 v64, v64, v68"); e("v_exp_f32 v64, v64"); e("s_nop 1")
    e("v_mov_b32_dpp v65, v64 quad_perm:[1,1,3,3] row_mask:0xf bank_mask:0xf")
    e("v_cvt_pk_bf16_f32 v64, v64, v65"); e(f"v_mov_b32 v65, {VTAG}")
    e(f"v_mov_b32 v69, {VTAG}")
    set_exec64(0x5555555555555555)
    e(f"buffer_store_dwordx2 v[64:65], v6, {sr(WS)}, s10 offen{SCG}")
    e("s_mov_b64 exec, 1")
    e("v_mov_b32 v7, 0")
    e(f"buffer_store_dwordx2 v[68:69], v7, {sr(WS)}, s11 offen{SCG}")
    exec_all()
    stamp("y: P published", 7)
    if OPT["stamps"] & 4:
        e("s_waitcnt vmcnt(0)"); stamp("y: P store complete", 4)
    e("s_waitcnt vmcnt(0)")
    stamp("y: stores done", 2)
    barrier()
    stamp("y: after B3", 2)
    e(f"s_cmp_ge_u32 {WAVE}, 6"); e("s_cbranch_scc1 Y_PRD")
    e(f"v_mul_u32_u24 v5, 1536, {G}"); e(f"v_lshl_add_u32 v5, {L15}, 3, v5")
    e(f"s_lshl_b32 s9, {WAVE}, 7"); e("v_add_u32 v5, s9, v5"); e(f"v_add_u32 v6, 49152, v5")
    for ks in range(16):
        base = "v5" if ks < 8 else "v6"
        o = YL_CPV + (ks % 8) * 6144
        e(f"ds_read_b64_tr_b16 {vr(16+4*ks,2)}, {base} offset:{o}")
        e(f"ds_read_b64_tr_b16 {vr(18+4*ks,2)}, {base} offset:{o+768}")
        if ks % 4 == 3: e("s_waitcnt lgkmcnt(0)")
    lab("Y_PRD")
    stamp("y: preread done", 2)
    e(f"v_lshlrev_b32 v5, 7, {L15}"); e(f"v_lshl_add_u32 v5, {G}, 5, v5")
    e(f"v_lshlrev_b32 v6, 6, {L15}"); e(f"v_lshl_add_u32 v7, {G}, 4, v6")
    e(f"s_lshl_b32 s9, {X}, 1"); e(f"s_add_u32 s9, s9, {HH}")
    e(f"s_lshl_b32 s10, s9, 15"); e(f"s_lshl_b32 s11, {WAVE}, 11"); e("s_add_u32 s10, s10, s11")
    e(f"s_add_u32 s10, s10, {WS_PS}")
    e(f"s_lshl_b32 s11, s9, 10"); e(f"s_add_u32 s11, s11, {WS_MT}")
    e(f"s_lshr_b32 s14, {WAVE}, 1"); e("s_lshl_b32 s14, s14, 3"); e("s_add_u32 s14, s14, s11")
    stamp("y: ES poll start", 4)
    poll([f"buffer_load_dwordx4 v[80:83], v5, {sr(WS)}, s10 offen sc1",
          f"buffer_load_dwordx4 v[84:87], v5, {sr(WS)}, s10 offen offset:16 sc1",
          f"buffer_load_dwordx4 v[88:91], v7, {sr(WS)}, s11 offen sc1",
          f"buffer_load_dwordx2 v[92:93], v6, {sr(WS)}, s14 offen sc1"],
         [81, 83, 85, 87, 89, 91, 93], 94)
    stamp("y: ES poll end", 4); stamp_val("ES iters", "s13", 4)
    e("v_max_f32 v116, v88, v90")
    cross16("v_max_f32", 116, 97); cross32("v_max_f32", 116, 97)
    e("v_sub_f32 v92, v92, v116"); e("v_exp_f32 v92, v92"); e("s_nop 0")
    for i, src in enumerate((80, 82, 84, 86)):
        e(f"v_lshlrev_b32 v98, 16, v{src}"); e(f"v_and_b32 v99, 0xffff0000, v{src}")
        e("v_mul_f32 v98, v98, v92"); e("v_mul_f32 v99, v99, v92")
        e(f"v_cvt_pk_bf16_f32 v{100+i}, v98, v99")
    e(f"v_lshlrev_b32 v5, 4, {LANE}"); e(f"s_lshl_b32 s9, {WAVE}, 10"); e(f"s_add_u32 s9, s9, {YL_PF}")
    e("v_add_u32 v5, s9, v5")
    e("ds_write_b128 v5, v[100:103]")
    stamp("y: P gathered", 3)
    barrier()
    e(f"s_cmp_ge_u32 {WAVE}, 7"); e("s_cbranch_scc1 Y_P3D")
    e(f"v_lshlrev_b32 v5, 4, {LANE}"); e(f"v_add_u32 v5, {YL_PF}, v5")
    e(f"s_cmp_eq_u32 {WAVE}, 6"); e("s_cbranch_scc1 Y_ONES")
    for half in range(2):
        for k in range(8): e(f"ds_read_b128 {vr(80+4*k,4)}, v5 offset:{1024*(8*half+k)}")
        for k in range(8):
            ks = 8 * half + k
            e(f"s_waitcnt lgkmcnt({7-k})")
            mfma(112, 16 + 4 * ks, 80 + 4 * k, "0" if ks == 0 else None)
    e(f"v_mul_u32_u24 v5, 24576, {L15}"); e(f"v_lshl_add_u32 v5, {G}, 4, v5")
    e(f"s_mul_i32 s9, {HH}, 393216"); e(f"s_mul_i32 s10, {X}, 3072"); e("s_add_u32 s9, s9, s10")
    e(f"s_mul_i32 s10, {KC}, 384"); e("s_add_u32 s9, s9, s10")
    e(f"s_lshl_b32 s10, {WAVE}, 6"); e("s_add_u32 s9, s9, s10"); e(f"s_add_u32 s9, s9, {WS_E3}")
    e("s_nop 4")
    e("v_cvt_pk_bf16_f32 v80, v112, v113"); e(f"v_mov_b32 v81, {VTAG}")
    e("v_cvt_pk_bf16_f32 v82, v114, v115"); e(f"v_mov_b32 v83, {VTAG}")
    e(f"buffer_store_dwordx4 v[80:83], v5, {sr(WS)}, s9 offen{SCG}")
    e("s_branch Y_P3D")
    lab("Y_ONES")
    e(f"s_cmp_lg_u32 {KC}, 0"); e("s_cbranch_scc1 Y_P3D")
    for i in range(4): e(f"v_mov_b32 v{16+i}, 0x3f803f80")
    for half in range(2):
        for k in range(8): e(f"ds_read_b128 {vr(80+4*k,4)}, v5 offset:{1024*(8*half+k)}")
        for k in range(8):
            ks = 8 * half + k
            e(f"s_waitcnt lgkmcnt({7-k})")
            mfma(112, 16, 80 + 4 * k, "0" if ks == 0 else None)
    e(f"v_lshlrev_b32 v5, 7, {L15}")
    e(f"s_lshl_b32 s9, {HH}, 11"); e(f"s_lshl_b32 s10, {X}, 4"); e("s_add_u32 s9, s9, s10")
    e(f"s_add_u32 s9, s9, {WS_ML}")
    e("s_nop 4")
    e("v_mov_b32 v80, v116"); e(f"v_mov_b32 v81, {VTAG}"); e("v_mov_b32 v82, v112"); e(f"v_mov_b32 v83, {VTAG}")
    e("s_mov_b64 exec, 0xffff")
    e(f"buffer_store_dwordx4 v[80:83], v5, {sr(WS)}, s9 offen{SCG}")
    exec_all()
    lab("Y_P3D")
    stamp("y: ctxlat published")
    e(f"s_cmp_ge_u32 {J}, 12"); e("s_cbranch_scc1 Y_END")
    e(f"s_mul_i32 s66, {X}, 12"); e(f"s_add_u32 s66, s66, {J}")
    srd(SA, P_WG, 1966080); srd(SB, P_WU, 1966080); srd(SC_, P_WD, 1966080); srd(SD, P_X, 1280)
    e(f"s_cmp_ge_u32 {WAVE}, 10"); e("s_cbranch_scc1 Y_MD")
    dma_pattern(15, 1, 3072, None, 40, 41)
    e(f"s_lshl_b32 s11, {WAVE}, 6"); e("s_mul_i32 s11, s11, 3072"); e("s_lshl_b32 s10, s66, 5"); e("s_add_u32 s11, s11, s10")
    e("s_mov_b32 s14, s11")
    e(f"s_lshl_b32 s10, {WAVE}, 11"); e(f"s_add_u32 s10, s10, {YL_MG}")
    dma_loop(15, SA, 10, 11, 2, 1024, 32 * 3072, 0)
    e(f"s_lshl_b32 s10, {WAVE}, 11"); e(f"s_add_u32 s10, s10, {YL_MU}")
    dma_loop(15, SB, 10, 14, 2, 1024, 32 * 3072, 0)
    lab("Y_MD")
    e(f"s_cmp_lt_u32 {WAVE}, 10"); e("s_cbranch_scc1 Y_MW")
    e(f"s_cmp_ge_u32 {WAVE}, 15"); e("s_cbranch_scc1 Y_MW")
    e(f"v_bfe_u32 v5, {LANE}, 1, 2"); e("v_mul_u32_u24 v5, 1280, v5")
    e(f"v_lshrrev_b32 v6, 3, {LANE}"); e("v_lshl_add_u32 v5, v6, 5, v5")
    e(f"v_and_b32 v6, 1, {LANE}"); e("v_lshl_add_u32 v15, v6, 4, v5")
    e(f"s_sub_u32 s9, {WAVE}, 10")
    e("s_lshl_b32 s11, s66, 4"); e("s_mul_i32 s11, s11, 1280"); e("s_lshl_b32 s10, s9, 8"); e("s_add_u32 s11, s11, s10")
    e("s_lshl_b32 s10, s9, 10"); e(f"s_add_u32 s10, s10, {YL_MD}")
    dma_loop(15, SC_, 10, 11, 4, 5 * 1024, 4 * 1280, OPT["ynt"])
    lab("Y_MW")
    e(f"v_lshlrev_b32 v5, 2, {LANE}"); e(f"s_lshl_b32 s9, {WAVE}, 8")
    e(f"s_cmp_ge_u32 {WAVE}, 5"); e("s_cbranch_scc1 Y_NX")
    e(f"buffer_load_dword v110, v5, {sr(SD)}, s9 offen")
    lab("Y_NX")
    e("s_waitcnt vmcnt(0)")
    stamp("y: mlp landed")
    barrier()
    e(f"s_cmp_ge_u32 {WAVE}, 10"); e("s_cbranch_scc1 Y_MPD")
    e(f"v_lshlrev_b32 v5, 8, {G}"); e(f"v_lshl_add_u32 v5, {L15}, 3, v5")
    e(f"s_lshl_b32 s9, {WAVE}, 11"); e("v_add_u32 v5, s9, v5")
    for ksl in range(2):
        e(f"ds_read_b64_tr_b16 {vr(16+4*ksl,2)}, v5 offset:{YL_MG+ksl*1024}")
        e(f"ds_read_b64_tr_b16 {vr(18+4*ksl,2)}, v5 offset:{YL_MG+ksl*1024+128}")
        e(f"ds_read_b64_tr_b16 {vr(24+4*ksl,2)}, v5 offset:{YL_MU+ksl*1024}")
        e(f"ds_read_b64_tr_b16 {vr(26+4*ksl,2)}, v5 offset:{YL_MU+ksl*1024+128}")
    e(f"v_mul_u32_u24 v5, 5120, {G}"); e(f"v_lshl_add_u32 v5, {L15}, 3, v5")
    e(f"s_lshl_b32 s9, {WAVE}, 9"); e("v_add_u32 v5, s9, v5")
    for a in range(4): e(f"ds_read_b64_tr_b16 {vr(32+2*a,2)}, v5 offset:{YL_MD+128*a}")
    lab("Y_MPD")
    e(f"s_cmp_ge_u32 {WAVE}, 5"); e("s_cbranch_scc1 Y_B6")
    e(f"v_lshlrev_b32 v5, 3, {LANE}")
    e(f"s_lshl_b32 s9, {WAVE}, 9"); e(f"s_add_u32 s9, s9, {WS_E5}")
    e("s_add_u32 s10, s9, 5120"); e("s_add_u32 s11, s9, 10240"); e("s_add_u32 s14, s9, 15360")
    sos = ["s9", "s10", "s11", "s14"]
    poll([f"buffer_load_dwordx2 {vr(80+2*xp,2)}, v5, {sr(WS)}, {sos[xp//2]} offen offset:{2560*(xp%2)} sc1" for xp in range(8)],
         [81 + 2 * xp for xp in range(8)], 96)
    e("v_lshlrev_b32 v100, 16, v110"); e("v_and_b32 v101, 0xffff0000, v110")
    for xp in range(8):
        e(f"v_lshlrev_b32 v98, 16, v{80+2*xp}"); e(f"v_and_b32 v99, 0xffff0000, v{80+2*xp}")
        e("v_add_f32 v100, v100, v98"); e("v_add_f32 v101, v101, v99")
    e(f"s_lshl_b32 s9, {WAVE}, 9"); e(f"s_add_u32 s9, s9, {YL_H}"); e("v_add_u32 v5, s9, v5")
    e("ds_write_b64 v5, v[100:101]")
    e("v_add_f32 v102, v100, v101")
    e("v_mul_f32 v103, v100, v100"); e("v_fmac_f32 v103, v101, v101")
    e("s_nop 1")
    row16_allreduce("v_add_f32", 102, 2)
    e("s_nop 1")
    for i in range(2): cross16("v_add_f32", 102 + i, 104); cross32("v_add_f32", 102 + i, 104)
    e(f"s_lshl_b32 s9, {WAVE}, 3"); e(f"s_add_u32 s9, s9, {YL_ST}"); e("v_mov_b32 v5, s9")
    e("s_mov_b64 exec, 1")
    e("ds_write_b64 v5, v[102:103]")
    exec_all()
    lab("Y_B6")
    stamp("y: h gathered")
    barrier()
    e(f"s_cmp_ge_u32 {WAVE}, 10"); e("s_cbranch_scc1 Y_B7")
    e(f"v_mov_b32 v5, {YL_ST}")
    e("ds_read_b128 v[80:83], v5"); e("ds_read_b128 v[84:87], v5 offset:16"); e("ds_read_b64 v[88:89], v5 offset:32")
    e(f"v_lshlrev_b32 v6, 5, {G}"); e(f"s_lshl_b32 s9, {WAVE}, 8"); e(f"s_add_u32 s9, s9, {YL_H}"); e("v_add_u32 v6, s9, v6")
    for ksl in range(2):
        e(f"ds_read_b128 {vr(92+8*ksl,4)}, v6 offset:{128*ksl}")
        e(f"ds_read_b128 {vr(96+8*ksl,4)}, v6 offset:{128*ksl+16}")
    e("s_waitcnt lgkmcnt(4)")
    for a, b in ((82, 83), (84, 85), (86, 87), (88, 89)):
        e(f"v_add_f32 v80, v80, v{a}"); e(f"v_add_f32 v81, v81, v{b}")
    e(f"v_mul_f32 v80, {F(1.0/640.0)}, v80")
    e(f"v_mul_f32 v81, {F(1.0/640.0)}, v81")
    e("v_fma_f32 v81, -v80, v80, v81")
    e("v_max_f32 v81, 0, v81")
    e(f"v_add_f32 v81, {F(1e-5)}, v81")
    e("v_rsq_f32 v81, v81"); e("s_nop 0")
    e("v_mul_f32 v80, v80, v81");
    e("s_waitcnt lgkmcnt(0)")
    for i in range(16): e(f"v_fma_f32 v{92+i}, v{92+i}, v81, -v80")
    for ksl in range(2):
        for i in range(4): e(f"v_cvt_pk_bf16_f32 v{108+4*ksl+i}, v{92+8*ksl+2*i}, v{93+8*ksl+2*i}")
    e("s_nop 1")
    mfma(80, 108, 16, "0"); mfma(84, 108, 24, "0"); mfma(80, 112, 20); mfma(84, 112, 28)
    e(f"v_lshlrev_b32 v5, 2, {L15}"); e(f"s_lshl_b32 s9, {WAVE}, 7"); e(f"s_add_u32 s9, s9, {YL_G}"); e("v_add_u32 v5, s9, v5")
    e("s_nop 5")
    e("s_mov_b64 exec, 0xffff")
    e("ds_write_b32 v5, v80"); e("ds_write_b32 v5, v84 offset:64")
    exec_all()
    lab("Y_B7")
    barrier()
    e(f"s_cmp_lg_u32 {WAVE}, 0"); e("s_cbranch_scc1 Y_B8")
    e(f"v_lshlrev_b32 v5, 7, {G}"); e(f"v_lshl_add_u32 v5, {L15}, 2, v5"); e(f"v_add_u32 v5, {YL_G}, v5")
    e("ds_read_b32 v80, v5"); e("ds_read_b32 v81, v5 offset:64")
    e("ds_read_b32 v82, v5 offset:512"); e("ds_read_b32 v83, v5 offset:576")
    e("ds_read_b32 v84, v5 offset:1024"); e("ds_read_b32 v85, v5 offset:1088")
    e(f"v_cmp_gt_u32 vcc, 2, {G}")
    e("s_nop 1")
    e("s_waitcnt lgkmcnt(0)")
    e("v_cndmask_b32 v84, 0, v84, vcc"); e("v_cndmask_b32 v85, 0, v85, vcc")
    e("v_add_f32 v80, v80, v82"); e("v_add_f32 v81, v81, v83")
    e("v_add_f32 v80, v80, v84"); e("v_add_f32 v81, v81, v85")
    for i in range(2): cross16("v_add_f32", 80 + i, 86); cross32("v_add_f32", 80 + i, 86)
    e(f"v_mul_f32 v80, {F(-math.log2(math.e))}, v80"); e("v_exp_f32 v80, v80"); e("s_nop 0")
    e("v_add_f32 v80, 1.0, v80"); e("v_rcp_f32 v80, v80"); e("s_nop 0")
    e("v_mul_f32 v80, v80, v81")
    e("v_cvt_pk_bf16_f32 v80, v80, v80")
    e(f"v_lshlrev_b32 v5, 1, {L15}"); e(f"v_add_u32 v5, {YL_HH}, v5")
    e("s_mov_b64 exec, 0xffff")
    e("ds_write_b16 v5, v80")
    exec_all()
    lab("Y_B8")
    barrier()
    e(f"s_cmp_ge_u32 {WAVE}, 10"); e("s_cbranch_scc1 Y_END")
    e(f"v_lshlrev_b32 v5, 3, {G}"); e(f"v_add_u32 v5, {YL_HH}, v5")
    e("ds_read_b64 v[80:81], v5")
    e("s_waitcnt lgkmcnt(0)")
    for a in range(4):
        e(f"v_mfma_f32_16x16x16_bf16 {vr(84+4*a,4)}, v[80:81], {vr(32+2*a,2)}, 0")
    e(f"v_lshlrev_b32 v5, 3, {LANE}")
    e("s_mul_i32 s9, s66, 5120"); e(f"s_lshl_b32 s10, {WAVE}, 9"); e("s_add_u32 s9, s9, s10"); e(f"s_add_u32 s9, s9, {WS_E6}")
    e(f"v_cmp_eq_u32 vcc, 1, {G}"); e(f"v_cmp_eq_u32 s[10:11], 2, {G}"); e(f"v_cmp_eq_u32 s[14:15], 3, {G}")
    e("s_nop 7")
    e("v_cndmask_b32 v84, v84, v88, vcc"); e("v_cndmask_b32 v84, v84, v92, s[10:11]"); e("v_cndmask_b32 v84, v84, v96, s[14:15]")
    e(f"v_mov_b32 v85, {VTAG}")
    e(f"buffer_store_dwordx2 v[84:85], v5, {sr(WS)}, s9 offen{SCG}")
    lab("Y_END")
    stamp("y: end")
    stamp_flush(nstamp[0])
    e("s_endpgm")

hdr = f"""; Kernarg layout (104 bytes): d_in[0..9], d_out, d_debug, d_ws
; @launch grid=(256,1,1) block=(1024,1,1) lds=163840
.amdgcn_target "amdgcn-amd-amdhsa--gfx950"
.text
.globl {NAME}_kernel
.p2align 8
.type {NAME}_kernel,@function
{NAME}_kernel:
"""
prologue()
x_program()
y_program()
lab("L_END")
e("s_endpgm")
ftr = f""".section .rodata,"a"
.p2align 6
.amdhsa_kernel {NAME}_kernel
  .amdhsa_next_free_vgpr 128
  .amdhsa_next_free_sgpr 102
  .amdhsa_accum_offset 128
  .amdhsa_group_segment_fixed_size 0
  .amdhsa_kernarg_size 104
  .amdhsa_user_sgpr_count 2
  .amdhsa_user_sgpr_kernarg_segment_ptr 1
  .amdhsa_system_sgpr_workgroup_id_x 1
.end_amdhsa_kernel
"""
open(sys.argv[1], "w").write(hdr + "\n".join(L) + "\n" + ftr)
```

```python
import sys, math, struct
def F(x): return "0x%08x" % struct.unpack("<I", struct.pack("<f", x))[0]
NAME = "sequential_preLN__compressed_kv_cla__glu_gated_glu__decode"

OPT = dict(stamps=0, ynt=1, xnt=1, spin=1 << 16, cpv_early=1, prefetch_code=1)
for a in sys.argv[2:]:
    k, v = a.split("="); OPT[k] = int(v)

L = []
def e(s): L.append("    " + s)
def lab(s): L.append(s + ":")
def cm(s): L.append("    ; " + s)
_uid = [0]
def uid(p):
    _uid[0] += 1
    return f"{p}_{_uid[0]}"

WS_EPOCH = 0
WS_E1 = 0x10000
WS_QA = 0x40000
WS_ML = 0x60000
WS_E4 = 0x70000
WS_E5 = 0x90000
WS_E6 = 0x100000
WS_ST = 0x180000
WS_E3 = 0x200000
WS_SIZE = 0x700000

WAVE, X, J, TAG, H, R = "s3", "s4", "s5", "s6", "s7", "s8"
HH, KC = "s7", "s8"
P_X, P_CKV, P_WQ, P_WUK, P_WUV, P_WO, P_WG, P_WU, P_WD, P_OUT, P_WS = 16, 18, 20, 22, 24, 26, 30, 32, 34, 36, 40
WS, SA, SB, SC_, SD = 44, 48, 52, 56, 60
def sr(b, n=4): return f"s[{b}:{b+n-1}]"
def vr(b, n): return f"v[{b}:{b+n-1}]" if n > 1 else f"v{b}"
STAMP0 = 72
LANE, G, L15, VTAG = "v1", "v2", "v3", "v4"

def srd(b, ptr, size):
    e(f"s_mov_b32 s{b}, s{ptr}")
    e(f"s_mov_b32 s{b+1}, s{ptr+1}")
    e(f"s_mov_b32 s{b+2}, {size}")
    e(f"s_mov_b32 s{b+3}, 0x00020000")

nstamp = [0]
def stamp(name, grp=1):
    if not (OPT["stamps"] & grp): return
    i = nstamp[0]; nstamp[0] += 1
    cm(f"stamp {i}: {name}")
    sk = uid("STK")
    e(f"s_cmp_lg_u32 {WAVE}, {OPT.get('stampwave',0)}"); e(f"s_cbranch_scc1 {sk}")
    if i == 0:
        e("s_memrealtime s[98:99]")
    e(f"s_memtime s[{STAMP0+2*i}:{STAMP0+2*i+1}]")
    e("s_waitcnt lgkmcnt(0)")
    lab(sk)
def stamp_val(name, sreg, grp=1):
    if not (OPT["stamps"] & grp): return
    i = nstamp[0]; nstamp[0] += 1
    cm(f"stamp {i}: VALUE {name}")
    e(f"s_mov_b32 s{STAMP0+2*i}, {sreg}"); e(f"s_mov_b32 s{STAMP0+2*i+1}, 0x7fffffff")
def stamp_flush(n):
    if not OPT["stamps"]: return
    skip = uid("STF")
    e(f"s_cmp_lg_u32 {WAVE}, {OPT.get('stampwave',0)}"); e(f"s_cbranch_scc1 {skip}")
    e("s_mov_b64 exec, 1")
    e("s_lshl_b32 s9, s2, 8"); e(f"s_add_u32 s9, s9, {WS_ST}")
    e("v_mov_b32 v5, 0")
    for i in range(n):
        e(f"v_mov_b32 v6, s{STAMP0+2*i}"); e(f"v_mov_b32 v7, s{STAMP0+2*i+1}")
        e(f"buffer_store_dwordx2 v[6:7], v5, {sr(WS)}, s9 offen offset:{8*i}")
        e("s_nop 1")
    e("v_mov_b32 v6, s98"); e("v_mov_b32 v7, s99")
    e(f"buffer_store_dwordx2 v[6:7], v5, {sr(WS)}, s9 offen offset:248")
    e("s_nop 1")
    e("v_mov_b32 v6, s96"); e("v_mov_b32 v7, s97")
    e(f"buffer_store_dwordx2 v[6:7], v5, {sr(WS)}, s9 offen offset:240")
    e("s_memrealtime s[96:97]"); e("s_waitcnt lgkmcnt(0)")
    e("v_mov_b32 v6, s96"); e("v_mov_b32 v7, s97")
    e(f"buffer_store_dwordx2 v[6:7], v5, {sr(WS)}, s9 offen offset:232")
    e("s_mov_b64 exec, -1")
    lab(skip)

def barrier():
    e("s_waitcnt lgkmcnt(0)")
    e("s_barrier")

def divmagic(T):
    return {12: (43, 9), 6: (43, 8), 3: (86, 8), 1: (1, 0)}[T]

def dma_pattern(vd, T, S, sp, t0, t1):
    M, sh = divmagic(T)
    e(f"v_lshrrev_b32 v{t0}, 3, {LANE}")
    if sp is not None:
        e(f"s_lshl_b32 s9, {sp}, 3")
        e(f"v_add_u32 v{t0}, s9, v{t0}")
    if T == 1:
        e(f"v_mov_b32 v{t1}, v{t0}")
        e(f"v_mov_b32 v{t0}, 0")
    else:
        e(f"v_mul_u32_u24 v{t1}, {M}, v{t0}")
        e(f"v_lshrrev_b32 v{t1}, {sh}, v{t1}")
        e(f"v_mul_u32_u24 v{vd}, {T}, v{t1}")
        e(f"v_sub_u32 v{t0}, v{t0}, v{vd}")
    e(f"v_lshlrev_b32 v{t1}, 2, v{t1}")
    e(f"v_bfe_u32 v{vd}, {LANE}, 1, 2")
    e(f"v_add_u32 v{t1}, v{t1}, v{vd}")
    e(f"s_mov_b32 s9, {S}")
    e(f"v_mul_lo_u32 v{t1}, v{t1}, s9")
    e(f"v_lshlrev_b32 v{t0}, 5, v{t0}")
    e(f"v_and_b32 v{vd}, 1, {LANE}")
    e(f"v_lshlrev_b32 v{vd}, 4, v{vd}")
    e(f"v_add3_u32 v{vd}, v{vd}, v{t0}, v{t1}")

def dma_loop(vd, srdb, s_m0, s_off, n, step_m, step_s, nt):
    lp = uid("DMA")
    e(f"s_mov_b32 s12, {n}")
    lab(lp)
    e(f"s_mov_b32 m0, s{s_m0}")
    e(f"s_add_u32 s{s_m0}, s{s_m0}, {step_m}")
    e(f"buffer_load_dwordx4 v{vd}, {sr(srdb)}, s{s_off} offen{' nt' if nt else ''} lds")
    e(f"s_add_u32 s{s_off}, s{s_off}, {step_s}")
    e("s_sub_u32 s12, s12, 1")
    e("s_cmp_lg_u32 s12, 0")
    e(f"s_cbranch_scc1 {lp}")

def row16_allreduce(op, v, nregs=1):
    for sh in (8, 4, 2, 1):
        if nregs < 3: e("s_nop 1")
        for i in range(nregs):
            e(f"{op}_dpp v{v+i}, v{v+i}, v{v+i} row_ror:{sh} row_mask:0xf bank_mask:0xf")
def cross16(op, v, t):
    e(f"v_mov_b32 v{t}, v{v}"); e("s_nop 1")
    e(f"v_permlane16_swap_b32 v{v}, v{t}"); e("s_nop 1")
    e(f"{op} v{v}, v{v}, v{t}")
def cross32(op, v, t):
    e(f"v_mov_b32 v{t}, v{v}"); e("s_nop 1")
    e(f"v_permlane32_swap_b32 v{v}, v{t}"); e("s_nop 1")
    e(f"{op} v{v}, v{v}, v{t}")
def wave_allreduce(op, v, t):
    e("s_nop 1")
    row16_allreduce(op, v)
    e("s_nop 1")
    cross16(op, v, t)
    cross32(op, v, t)

def poll(loads, tagregs, vt):
    lp = uid("POLL"); dn = uid("PDONE")
    e("s_mov_b32 s13, 0")
    lab(lp)
    for s in loads: e(s)
    e("s_waitcnt vmcnt(0)")
    first = True
    tr = list(tagregs)
    while tr:
        a = tr.pop(0)
        e(f"v_xor_b32 v{vt+1}, {TAG}, v{a}")
        if tr:
            b = tr.pop(0)
            e(f"v_xor_b32 v{vt+2}, {TAG}, v{b}")
            if first: e(f"v_or_b32 v{vt}, v{vt+1}, v{vt+2}")
            else: e(f"v_or3_b32 v{vt}, v{vt+1}, v{vt+2}, v{vt}")
        else:
            if first: e(f"v_mov_b32 v{vt}, v{vt+1}")
            else: e(f"v_or_b32 v{vt}, v{vt+1}, v{vt}")
        first = False
    e(f"v_cmp_ne_u32 vcc, 0, v{vt}")
    e("s_add_u32 s13, s13, 1")
    e("s_cmp_eq_u64 vcc, 0")
    e(f"s_cbranch_scc1 {dn}")
    if OPT.get("psleep", 0): e(f"s_sleep {OPT['psleep']}")
    e(f"s_cmp_lt_u32 s13, {OPT['spin']}")
    e(f"s_cbranch_scc1 {lp}")
    lab(dn)

def mfma(d, a, b, c=None):
    cs = vr(d, 4) if c is None else c
    e(f"v_mfma_f32_16x16x32_bf16 {vr(d,4)}, {vr(a,4)}, {vr(b,4)}, {cs}")

SCG = " sc1"
EXEC_L15_0 = 0x0001000100010001

def set_exec64(val):
    lo, hi = val & 0xffffffff, val >> 32
    e(f"s_mov_b32 exec_lo, {lo:#x}"); e(f"s_mov_b32 exec_hi, {hi:#x}")
def exec_all(): e("s_mov_b64 exec, -1")

def prologue():
    if OPT["stamps"] or OPT.get("diagx", 0): e("s_memrealtime s[96:97]")
    e("s_cmp_ge_u32 s2, 256")
    e("s_cbranch_scc1 L_END")
    e("s_load_dwordx16 s[16:31], s[0:1], 0")
    e("s_load_dwordx8 s[32:39], s[0:1], 64")
    e("s_load_dwordx2 s[40:41], s[0:1], 96")
    e(f"v_lshrrev_b32 v5, 6, v0")
    e(f"v_and_b32 {LANE}, 63, v0")
    e(f"v_readfirstlane_b32 {WAVE}, v5")
    e(f"v_lshrrev_b32 {G}, 4, {LANE}")
    e(f"v_and_b32 {L15}, 15, {LANE}")
    e(f"s_and_b32 {X}, s2, 7")
    e(f"s_lshr_b32 {J}, s2, 3")
    e(f"s_mul_i32 s64, {WAVE}, 11"); e("s_lshr_b32 s64, s64, 5")
    e("s_mul_i32 s65, s64, 3"); e(f"s_sub_u32 s65, {WAVE}, s65")
    e(f"s_cmp_ge_u32 {J}, 16")
    e("s_cbranch_scc1 L_Y")

def kernarg_ready():
    e("s_waitcnt lgkmcnt(0)")
    e(f"s_load_dword {TAG}, s[{P_WS}:{P_WS+1}], 0")
    srd(WS, P_WS, WS_SIZE)

def get_tag():
    e("s_waitcnt lgkmcnt(0)")
    e(f"s_mul_i32 {TAG}, {TAG}, 1664525")
    e(f"s_add_u32 {TAG}, {TAG}, 1013904223")
    e(f"v_mov_b32 {VTAG}, {TAG}")

XL_U = 0
XL_UK = 61440
XL_MG, XL_MU, XL_MD = 73728, 94208, 114688
XL_S = 147456
XL_XN = XL_S
XL_Q = XL_S + 1280
XL_CL = XL_S + 2048
XL_CB = XL_S + 14336
XL_W = XL_S + 14848
XL_H = XL_S + 2048
XL_ST = XL_S + 4608
XL_G = XL_S + 4736
XL_HH = XL_S + 6144
XL_R2 = XL_S + 6400

def x_program():
    lab("L_X")
    e(f"s_lshr_b32 s9, {J}, 2"); e(f"s_lshl_b32 {H}, {X}, 2"); e(f"s_add_u32 {H}, {H}, s9")
    e(f"s_and_b32 {R}, {J}, 3")
    dma_pattern(15, 12, 12288, "s65", 17, 18)
    e(f"v_cmp_lt_u32 vcc, 23, {LANE}"); e(f"v_subrev_u32 v6, 24, {LANE}"); e("s_nop 0")
    e(f"v_cndmask_b32 v14, {LANE}, v6, vcc"); e("v_lshlrev_b32 v14, 4, v14")
    e("v_mov_b32 v6, 12288"); e("v_cndmask_b32 v6, 0, v6, vcc"); e("v_add_u32 v14, v14, v6")
    e(f"v_lshlrev_b32 v5, 2, {LANE}")
    e(f"s_mul_i32 s10, {R}, 160"); e("s_lshl_b32 s11, s64, 3"); e("s_add_u32 s10, s10, s11")
    e("s_mul_i32 s11, s10, 12288"); e(f"s_mul_i32 s67, {H}, 384"); e("s_add_u32 s11, s11, s67")
    e(f"s_mul_i32 s66, {R}, 192"); e(f"s_lshl_b32 s10, {WAVE}, 1"); e("s_add_u32 s66, s66, s10")
    e("s_mul_i32 s66, s66, 12288"); e("s_add_u32 s66, s66, s67")
    e(f"s_mul_i32 s68, {WAVE}, 800"); e(f"s_add_u32 s68, s68, {XL_UK}")
    e(f"s_lshl_b32 s10, {WAVE}, 10")
    kernarg_ready()
    srd(SA, P_WQ, 7864320); srd(SB, P_WUK, 9437184); srd(SC_, P_X, 1280)
    stamp("x: start", 31)
    e(f"s_cmp_eq_u32 {WAVE}, 15"); e("s_cbranch_scc1 X_LN")
    dma_loop(15, SA, 10, 11, 4, 15 * 1024, 40 * 12288, OPT["xnt"])
    e("s_barrier")
    e(f"s_cmp_ge_u32 {WAVE}, 12"); e("s_cbranch_scc1 X_W1")
    set_exec64((1<<48)-1)
    dma_loop(14, SB, 68, 66, 8, 12 * 800, 24 * 12288, OPT["xnt"])
    exec_all()
    e("s_waitcnt vmcnt(8)")
    e("s_branch X_B1")
    lab("X_W1")
    e("s_waitcnt vmcnt(0)")
    lab("X_B1")
    get_tag()
    stamp("x: wq landed", 9)
    barrier()
    stamp("x: after B1", 8)
    e(f"s_cmp_ge_u32 {WAVE}, 12"); e("s_cbranch_scc1 X_B3")
    e(f"v_mul_u32_u24 v5, 3072, {G}"); e(f"v_lshl_add_u32 v5, {L15}, 3, v5")
    e(f"s_lshl_b32 s9, {WAVE}, 7"); e("v_add_u32 v13, s9, v5")
    e(f"s_mul_i32 s9, {R}, 320"); e(f"s_add_u32 s9, s9, {XL_XN}")
    e(f"v_lshl_add_u32 v6, {G}, 4, s9")
    for ks in range(5):
        e(f"ds_read_b128 {vr(64+4*ks,4)}, v6 offset:{64*ks}")
        e(f"ds_read_b64_tr_b16 {vr(40+4*ks,2)}, v13 offset:{XL_U+ks*12288}")
        e(f"ds_read_b64_tr_b16 {vr(42+4*ks,2)}, v13 offset:{XL_U+ks*12288+1536}")
    e(f"s_lshl_b32 s9, {H}, 2"); e(f"s_add_u32 s9, s9, {R}"); e("s_mul_i32 s9, s9, 1536")
    e(f"s_lshl_b32 s10, {WAVE}, 7"); e("s_add_u32 s9, s9, s10"); e(f"s_add_u32 s9, s9, {WS_E1}")
    e(f"v_lshlrev_b32 v5, 3, {L15}")
    for ks in range(5):
        e(f"s_waitcnt lgkmcnt({3*(4-ks)})")
        mfma(88, 64 + 4 * ks, 40 + 4 * ks, "0" if ks == 0 else None)
    e("s_nop 7")
    e(f"v_mov_b32 v89, {VTAG}")
    e("s_mov_b64 exec, 0xffff")
    e(f"buffer_store_dwordx2 v[88:89], v5, {sr(WS)}, s9 offen{SCG}")
    exec_all()
    stamp("x: q published", 9)
    e(f"s_cmp_ge_u32 {WAVE}, 2"); e("s_cbranch_scc1 X_B3W")
    e(f"s_lshl_b32 s9, {WAVE}, 6"); e(f"v_add_u32 v5, s9, {LANE}")
    e("v_cmp_gt_u32 vcc, 96, v5"); e("s_and_saveexec_b64 s[14:15], vcc")
    e("v_lshlrev_b32 v6, 4, v5")
    e(f"s_mul_i32 s9, {H}, 6144"); e(f"s_add_u32 s9, s9, {WS_E1}")
    e("s_add_u32 s10, s9, 3072")
    e(f"s_waitcnt vmcnt({OPT.get('e1wait',3)})")
    stamp("x: E1 poll start", 8)
    poll([f"buffer_load_dwordx4 v[92:95], v6, {sr(WS)}, s9 offen sc1",
          f"buffer_load_dwordx4 v[96:99], v6, {sr(WS)}, s9 offen offset:1536 sc1",
          f"buffer_load_dwordx4 v[100:103], v6, {sr(WS)}, s10 offen sc1",
          f"buffer_load_dwordx4 v[104:107], v6, {sr(WS)}, s10 offen offset:1536 sc1"],
         [93, 95, 97, 99, 101, 103, 105, 107], 108)
    stamp("x: E1 poll end", 8); stamp_val("E1 iters", "s13", 8)
    e("v_add_f32 v92, v92, v96"); e("v_add_f32 v94, v94, v98")
    e("v_add_f32 v100, v100, v104"); e("v_add_f32 v102, v102, v106")
    e("v_add_f32 v92, v92, v100"); e("v_add_f32 v94, v94, v102")
    qs = 192 ** -0.5 * math.log2(math.e)
    e(f"v_mul_f32 v92, {F(qs)}, v92"); e(f"v_mul_f32 v94, {F(qs)}, v94")
    e("v_cvt_pk_bf16_f32 v92, v92, v94")
    e("v_lshlrev_b32 v6, 2, v5"); e(f"v_add_u32 v6, {XL_Q}, v6")
    e("ds_write_b32 v6, v92")
    e("s_mov_b64 exec, s[14:15]")
    lab("X_B3W")
    e("s_waitcnt vmcnt(0)")
    lab("X_B3")
    barrier()
    stamp("x: q gathered", 9)
    e(f"s_cmp_ge_u32 {WAVE}, 12"); e("s_cbranch_scc1 X_P2B")
    e(f"v_lshlrev_b32 v6, 4, {G}"); e(f"v_add_u32 v6, {XL_Q}, v6")
    e(f"v_lshrrev_b32 v7, 1, {L15}"); e("v_mul_u32_u24 v7, 800, v7")
    e(f"v_and_b32 v8, 1, {L15}"); e("v_mul_u32_u24 v8, 384, v8"); e("v_add_u32 v7, v7, v8")
    e(f"v_lshl_add_u32 v7, {G}, 4, v7")
    e(f"s_mul_i32 s9, {WAVE}, 6400"); e(f"s_add_u32 s9, s9, {XL_UK}"); e("v_add_u32 v7, s9, v7")
    for ks in range(6):
        e(f"ds_read_b128 {vr(16+4*ks,4)}, v7 offset:{64*ks}")
        e(f"ds_read_b128 {vr(64+4*ks,4)}, v6 offset:{64*ks}")
    e(f"s_mul_i32 s9, {H}, 3072"); e(f"s_mul_i32 s10, {R}, 768"); e("s_add_u32 s9, s9, s10")
    e(f"s_lshl_b32 s10, {WAVE}, 6"); e("s_add_u32 s9, s9, s10"); e(f"s_add_u32 s9, s9, {WS_QA}")
    e(f"v_lshlrev_b32 v5, 4, {G}")
    for ks in range(6):
        e(f"s_waitcnt lgkmcnt({2*(5-ks)})")
        mfma(88, 16 + 4 * ks, 64 + 4 * ks, "0" if ks == 0 else None)
    e("s_nop 7")
    e("v_cvt_pk_bf16_f32 v92, v88, v89"); e(f"v_mov_b32 v93, {VTAG}")
    e("v_cvt_pk_bf16_f32 v94, v90, v91"); e(f"v_mov_b32 v95, {VTAG}")
    set_exec64(EXEC_L15_0)
    e(f"buffer_store_dwordx4 v[92:95], v5, {sr(WS)}, s9 offen{SCG}")
    exec_all()
    lab("X_P2B")
    stamp("x: qabs published", 9)
    barrier()
    if OPT.get("xstop", 0) == 1:
        e("s_waitcnt vmcnt(0)"); barrier(); stamp("x: all waves done"); e("s_branch X_END")
    srd(SA, P_WUV, 9437184)
    e(f"s_cmp_ge_u32 {WAVE}, 12"); e("s_cbranch_scc1 X_B4")
    e(f"s_mul_i32 s10, {R}, 192"); e("s_lshl_b32 s11, s64, 3"); e("s_add_u32 s10, s10, s11")
    e("s_mul_i32 s11, s10, 12288"); e("s_add_u32 s11, s11, s67")
    e(f"s_lshl_b32 s10, {WAVE}, 10"); e(f"s_add_u32 s10, s10, {XL_U}")
    dma_loop(15, SA, 10, 11, 6, 12 * 1024, 32 * 12288, OPT["xnt"])
    lab("X_B4")
    e(f"s_lshl_b32 s9, {WAVE}, 7")
    for n in range(2):
        e(f"v_add_u32 v{6+n}, s9, {LANE}")
        if n: e(f"v_add_u32 v{6+n}, 64, v{6+n}")
        e("s_mov_b32 s10, 43691")
        e(f"v_mul_lo_u32 v8, v{6+n}, s10"); e("v_lshrrev_b32 v8, 21, v8")
        e(f"v_mul_u32_u24 v9, 48, v8"); e(f"v_sub_u32 v9, v{6+n}, v9")
        e("v_mul_u32_u24 v10, 43, v9"); e("v_lshrrev_b32 v10, 9, v10")
        e("v_lshlrev_b32 v11, 12, v8"); e("v_lshl_add_u32 v11, v10, 6, v11")
        e(f"v_lshl_add_u32 v{6+n}, v9, 4, v11")
        e("v_lshrrev_b32 v10, 2, v8"); e("v_mul_u32_u24 v10, 12, v10"); e("v_lshrrev_b32 v11, 2, v9")
        e("v_add_u32 v10, v10, v11"); e("v_lshlrev_b32 v10, 7, v10")
        e("v_and_b32 v8, 3, v8"); e("v_lshl_add_u32 v10, v8, 5, v10")
        e("v_and_b32 v9, 3, v9"); e("v_lshl_add_u32 v10, v9, 3, v10")
        e(f"v_add_u32 v{118+n}, {XL_CL}, v10")
    e("s_waitcnt vmcnt(0)")
    stamp("x: burst2 landed")
    barrier()
    if OPT.get("e3hint", 0):
        e(f"s_cmp_lt_u32 {WAVE}, 13"); e("s_cbranch_scc1 X_H13"); e("s_barrier"); e("s_branch X_B5"); lab("X_H13")
    else:
        e(f"s_cmp_ge_u32 {WAVE}, 13"); e("s_cbranch_scc1 X_B5")
    e(f"s_cmp_eq_u32 {WAVE}, 12"); e("s_cbranch_scc1 X_ML")
    for ks in range(6):
        e(f"ds_read_b64_tr_b16 {vr(40+4*ks,2)}, v13 offset:{XL_U+ks*12288}")
        e(f"ds_read_b64_tr_b16 {vr(42+4*ks,2)}, v13 offset:{XL_U+ks*12288+1536}")
    e(f"s_lshl_b32 s9, {H}, 17"); e(f"s_lshl_b32 s10, {R}, 10"); e("s_add_u32 s9, s9, s10")
    e(f"s_add_u32 s9, s9, {WS_E3}")
    stamp("x: E3 poll start", 16)
    if OPT.get("e3hint", 0):
        e("s_barrier")
    poll([f"buffer_load_dwordx4 v[92:95], v6, {sr(WS)}, s9 offen sc1",
          f"buffer_load_dwordx4 v[96:99], v7, {sr(WS)}, s9 offen sc1"], [93, 95, 97, 99], 108)
    stamp("x: E3 poll end", 16); stamp_val("E3 iters", "s13", 16)
    e("v_mov_b32 v93, v94"); e("v_mov_b32 v97, v98")
    e("ds_write_b64 v118, v[92:93]"); e("ds_write_b64 v119, v[96:97]")
    e("s_branch X_B5")
    lab("X_ML")
    e(f"v_and_b32 v5, 31, {LANE}"); e("v_lshlrev_b32 v5, 4, v5")
    e(f"s_lshl_b32 s9, {H}, 9"); e(f"s_add_u32 s9, s9, {WS_ML}")
    poll([f"buffer_load_dwordx4 v[92:95], v5, {sr(WS)}, s9 offen sc1"], [93, 95], 108)
    if OPT.get("e3hint", 0): e("s_barrier")
    e("v_mov_b32 v96, v92")
    e("s_nop 1"); row16_allreduce("v_max_f32", 96); e("s_nop 1"); cross16("v_max_f32", 96, 97)
    e("v_sub_f32 v92, v92, v96"); e("v_exp_f32 v92, v92"); e("s_nop 0")
    e("v_mul_f32 v94, v92, v94")
    e("s_nop 1"); row16_allreduce("v_add_f32", 94); e("s_nop 1"); cross16("v_add_f32", 94, 97)
    e("v_rcp_f32 v94, v94"); e("s_nop 0")
    e("v_mul_f32 v92, v92, v94")
    e("v_cvt_pk_bf16_f32 v93, v92, v92")
    e("v_and_b32 v94, 0xffff0000, v93")
    e("v_sub_f32 v92, v92, v94")
    e("v_cvt_pk_bf16_f32 v92, v92, v92")
    e(f"v_and_b32 v5, 31, {LANE}"); e("v_lshlrev_b32 v5, 1, v5"); e(f"v_add_u32 v5, {XL_W}, v5")
    e("ds_write_b16 v5, v93"); e("ds_write_b16 v5, v92 offset:64")
    lab("X_B5")
    barrier()
    stamp("x: E3 gathered", 17)
    e(f"s_cmp_ge_u32 {WAVE}, 12"); e("s_cbranch_scc1 X_B5b")
    e(f"v_mul_u32_u24 v5, 3072, {G}"); e(f"v_lshl_add_u32 v5, {L15}, 3, v5")
    e(f"s_lshl_b32 s9, {WAVE}, 7"); e(f"s_add_u32 s9, s9, {XL_CL}"); e("v_add_u32 v5, s9, v5")
    e("ds_read_b64_tr_b16 v[92:93], v5"); e("ds_read_b64_tr_b16 v[94:95], v5 offset:1536")
    e(f"v_and_b32 v6, 1, {LANE}"); e("v_lshlrev_b32 v6, 6, v6"); e(f"v_lshl_add_u32 v6, {G}, 4, v6")
    e(f"v_add_u32 v6, {XL_W}, v6")
    e("ds_read_b128 v[96:99], v6")
    e(f"v_lshlrev_b32 v5, 1, {L15}"); e(f"s_lshl_b32 s9, {WAVE}, 5"); e(f"s_add_u32 s9, s9, {XL_CB}"); e("v_add_u32 v5, s9, v5")
    e("s_waitcnt lgkmcnt(0)")
    mfma(88, 96, 92, "0")
    e("s_nop 7")
    e("v_add_f32 v88, v88, v89")
    e("v_cvt_pk_bf16_f32 v88, v88, v88")
    e("s_mov_b64 exec, 0xffff")
    e("ds_write_b16 v5, v88")
    exec_all()
    lab("X_B5b")
    barrier()
    e(f"s_cmp_ge_u32 {WAVE}, 12"); e("s_cbranch_scc1 X_UPD")
    e(f"v_lshlrev_b32 v5, 4, {G}"); e(f"v_add_u32 v6, {XL_CB}, v5")
    for ks in range(6): e(f"ds_read_b128 {vr(92+4*ks,4)}, v6 offset:{64*ks}")
    e(f"s_lshl_b32 s9, {X}, 2"); e(f"s_add_u32 s9, s9, {R}"); e("s_mul_i32 s9, s9, 3072")
    e(f"s_and_b32 s10, {H}, 3"); e("s_mul_i32 s10, s10, 768"); e("s_add_u32 s9, s9, s10")
    e(f"s_lshl_b32 s10, {WAVE}, 6"); e("s_add_u32 s9, s9, s10"); e(f"s_add_u32 s9, s9, {WS_E4}")
    for ks in range(6):
        e(f"s_waitcnt lgkmcnt({5-ks})")
        mfma(88, 40 + 4 * ks, 92 + 4 * ks, "0" if ks == 0 else None)
    e("s_nop 7")
    e("v_cvt_pk_bf16_f32 v92, v88, v89"); e(f"v_mov_b32 v93, {VTAG}")
    e("v_cvt_pk_bf16_f32 v94, v90, v91"); e(f"v_mov_b32 v95, {VTAG}")
    set_exec64(EXEC_L15_0)
    e(f"buffer_store_dwordx4 v[92:95], v5, {sr(WS)}, s9 offen{SCG}")
    exec_all()
    lab("X_UPD")
    stamp("x: ctx published")
    e(f"s_cmp_ge_u32 {J}, 5"); e("s_cbranch_scc1 X_END")
    e(f"s_mul_i32 s66, {X}, 5"); e(f"s_add_u32 s66, s66, {J}")
    e(f"s_cmp_ge_u32 {WAVE}, 7"); e("s_cbranch_scc1 X_B9")
    e(f"s_cmp_eq_u32 {WAVE}, 6"); e("s_cbranch_scc1 X_FH")
    e(f"v_lshrrev_b32 v5, 3, {LANE}"); e("v_mul_u32_u24 v5, 5120, v5")
    e(f"v_and_b32 v6, 7, {LANE}"); e("v_lshl_add_u32 v5, v6, 4, v5")
    e(f"s_mul_i32 s9, {WAVE}, 40960"); e("s_lshl_b32 s10, s66, 7"); e("s_add_u32 s9, s9, s10")
    e(f"s_add_u32 s9, s9, {WS_E6}")
    poll([f"buffer_load_dwordx4 v[92:95], v5, {sr(WS)}, s9 offen sc1"], [93, 95], 108)
    e("v_mov_b32 v93, v94")
    e("s_nop 1")
    for i in range(2):
        e(f"v_add_f32_dpp v{92+i}, v{92+i}, v{92+i} row_ror:8 row_mask:0xf bank_mask:0xf")
    for i in range(2):
        cross16("v_add_f32", 92 + i, 96); cross32("v_add_f32", 92 + i, 96)
    e("v_lshlrev_b32 v6, 3, v6"); e(f"s_lshl_b32 s9, {WAVE}, 6"); e(f"s_add_u32 s9, s9, {XL_R2}")
    e("v_add_u32 v6, s9, v6")
    e("s_mov_b64 exec, 0xff")
    e("ds_write_b64 v6, v[92:93]")
    exec_all()
    e("s_branch X_B9")
    lab("X_FH")
    e(f"v_bfe_u32 v5, {LANE}, 2, 3"); e("v_mul_u32_u24 v5, 2560, v5")
    e(f"v_and_b32 v6, 3, {LANE}"); e("v_lshl_add_u32 v5, v6, 4, v5")
    e("s_lshl_b32 s9, s66, 6"); e(f"s_add_u32 s9, s9, {WS_E5}")
    e("v_lshlrev_b32 v7, 3, v6"); e("s_lshl_b32 s10, s66, 5")
    e(f"buffer_load_dwordx2 v[104:105], v7, {sr(SC_)}, s10 offen")
    poll([f"buffer_load_dwordx4 v[92:95], v5, {sr(WS)}, s9 offen sc1"], [93, 95], 108)
    e("v_lshlrev_b32 v96, 16, v92"); e("v_and_b32 v97, 0xffff0000, v92")
    e("v_lshlrev_b32 v98, 16, v94"); e("v_and_b32 v99, 0xffff0000, v94")
    e("s_nop 1")
    for sh in (4, 8):
        for i in range(4):
            e(f"v_add_f32_dpp v{96+i}, v{96+i}, v{96+i} row_ror:{sh} row_mask:0xf bank_mask:0xf")
    for i in range(4): cross16("v_add_f32", 96 + i, 100)
    e("v_lshlrev_b32 v100, 16, v104"); e("v_and_b32 v101, 0xffff0000, v104")
    e("v_lshlrev_b32 v102, 16, v105"); e("v_and_b32 v103, 0xffff0000, v105")
    for i in range(4): e(f"v_add_f32 v{96+i}, v{96+i}, v{100+i}")
    e("v_lshlrev_b32 v6, 4, v6"); e(f"v_add_u32 v6, {XL_H}, v6")
    e("s_mov_b64 exec, 0xf")
    e("ds_write_b128 v6, v[96:99]")
    exec_all()
    lab("X_B9")
    barrier()
    e(f"s_cmp_lg_u32 {WAVE}, 0"); e("s_cbranch_scc1 X_END")
    e(f"v_lshlrev_b32 v5, 3, {LANE}"); e(f"v_add_u32 v6, {XL_R2}, v5"); e(f"v_add_u32 v7, {XL_H}, v5")
    e("s_mov_b64 exec, 0xff")
    for w in range(6): e(f"ds_read_b64 {vr(92+2*w,2)}, v6 offset:{64*w}")
    e("ds_read_b64 v[116:117], v7")
    srd(SD, P_OUT, 1280)
    e("s_waitcnt lgkmcnt(0)")
    for w in range(1, 6):
        e(f"v_add_f32 v92, v92, v{92+2*w}"); e(f"v_add_f32 v93, v93, v{93+2*w}")
    e("v_add_f32 v92, v92, v116"); e("v_add_f32 v93, v93, v117")
    e("v_cvt_pk_bf16_f32 v92, v92, v93")
    e(f"v_lshlrev_b32 v5, 2, {LANE}"); e("s_lshl_b32 s9, s66, 5")
    e(f"buffer_store_dword v92, v5, {sr(SD)}, s9 offen")
    e("s_cmp_lg_u32 s66, 0"); e("s_cbranch_scc1 X_EP")
    e("s_mov_b64 exec, 1")
    e("v_mov_b32 v5, 0")
    e(f"buffer_store_dword {VTAG}, v5, {sr(WS)}, 0 offen sc1")
    lab("X_EP")
    exec_all()
    lab("X_END")
    stamp("x: end")
    stamp_flush(nstamp[0])
    e("s_endpgm")
    lab("X_LN")
    for i in range(5):
        e(f"buffer_load_dword v{16+i}, v5, {sr(SC_)}, 0 offen offset:{256*i}")
    e("s_barrier")
    e("s_waitcnt vmcnt(0)")
    for i in range(5):
        e(f"v_lshlrev_b32 v{21+2*i}, 16, v{16+i}")
        e(f"v_and_b32 v{22+2*i}, 0xffff0000, v{16+i}")
    e("v_add_f32 v31, v21, v22")
    for i in range(23, 31): e(f"v_add_f32 v31, v31, v{i}")
    wave_allreduce("v_add_f32", 31, 32)
    e(f"v_mul_f32 v31, {F(1.0/640.0)}, v31")
    for i in range(21, 31): e(f"v_sub_f32 v{i}, v{i}, v31")
    e("v_mul_f32 v33, v21, v21")
    for i in range(22, 31): e(f"v_fmac_f32 v33, v{i}, v{i}")
    wave_allreduce("v_add_f32", 33, 32)
    e(f"v_mov_b32 v32, {F(1e-5)}")
    e(f"v_fmac_f32 v32, {F(1.0/640.0)}, v33")
    e("v_rsq_f32 v32, v32"); e("s_nop 0")
    for i in range(21, 31): e(f"v_mul_f32 v{i}, v{i}, v32")
    for i in range(5): e(f"v_cvt_pk_bf16_f32 v{16+i}, v{21+2*i}, v{22+2*i}")
    e(f"v_add_u32 v5, {XL_XN}, v5")
    for i in range(5): e(f"ds_write_b32 v5, v{16+i} offset:{256*i}")
    e("s_branch X_B1")

CH_KB = 6272
CH_SZ = 8 * CH_KB
YL_C = 0
YL_QA = 2 * CH_SZ
YL_SP = YL_QA + 12416
YL_PF = YL_SP + 34816
YL_M = YL_PF + 4096
YL_R = YL_M + 64
YL_MG, YL_MU, YL_MD = 0, 40960, 81920
YL_H = 131072
YL_ST = YL_H + 2560
YL_G = YL_H + 2688
YL_HH = YL_H + 5376
assert YL_R + 3072 <= 163840
HG = "s7"

def y_program():
    nstamp[0] = 0
    lab("L_Y")
    e(f"s_sub_u32 {J}, {J}, 16")
    e(f"s_and_b32 {HG}, {J}, 3"); e(f"s_lshr_b32 {KC}, {J}, 2")
    e(f"v_bfe_u32 v5, {LANE}, 1, 2"); e("v_mul_u32_u24 v5, 1536, v5")
    e(f"v_lshrrev_b32 v6, 3, {LANE}"); e("v_lshl_add_u32 v5, v6, 5, v5")
    e(f"v_and_b32 v6, 1, {LANE}"); e("v_lshl_add_u32 v15, v6, 4, v5")
    e(f"s_lshl_b32 s9, {X}, 9"); e(f"s_lshl_b32 s10, {KC}, 7"); e("s_add_u32 s9, s9, s10")
    e(f"s_lshr_b32 s10, {WAVE}, 1"); e("s_lshl_b32 s11, s10, 2"); e("s_add_u32 s9, s9, s11")
    e("s_mul_i32 s66, s9, 1536")
    e(f"s_and_b32 s11, {WAVE}, 1"); e("s_mul_i32 s11, s11, 3"); e("s_lshl_b32 s14, s11, 8"); e("s_add_u32 s66, s66, s14")
    e(f"s_mul_i32 s67, s10, {CH_KB}"); e("s_lshl_b32 s14, s11, 10"); e("s_add_u32 s67, s67, s14")
    kernarg_ready()
    srd(SA, P_CKV, 6291456)
    stamp("y: start", 31)
    if OPT.get("ystop", 0) == 1: e("s_branch Y_END")
    if OPT["prefetch_code"]:
        e(f"s_cmp_lg_u32 {WAVE}, 15"); e("s_cbranch_scc1 Y_NPF")
        e("s_getpc_b64 s[10:11]")
        lab("Y_PC")
        e(f"s_sub_u32 s10, s10, Y_PC-{NAME}_kernel"); e("s_subb_u32 s11, s11, 0")
        e(f"s_lshl_b32 s9, {J}, 10")
        e(f"v_lshl_add_u32 v5, {LANE}, 4, s9")
        e(f"s_mov_b32 s9, L_END-{NAME}_kernel-16")
        e("v_min_u32 v5, s9, v5")
        e("global_load_dwordx4 v[120:123], v5, s[10:11]")
        lab("Y_NPF")
    ynt = OPT["ynt"]
    def chunk_dma(ch):
        e(f"s_add_u32 s10, s67, {(ch % 2) * CH_SZ}"); e(f"s_add_u32 s11, s66, {ch * 32 * 1536}")
        for i in range(3):
            e("s_mov_b32 m0, s10"); e("s_add_u32 s10, s10, 1024")
            e(f"buffer_load_dwordx4 v15, {sr(SA)}, s11 offen{' nt' if ynt else ''} lds")
            e("s_add_u32 s11, s11, 256")
    chunk_dma(0); chunk_dma(1)
    e(f"v_lshlrev_b32 v5, 2, v0"); e(f"v_add_u32 v5, {YL_PF}, v5"); e("v_mov_b32 v6, 0"); e("ds_write_b32 v5, v6")
    e(f"s_and_b32 s68, {WAVE}, 3"); e(f"s_lshr_b32 s69, {WAVE}, 2")
    e(f"v_lshrrev_b32 v5, 2, {L15}")
    e(f"v_mul_u32_u24 v5, {CH_KB}, v5")
    e(f"v_and_b32 v6, 3, {L15}"); e("v_lshl_add_u32 v5, v6, 5, v5")
    e(f"v_lshrrev_b32 v6, 1, {G}"); e("v_lshl_add_u32 v5, v6, 7, v5")
    e(f"v_and_b32 v6, 1, {G}"); e("v_lshl_add_u32 v5, v6, 4, v5")
    e("s_mul_i32 s9, s69, 1536"); e("v_add_u32 v13, s9, v5")
    e(f"v_mul_u32_u24 v5, {CH_KB}, {G}"); e(f"v_lshl_add_u32 v5, {L15}, 3, v5")
    e(f"s_mul_i32 s9, {WAVE}, 384"); e("v_add_u32 v14, s9, v5")
    e(f"v_add_u32 v8, {CH_SZ}, v14"); e(f"v_add_u32 v11, {CH_SZ}, v13")
    for n in range(2):
        e(f"v_add_u32 v{6+n}, {1024*n}, v0")
        e(f"s_mov_b32 s9, 43691")
        e(f"v_mul_lo_u32 v{9+n}, v{6+n}, s9"); e(f"v_lshrrev_b32 v{9+n}, 23, v{9+n}")
        e(f"v_mul_u32_u24 v12, 192, v{9+n}"); e(f"v_sub_u32 v12, v{6+n}, v12")
        e(f"v_mul_u32_u24 v{9+n}, 1552, v{9+n}"); e(f"v_lshl_add_u32 v{9+n}, v12, 3, v{9+n}")
        e(f"v_add_u32 v{9+n}, {YL_QA}, v{9+n}")
        e(f"v_lshlrev_b32 v{6+n}, 4, v{6+n}")
    SF, PVF = 16, 64
    def read_frags(ch):
        sb, pb = ("v13", "v14") if ch % 2 == 0 else ("v11", "v8")
        sk = uid("YSR")
        e(f"s_cmp_lg_u32 s68, {ch}"); e(f"s_cbranch_scc1 {sk}")
        for a in range(2):
            for i in range(6): e(f"ds_read_b128 {vr(SF+4*(6*a+i),4)}, {sb} offset:{a*4*CH_KB+256*i}")
        e("s_waitcnt lgkmcnt(0)")
        lab(sk)
        for a in range(3):
            b = PVF + (ch * 3 + a) * 4
            e(f"ds_read_b64_tr_b16 {vr(b,2)}, {pb} offset:{a*128}")
            e(f"ds_read_b64_tr_b16 {vr(b+2,2)}, {pb} offset:{4*CH_KB+a*128}")
    e("s_waitcnt vmcnt(3)"); barrier(); read_frags(0); barrier(); chunk_dma(2)
    e("s_waitcnt vmcnt(3)"); barrier(); read_frags(1); barrier(); chunk_dma(3)
    e("s_waitcnt vmcnt(3)"); barrier(); read_frags(2)
    e("s_waitcnt vmcnt(0)"); barrier(); read_frags(3)
    get_tag()
    stamp("y: C landed", 9)
    if OPT.get("ystop", 0) == 2:
        barrier(); stamp("y: all landed"); e("s_branch Y_END")
    e(f"s_mul_i32 s9, {HG}, 24576"); e(f"s_add_u32 s9, s9, {WS_QA}")
    e(f"s_cmp_ge_u32 {WAVE}, 8"); e("s_cbranch_scc1 Y_E2B")
    poll([f"buffer_load_dwordx4 {vr(112+4*n,4)}, v{6+n}, {sr(WS)}, s9 offen sc1" for n in range(2)],
         [113, 115, 117, 119], 120)
    for n in range(2):
        e(f"v_mov_b32 v{113+4*n}, v{114+4*n}")
        e(f"ds_write_b64 v{9+n}, {vr(112+4*n,2)}")
    e("s_branch Y_E2D")
    lab("Y_E2B")
    poll([f"buffer_load_dwordx4 v[112:115], v6, {sr(WS)}, s9 offen sc1"], [113, 115], 120)
    e("v_mov_b32 v113, v114"); e("ds_write_b64 v9, v[112:113]")
    lab("Y_E2D")
    stamp("y: qabs gathered", 9)
    barrier()
    stamp("y: after E2 barrier", 8)
    e(f"v_and_b32 v5, 7, {L15}"); e("v_mul_u32_u24 v5, 1552, v5"); e(f"v_lshl_add_u32 v5, {G}, 4, v5")
    e(f"s_mul_i32 s9, s69, 384"); e(f"s_add_u32 s9, s9, {YL_QA}"); e("v_add_u32 v5, s9, v5")
    for i in range(4): e(f"ds_read_b128 {vr(112+4*i,4)}, v5 offset:{64*i}")
    e(f"v_mul_u32_u24 v6, 272, {G}"); e(f"v_lshl_add_u32 v6, {L15}, 4, v6")
    e("s_lshl_b32 s9, s69, 3"); e("s_lshl_b32 s10, s68, 1"); e("s_add_u32 s9, s9, s10"); e("s_mul_i32 s9, s9, 1088")
    e(f"s_add_u32 s9, s9, {YL_SP}"); e("v_add_u32 v6, s9, v6")
    for i in range(6):
        rem = min(6, i + 4) - (i + 1)
        e(f"s_waitcnt lgkmcnt({rem})")
        mfma(8, SF + 4 * i, 112 + 4 * (i % 4), "0" if i == 0 else None)
        mfma(12, SF + 4 * (6 + i), 112 + 4 * (i % 4), "0" if i == 0 else None)
        if i + 4 < 6:
            e(f"ds_read_b128 {vr(112+4*(i%4),4)}, v5 offset:{64*(i+4)}")
    e("s_nop 7")
    e("ds_write_b128 v6, v[8:11]"); e("ds_write_b128 v6, v[12:15] offset:1088")
    barrier()
    stamp("y: S partial done", 10)
    e(f"s_cmp_ge_u32 {WAVE}, 8"); e("s_cbranch_scc1 Y_SMD")
    e(f"v_mul_u32_u24 v5, 1088, {G}")
    e(f"v_bfe_u32 v6, {LANE}, 2, 2"); e("v_mul_u32_u24 v7, 272, v6")
    e(f"v_and_b32 v12, 3, {LANE}"); e("v_lshlrev_b32 v8, 2, v12")
    e("v_add3_u32 v5, v5, v7, v8")
    e(f"s_lshl_b32 s9, {WAVE}, 4"); e(f"s_add_u32 s9, s9, {YL_SP}"); e("v_add_u32 v5, s9, v5")
    for kq in range(4):
        e(f"ds_read_b32 v{112+kq}, v5 offset:{8704*kq}"); e(f"ds_read_b32 v{116+kq}, v5 offset:{8704*kq+4352}")
    e(f"v_lshrrev_b32 v7, 5, {LANE}"); e("v_lshlrev_b32 v7, 10, v7")
    e("v_lshl_add_u32 v7, v6, 8, v7")
    e(f"v_bfe_u32 v8, {LANE}, 4, 1"); e("v_lshl_add_u32 v7, v8, 3, v7")
    e("v_lshl_add_u32 v7, v12, 1, v7")
    e(f"s_lshl_b32 s9, {WAVE}, 4"); e(f"s_add_u32 s9, s9, {YL_PF}"); e("v_add_u32 v7, s9, v7")
    e("s_waitcnt lgkmcnt(0)")
    e("v_add_f32 v112, v112, v113"); e("v_add_f32 v114, v114, v115"); e("v_add_f32 v116, v116, v117"); e("v_add_f32 v118, v118, v119")
    e("v_add_f32 v112, v112, v114"); e("v_add_f32 v114, v116, v118")
    e("v_max_f32 v116, v112, v114")
    wave_allreduce("v_max_f32", 116, 117)
    e("v_sub_f32 v112, v112, v116"); e("v_sub_f32 v114, v114, v116")
    e("v_exp_f32 v112, v112"); e("v_exp_f32 v114, v114"); e("s_nop 0")
    e("v_cvt_pk_bf16_f32 v112, v112, v114")
    e("ds_write_b16 v7, v112"); e("ds_write_b16_d16_hi v7, v112 offset:2048")
    e(f"s_lshl_b32 s9, {WAVE}, 2"); e(f"s_add_u32 s9, s9, {YL_M}"); e("v_mov_b32 v5, s9")
    e("s_mov_b64 exec, 1")
    e("ds_write_b32 v5, v116")
    exec_all()
    lab("Y_SMD")
    barrier()
    stamp("y: P ready", 10)
    e(f"v_lshlrev_b32 v5, 4, {LANE}"); e(f"v_add_u32 v5, {YL_PF}, v5")
    for ks in range(4): e(f"ds_read_b128 {vr(112+4*ks,4)}, v5 offset:{1024*ks}")
    e(f"v_and_b32 v5, 7, {L15}"); e("v_lshlrev_b32 v5, 17, v5"); e(f"v_lshl_add_u32 v5, {G}, 4, v5")
    e(f"v_lshrrev_b32 v6, 3, {L15}"); e("v_lshl_add_u32 v5, v6, 6, v5")
    e(f"s_lshl_b32 s9, {HG}, 20"); e(f"s_lshl_b32 s10, {X}, 2"); e(f"s_add_u32 s10, s10, {KC}")
    e("s_lshl_b32 s11, s10, 12"); e("s_add_u32 s9, s9, s11")
    e(f"s_lshl_b32 s11, {WAVE}, 8"); e("s_add_u32 s9, s9, s11"); e(f"s_add_u32 s9, s9, {WS_E3}")
    for ks in range(4):
        e(f"s_waitcnt lgkmcnt({3-ks})")
        for a in range(3):
            mfma(16 + 4 * a, PVF + (ks * 3 + a) * 4, 112 + 4 * ks, "0" if ks == 0 else None)
    e(f"s_cmp_lg_u32 {WAVE}, 15"); e("s_cbranch_scc1 Y_NL")
    for i in range(4): e(f"v_mov_b32 v{32+i}, 0x3f803f80")
    e(f"v_and_b32 v6, 7, {L15}"); e("v_lshlrev_b32 v6, 2, v6"); e(f"v_add_u32 v6, {YL_M}, v6")
    e("ds_read_b32 v40, v6")
    for ks in range(4): mfma(36, 32, 112 + 4 * ks, "0" if ks == 0 else None)
    lab("Y_NL")
    e("s_nop 7")
    stamp("y: PV mfma done", 8)
    for a in range(3):
        b = 44 + 4 * a
        e(f"v_cvt_pk_bf16_f32 v{b}, v{16+4*a}, v{17+4*a}"); e(f"v_mov_b32 v{b+1}, {VTAG}")
        e(f"v_cvt_pk_bf16_f32 v{b+2}, v{18+4*a}, v{19+4*a}"); e(f"v_mov_b32 v{b+3}, {VTAG}")
    e("s_nop 1")
    e("v_mov_b32_dpp v44, v48 row_ror:8 row_mask:0xf bank_mask:0xc")
    e("v_mov_b32_dpp v46, v50 row_ror:8 row_mask:0xf bank_mask:0xc")
    e(f"buffer_store_dwordx4 v[44:47], v5, {sr(WS)}, s9 offen{SCG}")
    set_exec64(0x00ff00ff00ff00ff)
    e(f"buffer_store_dwordx4 v[52:55], v5, {sr(WS)}, s9 offen offset:128{SCG}")
    exec_all()
    e(f"s_cmp_lg_u32 {WAVE}, 15"); e("s_cbranch_scc1 Y_P3D")
    e(f"v_lshlrev_b32 v5, 9, {L15}")
    e(f"s_lshl_b32 s9, {HG}, 12"); e("s_lshl_b32 s11, s10, 4"); e("s_add_u32 s9, s9, s11"); e(f"s_add_u32 s9, s9, {WS_ML}")
    e("s_waitcnt lgkmcnt(0)")
    e("v_mov_b32 v56, v40"); e(f"v_mov_b32 v57, {VTAG}"); e("v_mov_b32 v58, v36"); e(f"v_mov_b32 v59, {VTAG}")
    e("s_mov_b64 exec, 0xff")
    e(f"buffer_store_dwordx4 v[56:59], v5, {sr(WS)}, s9 offen{SCG}")
    exec_all()
    lab("Y_P3D")
    stamp("y: ctxlat published", 9|16)
    if OPT["stamps"] & 16:
        e("s_waitcnt vmcnt(0)"); stamp("y: E3 stores complete", 16); barrier(); stamp("y: all waves stores complete", 16)
    e(f"s_cmp_ge_u32 {J}, 10"); e("s_cbranch_scc1 Y_MLP")
    srd(SA, P_WO, 7864320)
    e(f"v_lshrrev_b32 v5, 5, {LANE}"); e("v_lshlrev_b32 v5, 2, v5"); e(f"v_bfe_u32 v6, {LANE}, 1, 2"); e("v_add_u32 v5, v5, v6")
    e("v_mul_u32_u24 v5, 1280, v5")
    e(f"v_bfe_u32 v6, {LANE}, 3, 2"); e("v_lshl_add_u32 v5, v6, 5, v5")
    e(f"v_and_b32 v6, 1, {LANE}"); e("v_lshl_add_u32 v15, v6, 4, v5")
    e(f"s_mul_i32 s11, {X}, 768"); e(f"s_lshl_b32 s10, {WAVE}, 3"); e("s_add_u32 s11, s11, s10"); e("s_mul_i32 s11, s11, 1280")
    e(f"s_lshl_b32 s10, {J}, 7"); e("s_add_u32 s11, s11, s10")
    e(f"s_lshl_b32 s10, {WAVE}, 10")
    dma_loop(15, SA, 10, 11, 6, 16 * 1024, 128 * 1280, OPT.get("wont", 1))
    e("s_waitcnt vmcnt(0)")
    stamp("y: wo landed")
    barrier()
    e(f"s_cmp_ge_u32 {WAVE}, 12"); e("s_cbranch_scc1 Y_B6")
    e(f"v_lshlrev_b32 v5, 10, {G}"); e(f"v_lshl_add_u32 v5, {L15}, 3, v5")
    e(f"s_lshl_b32 s9, {WAVE}, 13"); e("v_add_u32 v5, s9, v5")
    for ksl in range(2):
        for t in range(4):
            b = 64 + (ksl * 4 + t) * 4
            e(f"ds_read_b64_tr_b16 {vr(b,2)}, v5 offset:{ksl*4096+t*128}")
            e(f"ds_read_b64_tr_b16 {vr(b+2,2)}, v5 offset:{ksl*4096+512+t*128}")
        if ksl == 0: e("s_waitcnt lgkmcnt(0)")
    e(f"v_and_b32 v5, 3, {LANE}"); e("v_mul_u32_u24 v5, 3072, v5"); e(f"v_lshl_add_u32 v5, {G}, 5, v5")
    e(f"s_mul_i32 s9, {X}, 12288"); e(f"s_lshl_b32 s10, {WAVE}, 8"); e("s_add_u32 s9, s9, s10")
    e(f"s_add_u32 s9, s9, {WS_E4}")
    poll([f"buffer_load_dwordx4 v[16:19], v5, {sr(WS)}, s9 offen sc1",
          f"buffer_load_dwordx4 v[20:23], v5, {sr(WS)}, s9 offen offset:16 sc1",
          f"buffer_load_dwordx4 v[24:27], v5, {sr(WS)}, s9 offen offset:128 sc1",
          f"buffer_load_dwordx4 v[28:31], v5, {sr(WS)}, s9 offen offset:144 sc1"],
         [17, 19, 21, 23, 25, 27, 29, 31], 32)
    stamp("y: ctx gathered")
    e("v_mov_b32 v17, v18"); e("v_mov_b32 v18, v20"); e("v_mov_b32 v19, v22")
    e("v_mov_b32 v25, v26"); e("v_mov_b32 v26, v28"); e("v_mov_b32 v27, v30")
    e("s_waitcnt lgkmcnt(0)")
    e("s_nop 0")
    for t in range(4): mfma(36 + 4 * t, 64 + 4 * t, 16, "0")
    for t in range(4): mfma(36 + 4 * t, 64 + 16 + 4 * t, 24)
    e(f"v_lshlrev_b32 v5, 4, {G}"); e(f"s_lshl_b32 s9, {WAVE}, 8"); e(f"s_add_u32 s9, s9, {YL_R}")
    e("v_add_u32 v5, s9, v5")
    e("s_nop 7")
    for pat in ("quad_perm:[1,0,3,2]", "quad_perm:[2,3,0,1]"):
        for i in range(16):
            e(f"v_add_f32_dpp v{36+i}, v{36+i}, v{36+i} {pat} row_mask:0xf bank_mask:0xf")
    set_exec64(EXEC_L15_0)
    for t in range(4): e(f"ds_write_b128 v5, {vr(36+4*t,4)} offset:{64*t}")
    exec_all()
    lab("Y_B6")
    barrier()
    e(f"s_cmp_lg_u32 {WAVE}, 0"); e("s_cbranch_scc1 Y_END")
    e(f"v_lshlrev_b32 v5, 3, {LANE}"); e(f"v_add_u32 v6, {YL_R}, v5")
    set_exec64(0xffffffff)
    for w in range(12): e(f"ds_read_b64 {vr(16+2*w,2)}, v6 offset:{256*w}")
    e(f"s_mul_i32 s9, {X}, 2560"); e(f"s_lshl_b32 s10, {J}, 8"); e("s_add_u32 s9, s9, s10")
    e(f"s_add_u32 s9, s9, {WS_E5}")
    e("s_waitcnt lgkmcnt(0)")
    for w in range(1, 12):
        e(f"v_add_f32 v16, v16, v{16+2*w}"); e(f"v_add_f32 v17, v17, v{17+2*w}")
    e("v_cvt_pk_bf16_f32 v16, v16, v17"); e(f"v_mov_b32 v17, {VTAG}")
    e(f"buffer_store_dwordx2 v[16:17], v5, {sr(WS)}, s9 offen{SCG}")
    exec_all()
    e("s_branch Y_END")
    lab("Y_MLP")
    e(f"s_mul_i32 s66, {X}, 6"); e(f"s_add_u32 s66, s66, {J}"); e("s_sub_u32 s66, s66, 10")
    srd(SA, P_WG, 1966080); srd(SB, P_WU, 1966080); srd(SC_, P_WD, 1966080); srd(SD, P_X, 1280)
    e(f"v_lshrrev_b32 v5, 4, {LANE}"); e("v_lshlrev_b32 v5, 2, v5"); e(f"v_bfe_u32 v6, {LANE}, 1, 2"); e("v_add_u32 v5, v5, v6")
    e("v_mul_u32_u24 v5, 3072, v5")
    e(f"v_bfe_u32 v6, {LANE}, 3, 1"); e("v_lshl_add_u32 v5, v6, 5, v5")
    e(f"v_and_b32 v6, 1, {LANE}"); e("v_lshl_add_u32 v15, v6, 4, v5")
    e(f"v_bfe_u32 v5, {LANE}, 1, 2"); e("v_mul_u32_u24 v5, 1280, v5")
    e(f"v_lshrrev_b32 v6, 3, {LANE}"); e("v_lshl_add_u32 v5, v6, 5, v5")
    e(f"v_and_b32 v6, 1, {LANE}"); e("v_lshl_add_u32 v14, v6, 4, v5")
    barrier()
    e(f"s_and_b32 s9, {WAVE}, 7")
    e(f"s_mul_i32 s11, s9, {5*16*3072}"); e("s_lshl_b32 s10, s66, 6"); e("s_add_u32 s11, s11, s10")
    e("s_mul_i32 s10, s9, 5120")
    e(f"s_cmp_ge_u32 {WAVE}, 8"); e("s_cbranch_scc1 Y_MU")
    dma_loop(15, SA, 10, 11, 5, 1024, 16 * 3072, OPT.get("mnt", 1))
    e("s_lshl_b32 s11, s66, 5"); e(f"s_lshl_b32 s10, {WAVE}, 2"); e("s_add_u32 s11, s11, s10"); e("s_mul_i32 s11, s11, 1280")
    e(f"s_mul_i32 s10, {WAVE}, 5120"); e(f"s_add_u32 s10, s10, {YL_MD}")
    dma_loop(14, SC_, 10, 11, 5, 1024, 256, OPT["ynt"])
    e("s_branch Y_MW")
    lab("Y_MU")
    e(f"s_add_u32 s10, s10, {YL_MU}")
    dma_loop(15, SB, 10, 11, 5, 1024, 16 * 3072, OPT.get("mnt", 1))
    lab("Y_MW")
    e(f"v_lshlrev_b32 v5, 2, {LANE}"); e(f"s_lshl_b32 s9, {WAVE}, 8")
    e(f"s_cmp_ge_u32 {WAVE}, 5"); e("s_cbranch_scc1 Y_NX")
    e(f"buffer_load_dword v110, v5, {sr(SD)}, s9 offen")
    lab("Y_NX")
    e("s_waitcnt vmcnt(0)")
    stamp("y: mlp landed")
    barrier()
    e(f"s_cmp_ge_u32 {WAVE}, 10"); e("s_cbranch_scc1 Y_MPD")
    e(f"v_lshlrev_b32 v5, 9, {G}"); e(f"v_lshl_add_u32 v5, {L15}, 3, v5")
    e(f"s_lshl_b32 s9, {WAVE}, 12"); e("v_add_u32 v5, s9, v5")
    for mat, base in ((0, YL_MG), (1, YL_MU)):
        for ksl in range(2):
            for t in range(2):
                b = 16 + mat * 16 + (ksl * 2 + t) * 4
                e(f"ds_read_b64_tr_b16 {vr(b,2)}, v5 offset:{base+ksl*2048+t*128}")
                e(f"ds_read_b64_tr_b16 {vr(b+2,2)}, v5 offset:{base+ksl*2048+256+t*128}")
        e("s_waitcnt lgkmcnt(0)")
    e(f"v_mul_u32_u24 v5, 10240, {G}"); e(f"v_lshl_add_u32 v5, {L15}, 3, v5")
    e(f"s_lshl_b32 s9, {WAVE}, 9"); e(f"s_add_u32 s9, s9, {YL_MD}"); e("v_add_u32 v5, s9, v5")
    for a in range(4):
        e(f"ds_read_b64_tr_b16 {vr(48+4*a,2)}, v5 offset:{128*a}")
        e(f"ds_read_b64_tr_b16 {vr(50+4*a,2)}, v5 offset:{5120+128*a}")
    lab("Y_MPD")
    e(f"s_cmp_ge_u32 {WAVE}, 5"); e("s_cbranch_scc1 Y_MB6")
    e(f"v_lshlrev_b32 v5, 3, {LANE}")
    e(f"s_lshl_b32 s9, {WAVE}, 9"); e(f"s_add_u32 s9, s9, {WS_E5}")
    e("s_add_u32 s10, s9, 5120"); e("s_add_u32 s11, s9, 10240"); e("s_add_u32 s14, s9, 15360")
    sos = ["s9", "s10", "s11", "s14"]
    poll([f"buffer_load_dwordx2 {vr(80+2*xp,2)}, v5, {sr(WS)}, {sos[xp//2]} offen offset:{2560*(xp%2)} sc1" for xp in range(8)],
         [81 + 2 * xp for xp in range(8)], 96)
    e("v_lshlrev_b32 v100, 16, v110"); e("v_and_b32 v101, 0xffff0000, v110")
    for xp in range(8):
        e(f"v_lshlrev_b32 v98, 16, v{80+2*xp}"); e(f"v_and_b32 v99, 0xffff0000, v{80+2*xp}")
        e("v_add_f32 v100, v100, v98"); e("v_add_f32 v101, v101, v99")
    e(f"s_lshl_b32 s9, {WAVE}, 9"); e(f"s_add_u32 s9, s9, {YL_H}"); e("v_add_u32 v5, s9, v5")
    e("ds_write_b64 v5, v[100:101]")
    e("v_add_f32 v102, v100, v101")
    e("v_mul_f32 v103, v100, v100"); e("v_fmac_f32 v103, v101, v101")
    e("s_nop 1")
    row16_allreduce("v_add_f32", 102, 2)
    e("s_nop 1")
    for i in range(2): cross16("v_add_f32", 102 + i, 104); cross32("v_add_f32", 102 + i, 104)
    e(f"s_lshl_b32 s9, {WAVE}, 3"); e(f"s_add_u32 s9, s9, {YL_ST}"); e("v_mov_b32 v5, s9")
    e("s_mov_b64 exec, 1")
    e("ds_write_b64 v5, v[102:103]")
    exec_all()
    lab("Y_MB6")
    stamp("y: h gathered")
    barrier()
    e(f"s_cmp_ge_u32 {WAVE}, 10"); e("s_cbranch_scc1 Y_MB7")
    e(f"v_mov_b32 v5, {YL_ST}")
    e("ds_read_b128 v[80:83], v5"); e("ds_read_b128 v[84:87], v5 offset:16"); e("ds_read_b64 v[88:89], v5 offset:32")
    e(f"v_lshlrev_b32 v6, 5, {G}"); e(f"s_lshl_b32 s9, {WAVE}, 8"); e(f"s_add_u32 s9, s9, {YL_H}"); e("v_add_u32 v6, s9, v6")
    for ksl in range(2):
        e(f"ds_read_b128 {vr(92+8*ksl,4)}, v6 offset:{128*ksl}")
        e(f"ds_read_b128 {vr(96+8*ksl,4)}, v6 offset:{128*ksl+16}")
    e("s_waitcnt lgkmcnt(4)")
    for a, b in ((82, 83), (84, 85), (86, 87), (88, 89)):
        e(f"v_add_f32 v80, v80, v{a}"); e(f"v_add_f32 v81, v81, v{b}")
    e(f"v_mul_f32 v80, {F(1.0/640.0)}, v80")
    e(f"v_mul_f32 v81, {F(1.0/640.0)}, v81")
    e("v_fma_f32 v81, -v80, v80, v81")
    e("v_max_f32 v81, 0, v81")
    e(f"v_add_f32 v81, {F(1e-5)}, v81")
    e("v_rsq_f32 v81, v81"); e("s_nop 0")
    e("v_mul_f32 v80, v80, v81")
    e("s_waitcnt lgkmcnt(0)")
    for i in range(16): e(f"v_fma_f32 v{92+i}, v{92+i}, v81, -v80")
    for ksl in range(2):
        for i in range(4): e(f"v_cvt_pk_bf16_f32 v{108+4*ksl+i}, v{92+8*ksl+2*i}, v{93+8*ksl+2*i}")
    e("s_nop 1")
    for ksl in range(2):
        for mat in range(2):
            for t in range(2):
                mfma(64 + 8 * mat + 4 * t, 108 + 4 * ksl, 16 + mat * 16 + (ksl * 2 + t) * 4, "0" if ksl == 0 else None)
    e(f"v_lshlrev_b32 v5, 2, {L15}"); e(f"s_lshl_b32 s9, {WAVE}, 8"); e(f"s_add_u32 s9, s9, {YL_G}"); e("v_add_u32 v5, s9, v5")
    e("s_nop 5")
    e("s_mov_b64 exec, 0xffff")
    e("ds_write_b32 v5, v64"); e("ds_write_b32 v5, v68 offset:64"); e("ds_write_b32 v5, v72 offset:128"); e("ds_write_b32 v5, v76 offset:192")
    exec_all()
    lab("Y_MB7")
    barrier()
    e(f"s_cmp_lg_u32 {WAVE}, 0"); e("s_cbranch_scc1 Y_MB8")
    e(f"v_lshrrev_b32 v5, 5, {LANE}"); e("v_lshlrev_b32 v5, 8, v5"); e(f"v_and_b32 v6, 31, {LANE}"); e("v_lshl_add_u32 v5, v6, 2, v5")
    e(f"v_add_u32 v5, {YL_G}, v5")
    for i in range(5):
        e(f"ds_read_b32 v{80+i}, v5 offset:{512*i}"); e(f"ds_read_b32 v{88+i}, v5 offset:{512*i+128}")
    e("s_waitcnt lgkmcnt(0)")
    for i in range(1, 5): e(f"v_add_f32 v80, v80, v{80+i}"); e(f"v_add_f32 v88, v88, v{88+i}")
    cross32("v_add_f32", 80, 86); cross32("v_add_f32", 88, 86)
    e(f"v_mul_f32 v80, {F(-math.log2(math.e))}, v80"); e("v_exp_f32 v80, v80"); e("s_nop 0")
    e("v_add_f32 v80, 1.0, v80"); e("v_rcp_f32 v80, v80"); e("s_nop 0")
    e("v_mul_f32 v80, v80, v88")
    e("v_cvt_pk_bf16_f32 v80, v80, v80")
    e("v_lshlrev_b32 v5, 1, v6"); e(f"v_add_u32 v5, {YL_HH}, v5")
    set_exec64(0xffffffff)
    e("ds_write_b16 v5, v80")
    exec_all()
    lab("Y_MB8")
    barrier()
    e(f"s_cmp_ge_u32 {WAVE}, 10"); e("s_cbranch_scc1 Y_END")
    e(f"v_lshlrev_b32 v5, 4, {G}"); e(f"v_add_u32 v5, {YL_HH}, v5")
    e("ds_read_b128 v[80:83], v5")
    e(f"v_lshlrev_b32 v5, 3, {LANE}")
    e("s_mul_i32 s9, s66, 5120"); e(f"s_lshl_b32 s10, {WAVE}, 9"); e("s_add_u32 s9, s9, s10"); e(f"s_add_u32 s9, s9, {WS_E6}")
    e(f"v_cmp_eq_u32 vcc, 1, {G}"); e(f"v_cmp_eq_u32 s[10:11], 2, {G}"); e(f"v_cmp_eq_u32 s[14:15], 3, {G}")
    e("s_waitcnt lgkmcnt(0)")
    for a in range(4): mfma(84 + 4 * a, 80, 48 + 4 * a, "0")
    e("s_nop 7")
    e("v_cndmask_b32 v84, v84, v88, vcc"); e("v_cndmask_b32 v84, v84, v92, s[10:11]"); e("v_cndmask_b32 v84, v84, v96, s[14:15]")
    e(f"v_mov_b32 v85, {VTAG}")
    e(f"buffer_store_dwordx2 v[84:85], v5, {sr(WS)}, s9 offen{SCG}")
    lab("Y_END")
    stamp("y: end")
    stamp_flush(nstamp[0])
    e("s_endpgm")

hdr = f"""; Kernarg layout (104 bytes): d_in[0..9], d_out, d_debug, d_ws
; @launch grid=(256,1,1) block=(1024,1,1) lds=163840
.amdgcn_target "amdgcn-amd-amdhsa--gfx950"
.text
.globl {NAME}_kernel
.p2align 8
.type {NAME}_kernel,@function
{NAME}_kernel:
"""
prologue()
x_program()
y_program()
lab("L_END")
e("s_endpgm")
ftr = f""".section .rodata,"a"
.p2align 6
.amdhsa_kernel {NAME}_kernel
  .amdhsa_next_free_vgpr 128
  .amdhsa_next_free_sgpr 102
  .amdhsa_accum_offset 128
  .amdhsa_group_segment_fixed_size 0
  .amdhsa_kernarg_size 104
  .amdhsa_user_sgpr_count 2
  .amdhsa_user_sgpr_kernarg_segment_ptr 1
  .amdhsa_system_sgpr_workgroup_id_x 1
.end_amdhsa_kernel
"""
open(sys.argv[1], "w").write(hdr + "\n".join(L) + "\n" + ftr)
```

```python
import sys, math, struct
def F(x): return "0x%08x" % struct.unpack("<I", struct.pack("<f", x))[0]
NAME = "sequential_preLN__compressed_kv_cla__glu_gated_glu__decode"

OPT = dict(stamps=0, ynt=1, xnt=1, spin=1 << 16, cpv_early=1, prefetch_code=1)
for a in sys.argv[2:]:
    k, v = a.split("="); OPT[k] = int(v)

L = []
def e(s): L.append("    " + s)
def lab(s): L.append(s + ":")
def cm(s): L.append("    ; " + s)
_uid = [0]
def uid(p):
    _uid[0] += 1
    return f"{p}_{_uid[0]}"

WS_EPOCH = 0
WS_HELLO = 0x1000
WS_E1 = 0x10000
WS_QA = 0x40000
WS_ML = 0x60000
WS_E4 = 0x70000
WS_E5 = 0x90000
WS_E6 = 0x100000
WS_ST = 0x180000
WS_E3 = 0x200000
WS_SIZE = 0x700000

WAVE, X, J, TAG, H, R = "s3", "s4", "s5", "s6", "s7", "s8"
HH, KC = "s7", "s8"
P_X, P_CKV, P_WQ, P_WUK, P_WUV, P_WO, P_WG, P_WU, P_WD, P_OUT, P_WS = 16, 18, 20, 22, 24, 26, 30, 32, 34, 36, 40
WS, SA, SB, SC_, SD = 44, 48, 52, 56, 60
def sr(b, n=4): return f"s[{b}:{b+n-1}]"
def vr(b, n): return f"v[{b}:{b+n-1}]" if n > 1 else f"v{b}"
STAMP0 = 72
LANE, G, L15, VTAG = "v1", "v2", "v3", "v4"

def srd(b, ptr, size):
    e(f"s_mov_b32 s{b}, s{ptr}")
    e(f"s_mov_b32 s{b+1}, s{ptr+1}")
    e(f"s_mov_b32 s{b+2}, {size}")
    e(f"s_mov_b32 s{b+3}, 0x00020000")

nstamp = [0]
def stamp(name, grp=1):
    if not (OPT["stamps"] & grp): return
    i = nstamp[0]; nstamp[0] += 1
    if OPT.get("pmask", 1) and i >= 6: return
    cm(f"stamp {i}: {name}")
    sk = uid("STK")
    e(f"s_cmp_lg_u32 {WAVE}, {OPT.get('stampwave',0)}"); e(f"s_cbranch_scc1 {sk}")
    if i == 0:
        e("s_memrealtime s[98:99]")
    e(f"s_memtime s[{STAMP0+2*i}:{STAMP0+2*i+1}]")
    e("s_waitcnt lgkmcnt(0)")
    lab(sk)
def stamp_val(name, sreg, grp=1):
    if not (OPT["stamps"] & grp): return
    i = nstamp[0]; nstamp[0] += 1
    if OPT.get("pmask", 1) and i >= 6: return
    cm(f"stamp {i}: VALUE {name}")
    e(f"s_mov_b32 s{STAMP0+2*i}, {sreg}"); e(f"s_mov_b32 s{STAMP0+2*i+1}, 0x7fffffff")
def stamp_flush(n):
    if not OPT["stamps"]: return
    skip = uid("STF")
    e(f"s_cmp_lg_u32 {WAVE}, {OPT.get('stampwave',0)}"); e(f"s_cbranch_scc1 {skip}")
    e("s_mov_b64 exec, 1")
    e("s_lshl_b32 s9, s2, 8"); e(f"s_add_u32 s9, s9, {WS_ST}")
    e("v_mov_b32 v5, 0")
    if OPT.get("pmask", 1): n = min(n, 6)
    for i in range(n):
        e(f"v_mov_b32 v6, s{STAMP0+2*i}"); e(f"v_mov_b32 v7, s{STAMP0+2*i+1}")
        e(f"buffer_store_dwordx2 v[6:7], v5, {sr(WS)}, s9 offen offset:{8*i}")
        e("s_nop 1")
    e("v_mov_b32 v6, s98"); e("v_mov_b32 v7, s99")
    e(f"buffer_store_dwordx2 v[6:7], v5, {sr(WS)}, s9 offen offset:248")
    e("s_nop 1")
    e("v_mov_b32 v6, s96"); e("v_mov_b32 v7, s97")
    e(f"buffer_store_dwordx2 v[6:7], v5, {sr(WS)}, s9 offen offset:240")
    e("s_memrealtime s[96:97]"); e("s_waitcnt lgkmcnt(0)")
    e("v_mov_b32 v6, s96"); e("v_mov_b32 v7, s97")
    e(f"buffer_store_dwordx2 v[6:7], v5, {sr(WS)}, s9 offen offset:232")
    e("s_mov_b64 exec, -1")
    lab(skip)

def barrier():
    e("s_waitcnt lgkmcnt(0)")
    e("s_barrier")

def divmagic(T):
    return {12: (43, 9), 6: (43, 8), 3: (86, 8), 1: (1, 0)}[T]

def dma_pattern(vd, T, S, sp, t0, t1):
    M, sh = divmagic(T)
    e(f"v_lshrrev_b32 v{t0}, 3, {LANE}")
    if sp is not None:
        e(f"s_lshl_b32 s9, {sp}, 3")
        e(f"v_add_u32 v{t0}, s9, v{t0}")
    if T == 1:
        e(f"v_mov_b32 v{t1}, v{t0}")
        e(f"v_mov_b32 v{t0}, 0")
    else:
        e(f"v_mul_u32_u24 v{t1}, {M}, v{t0}")
        e(f"v_lshrrev_b32 v{t1}, {sh}, v{t1}")
        e(f"v_mul_u32_u24 v{vd}, {T}, v{t1}")
        e(f"v_sub_u32 v{t0}, v{t0}, v{vd}")
    e(f"v_lshlrev_b32 v{t1}, 2, v{t1}")
    e(f"v_bfe_u32 v{vd}, {LANE}, 1, 2")
    e(f"v_add_u32 v{t1}, v{t1}, v{vd}")
    e(f"s_mov_b32 s9, {S}")
    e(f"v_mul_lo_u32 v{t1}, v{t1}, s9")
    e(f"v_lshlrev_b32 v{t0}, 5, v{t0}")
    e(f"v_and_b32 v{vd}, 1, {LANE}")
    e(f"v_lshlrev_b32 v{vd}, 4, v{vd}")
    e(f"v_add3_u32 v{vd}, v{vd}, v{t0}, v{t1}")

def dma_loop(vd, srdb, s_m0, s_off, n, step_m, step_s, nt):
    lp = uid("DMA")
    e(f"s_mov_b32 s12, {n}")
    lab(lp)
    e(f"s_mov_b32 m0, s{s_m0}")
    e(f"s_add_u32 s{s_m0}, s{s_m0}, {step_m}")
    e(f"buffer_load_dwordx4 v{vd}, {sr(srdb)}, s{s_off} offen{' nt' if nt else ''} lds")
    e(f"s_add_u32 s{s_off}, s{s_off}, {step_s}")
    e("s_sub_u32 s12, s12, 1")
    e("s_cmp_lg_u32 s12, 0")
    e(f"s_cbranch_scc1 {lp}")

def row16_allreduce(op, v, nregs=1):
    for sh in (8, 4, 2, 1):
        if nregs < 3: e("s_nop 1")
        for i in range(nregs):
            e(f"{op}_dpp v{v+i}, v{v+i}, v{v+i} row_ror:{sh} row_mask:0xf bank_mask:0xf")
def cross16(op, v, t):
    e(f"v_mov_b32 v{t}, v{v}"); e("s_nop 1")
    e(f"v_permlane16_swap_b32 v{v}, v{t}"); e("s_nop 1")
    e(f"{op} v{v}, v{v}, v{t}")
def cross32(op, v, t):
    e(f"v_mov_b32 v{t}, v{v}"); e("s_nop 1")
    e(f"v_permlane32_swap_b32 v{v}, v{t}"); e("s_nop 1")
    e(f"{op} v{v}, v{v}, v{t}")
def wave_allreduce(op, v, t):
    e("s_nop 1")
    row16_allreduce(op, v)
    e("s_nop 1")
    cross16(op, v, t)
    cross32(op, v, t)

MASK0 = 84
def _poll_generic(loads, checks, vt, init=None):
    n = len(loads)
    lp = uid("POLL"); dn = uid("PDONE")
    masked = OPT.get("pmask", 1) and n <= 8
    e("s_mov_b32 s13, 0")
    if masked:
        e("s_mov_b64 s[100:101], exec")
        for i in range(n):
            if init and init[i] is not None:
                e(f"s_mov_b32 s{MASK0+2*i}, {init[i] & 0xffffffff:#x}"); e(f"s_mov_b32 s{MASK0+2*i+1}, {init[i] >> 32:#x}")
            else: e(f"s_mov_b64 s[{MASK0+2*i}:{MASK0+2*i+1}], exec")
    lab(lp)
    for i, s_ in enumerate(loads):
        if masked:
            sk = uid("PSK")
            e(f"s_mov_b64 exec, s[{MASK0+2*i}:{MASK0+2*i+1}]")
            if n > 1: e(f"s_cbranch_execz {sk}")
            e(s_)
            if n > 1: lab(sk)
        else: e(s_)
    e("s_waitcnt vmcnt(0)")
    if masked:
        for i in range(n):
            e(f"s_mov_b64 exec, s[{MASK0+2*i}:{MASK0+2*i+1}]")
            for c in checks[i]: e(c)
            e(f"v_cmp_ne_u32 vcc, 0, v{vt}")
            e(f"s_mov_b64 s[{MASK0+2*i}:{MASK0+2*i+1}], vcc")
            if i == 0: e("s_mov_b64 s[14:15], vcc")
            else: e("s_or_b64 s[14:15], s[14:15], vcc")
        e("s_mov_b64 exec, s[100:101]")
        e("s_add_u32 s13, s13, 1")
        e("s_cmp_eq_u64 s[14:15], 0")
    else:
        for i in range(n):
            for c in checks[i]: e(c.replace(f"v{vt},", f"v{vt+1},", 1).replace(f", v{vt}", f", v{vt+1}") if False else c)
            if i == 0: e(f"v_mov_b32 v{vt+2}, v{vt}")
            else: e(f"v_or_b32 v{vt+2}, v{vt+2}, v{vt}")
        e(f"v_cmp_ne_u32 vcc, 0, v{vt+2}")
        e("s_add_u32 s13, s13, 1")
        e("s_cmp_eq_u64 vcc, 0")
    e(f"s_cbranch_scc1 {dn}")
    if OPT.get("psleep", 0): e(f"s_sleep {OPT['psleep']}")
    e(f"s_cmp_lt_u32 s13, {OPT['spin']}")
    e(f"s_cbranch_scc1 {lp}")
    if masked: e("s_mov_b64 exec, s[100:101]")
    lab(dn)

def poll(loads, tagregs, vt):
    per = len(tagregs) // len(loads)
    checks = []
    for i in range(len(loads)):
        tr = tagregs[i*per:(i+1)*per]
        if per == 1: checks.append([f"v_xor_b32 v{vt}, {TAG}, v{tr[0]}"])
        else: checks.append([f"v_xor_b32 v{vt}, {TAG}, v{tr[0]}", f"v_xor_b32 v{vt+1}, {TAG}, v{tr[1]}", f"v_or_b32 v{vt}, v{vt}, v{vt+1}"])
    _poll_generic(loads, checks, vt)

def pollx(loads, bases, vt, init=None):
    checks = [[f"v_bitop3_b32 v{vt}, v{b}, v{b+1}, v{b+2} bitop3:0x96", f"v_bitop3_b32 v{vt}, v{vt}, v{b+3}, {VTAG} bitop3:0x96"] for b in bases]
    _poll_generic(loads, checks, vt, init)

def mfma(d, a, b, c=None):
    cs = vr(d, 4) if c is None else c
    e(f"v_mfma_f32_16x16x32_bf16 {vr(d,4)}, {vr(a,4)}, {vr(b,4)}, {cs}")

SCG = " sc1"
EXEC_L15_0 = 0x0001000100010001

def set_exec64(val):
    lo, hi = val & 0xffffffff, val >> 32
    e(f"s_mov_b32 exec_lo, {lo:#x}"); e(f"s_mov_b32 exec_hi, {hi:#x}")
def exec_all(): e("s_mov_b64 exec, -1")

def prologue():
    if OPT["stamps"] or OPT.get("diagx", 0): e("s_memrealtime s[96:97]")
    e("s_cmp_ge_u32 s2, 256")
    e("s_cbranch_scc1 L_END")
    e("s_load_dwordx16 s[16:31], s[0:1], 0")
    e("s_load_dwordx8 s[32:39], s[0:1], 64")
    e("s_load_dwordx2 s[40:41], s[0:1], 96")
    e(f"v_lshrrev_b32 v5, 6, v0")
    e(f"v_and_b32 {LANE}, 63, v0")
    e(f"v_readfirstlane_b32 {WAVE}, v5")
    e(f"v_lshrrev_b32 {G}, 4, {LANE}")
    e(f"v_and_b32 {L15}, 15, {LANE}")
    e(f"s_and_b32 {X}, s2, 7")
    e(f"s_lshr_b32 {J}, s2, 3")
    e(f"s_mul_i32 s64, {WAVE}, 11"); e("s_lshr_b32 s64, s64, 5")
    e("s_mul_i32 s65, s64, 3"); e(f"s_sub_u32 s65, {WAVE}, s65")
    e(f"s_cmp_ge_u32 {J}, 16")
    e("s_cbranch_scc1 L_Y")

def kernarg_ready():
    e("s_waitcnt lgkmcnt(0)")
    e(f"s_load_dword {TAG}, s[{P_WS}:{P_WS+1}], 0")
    srd(WS, P_WS, WS_SIZE)

def get_tag():
    e("s_waitcnt lgkmcnt(0)")
    e(f"s_mul_i32 {TAG}, {TAG}, 1664525")
    e(f"s_add_u32 {TAG}, {TAG}, 1013904223")
    e(f"v_mov_b32 {VTAG}, {TAG}")

def hello_publish(vt):
    if not OPT.get("local", 1): return
    sk = uid("HEL")
    e(f"s_cmp_lg_u32 {WAVE}, 15"); e(f"s_cbranch_scc1 {sk}")
    e("s_getreg_b32 s9, hwreg(HW_REG_XCC_ID, 0, 4)")
    e(f"s_lshl_b32 s10, {X}, 8"); e("s_lshr_b32 s11, s2, 3"); e("s_lshl_b32 s11, s11, 3"); e("s_add_u32 s10, s10, s11"); e(f"s_add_u32 s10, s10, {WS_HELLO}")
    e(f"v_mov_b32 v{vt}, s9"); e(f"v_mov_b32 v{vt+1}, {TAG}"); e(f"v_mov_b32 v{vt+2}, 0")
    e("s_mov_b64 exec, 1")
    e(f"buffer_store_dwordx2 v[{vt}:{vt+1}], v{vt+2}, {sr(WS)}, s10 offen sc1")
    exec_all()
    lab(sk)

XL_U = 0
XL_UK = 61440
XL_MG, XL_MU, XL_MD = 73728, 94208, 114688
XL_S = 147456
XL_XN = XL_S
XL_Q = XL_S + 1280
XL_CL = XL_S + 2048
CL_RS = 400
XL_CB = XL_S + 14848
XL_W = XL_S + 15232
XL_FLAG = XL_S + 15360
XL_H = XL_S + 2048
XL_ST = XL_S + 4608
XL_G = XL_S + 4736
XL_HH = XL_S + 6144
XL_R2 = XL_S + 6400
XL_R = XL_S + 8192

def st_global(data, voff, soff):
    e(f"buffer_store_dwordx4 {data}, {voff}, {sr(WS)}, {soff} offen sc1")
def st_local(data, voff, soff):
    g = uid("STG"); d = uid("STD")
    e("s_nop 0"); e("v_readfirstlane_b32 s10, v123"); e("s_nop 3")
    e("s_cmp_eq_u32 s10, 1"); e(f"s_cbranch_scc0 {g}")
    e(f"buffer_store_dwordx4 {data}, {voff}, {sr(WS)}, {soff} offen")
    e(f"s_branch {d}")
    lab(g)
    e(f"buffer_store_dwordx4 {data}, {voff}, {sr(WS)}, {soff} offen sc1")
    lab(d)

XL_CX = None
def collect_store(acc, lds_base, soff_code, flavor, lbl):
    e(f"v_cvt_pk_bf16_f32 v124, v{acc}, v{acc+1}"); e(f"v_cvt_pk_bf16_f32 v125, v{acc+2}, v{acc+3}")
    e(f"v_lshlrev_b32 v5, 3, {G}"); e(f"s_lshl_b32 s9, {WAVE}, 5"); e(f"s_add_u32 s9, s9, {lds_base}"); e("v_add_u32 v5, s9, v5")
    set_exec64(EXEC_L15_0)
    e("ds_write_b64 v5, v[124:125]")
    exec_all()
    lab(lbl)
    barrier()
    sk = uid("CST")
    e(f"s_cmp_lg_u32 {WAVE}, 0"); e(f"s_cbranch_scc1 {sk}")
    e(f"v_lshlrev_b32 v5, 3, {LANE}"); e(f"v_add_u32 v6, {lds_base}, v5")
    set_exec64((1 << 48) - 1)
    e("ds_read_b64 v[124:125], v6")
    if flavor is st_local:
        e(f"v_mov_b32 v7, {XL_FLAG}"); e("ds_read_b32 v123, v7")
    soff_code()
    e(f"v_lshlrev_b32 v5, 4, {LANE}")
    e("s_waitcnt lgkmcnt(0)")
    e("v_mov_b32 v126, v125"); e(f"v_mov_b32 v125, {VTAG}"); e(f"v_mov_b32 v127, {VTAG}")
    flavor("v[124:127]", "v5", "s9")
    exec_all()
    lab(sk)

def code_touch(vd, wave=15):
    if not OPT["prefetch_code"]: return
    sk = uid("CT"); pc = uid("PC")
    e(f"s_cmp_lg_u32 {WAVE}, {wave}"); e(f"s_cbranch_scc1 {sk}")
    e("s_getpc_b64 s[10:11]")
    lab(pc)
    e(f"s_sub_u32 s10, s10, {pc}-{NAME}_kernel"); e("s_subb_u32 s11, s11, 0")
    e("s_lshr_b32 s9, s2, 3"); e("s_and_b32 s9, s9, 15"); e("s_lshl_b32 s9, s9, 10")
    e(f"v_lshl_add_u32 v{vd}, {LANE}, 4, s9")
    e(f"s_mov_b32 s9, L_END-{NAME}_kernel-16")
    e(f"v_min_u32 v{vd}, s9, v{vd}")
    e(f"global_load_dwordx4 v[{vd}:{vd+3}], v{vd}, s[10:11]")
    lab(sk)

def x_program():
    lab("L_X")
    e(f"s_lshr_b32 s9, {J}, 2"); e(f"s_lshl_b32 {H}, {X}, 2"); e(f"s_add_u32 {H}, {H}, s9")
    e(f"s_and_b32 {R}, {J}, 3")
    dma_pattern(15, 12, 12288, "s65", 17, 18)
    if OPT.get("dmaexp", 0):
        e(f"v_lshrrev_b32 v17, 4, {LANE}"); e("s_lshl_b32 s9, s65, 2"); e("v_add_u32 v17, s9, v17"); e("v_mul_u32_u24 v17, 12288, v17")
        e(f"v_lshl_add_u32 v17, {L15}, 4, v17")
        e(f"v_lshrrev_b32 v18, 3, {LANE}"); e("v_mul_u32_u24 v18, 12288, v18"); e(f"v_and_b32 v15, 7, {LANE}"); e("v_lshl_add_u32 v18, v15, 4, v18"); e("v_add_u32 v18, 256, v18")
        e("s_cmp_eq_u32 s65, 2"); e("s_cselect_b64 vcc, -1, 0"); e("s_nop 1"); e("v_cndmask_b32 v15, v17, v18, vcc")
    e(f"v_cmp_lt_u32 vcc, 23, {LANE}"); e(f"v_subrev_u32 v6, 24, {LANE}"); e("s_nop 0")
    e(f"v_cndmask_b32 v14, {LANE}, v6, vcc"); e("v_lshlrev_b32 v14, 4, v14")
    e("v_mov_b32 v6, 12288"); e("v_cndmask_b32 v6, 0, v6, vcc"); e("v_add_u32 v14, v14, v6")
    e(f"v_lshlrev_b32 v5, 2, {LANE}")
    e(f"s_mul_i32 s10, {R}, 160"); e("s_lshl_b32 s11, s64, 3"); e("s_add_u32 s10, s10, s11")
    e("s_mul_i32 s11, s10, 12288"); e(f"s_mul_i32 s67, {H}, 384"); e("s_add_u32 s11, s11, s67")
    e(f"s_sub_u32 s9, {WAVE}, 12")
    e(f"s_mul_i32 s66, {R}, 192"); e("s_lshl_b32 s10, s9, 1"); e("s_add_u32 s66, s66, s10")
    e("s_mul_i32 s66, s66, 12288"); e("s_add_u32 s66, s66, s67")
    e(f"s_mul_i32 s68, s9, 800"); e(f"s_add_u32 s68, s68, {XL_UK}")
    e(f"s_lshl_b32 s10, {WAVE}, 10")
    kernarg_ready()
    srd(SA, P_WQ, 7864320); srd(SB, P_WUK, 9437184); srd(SC_, P_X, 1280)
    stamp("x: start", 2047)
    e(f"s_cmp_eq_u32 {WAVE}, 15"); e("s_cbranch_scc1 X_LN")
    e(f"s_cmp_ge_u32 {WAVE}, 12"); e("s_cbranch_scc1 X_UKD")
    dma_loop(15, SA, 10, 11, 5, 12 * 1024, 32 * 12288, OPT["xnt"])
    e("s_barrier")
    e("s_waitcnt vmcnt(0)")
    e("s_branch X_B1")
    lab("X_UKD")
    e("s_barrier")
    set_exec64((1<<48)-1)
    npre = OPT.get("ukpre", 4)
    dma_loop(14, SB, 68, 66, npre, 3 * 800, 6 * 12288, OPT["xnt"])
    exec_all()
    lab("X_B1")
    get_tag()
    if OPT.get("diagw", 0):
        e("s_memtime s[76:77]"); e("s_waitcnt lgkmcnt(0)")
        e("s_barrier")
        e("s_memtime s[78:79]"); e("s_waitcnt vmcnt(0)"); e("s_memtime s[80:81]"); e("s_waitcnt lgkmcnt(0)")
        e("s_lshl_b32 s9, s2, 10"); e(f"s_lshl_b32 s10, {WAVE}, 6"); e("s_add_u32 s9, s9, s10"); e(f"s_add_u32 s9, s9, {WS_ST}")
        e("s_mov_b64 exec, 1"); e("v_mov_b32 v5, 0")
        for i, b in enumerate((72, 74, 76, 78, 80, 96)):
            e(f"v_mov_b32 v6, s{b}"); e(f"v_mov_b32 v7, s{b+1}")
            e(f"buffer_store_dwordx2 v[6:7], v5, {sr(WS)}, s9 offen offset:{8*i}"); e("s_nop 1")
        e("s_endpgm")
    stamp("x: wq landed", 9)
    barrier()
    stamp("x: after B1", 8)
    e(f"s_cmp_ge_u32 {WAVE}, 12"); e("s_cbranch_scc1 X_UK2")
    e(f"v_mul_u32_u24 v5, 3072, {G}"); e(f"v_lshl_add_u32 v5, {L15}, 3, v5")
    e(f"s_lshl_b32 s9, {WAVE}, 7"); e("v_add_u32 v13, s9, v5")
    e(f"s_mul_i32 s9, {R}, 320"); e(f"s_add_u32 s9, s9, {XL_XN}")
    e(f"v_lshl_add_u32 v6, {G}, 4, s9")
    for ks in range(5):
        e(f"ds_read_b128 {vr(64+4*ks,4)}, v6 offset:{64*ks}")
        e(f"ds_read_b64_tr_b16 {vr(40+4*ks,2)}, v13 offset:{XL_U+ks*12288}")
        e(f"ds_read_b64_tr_b16 {vr(42+4*ks,2)}, v13 offset:{XL_U+ks*12288+1536}")
    e(f"s_lshl_b32 s9, {H}, 2"); e(f"s_add_u32 s9, s9, {R}"); e("s_mul_i32 s9, s9, 1536")
    e(f"s_lshl_b32 s10, {WAVE}, 7"); e("s_add_u32 s9, s9, s10"); e(f"s_add_u32 s9, s9, {WS_E1}")
    e(f"v_lshlrev_b32 v5, 3, {L15}")
    for ks in range(5):
        e(f"s_waitcnt lgkmcnt({3*(4-ks)})")
        mfma(88, 64 + 4 * ks, 40 + 4 * ks, "0" if ks == 0 else None)
    e("s_nop 7")
    e(f"v_mov_b32 v89, {VTAG}")
    e("s_mov_b64 exec, 0xffff")
    e(f"buffer_store_dwordx2 v[88:89], v5, {sr(WS)}, s9 offen{SCG}")
    exec_all()
    stamp("x: q published", 9)
    e("s_branch X_B3")
    lab("X_UK2")
    e(f"s_cmp_eq_u32 {WAVE}, 15"); e("s_cbranch_scc1 X_B3")
    set_exec64((1<<48)-1)
    dma_loop(14, SB, 68, 66, 32 - OPT.get("ukpre", 4), 3 * 800, 6 * 12288, OPT["xnt"])
    exec_all()
    e(f"s_cmp_ge_u32 {WAVE}, 14"); e("s_cbranch_scc1 X_B3W")
    e(f"s_sub_u32 s9, {WAVE}, 12"); e("s_lshl_b32 s9, s9, 6"); e(f"v_add_u32 v5, s9, {LANE}")
    e("v_cmp_gt_u32 vcc, 96, v5"); e("s_and_saveexec_b64 s[42:43], vcc")
    e("v_lshlrev_b32 v6, 4, v5")
    e(f"s_mul_i32 s9, {H}, 6144"); e(f"s_add_u32 s9, s9, {WS_E1}")
    e("s_add_u32 s10, s9, 3072")
    stamp("x: E1 poll start", 8)
    poll([f"buffer_load_dwordx4 v[92:95], v6, {sr(WS)}, s9 offen sc1",
          f"buffer_load_dwordx4 v[96:99], v6, {sr(WS)}, s9 offen offset:1536 sc1",
          f"buffer_load_dwordx4 v[100:103], v6, {sr(WS)}, s10 offen sc1",
          f"buffer_load_dwordx4 v[104:107], v6, {sr(WS)}, s10 offen offset:1536 sc1"],
         [93, 95, 97, 99, 101, 103, 105, 107], 108)
    stamp("x: E1 poll end", 8); stamp_val("E1 iters", "s13", 8)
    e("v_add_f32 v92, v92, v96"); e("v_add_f32 v94, v94, v98")
    e("v_add_f32 v100, v100, v104"); e("v_add_f32 v102, v102, v106")
    e("v_add_f32 v92, v92, v100"); e("v_add_f32 v94, v94, v102")
    qs = 192 ** -0.5 * math.log2(math.e)
    e(f"v_mul_f32 v92, {F(qs)}, v92"); e(f"v_mul_f32 v94, {F(qs)}, v94")
    e("v_cvt_pk_bf16_f32 v92, v92, v94")
    e("v_lshlrev_b32 v6, 2, v5"); e(f"v_add_u32 v6, {XL_Q}, v6")
    e("ds_write_b32 v6, v92")
    e("s_mov_b64 exec, s[42:43]")
    lab("X_B3W")
    e("s_waitcnt vmcnt(0)")
    lab("X_B3")
    barrier()
    stamp("x: q gathered", 9)
    e(f"s_cmp_ge_u32 {WAVE}, 12"); e("s_cbranch_scc1 X_P2B")
    e(f"v_lshlrev_b32 v6, 4, {G}"); e(f"v_add_u32 v6, {XL_Q}, v6")
    e(f"v_lshrrev_b32 v7, 1, {L15}"); e("v_mul_u32_u24 v7, 800, v7")
    e(f"v_and_b32 v8, 1, {L15}"); e("v_mul_u32_u24 v8, 384, v8"); e("v_add_u32 v7, v7, v8")
    e(f"v_lshl_add_u32 v7, {G}, 4, v7")
    e(f"s_mul_i32 s9, {WAVE}, 6400"); e(f"s_add_u32 s9, s9, {XL_UK}"); e("v_add_u32 v7, s9, v7")
    for ks in range(6):
        e(f"ds_read_b128 {vr(16+4*ks,4)}, v7 offset:{64*ks}")
        e(f"ds_read_b128 {vr(64+4*ks,4)}, v6 offset:{64*ks}")
    for ks in range(6):
        e(f"s_waitcnt lgkmcnt({2*(5-ks)})")
        mfma(88, 16 + 4 * ks, 64 + 4 * ks, "0" if ks == 0 else None)
    e("s_nop 7")
    def soff_qa():
        e(f"s_mul_i32 s9, {H}, 3072"); e(f"s_mul_i32 s10, {R}, 768"); e("s_add_u32 s9, s9, s10"); e(f"s_add_u32 s9, s9, {WS_QA}")
    collect_store(88, XL_CB, soff_qa, st_global, "X_P2B")
    stamp("x: qabs published", 9|128|256)
    if OPT.get("xstop", 0) == 1:
        e("s_waitcnt vmcnt(0)"); barrier(); stamp("x: all waves done"); e("s_branch X_END")
    srd(SA, P_WUV, 9437184)
    e(f"s_cmp_ge_u32 {WAVE}, 12"); e("s_cbranch_scc1 X_B4")
    e(f"s_mul_i32 s10, {R}, 192"); e("s_lshl_b32 s11, s64, 3"); e("s_add_u32 s10, s10, s11")
    e("s_mul_i32 s11, s10, 12288"); e("s_add_u32 s11, s11, s67")
    e(f"s_lshl_b32 s10, {WAVE}, 10"); e(f"s_add_u32 s10, s10, {XL_U}")
    dma_loop(15, SA, 10, 11, 6, 12 * 1024, 32 * 12288, OPT["xnt"])
    lab("X_B4")
    e(f"v_lshrrev_b32 v8, 5, {LANE}"); e(f"s_lshl_b32 s9, {WAVE}, 1"); e("v_add_u32 v8, s9, v8")
    e(f"v_and_b32 v9, 31, {LANE}")
    e("v_mul_u32_u24 v6, 2176, v8"); e("v_lshl_add_u32 v6, v9, 4, v6")
    e(f"v_mul_u32_u24 v10, {CL_RS}, v8"); e("v_mul_u32_u24 v11, 12, v9"); e("v_add_u32 v10, v10, v11")
    e(f"v_add_u32 v118, {XL_CL}, v10")
    e("s_waitcnt vmcnt(0)")
    if OPT.get("retouch", 1): code_touch(124)
    stamp("x: burst2 landed", 1|256)
    barrier()
    if OPT.get("xstop", 0) == 2: e("s_branch X_END")
    e(f"s_cmp_ge_u32 {WAVE}, 12"); e("s_cbranch_scc1 X_NPR")
    for ks in range(6):
        e(f"ds_read_b64_tr_b16 {vr(40+4*ks,2)}, v13 offset:{XL_U+ks*12288}")
        e(f"ds_read_b64_tr_b16 {vr(42+4*ks,2)}, v13 offset:{XL_U+ks*12288+1536}")
    lab("X_NPR")
    e(f"s_mul_i32 s9, {H}, 69632"); e(f"s_add_u32 s69, s9, {WS_E3 + 2048}"); e(f"s_lshl_b32 s10, {R}, 9"); e("s_add_u32 s9, s9, s10")
    e(f"s_add_u32 s9, s9, {WS_E3}")
    e(f"s_cmp_eq_u32 {WAVE}, 12"); e("s_cbranch_scc1 X_ML")
    stamp("x: E3 poll start", 16)
    pollx([f"buffer_load_dwordx4 v[96:99], v6, {sr(WS)}, s9 offen sc1"], [96], 108)
    stamp("x: E3 poll end", 16); stamp_val("E3 iters", "s13", 16)
    e("ds_write2_b32 v118, v96, v97 offset1:1"); e("ds_write_b32 v118, v98 offset:8")
    if OPT.get("local", 1):
        sk = uid("HCK")
        e(f"s_cmp_lg_u32 {WAVE}, 13"); e(f"s_cbranch_scc1 {sk}")
        e(f"v_lshlrev_b32 v5, 3, {LANE}")
        e(f"s_lshl_b32 s10, {X}, 8"); e(f"s_add_u32 s10, s10, {WS_HELLO + 128}")
        e("s_getreg_b32 s11, hwreg(HW_REG_XCC_ID, 0, 4)")
        e("s_mov_b64 exec, 0x3ff")
        e(f"buffer_load_dwordx2 v[100:101], v5, {sr(WS)}, s10 offen sc1")
        e("s_waitcnt vmcnt(0)")
        e("v_xor_b32 v100, s11, v100"); e(f"v_xor_b32 v101, {TAG}, v101"); e("v_or_b32 v100, v100, v101")
        e("v_cmp_ne_u32 vcc, 0, v100")
        e("s_cmp_eq_u64 vcc, 0"); e("s_cselect_b32 s10, 1, 0")
        e("s_mov_b64 exec, 1")
        e(f"v_mov_b32 v100, s10"); e(f"v_mov_b32 v5, {XL_FLAG}"); e("ds_write_b32 v5, v100")
        exec_all()
        lab(sk)
    e("s_branch X_B5")
    lab("X_ML")
    e(f"v_and_b32 v5, 31, {LANE}"); e("v_mul_u32_u24 v5, 2176, v5")
    pollx([f"buffer_load_dwordx4 v[100:103], v6, {sr(WS)}, s9 offen sc1",
           f"buffer_load_dwordx4 v[96:99], v5, {sr(WS)}, s69 offen sc1"], [100, 96], 108, init=[None, 0xffffffff])
    e("ds_write2_b32 v118, v100, v101 offset1:1"); e("ds_write_b32 v118, v102 offset:8")
    e("v_mov_b32 v98, v96")
    e("s_nop 1"); row16_allreduce("v_max_f32", 98); e("s_nop 1"); cross16("v_max_f32", 98, 99)
    e("v_sub_f32 v96, v96, v98"); e("v_exp_f32 v96, v96"); e("s_nop 0")
    e("v_mul_f32 v97, v96, v97")
    e("s_nop 1"); row16_allreduce("v_add_f32", 97); e("s_nop 1"); cross16("v_add_f32", 97, 99)
    e("v_rcp_f32 v97, v97"); e("s_nop 0")
    e("v_mul_f32 v96, v96, v97")
    e("v_cvt_pk_bf16_f32 v97, v96, v96")
    e("v_and_b32 v98, 0xffff0000, v97")
    e("v_sub_f32 v96, v96, v98")
    e("v_cvt_pk_bf16_f32 v96, v96, v96")
    e(f"v_and_b32 v5, 31, {LANE}"); e("v_lshlrev_b32 v5, 1, v5"); e(f"v_add_u32 v5, {XL_W}, v5")
    set_exec64(0xffffffff)
    e("ds_write_b16 v5, v97"); e("ds_write_b16 v5, v96 offset:64")
    exec_all()
    lab("X_B5")
    barrier()
    stamp("x: E3 gathered", 17|128|256)
    e(f"s_cmp_ge_u32 {WAVE}, 12"); e("s_cbranch_scc1 X_B5b")
    e(f"v_lshrrev_b32 v5, 2, {L15}"); e(f"v_lshl_add_u32 v5, {G}, 3, v5"); e(f"v_mul_u32_u24 v5, {CL_RS}, v5")
    e(f"v_and_b32 v6, 3, {L15}"); e("v_lshl_add_u32 v5, v6, 3, v5")
    e(f"s_lshl_b32 s9, {WAVE}, 5"); e(f"s_add_u32 s9, s9, {XL_CL}"); e("v_add_u32 v5, s9, v5")
    e(f"ds_read_b64_tr_b16 v[96:97], v5"); e(f"ds_read_b64_tr_b16 v[98:99], v5 offset:{4*CL_RS}")
    e(f"v_and_b32 v6, 1, {LANE}"); e("v_lshlrev_b32 v6, 6, v6"); e(f"v_lshl_add_u32 v6, {G}, 4, v6")
    e(f"v_add_u32 v6, {XL_W}, v6")
    e("ds_read_b128 v[100:103], v6")
    e(f"v_lshlrev_b32 v5, 1, {L15}"); e(f"s_lshl_b32 s9, {WAVE}, 5"); e(f"s_add_u32 s9, s9, {XL_CB}"); e("v_add_u32 v5, s9, v5")
    e("s_waitcnt lgkmcnt(0)")
    mfma(120, 100, 96, "0")
    e("s_nop 7")
    e("v_add_f32 v120, v120, v121")
    e("v_cvt_pk_bf16_f32 v120, v120, v120")
    e("s_mov_b64 exec, 0xffff")
    e("ds_write_b16 v5, v120")
    exec_all()
    lab("X_B5b")
    barrier()
    e(f"s_cmp_ge_u32 {WAVE}, 12"); e("s_cbranch_scc1 X_UPD")
    e(f"v_lshlrev_b32 v5, 4, {G}"); e(f"v_add_u32 v6, {XL_CB}, v5")
    for ks in range(6): e(f"ds_read_b128 {vr(96+4*ks,4)}, v6 offset:{64*ks}")
    for ks in range(6):
        e(f"s_waitcnt lgkmcnt({5-ks})")
        mfma(120, 40 + 4 * ks, 96 + 4 * ks, "0" if ks == 0 else None)
    e("s_nop 7")
    def soff_e4():
        e(f"s_lshl_b32 s9, {X}, 2"); e(f"s_add_u32 s9, s9, {R}"); e("s_mul_i32 s9, s9, 3072")
        e(f"s_and_b32 s10, {H}, 3"); e("s_mul_i32 s10, s10, 768"); e("s_add_u32 s9, s9, s10"); e(f"s_add_u32 s9, s9, {WS_E4}")
    collect_store(120, XL_Q, soff_e4, st_local if OPT.get("local", 1) else st_global, "X_UPD")
    stamp("x: ctx published", 1|128|256)
    e(f"s_cmp_ge_u32 {J}, 5"); e("s_cbranch_scc1 X_END")
    e(f"s_mul_i32 s66, {X}, 5"); e(f"s_add_u32 s66, s66, {J}")
    e(f"s_cmp_ge_u32 {WAVE}, 7"); e("s_cbranch_scc1 X_B9")
    e(f"s_cmp_eq_u32 {WAVE}, 6"); e("s_cbranch_scc1 X_FH")
    e(f"v_lshrrev_b32 v5, 3, {LANE}"); e("v_mul_u32_u24 v5, 5120, v5")
    e(f"v_and_b32 v6, 7, {LANE}"); e("v_lshl_add_u32 v5, v6, 4, v5")
    e(f"s_mul_i32 s9, {WAVE}, 40960"); e("s_lshl_b32 s10, s66, 7"); e("s_add_u32 s9, s9, s10")
    e(f"s_add_u32 s9, s9, {WS_E6}")
    poll([f"buffer_load_dwordx4 v[92:95], v5, {sr(WS)}, s9 offen sc1"], [93, 95], 108)
    e("v_mov_b32 v93, v94")
    e("s_nop 1")
    for i in range(2):
        e(f"v_add_f32_dpp v{92+i}, v{92+i}, v{92+i} row_ror:8 row_mask:0xf bank_mask:0xf")
    for i in range(2):
        cross16("v_add_f32", 92 + i, 96); cross32("v_add_f32", 92 + i, 96)
    e("v_lshlrev_b32 v6, 3, v6"); e(f"s_lshl_b32 s9, {WAVE}, 6"); e(f"s_add_u32 s9, s9, {XL_R2}")
    e("v_add_u32 v6, s9, v6")
    e("s_mov_b64 exec, 0xff")
    e("ds_write_b64 v6, v[92:93]")
    exec_all()
    e("s_branch X_B9")
    lab("X_FH")
    e(f"v_bfe_u32 v5, {LANE}, 2, 3"); e("v_mul_u32_u24 v5, 2560, v5")
    e(f"v_and_b32 v6, 3, {LANE}"); e("v_lshl_add_u32 v5, v6, 4, v5")
    e("s_lshl_b32 s9, s66, 6"); e(f"s_add_u32 s9, s9, {WS_E5}")
    e("v_lshlrev_b32 v7, 3, v6"); e("s_lshl_b32 s10, s66, 5")
    e(f"buffer_load_dwordx2 v[104:105], v7, {sr(SC_)}, s10 offen")
    set_exec64(0xffffffff)
    poll([f"buffer_load_dwordx4 v[92:95], v5, {sr(WS)}, s9 offen sc1"], [93, 95], 108)
    exec_all()
    e("v_lshlrev_b32 v96, 16, v92"); e("v_and_b32 v97, 0xffff0000, v92")
    e("v_lshlrev_b32 v98, 16, v94"); e("v_and_b32 v99, 0xffff0000, v94")
    e("s_nop 1")
    for sh in (4, 8):
        for i in range(4):
            e(f"v_add_f32_dpp v{96+i}, v{96+i}, v{96+i} row_ror:{sh} row_mask:0xf bank_mask:0xf")
    for i in range(4): cross16("v_add_f32", 96 + i, 100)
    e("v_lshlrev_b32 v100, 16, v104"); e("v_and_b32 v101, 0xffff0000, v104")
    e("v_lshlrev_b32 v102, 16, v105"); e("v_and_b32 v103, 0xffff0000, v105")
    for i in range(4): e(f"v_add_f32 v{96+i}, v{96+i}, v{100+i}")
    e("v_lshlrev_b32 v6, 4, v6"); e(f"v_add_u32 v6, {XL_H}, v6")
    e("s_mov_b64 exec, 0xf")
    e("ds_write_b128 v6, v[96:99]")
    exec_all()
    lab("X_B9")
    barrier()
    e(f"s_cmp_lg_u32 {WAVE}, 0"); e("s_cbranch_scc1 X_END")
    e(f"v_lshlrev_b32 v5, 3, {LANE}"); e(f"v_add_u32 v6, {XL_R2}, v5"); e(f"v_add_u32 v7, {XL_H}, v5")
    e("s_mov_b64 exec, 0xff")
    for w in range(6): e(f"ds_read_b64 {vr(92+2*w,2)}, v6 offset:{64*w}")
    e("ds_read_b64 v[116:117], v7")
    srd(SD, P_OUT, 1280)
    e("s_waitcnt lgkmcnt(0)")
    for w in range(1, 6):
        e(f"v_add_f32 v92, v92, v{92+2*w}"); e(f"v_add_f32 v93, v93, v{93+2*w}")
    e("v_add_f32 v92, v92, v116"); e("v_add_f32 v93, v93, v117")
    e("v_cvt_pk_bf16_f32 v92, v92, v93")
    e(f"v_lshlrev_b32 v5, 2, {LANE}"); e("s_lshl_b32 s9, s66, 5")
    e(f"buffer_store_dword v92, v5, {sr(SD)}, s9 offen")
    e("s_cmp_lg_u32 s66, 0"); e("s_cbranch_scc1 X_EP")
    e("s_mov_b64 exec, 1")
    e("v_mov_b32 v5, 0")
    e(f"buffer_store_dword {VTAG}, v5, {sr(WS)}, 0 offen sc1")
    lab("X_EP")
    exec_all()
    lab("X_END")
    stamp("x: end", 1|128|1024)
    stamp_flush(nstamp[0])
    e("s_endpgm")
    lab("X_LN")
    for i in range(5):
        e(f"buffer_load_dword v{16+i}, v5, {sr(SC_)}, 0 offen offset:{256*i}")
    e("s_barrier")
    e("s_waitcnt vmcnt(0)")
    for i in range(5):
        e(f"v_lshlrev_b32 v{21+2*i}, 16, v{16+i}")
        e(f"v_and_b32 v{22+2*i}, 0xffff0000, v{16+i}")
    e("v_add_f32 v31, v21, v22")
    for i in range(23, 31): e(f"v_add_f32 v31, v31, v{i}")
    wave_allreduce("v_add_f32", 31, 32)
    e(f"v_mul_f32 v31, {F(1.0/640.0)}, v31")
    for i in range(21, 31): e(f"v_sub_f32 v{i}, v{i}, v31")
    e("v_mul_f32 v33, v21, v21")
    for i in range(22, 31): e(f"v_fmac_f32 v33, v{i}, v{i}")
    wave_allreduce("v_add_f32", 33, 32)
    e(f"v_mov_b32 v32, {F(1e-5)}")
    e(f"v_fmac_f32 v32, {F(1.0/640.0)}, v33")
    e("v_rsq_f32 v32, v32"); e("s_nop 0")
    for i in range(21, 31): e(f"v_mul_f32 v{i}, v{i}, v32")
    for i in range(5): e(f"v_cvt_pk_bf16_f32 v{16+i}, v{21+2*i}, v{22+2*i}")
    e(f"v_add_u32 v5, {XL_XN}, v5")
    for i in range(5): e(f"ds_write_b32 v5, v{16+i} offset:{256*i}")
    e("s_branch X_B1")

CH_KB = 6272
CH_SZ = 8 * CH_KB
YL_C = 0
YL_QA = 2 * CH_SZ
YL_SP = YL_QA + 12416
YL_PF = YL_SP + 34816
YL_M = YL_PF + 4096
YL_R = YL_M + 64
YL_MG, YL_MU, YL_MD = 0, 40960, 81920
YL_H = 131072
YL_ST = YL_H + 2560
YL_G = YL_H + 2688
YL_HH = YL_H + 5376
assert YL_R + 3072 <= 163840
HG = "s7"

def y_program():
    nstamp[0] = 0
    lab("L_Y")
    e(f"s_sub_u32 {J}, {J}, 16")
    e(f"s_and_b32 {HG}, {J}, 3"); e(f"s_lshr_b32 {KC}, {J}, 2")
    e(f"v_bfe_u32 v5, {LANE}, 1, 2"); e("v_mul_u32_u24 v5, 1536, v5")
    e(f"v_lshrrev_b32 v6, 3, {LANE}"); e("v_lshl_add_u32 v5, v6, 5, v5")
    e(f"v_and_b32 v6, 1, {LANE}"); e("v_lshl_add_u32 v15, v6, 4, v5")
    e(f"s_lshl_b32 s9, {X}, 9"); e(f"s_lshl_b32 s10, {KC}, 7"); e("s_add_u32 s9, s9, s10")
    e(f"s_lshr_b32 s10, {WAVE}, 1"); e("s_lshl_b32 s11, s10, 2"); e("s_add_u32 s9, s9, s11")
    e("s_mul_i32 s66, s9, 1536")
    e(f"s_and_b32 s11, {WAVE}, 1"); e("s_mul_i32 s11, s11, 3"); e("s_lshl_b32 s14, s11, 8"); e("s_add_u32 s66, s66, s14")
    e(f"s_mul_i32 s67, s10, {CH_KB}"); e("s_lshl_b32 s14, s11, 10"); e("s_add_u32 s67, s67, s14")
    kernarg_ready()
    srd(SA, P_CKV, 6291456)
    stamp("y: start", 2047)
    if OPT.get("ystop", 0) == 1: e("s_branch Y_END")
    code_touch(120)
    ynt = OPT["ynt"]
    def chunk_dma(ch):
        e(f"s_add_u32 s10, s67, {(ch % 2) * CH_SZ}"); e(f"s_add_u32 s11, s66, {ch * 32 * 1536}")
        for i in range(3):
            e("s_mov_b32 m0, s10"); e("s_add_u32 s10, s10, 1024")
            e(f"buffer_load_dwordx4 v15, {sr(SA)}, s11 offen{' nt' if ynt else ''} lds")
            e("s_add_u32 s11, s11, 256")
    chunk_dma(0); chunk_dma(1)
    e(f"v_lshlrev_b32 v5, 2, v0"); e(f"v_add_u32 v5, {YL_PF}, v5"); e("v_mov_b32 v6, 0"); e("ds_write_b32 v5, v6")
    e(f"s_and_b32 s68, {WAVE}, 3"); e(f"s_lshr_b32 s69, {WAVE}, 2")
    e(f"v_lshrrev_b32 v5, 2, {L15}")
    e(f"v_mul_u32_u24 v5, {CH_KB}, v5")
    e(f"v_and_b32 v6, 3, {L15}"); e("v_lshl_add_u32 v5, v6, 5, v5")
    e(f"v_lshrrev_b32 v6, 1, {G}"); e("v_lshl_add_u32 v5, v6, 7, v5")
    e(f"v_and_b32 v6, 1, {G}"); e("v_lshl_add_u32 v5, v6, 4, v5")
    e("s_mul_i32 s9, s69, 1536"); e("v_add_u32 v13, s9, v5")
    e(f"v_mul_u32_u24 v5, {CH_KB}, {G}"); e(f"v_lshl_add_u32 v5, {L15}, 3, v5")
    e(f"s_mul_i32 s9, {WAVE}, 384"); e("v_add_u32 v14, s9, v5")
    e(f"v_add_u32 v8, {CH_SZ}, v14"); e(f"v_add_u32 v11, {CH_SZ}, v13")
    for n in range(2):
        e(f"v_add_u32 v{6+n}, {1024*n}, v0")
        e(f"s_mov_b32 s9, 43691")
        e(f"v_mul_lo_u32 v{9+n}, v{6+n}, s9"); e(f"v_lshrrev_b32 v{9+n}, 23, v{9+n}")
        e(f"v_mul_u32_u24 v12, 192, v{9+n}"); e(f"v_sub_u32 v12, v{6+n}, v12")
        e(f"v_mul_u32_u24 v{9+n}, 1552, v{9+n}"); e(f"v_lshl_add_u32 v{9+n}, v12, 3, v{9+n}")
        e(f"v_add_u32 v{9+n}, {YL_QA}, v{9+n}")
        e(f"v_lshlrev_b32 v{6+n}, 4, v{6+n}")
    SF, PVF = 16, 64
    def read_frags(ch):
        sb, pb = ("v13", "v14") if ch % 2 == 0 else ("v11", "v8")
        sk = uid("YSR")
        e(f"s_cmp_lg_u32 s68, {ch}"); e(f"s_cbranch_scc1 {sk}")
        for a in range(2):
            for i in range(6): e(f"ds_read_b128 {vr(SF+4*(6*a+i),4)}, {sb} offset:{a*4*CH_KB+256*i}")
        e("s_waitcnt lgkmcnt(0)")
        lab(sk)
        for a in range(3):
            b = PVF + (ch * 3 + a) * 4
            e(f"ds_read_b64_tr_b16 {vr(b,2)}, {pb} offset:{a*128}")
            e(f"ds_read_b64_tr_b16 {vr(b+2,2)}, {pb} offset:{4*CH_KB+a*128}")
    e("s_waitcnt vmcnt(3)"); barrier(); read_frags(0); barrier(); chunk_dma(2)
    e("s_waitcnt vmcnt(3)"); barrier(); read_frags(1); barrier(); chunk_dma(3)
    e("s_waitcnt vmcnt(3)"); barrier(); read_frags(2)
    e("s_waitcnt vmcnt(0)"); barrier(); read_frags(3)
    get_tag()
    hello_publish(120)
    if OPT.get("retouch", 1): code_touch(124)
    stamp("y: C landed", 9)
    if OPT.get("ystop", 0) == 2:
        barrier(); stamp("y: all landed"); e("s_branch Y_END")
    e(f"s_mul_i32 s9, {HG}, 24576"); e(f"s_add_u32 s9, s9, {WS_QA}")
    e(f"s_cmp_ge_u32 {WAVE}, 8"); e("s_cbranch_scc1 Y_E2B")
    poll([f"buffer_load_dwordx4 {vr(112+4*n,4)}, v{6+n}, {sr(WS)}, s9 offen sc1" for n in range(2)],
         [113, 115, 117, 119], 120)
    for n in range(2):
        e(f"v_mov_b32 v{113+4*n}, v{114+4*n}")
        e(f"ds_write_b64 v{9+n}, {vr(112+4*n,2)}")
    e("s_branch Y_E2D")
    lab("Y_E2B")
    poll([f"buffer_load_dwordx4 v[112:115], v6, {sr(WS)}, s9 offen sc1"], [113, 115], 120)
    e("v_mov_b32 v113, v114"); e("ds_write_b64 v9, v[112:113]")
    lab("Y_E2D")
    stamp("y: qabs gathered", 9|128)
    barrier()
    stamp("y: after E2 barrier", 8)
    srd(SA, P_WO, 7864320)
    e(f"v_lshrrev_b32 v5, 5, {LANE}"); e("v_lshlrev_b32 v5, 2, v5"); e(f"v_bfe_u32 v6, {LANE}, 1, 2"); e("v_add_u32 v5, v5, v6")
    e("v_mul_u32_u24 v5, 1280, v5")
    e(f"v_bfe_u32 v6, {LANE}, 3, 2"); e("v_lshl_add_u32 v5, v6, 5, v5")
    e(f"v_and_b32 v6, 1, {LANE}"); e("v_lshl_add_u32 v0, v6, 4, v5")
    e(f"s_mul_i32 s67, {X}, 768"); e(f"s_lshl_b32 s10, {WAVE}, 3"); e("s_add_u32 s67, s67, s10"); e("s_mul_i32 s67, s67, 1280")
    e(f"s_lshl_b32 s10, {J}, 7"); e("s_add_u32 s67, s67, s10")
    e(f"s_lshl_b32 s66, {WAVE}, 10")
    def wo_batch(vreg):
        sk = uid("YWO")
        e(f"s_cmp_ge_u32 {J}, 10"); e(f"s_cbranch_scc1 {sk}")
        for i in range(2):
            e("s_mov_b32 m0, s66"); e(f"s_add_u32 s66, s66, {16*1024}")
            e(f"buffer_load_dwordx4 {vreg}, {sr(SA)}, s67 offen{' nt' if OPT.get('wont', 1) else ''} lds")
            e(f"s_add_u32 s67, s67, {128*1280}")
        lab(sk)
    wo_batch("v0")
    e(f"v_and_b32 v5, 7, {L15}"); e("v_mul_u32_u24 v5, 1552, v5"); e(f"v_lshl_add_u32 v5, {G}, 4, v5")
    e(f"s_mul_i32 s9, s69, 384"); e(f"s_add_u32 s9, s9, {YL_QA}"); e("v_add_u32 v5, s9, v5")
    for i in range(4): e(f"ds_read_b128 {vr(112+4*i,4)}, v5 offset:{64*i}")
    e(f"v_mul_u32_u24 v6, 272, {G}"); e(f"v_lshl_add_u32 v6, {L15}, 4, v6")
    e("s_lshl_b32 s9, s69, 3"); e("s_lshl_b32 s10, s68, 1"); e("s_add_u32 s9, s9, s10"); e("s_mul_i32 s9, s9, 1088")
    e(f"s_add_u32 s9, s9, {YL_SP}"); e("v_add_u32 v6, s9, v6")
    for i in range(6):
        rem = min(6, i + 4) - (i + 1)
        e(f"s_waitcnt lgkmcnt({rem})")
        mfma(8, SF + 4 * i, 112 + 4 * (i % 4), "0" if i == 0 else None)
        mfma(12, SF + 4 * (6 + i), 112 + 4 * (i % 4), "0" if i == 0 else None)
        if i + 4 < 6:
            e(f"ds_read_b128 {vr(112+4*(i%4),4)}, v5 offset:{64*(i+4)}")
    e("s_nop 7")
    e("ds_write_b128 v6, v[8:11]"); e("ds_write_b128 v6, v[12:15] offset:1088")
    barrier()
    stamp("y: S partial done", 10)
    wo_batch("v0")
    e(f"s_cmp_ge_u32 {WAVE}, 8"); e("s_cbranch_scc1 Y_SMD")
    e(f"v_mul_u32_u24 v5, 1088, {G}")
    e(f"v_bfe_u32 v6, {LANE}, 2, 2"); e("v_mul_u32_u24 v7, 272, v6")
    e(f"v_and_b32 v12, 3, {LANE}"); e("v_lshlrev_b32 v8, 2, v12")
    e("v_add3_u32 v5, v5, v7, v8")
    e(f"s_lshl_b32 s9, {WAVE}, 4"); e(f"s_add_u32 s9, s9, {YL_SP}"); e("v_add_u32 v5, s9, v5")
    for kq in range(4):
        e(f"ds_read_b32 v{112+kq}, v5 offset:{8704*kq}"); e(f"ds_read_b32 v{116+kq}, v5 offset:{8704*kq+4352}")
    e(f"v_lshrrev_b32 v7, 5, {LANE}"); e("v_lshlrev_b32 v7, 10, v7")
    e("v_lshl_add_u32 v7, v6, 8, v7")
    e(f"v_bfe_u32 v8, {LANE}, 4, 1"); e("v_lshl_add_u32 v7, v8, 3, v7")
    e("v_lshl_add_u32 v7, v12, 1, v7")
    e(f"s_lshl_b32 s9, {WAVE}, 4"); e(f"s_add_u32 s9, s9, {YL_PF}"); e("v_add_u32 v7, s9, v7")
    e("s_waitcnt lgkmcnt(0)")
    e("v_add_f32 v112, v112, v113"); e("v_add_f32 v114, v114, v115"); e("v_add_f32 v116, v116, v117"); e("v_add_f32 v118, v118, v119")
    e("v_add_f32 v112, v112, v114"); e("v_add_f32 v114, v116, v118")
    e("v_max_f32 v116, v112, v114")
    wave_allreduce("v_max_f32", 116, 117)
    e("v_sub_f32 v112, v112, v116"); e("v_sub_f32 v114, v114, v116")
    e("v_exp_f32 v112, v112"); e("v_exp_f32 v114, v114"); e("s_nop 0")
    e("v_cvt_pk_bf16_f32 v112, v112, v114")
    e("ds_write_b16 v7, v112"); e("ds_write_b16_d16_hi v7, v112 offset:2048")
    e(f"s_lshl_b32 s9, {WAVE}, 2"); e(f"s_add_u32 s9, s9, {YL_M}"); e("v_mov_b32 v5, s9")
    e("s_mov_b64 exec, 1")
    e("ds_write_b32 v5, v116")
    exec_all()
    lab("Y_SMD")
    barrier()
    stamp("y: P ready", 10)
    wo_batch("v0")
    e(f"v_lshlrev_b32 v5, 4, {LANE}"); e(f"v_add_u32 v5, {YL_PF}, v5")
    for ks in range(4): e(f"ds_read_b128 {vr(112+4*ks,4)}, v5 offset:{1024*ks}")
    e(f"v_and_b32 v6, 7, {L15}"); e("v_mul_u32_u24 v6, 96, v6"); e(f"v_lshl_add_u32 v6, {G}, 3, v6")
    e(f"s_mul_i32 s9, {WAVE}, 768"); e(f"s_add_u32 s9, s9, {YL_SP}"); e("v_add_u32 v6, s9, v6")
    e(f"v_lshrrev_b32 v7, 3, {LANE}"); e("v_mul_u32_u24 v12, 96, v7"); e(f"v_and_b32 v5, 7, {LANE}"); e("v_mul_u32_u24 v8, 12, v5")
    e("v_add3_u32 v12, v12, v8, s9")
    e("v_mul_u32_u24 v7, 69632, v7"); e("v_lshl_add_u32 v5, v5, 4, v7")
    e(f"s_mul_i32 s9, {HG}, {8*69632}"); e(f"s_lshl_b32 s10, {X}, 2"); e(f"s_add_u32 s10, s10, {KC}")
    e("s_mul_i32 s11, s10, 2176"); e("s_add_u32 s9, s9, s11"); e(f"s_add_u32 s68, s9, {WS_E3 + 2048}")
    e(f"s_lshl_b32 s11, {WAVE}, 7"); e("s_add_u32 s9, s9, s11"); e(f"s_add_u32 s9, s9, {WS_E3}")
    for ks in range(4):
        e(f"s_waitcnt lgkmcnt({3-ks})")
        for a in range(3):
            mfma(16 + 4 * a, PVF + (ks * 3 + a) * 4, 112 + 4 * ks, "0" if ks == 0 else None)
    e(f"s_cmp_lg_u32 {WAVE}, 15"); e("s_cbranch_scc1 Y_NL")
    for i in range(4): e(f"v_mov_b32 v{32+i}, 0x3f803f80")
    e(f"v_and_b32 v41, 7, {L15}"); e("v_lshlrev_b32 v41, 2, v41"); e(f"v_add_u32 v41, {YL_M}, v41")
    e("ds_read_b32 v40, v41")
    for ks in range(4): mfma(36, 32, 112 + 4 * ks, "0" if ks == 0 else None)
    lab("Y_NL")
    e("s_nop 7")
    stamp("y: PV mfma done", 8)
    for a in range(3):
        e(f"v_cvt_pk_bf16_f32 v{44+2*a}, v{16+4*a}, v{17+4*a}"); e(f"v_cvt_pk_bf16_f32 v{45+2*a}, v{18+4*a}, v{19+4*a}")
    set_exec64(0x00ff00ff00ff00ff)
    for a in range(3): e(f"ds_write_b64 v6, {vr(44+2*a,2)} offset:{32*a}")
    exec_all()
    e("s_waitcnt lgkmcnt(0)")
    e("ds_read2_b32 v[52:53], v12 offset1:1"); e("ds_read_b32 v54, v12 offset:8")
    e("s_waitcnt lgkmcnt(0)")
    e("v_bitop3_b32 v55, v52, v53, v54 bitop3:0x96"); e(f"v_xor_b32 v55, {VTAG}, v55")
    e(f"buffer_store_dwordx4 v[52:55], v5, {sr(WS)}, s9 offen{SCG}")
    e(f"s_cmp_lg_u32 {WAVE}, 15"); e("s_cbranch_scc1 Y_P3D")
    e(f"s_mov_b32 s9, 69632"); e(f"v_mul_lo_u32 v5, {L15}, s9"); e("s_mov_b32 s9, s68")
    e("s_waitcnt lgkmcnt(0)")
    e("v_mov_b32 v56, v40"); e("v_mov_b32 v57, v36"); e("v_mov_b32 v58, 0"); e("v_bitop3_b32 v59, v56, v57, v4 bitop3:0x96")
    e("s_mov_b64 exec, 0xff")
    e(f"buffer_store_dwordx4 v[56:59], v5, {sr(WS)}, s9 offen{SCG}")
    exec_all()
    lab("Y_P3D")
    stamp("y: ctxlat published", 9|16|128|1024)
    if OPT["stamps"] & 16:
        e("s_waitcnt vmcnt(0)"); stamp("y: E3 stores complete", 16); barrier(); stamp("y: all waves stores complete", 16)
    if OPT.get("ystop", 0) == 3: e("s_branch Y_END")
    e(f"s_cmp_ge_u32 {J}, 10"); e("s_cbranch_scc1 Y_MLP")
    e("s_waitcnt vmcnt(0)")
    if OPT.get("retouch", 1): code_touch(124)
    stamp("y: wo landed", 1|256)
    barrier()
    e(f"s_cmp_ge_u32 {WAVE}, 12"); e("s_cbranch_scc1 Y_B5")
    e(f"v_lshlrev_b32 v5, 10, {G}"); e(f"v_lshl_add_u32 v5, {L15}, 3, v5")
    e(f"s_lshl_b32 s9, {WAVE}, 13"); e("v_add_u32 v5, s9, v5")
    for ksl in range(2):
        for t in range(4):
            b = 64 + (ksl * 4 + t) * 4
            e(f"ds_read_b64_tr_b16 {vr(b,2)}, v5 offset:{ksl*4096+t*128}")
            e(f"ds_read_b64_tr_b16 {vr(b+2,2)}, v5 offset:{ksl*4096+512+t*128}")
        if ksl == 0: e("s_waitcnt lgkmcnt(0)")
    e(f"v_lshlrev_b32 v5, 4, {LANE}")
    e(f"s_mul_i32 s9, {X}, 12288"); e(f"s_lshl_b32 s10, {WAVE}, 10"); e("s_add_u32 s9, s9, s10")
    e(f"s_add_u32 s9, s9, {WS_E4}")
    e(f"s_mul_i32 s10, s64, 1552"); e("s_lshl_b32 s11, s65, 9"); e("s_add_u32 s10, s10, s11"); e(f"s_add_u32 s10, s10, {YL_QA}")
    e(f"v_lshl_add_u32 v6, {LANE}, 3, s10")
    stamp("y: E4 poll start", 256)
    poll([f"buffer_load_dwordx4 v[96:99], v5, {sr(WS)}, s9 offen sc1"], [97, 99], 112)
    stamp("y: ctx gathered", 1|128|256)
    stamp_val("E4 iters", "s13", 256)
    e("v_mov_b32 v97, v98")
    e("ds_write_b64 v6, v[96:97]")
    lab("Y_B5")
    barrier()
    e(f"s_cmp_ge_u32 {WAVE}, 12"); e("s_cbranch_scc1 Y_B6")
    e(f"v_and_b32 v5, 3, {LANE}"); e("v_mul_u32_u24 v5, 1552, v5"); e(f"v_lshl_add_u32 v5, {G}, 4, v5")
    e(f"s_lshl_b32 s9, {WAVE}, 7"); e(f"s_add_u32 s9, s9, {YL_QA}"); e("v_add_u32 v5, s9, v5")
    e("ds_read_b128 v[96:99], v5"); e("ds_read_b128 v[104:107], v5 offset:64")
    e("s_waitcnt lgkmcnt(0)")
    for t in range(4): mfma(16 + 4 * t, 64 + 4 * t, 96, "0")
    for t in range(4): mfma(16 + 4 * t, 64 + 16 + 4 * t, 104)
    e(f"v_lshlrev_b32 v5, 4, {G}"); e(f"s_lshl_b32 s9, {WAVE}, 8"); e(f"s_add_u32 s9, s9, {YL_R}")
    e("v_add_u32 v5, s9, v5")
    e("s_nop 7")
    for pat in ("quad_perm:[1,0,3,2]", "quad_perm:[2,3,0,1]"):
        for i in range(16):
            e(f"v_add_f32_dpp v{16+i}, v{16+i}, v{16+i} {pat} row_mask:0xf bank_mask:0xf")
    set_exec64(EXEC_L15_0)
    for t in range(4): e(f"ds_write_b128 v5, {vr(16+4*t,4)} offset:{64*t}")
    exec_all()
    lab("Y_B6")
    barrier()
    e(f"s_cmp_lg_u32 {WAVE}, 0"); e("s_cbranch_scc1 Y_END")
    e(f"v_lshlrev_b32 v5, 3, {LANE}"); e(f"v_add_u32 v6, {YL_R}, v5")
    set_exec64(0xffffffff)
    for w in range(12): e(f"ds_read_b64 {vr(16+2*w,2)}, v6 offset:{256*w}")
    e(f"s_mul_i32 s9, {X}, 2560"); e(f"s_lshl_b32 s10, {J}, 8"); e("s_add_u32 s9, s9, s10")
    e(f"s_add_u32 s9, s9, {WS_E5}")
    e("s_waitcnt lgkmcnt(0)")
    for w in range(1, 12):
        e(f"v_add_f32 v16, v16, v{16+2*w}"); e(f"v_add_f32 v17, v17, v{17+2*w}")
    e("v_cvt_pk_bf16_f32 v16, v16, v17"); e(f"v_mov_b32 v17, {VTAG}")
    e(f"buffer_store_dwordx2 v[16:17], v5, {sr(WS)}, s9 offen{SCG}")
    exec_all()
    e("s_branch Y_END")
    lab("Y_MLP")
    e(f"s_mul_i32 s66, {X}, 6"); e(f"s_add_u32 s66, s66, {J}"); e("s_sub_u32 s66, s66, 10")
    srd(SA, P_WG, 1966080); srd(SB, P_WU, 1966080); srd(SC_, P_WD, 1966080); srd(SD, P_X, 1280)
    e(f"v_lshrrev_b32 v5, 4, {LANE}"); e("v_lshlrev_b32 v5, 2, v5"); e(f"v_bfe_u32 v6, {LANE}, 1, 2"); e("v_add_u32 v5, v5, v6")
    e("v_mul_u32_u24 v5, 3072, v5")
    e(f"v_bfe_u32 v6, {LANE}, 3, 1"); e("v_lshl_add_u32 v5, v6, 5, v5")
    e(f"v_and_b32 v6, 1, {LANE}"); e("v_lshl_add_u32 v15, v6, 4, v5")
    e(f"v_bfe_u32 v5, {LANE}, 1, 2"); e("v_mul_u32_u24 v5, 1280, v5")
    e(f"v_lshrrev_b32 v6, 3, {LANE}"); e("v_lshl_add_u32 v5, v6, 5, v5")
    e(f"v_and_b32 v6, 1, {LANE}"); e("v_lshl_add_u32 v14, v6, 4, v5")
    barrier()
    e(f"s_and_b32 s9, {WAVE}, 7")
    e(f"s_mul_i32 s11, s9, {5*16*3072}"); e("s_lshl_b32 s10, s66, 6"); e("s_add_u32 s11, s11, s10")
    e("s_mul_i32 s10, s9, 5120")
    e(f"s_cmp_ge_u32 {WAVE}, 8"); e("s_cbranch_scc1 Y_MU")
    dma_loop(15, SA, 10, 11, 5, 1024, 16 * 3072, OPT.get("mnt", 1))
    e("s_lshl_b32 s11, s66, 5"); e(f"s_lshl_b32 s10, {WAVE}, 2"); e("s_add_u32 s11, s11, s10"); e("s_mul_i32 s11, s11, 1280")
    e(f"s_mul_i32 s10, {WAVE}, 5120"); e(f"s_add_u32 s10, s10, {YL_MD}")
    dma_loop(14, SC_, 10, 11, 5, 1024, 256, OPT["ynt"])
    e("s_branch Y_MW")
    lab("Y_MU")
    e(f"s_add_u32 s10, s10, {YL_MU}")
    dma_loop(15, SB, 10, 11, 5, 1024, 16 * 3072, OPT.get("mnt", 1))
    lab("Y_MW")
    e(f"v_and_b32 v5, 31, {LANE}"); e("v_lshlrev_b32 v5, 3, v5"); e(f"s_lshl_b32 s9, {WAVE}, 8")
    e(f"s_cmp_ge_u32 {WAVE}, 5"); e("s_cbranch_scc1 Y_NX")
    e(f"buffer_load_dwordx2 v[110:111], v5, {sr(SD)}, s9 offen")
    lab("Y_NX")
    e("s_waitcnt vmcnt(0)")
    if OPT.get("retouch", 1): code_touch(124)
    stamp("y: mlp landed", 1|1024)
    barrier()
    if OPT.get("ystop", 0) == 4: e("s_branch Y_END")
    e(f"s_cmp_ge_u32 {WAVE}, 10"); e("s_cbranch_scc1 Y_MPD")
    e(f"v_lshlrev_b32 v5, 9, {G}"); e(f"v_lshl_add_u32 v5, {L15}, 3, v5")
    e(f"s_lshl_b32 s9, {WAVE}, 12"); e("v_add_u32 v5, s9, v5")
    for mat, base in ((0, YL_MG), (1, YL_MU)):
        for ksl in range(2):
            for t in range(2):
                b = 16 + mat * 16 + (ksl * 2 + t) * 4
                e(f"ds_read_b64_tr_b16 {vr(b,2)}, v5 offset:{base+ksl*2048+t*128}")
                e(f"ds_read_b64_tr_b16 {vr(b+2,2)}, v5 offset:{base+ksl*2048+256+t*128}")
        e("s_waitcnt lgkmcnt(0)")
    e(f"v_mul_u32_u24 v5, 10240, {G}"); e(f"v_lshl_add_u32 v5, {L15}, 3, v5")
    e(f"s_lshl_b32 s9, {WAVE}, 9"); e(f"s_add_u32 s9, s9, {YL_MD}"); e("v_add_u32 v5, s9, v5")
    for a in range(4):
        e(f"ds_read_b64_tr_b16 {vr(48+4*a,2)}, v5 offset:{128*a}")
        e(f"ds_read_b64_tr_b16 {vr(50+4*a,2)}, v5 offset:{5120+128*a}")
    lab("Y_MPD")
    e(f"s_cmp_ge_u32 {WAVE}, 5"); e("s_cbranch_scc1 Y_MB6")
    e(f"v_and_b32 v6, 31, {LANE}"); e(f"v_lshrrev_b32 v5, 5, {LANE}"); e("v_mul_u32_u24 v5, 10240, v5"); e("v_lshl_add_u32 v5, v6, 4, v5")
    e(f"s_lshl_b32 s9, {WAVE}, 9"); e(f"s_add_u32 s9, s9, {WS_E5}")
    e("s_add_u32 s10, s9, 5120")
    poll([f"buffer_load_dwordx4 {vr(80+4*i,4)}, v5, {sr(WS)}, {'s9' if i < 2 else 's10'} offen offset:{2560*(i%2)} sc1" for i in range(4)],
         [81, 83, 85, 87, 89, 91, 93, 95], 96)
    for i in range(4):
        b = 80 + 4 * i
        if i == 0:
            e(f"v_lshlrev_b32 v100, 16, v{b}"); e(f"v_and_b32 v101, 0xffff0000, v{b}")
            e(f"v_lshlrev_b32 v102, 16, v{b+2}"); e(f"v_and_b32 v103, 0xffff0000, v{b+2}")
        else:
            e(f"v_lshlrev_b32 v104, 16, v{b}"); e(f"v_and_b32 v105, 0xffff0000, v{b}")
            e(f"v_lshlrev_b32 v106, 16, v{b+2}"); e(f"v_and_b32 v107, 0xffff0000, v{b+2}")
            for k in range(4): e(f"v_add_f32 v{100+k}, v{100+k}, v{104+k}")
    for k in range(4): e(f"v_mov_b32 v{104+k}, v{100+k}")
    e("s_nop 1")
    for k in range(4): e(f"v_permlane32_swap_b32 v{100+k}, v{104+k}")
    e(f"v_lshlrev_b32 v80, 16, v110"); e("v_and_b32 v81, 0xffff0000, v110"); e("v_lshlrev_b32 v82, 16, v111"); e("v_and_b32 v83, 0xffff0000, v111")
    for k in range(4): e(f"v_add_f32 v{100+k}, v{100+k}, v{104+k}")
    for k in range(4): e(f"v_add_f32 v{100+k}, v{100+k}, v{80+k}")
    e("v_lshlrev_b32 v5, 4, v6"); e(f"s_lshl_b32 s9, {WAVE}, 9"); e(f"s_add_u32 s9, s9, {YL_H}"); e("v_add_u32 v5, s9, v5")
    set_exec64(0xffffffff)
    e("ds_write_b128 v5, v[100:103]")
    exec_all()
    e("v_add_f32 v104, v100, v101"); e("v_add_f32 v106, v102, v103"); e("v_mul_f32 v105, v100, v100")
    e("v_add_f32 v104, v104, v106"); e("v_fmac_f32 v105, v101, v101"); e("v_fmac_f32 v105, v102, v102"); e("v_fmac_f32 v105, v103, v103")
    e("s_nop 1")
    row16_allreduce("v_add_f32", 104, 2)
    e("s_nop 1")
    for i in range(2): cross16("v_add_f32", 104 + i, 106)
    e(f"s_lshl_b32 s9, {WAVE}, 3"); e(f"s_add_u32 s9, s9, {YL_ST}"); e("v_mov_b32 v5, s9")
    e("s_mov_b64 exec, 1")
    e("ds_write_b64 v5, v[104:105]")
    exec_all()
    lab("Y_MB6")
    stamp("y: h gathered", 65|128|1024)
    barrier()
    stamp("y: after MB6", 64)
    e(f"s_cmp_ge_u32 {WAVE}, 10"); e("s_cbranch_scc1 Y_MB7")
    e(f"v_mov_b32 v5, {YL_ST}")
    e("ds_read_b128 v[80:83], v5"); e("ds_read_b128 v[84:87], v5 offset:16"); e("ds_read_b64 v[88:89], v5 offset:32")
    e(f"v_lshlrev_b32 v6, 5, {G}"); e(f"s_lshl_b32 s9, {WAVE}, 8"); e(f"s_add_u32 s9, s9, {YL_H}"); e("v_add_u32 v6, s9, v6")
    for ksl in range(2):
        e(f"ds_read_b128 {vr(92+8*ksl,4)}, v6 offset:{128*ksl}")
        e(f"ds_read_b128 {vr(96+8*ksl,4)}, v6 offset:{128*ksl+16}")
    e("s_waitcnt lgkmcnt(4)")
    for a, b in ((82, 83), (84, 85), (86, 87), (88, 89)):
        e(f"v_add_f32 v80, v80, v{a}"); e(f"v_add_f32 v81, v81, v{b}")
    e(f"v_mul_f32 v80, {F(1.0/640.0)}, v80")
    e(f"v_mul_f32 v81, {F(1.0/640.0)}, v81")
    e("v_fma_f32 v81, -v80, v80, v81")
    e("v_max_f32 v81, 0, v81")
    e(f"v_add_f32 v81, {F(1e-5)}, v81")
    e("v_rsq_f32 v81, v81"); e("s_nop 0")
    e("v_mul_f32 v80, v80, v81")
    e("s_waitcnt lgkmcnt(0)")
    for i in range(16): e(f"v_fma_f32 v{92+i}, v{92+i}, v81, -v80")
    for ksl in range(2):
        for i in range(4): e(f"v_cvt_pk_bf16_f32 v{108+4*ksl+i}, v{92+8*ksl+2*i}, v{93+8*ksl+2*i}")
    e("s_nop 1")
    for ksl in range(2):
        for mat in range(2):
            for t in range(2):
                mfma(64 + 8 * mat + 4 * t, 108 + 4 * ksl, 16 + mat * 16 + (ksl * 2 + t) * 4, "0" if ksl == 0 else None)
    e(f"v_lshlrev_b32 v5, 2, {L15}"); e(f"s_lshl_b32 s9, {WAVE}, 8"); e(f"s_add_u32 s9, s9, {YL_G}"); e("v_add_u32 v5, s9, v5")
    e("s_nop 5")
    e("s_mov_b64 exec, 0xffff")
    e("ds_write_b32 v5, v64"); e("ds_write_b32 v5, v68 offset:64"); e("ds_write_b32 v5, v72 offset:128"); e("ds_write_b32 v5, v76 offset:192")
    exec_all()
    lab("Y_MB7")
    stamp("y: P6 done", 64)
    barrier()
    stamp("y: after MB7", 64)
    e(f"s_cmp_lg_u32 {WAVE}, 0"); e("s_cbranch_scc1 Y_MB8")
    e(f"v_lshrrev_b32 v5, 5, {LANE}"); e("v_lshlrev_b32 v5, 8, v5"); e(f"v_and_b32 v6, 31, {LANE}"); e("v_lshl_add_u32 v5, v6, 2, v5")
    e(f"v_add_u32 v5, {YL_G}, v5")
    for i in range(5):
        e(f"ds_read_b32 v{80+i}, v5 offset:{512*i}"); e(f"ds_read_b32 v{88+i}, v5 offset:{512*i+128}")
    e("s_waitcnt lgkmcnt(0)")
    for i in range(1, 5): e(f"v_add_f32 v80, v80, v{80+i}"); e(f"v_add_f32 v88, v88, v{88+i}")
    cross32("v_add_f32", 80, 86); cross32("v_add_f32", 88, 86)
    e(f"v_mul_f32 v80, {F(-math.log2(math.e))}, v80"); e("v_exp_f32 v80, v80"); e("s_nop 0")
    e("v_add_f32 v80, 1.0, v80"); e("v_rcp_f32 v80, v80"); e("s_nop 0")
    e("v_mul_f32 v80, v80, v88")
    e("v_cvt_pk_bf16_f32 v80, v80, v80")
    e("v_lshlrev_b32 v5, 1, v6"); e(f"v_add_u32 v5, {YL_HH}, v5")
    set_exec64(0xffffffff)
    e("ds_write_b16 v5, v80")
    exec_all()
    lab("Y_MB8")
    stamp("y: act done", 64)
    barrier()
    stamp("y: after MB8", 64)
    e(f"s_cmp_ge_u32 {WAVE}, 10"); e("s_cbranch_scc1 Y_END")
    e(f"v_lshlrev_b32 v5, 4, {G}"); e(f"v_add_u32 v5, {YL_HH}, v5")
    e("ds_read_b128 v[80:83], v5")
    e(f"v_lshlrev_b32 v5, 3, {LANE}")
    e("s_mul_i32 s9, s66, 5120"); e(f"s_lshl_b32 s10, {WAVE}, 9"); e("s_add_u32 s9, s9, s10"); e(f"s_add_u32 s9, s9, {WS_E6}")
    e(f"v_cmp_eq_u32 vcc, 1, {G}"); e(f"v_cmp_eq_u32 s[10:11], 2, {G}"); e(f"v_cmp_eq_u32 s[14:15], 3, {G}")
    e("s_waitcnt lgkmcnt(0)")
    for a in range(4): mfma(84 + 4 * a, 80, 48 + 4 * a, "0")
    e("s_nop 7")
    e("v_cndmask_b32 v84, v84, v88, vcc"); e("v_cndmask_b32 v84, v84, v92, s[10:11]"); e("v_cndmask_b32 v84, v84, v96, s[14:15]")
    e(f"v_mov_b32 v85, {VTAG}")
    e(f"buffer_store_dwordx2 v[84:85], v5, {sr(WS)}, s9 offen{SCG}")
    lab("Y_END")
    stamp("y: end", 65|128|1024)
    stamp_flush(nstamp[0])
    e("s_endpgm")

hdr = f"""; Kernarg layout (104 bytes): d_in[0..9], d_out, d_debug, d_ws
; @launch grid=(256,1,1) block=(1024,1,1) lds=163840
.amdgcn_target "amdgcn-amd-amdhsa--gfx950"
.text
.globl {NAME}_kernel
.p2align 8
.type {NAME}_kernel,@function
{NAME}_kernel:
"""
prologue()
x_program()
y_program()
lab("L_END")
e("s_endpgm")
ftr = f""".section .rodata,"a"
.p2align 6
.amdhsa_kernel {NAME}_kernel
  .amdhsa_next_free_vgpr 128
  .amdhsa_next_free_sgpr 102
  .amdhsa_accum_offset 128
  .amdhsa_group_segment_fixed_size 0
  .amdhsa_kernarg_size 104
  .amdhsa_user_sgpr_count 2
  .amdhsa_user_sgpr_kernarg_segment_ptr 1
  .amdhsa_system_sgpr_workgroup_id_x 1
.end_amdhsa_kernel
"""
open(sys.argv[1], "w").write(hdr + "\n".join(L) + "\n" + ftr)
```

```python
import sys, math, struct
def F(x): return "0x%08x" % struct.unpack("<I", struct.pack("<f", x))[0]
NAME = "sequential_preLN__compressed_kv_cla__glu_gated_glu__decode"

OPT = dict(stamps=0, ynt=1, xnt=1, spin=1 << 16, cpv_early=1, prefetch_code=1)
for a in sys.argv[2:]:
    k, v = a.split("="); OPT[k] = int(v)

L = []
def e(s): L.append("    " + s)
def lab(s): L.append(s + ":")
def cm(s): L.append("    ; " + s)
_uid = [0]
def uid(p):
    _uid[0] += 1
    return f"{p}_{_uid[0]}"

WS_EPOCH = 0
WS_HELLO = 0x1000
WS_E1 = 0x10000
WS_QA = 0x40000
WS_ML = 0x60000
WS_E4 = 0x70000
WS_E5 = 0x90000
WS_E6 = 0x100000
WS_ST = 0x180000
WS_E3 = 0x200000
WS_SIZE = 0x700000

WAVE, X, J, TAG, H, R = "s3", "s4", "s5", "s6", "s7", "s8"
HH, KC = "s7", "s8"
P_X, P_CKV, P_WQ, P_WUK, P_WUV, P_WO, P_WG, P_WU, P_WD, P_OUT, P_WS = 16, 18, 20, 22, 24, 26, 30, 32, 34, 36, 40
WS, SA, SB, SC_, SD = 44, 48, 52, 56, 60
def sr(b, n=4): return f"s[{b}:{b+n-1}]"
def vr(b, n): return f"v[{b}:{b+n-1}]" if n > 1 else f"v{b}"
STAMP0 = 72
LANE, G, L15, VTAG = "v1", "v2", "v3", "v4"

def srd(b, ptr, size):
    e(f"s_mov_b32 s{b}, s{ptr}")
    e(f"s_mov_b32 s{b+1}, s{ptr+1}")
    e(f"s_mov_b32 s{b+2}, {size}")
    e(f"s_mov_b32 s{b+3}, 0x00020000")

nstamp = [0]
def stamp(name, grp=1):
    if not (OPT["stamps"] & grp): return
    i = nstamp[0]; nstamp[0] += 1
    if OPT.get("pmask", 1) and i >= 6: return
    cm(f"stamp {i}: {name}")
    sk = uid("STK")
    e(f"s_cmp_lg_u32 {WAVE}, {OPT.get('stampwave',0)}"); e(f"s_cbranch_scc1 {sk}")
    if i == 0:
        e("s_memrealtime s[98:99]")
    e(f"s_memtime s[{STAMP0+2*i}:{STAMP0+2*i+1}]")
    e("s_waitcnt lgkmcnt(0)")
    lab(sk)
def stamp_val(name, sreg, grp=1):
    if not (OPT["stamps"] & grp): return
    i = nstamp[0]; nstamp[0] += 1
    if OPT.get("pmask", 1) and i >= 6: return
    cm(f"stamp {i}: VALUE {name}")
    e(f"s_mov_b32 s{STAMP0+2*i}, {sreg}"); e(f"s_mov_b32 s{STAMP0+2*i+1}, 0x7fffffff")
def stamp_flush(n):
    if not OPT["stamps"]: return
    skip = uid("STF")
    e(f"s_cmp_lg_u32 {WAVE}, {OPT.get('stampwave',0)}"); e(f"s_cbranch_scc1 {skip}")
    e("s_mov_b64 exec, 1")
    e("s_lshl_b32 s9, s2, 8"); e(f"s_add_u32 s9, s9, {WS_ST}")
    e("v_mov_b32 v5, 0")
    if OPT.get("pmask", 1): n = min(n, 6)
    for i in range(n):
        e(f"v_mov_b32 v6, s{STAMP0+2*i}"); e(f"v_mov_b32 v7, s{STAMP0+2*i+1}")
        e(f"buffer_store_dwordx2 v[6:7], v5, {sr(WS)}, s9 offen offset:{8*i}")
        e("s_nop 1")
    e("v_mov_b32 v6, s98"); e("v_mov_b32 v7, s99")
    e(f"buffer_store_dwordx2 v[6:7], v5, {sr(WS)}, s9 offen offset:248")
    e("s_nop 1")
    e("v_mov_b32 v6, s96"); e("v_mov_b32 v7, s97")
    e(f"buffer_store_dwordx2 v[6:7], v5, {sr(WS)}, s9 offen offset:240")
    e("s_memrealtime s[96:97]"); e("s_waitcnt lgkmcnt(0)")
    e("v_mov_b32 v6, s96"); e("v_mov_b32 v7, s97")
    e(f"buffer_store_dwordx2 v[6:7], v5, {sr(WS)}, s9 offen offset:232")
    e("s_mov_b64 exec, -1")
    lab(skip)

def barrier():
    e("s_waitcnt lgkmcnt(0)")
    e("s_barrier")

def divmagic(T):
    return {12: (43, 9), 6: (43, 8), 3: (86, 8), 1: (1, 0)}[T]

def dma_pattern(vd, T, S, sp, t0, t1):
    M, sh = divmagic(T)
    e(f"v_lshrrev_b32 v{t0}, 3, {LANE}")
    if sp is not None:
        e(f"s_lshl_b32 s9, {sp}, 3")
        e(f"v_add_u32 v{t0}, s9, v{t0}")
    if T == 1:
        e(f"v_mov_b32 v{t1}, v{t0}")
        e(f"v_mov_b32 v{t0}, 0")
    else:
        e(f"v_mul_u32_u24 v{t1}, {M}, v{t0}")
        e(f"v_lshrrev_b32 v{t1}, {sh}, v{t1}")
        e(f"v_mul_u32_u24 v{vd}, {T}, v{t1}")
        e(f"v_sub_u32 v{t0}, v{t0}, v{vd}")
    e(f"v_lshlrev_b32 v{t1}, 2, v{t1}")
    e(f"v_bfe_u32 v{vd}, {LANE}, 1, 2")
    e(f"v_add_u32 v{t1}, v{t1}, v{vd}")
    e(f"s_mov_b32 s9, {S}")
    e(f"v_mul_lo_u32 v{t1}, v{t1}, s9")
    e(f"v_lshlrev_b32 v{t0}, 5, v{t0}")
    e(f"v_and_b32 v{vd}, 1, {LANE}")
    e(f"v_lshlrev_b32 v{vd}, 4, v{vd}")
    e(f"v_add3_u32 v{vd}, v{vd}, v{t0}, v{t1}")

def dma_loop(vd, srdb, s_m0, s_off, n, step_m, step_s, nt):
    lp = uid("DMA")
    e(f"s_mov_b32 s12, {n}")
    lab(lp)
    e(f"s_mov_b32 m0, s{s_m0}")
    e(f"s_add_u32 s{s_m0}, s{s_m0}, {step_m}")
    e(f"buffer_load_dwordx4 v{vd}, {sr(srdb)}, s{s_off} offen{' nt' if nt else ''} lds")
    e(f"s_add_u32 s{s_off}, s{s_off}, {step_s}")
    e("s_sub_u32 s12, s12, 1")
    e("s_cmp_lg_u32 s12, 0")
    e(f"s_cbranch_scc1 {lp}")

def row16_allreduce(op, v, nregs=1):
    for sh in (8, 4, 2, 1):
        if nregs < 3: e("s_nop 1")
        for i in range(nregs):
            e(f"{op}_dpp v{v+i}, v{v+i}, v{v+i} row_ror:{sh} row_mask:0xf bank_mask:0xf")
def cross16(op, v, t):
    e(f"v_mov_b32 v{t}, v{v}"); e("s_nop 1")
    e(f"v_permlane16_swap_b32 v{v}, v{t}"); e("s_nop 1")
    e(f"{op} v{v}, v{v}, v{t}")
def cross32(op, v, t):
    e(f"v_mov_b32 v{t}, v{v}"); e("s_nop 1")
    e(f"v_permlane32_swap_b32 v{v}, v{t}"); e("s_nop 1")
    e(f"{op} v{v}, v{v}, v{t}")
def wave_allreduce(op, v, t):
    e("s_nop 1")
    row16_allreduce(op, v)
    e("s_nop 1")
    cross16(op, v, t)
    cross32(op, v, t)

MASK0 = 84
def _poll_generic(loads, checks, vt, init=None):
    n = len(loads)
    lp = uid("POLL"); dn = uid("PDONE")
    masked = OPT.get("pmask", 1) and n <= 8
    e("s_mov_b32 s13, 0")
    if masked:
        e("s_mov_b64 s[100:101], exec")
        for i in range(n):
            if init and init[i] is not None:
                e(f"s_mov_b32 s{MASK0+2*i}, {init[i] & 0xffffffff:#x}"); e(f"s_mov_b32 s{MASK0+2*i+1}, {init[i] >> 32:#x}")
            else: e(f"s_mov_b64 s[{MASK0+2*i}:{MASK0+2*i+1}], exec")
    lab(lp)
    for i, s_ in enumerate(loads):
        if masked:
            sk = uid("PSK")
            e(f"s_mov_b64 exec, s[{MASK0+2*i}:{MASK0+2*i+1}]")
            if n > 1: e(f"s_cbranch_execz {sk}")
            e(s_)
            if n > 1: lab(sk)
        else: e(s_)
    e("s_waitcnt vmcnt(0)")
    if masked:
        for i in range(n):
            e(f"s_mov_b64 exec, s[{MASK0+2*i}:{MASK0+2*i+1}]")
            for c in checks[i]: e(c)
            e(f"v_cmp_ne_u32 vcc, 0, v{vt}")
            e(f"s_mov_b64 s[{MASK0+2*i}:{MASK0+2*i+1}], vcc")
            if i == 0: e("s_mov_b64 s[14:15], vcc")
            else: e("s_or_b64 s[14:15], s[14:15], vcc")
        e("s_mov_b64 exec, s[100:101]")
        e("s_add_u32 s13, s13, 1")
        e("s_cmp_eq_u64 s[14:15], 0")
    else:
        for i in range(n):
            for c in checks[i]: e(c.replace(f"v{vt},", f"v{vt+1},", 1).replace(f", v{vt}", f", v{vt+1}") if False else c)
            if i == 0: e(f"v_mov_b32 v{vt+2}, v{vt}")
            else: e(f"v_or_b32 v{vt+2}, v{vt+2}, v{vt}")
        e(f"v_cmp_ne_u32 vcc, 0, v{vt+2}")
        e("s_add_u32 s13, s13, 1")
        e("s_cmp_eq_u64 vcc, 0")
    e(f"s_cbranch_scc1 {dn}")
    if OPT.get("psleep", 0): e(f"s_sleep {OPT['psleep']}")
    e(f"s_cmp_lt_u32 s13, {OPT['spin']}")
    e(f"s_cbranch_scc1 {lp}")
    if masked: e("s_mov_b64 exec, s[100:101]")
    lab(dn)

def poll(loads, tagregs, vt):
    per = len(tagregs) // len(loads)
    checks = []
    for i in range(len(loads)):
        tr = tagregs[i*per:(i+1)*per]
        if per == 1: checks.append([f"v_xor_b32 v{vt}, {TAG}, v{tr[0]}"])
        else: checks.append([f"v_xor_b32 v{vt}, {TAG}, v{tr[0]}", f"v_xor_b32 v{vt+1}, {TAG}, v{tr[1]}", f"v_or_b32 v{vt}, v{vt}, v{vt+1}"])
    _poll_generic(loads, checks, vt)

def pollx(loads, bases, vt, init=None):
    checks = [[f"v_bitop3_b32 v{vt}, v{b}, v{b+1}, v{b+2} bitop3:0x96", f"v_bitop3_b32 v{vt}, v{vt}, v{b+3}, {VTAG} bitop3:0x96"] for b in bases]
    _poll_generic(loads, checks, vt, init)

def mfma(d, a, b, c=None):
    cs = vr(d, 4) if c is None else c
    e(f"v_mfma_f32_16x16x32_bf16 {vr(d,4)}, {vr(a,4)}, {vr(b,4)}, {cs}")

SCG = " sc1"
EXEC_L15_0 = 0x0001000100010001

def set_exec64(val):
    lo, hi = val & 0xffffffff, val >> 32
    e(f"s_mov_b32 exec_lo, {lo:#x}"); e(f"s_mov_b32 exec_hi, {hi:#x}")
def exec_all(): e("s_mov_b64 exec, -1")

def prologue():
    if OPT["stamps"] or OPT.get("diagx", 0): e("s_memrealtime s[96:97]")
    e("s_cmp_ge_u32 s2, 256")
    e("s_cbranch_scc1 L_END")
    e("s_load_dwordx16 s[16:31], s[0:1], 0")
    e("s_load_dwordx8 s[32:39], s[0:1], 64")
    e("s_load_dwordx2 s[40:41], s[0:1], 96")
    e(f"v_lshrrev_b32 v5, 6, v0")
    e(f"v_and_b32 {LANE}, 63, v0")
    e(f"v_readfirstlane_b32 {WAVE}, v5")
    e(f"v_lshrrev_b32 {G}, 4, {LANE}")
    e(f"v_and_b32 {L15}, 15, {LANE}")
    e(f"s_and_b32 {X}, s2, 7")
    e(f"s_lshr_b32 {J}, s2, 3")
    e(f"s_mul_i32 s64, {WAVE}, 11"); e("s_lshr_b32 s64, s64, 5")
    e("s_mul_i32 s65, s64, 3"); e(f"s_sub_u32 s65, {WAVE}, s65")
    e(f"s_cmp_ge_u32 {J}, 16")
    e("s_cbranch_scc1 L_Y")

def kernarg_ready():
    e("s_waitcnt lgkmcnt(0)")
    e(f"s_load_dword {TAG}, s[{P_WS}:{P_WS+1}], 0")
    srd(WS, P_WS, WS_SIZE)

def get_tag():
    e("s_waitcnt lgkmcnt(0)")
    e(f"s_mul_i32 {TAG}, {TAG}, 1664525")
    e(f"s_add_u32 {TAG}, {TAG}, 1013904223")
    e(f"v_mov_b32 {VTAG}, {TAG}")

def hello_publish(vt):
    if not OPT.get("local", 1): return
    sk = uid("HEL")
    e(f"s_cmp_lg_u32 {WAVE}, 15"); e(f"s_cbranch_scc1 {sk}")
    e("s_getreg_b32 s9, hwreg(HW_REG_XCC_ID, 0, 4)")
    e(f"s_lshl_b32 s10, {X}, 8"); e("s_lshr_b32 s11, s2, 3"); e("s_lshl_b32 s11, s11, 3"); e("s_add_u32 s10, s10, s11"); e(f"s_add_u32 s10, s10, {WS_HELLO}")
    e(f"v_mov_b32 v{vt}, s9"); e(f"v_mov_b32 v{vt+1}, {TAG}"); e(f"v_mov_b32 v{vt+2}, 0")
    e("s_mov_b64 exec, 1")
    e(f"buffer_store_dwordx2 v[{vt}:{vt+1}], v{vt+2}, {sr(WS)}, s10 offen sc1")
    exec_all()
    lab(sk)

XL_U = 0
XL_UK = 61440
XL_MG, XL_MU, XL_MD = 73728, 94208, 114688
XL_S = 147456
XL_XN = XL_S
XL_Q = XL_S + 1280
XL_CL = XL_S + 2048
CL_RS = 400
XL_CB = XL_S + 14848
XL_W = XL_S + 15232
XL_FLAG = XL_S + 15360
XL_H = XL_S + 2048
XL_ST = XL_S + 4608
XL_G = XL_S + 4736
XL_HH = XL_S + 6144
XL_R2 = XL_S + 6400
XL_R = XL_S + 8192

def st_global(data, voff, soff):
    e(f"buffer_store_dwordx4 {data}, {voff}, {sr(WS)}, {soff} offen sc1")
def st_local(data, voff, soff):
    g = uid("STG"); d = uid("STD")
    e("s_nop 0"); e("v_readfirstlane_b32 s10, v123"); e("s_nop 3")
    e("s_cmp_eq_u32 s10, 1"); e(f"s_cbranch_scc0 {g}")
    e(f"buffer_store_dwordx4 {data}, {voff}, {sr(WS)}, {soff} offen")
    e(f"s_branch {d}")
    lab(g)
    e(f"buffer_store_dwordx4 {data}, {voff}, {sr(WS)}, {soff} offen sc1")
    lab(d)

XL_CX = None
def collect_store(acc, lds_base, soff_code, flavor, lbl):
    e(f"v_cvt_pk_bf16_f32 v124, v{acc}, v{acc+1}"); e(f"v_cvt_pk_bf16_f32 v125, v{acc+2}, v{acc+3}")
    e(f"v_lshlrev_b32 v5, 3, {G}"); e(f"s_lshl_b32 s9, {WAVE}, 5"); e(f"s_add_u32 s9, s9, {lds_base}"); e("v_add_u32 v5, s9, v5")
    set_exec64(EXEC_L15_0)
    e("ds_write_b64 v5, v[124:125]")
    exec_all()
    lab(lbl)
    barrier()
    sk = uid("CST")
    e(f"s_cmp_lg_u32 {WAVE}, 0"); e(f"s_cbranch_scc1 {sk}")
    e(f"v_lshlrev_b32 v5, 3, {LANE}"); e(f"v_add_u32 v6, {lds_base}, v5")
    set_exec64((1 << 48) - 1)
    e("ds_read_b64 v[124:125], v6")
    if flavor is st_local:
        e(f"v_mov_b32 v7, {XL_FLAG}"); e("ds_read_b32 v123, v7")
    soff_code()
    e(f"v_lshlrev_b32 v5, 4, {LANE}")
    e("s_waitcnt lgkmcnt(0)")
    e("v_mov_b32 v126, v125"); e(f"v_mov_b32 v125, {VTAG}"); e(f"v_mov_b32 v127, {VTAG}")
    flavor("v[124:127]", "v5", "s9")
    exec_all()
    lab(sk)

def code_touch(vd, wave=15):
    if not OPT["prefetch_code"]: return
    sk = uid("CT"); pc = uid("PC")
    e(f"s_cmp_lg_u32 {WAVE}, {wave}"); e(f"s_cbranch_scc1 {sk}")
    e("s_getpc_b64 s[10:11]")
    lab(pc)
    e(f"s_sub_u32 s10, s10, {pc}-{NAME}_kernel"); e("s_subb_u32 s11, s11, 0")
    e("s_lshr_b32 s9, s2, 3"); e("s_and_b32 s9, s9, 15"); e("s_lshl_b32 s9, s9, 10")
    e(f"v_lshl_add_u32 v{vd}, {LANE}, 4, s9")
    e(f"s_mov_b32 s9, L_END-{NAME}_kernel-16")
    e(f"v_min_u32 v{vd}, s9, v{vd}")
    e(f"global_load_dwordx4 v[{vd}:{vd+3}], v{vd}, s[10:11]")
    lab(sk)

def code_touch_range(lbl, nkb, vd, wave=15):
    if not OPT.get("retouch", 1): return
    sk = uid("CT"); pc = uid("PC")
    e(f"s_cmp_lg_u32 {WAVE}, {wave}"); e(f"s_cbranch_scc1 {sk}")
    e("s_getpc_b64 s[10:11]")
    lab(pc)
    e(f"s_sub_u32 s10, s10, {pc}-{NAME}_kernel"); e("s_subb_u32 s11, s11, 0")
    e(f"s_mov_b32 s9, {lbl}-{NAME}_kernel")
    e(f"v_lshl_add_u32 v{vd+4}, {LANE}, 4, s9")
    e(f"s_mov_b32 s9, L_END-{NAME}_kernel-16")
    for i in range(nkb):
        e(f"v_min_u32 v{vd+5}, s9, v{vd+4}")
        e(f"global_load_dwordx4 v[{vd}:{vd+3}], v{vd+5}, s[10:11]")
        if i + 1 < nkb: e(f"v_add_u32 v{vd+4}, 1024, v{vd+4}")
    lab(sk)

def x_program():
    lab("L_X")
    e(f"s_lshr_b32 s9, {J}, 2"); e(f"s_lshl_b32 {H}, {X}, 2"); e(f"s_add_u32 {H}, {H}, s9")
    e(f"s_and_b32 {R}, {J}, 3")
    dma_pattern(15, 12, 12288, "s65", 17, 18)
    if OPT.get("dmaexp", 0):
        e(f"v_lshrrev_b32 v17, 4, {LANE}"); e("s_lshl_b32 s9, s65, 2"); e("v_add_u32 v17, s9, v17"); e("v_mul_u32_u24 v17, 12288, v17")
        e(f"v_lshl_add_u32 v17, {L15}, 4, v17")
        e(f"v_lshrrev_b32 v18, 3, {LANE}"); e("v_mul_u32_u24 v18, 12288, v18"); e(f"v_and_b32 v15, 7, {LANE}"); e("v_lshl_add_u32 v18, v15, 4, v18"); e("v_add_u32 v18, 256, v18")
        e("s_cmp_eq_u32 s65, 2"); e("s_cselect_b64 vcc, -1, 0"); e("s_nop 1"); e("v_cndmask_b32 v15, v17, v18, vcc")
    e(f"v_cmp_lt_u32 vcc, 23, {LANE}"); e(f"v_subrev_u32 v6, 24, {LANE}"); e("s_nop 0")
    e(f"v_cndmask_b32 v14, {LANE}, v6, vcc"); e("v_lshlrev_b32 v14, 4, v14")
    e("v_mov_b32 v6, 12288"); e("v_cndmask_b32 v6, 0, v6, vcc"); e("v_add_u32 v14, v14, v6")
    e(f"v_lshlrev_b32 v5, 2, {LANE}")
    e(f"s_mul_i32 s10, {R}, 160"); e("s_lshl_b32 s11, s64, 3"); e("s_add_u32 s10, s10, s11")
    e("s_mul_i32 s11, s10, 12288"); e(f"s_mul_i32 s67, {H}, 384"); e("s_add_u32 s11, s11, s67")
    e(f"s_sub_u32 s9, {WAVE}, 12")
    e(f"s_mul_i32 s66, {R}, 192"); e("s_lshl_b32 s10, s9, 1"); e("s_add_u32 s66, s66, s10")
    e("s_mul_i32 s66, s66, 12288"); e("s_add_u32 s66, s66, s67")
    e(f"s_mul_i32 s68, s9, 800"); e(f"s_add_u32 s68, s68, {XL_UK}")
    e(f"s_lshl_b32 s10, {WAVE}, 10")
    kernarg_ready()
    srd(SA, P_WQ, 7864320); srd(SB, P_WUK, 9437184); srd(SC_, P_X, 1280)
    stamp("x: start", 8191)
    e(f"s_cmp_eq_u32 {WAVE}, 15"); e("s_cbranch_scc1 X_LN")
    e(f"s_cmp_ge_u32 {WAVE}, 12"); e("s_cbranch_scc1 X_UKD")
    dma_loop(15, SA, 10, 11, 5, 12 * 1024, 32 * 12288, OPT["xnt"])
    e("s_barrier")
    e("s_waitcnt vmcnt(0)")
    e("s_branch X_B1")
    lab("X_UKD")
    e("s_barrier")
    set_exec64((1<<48)-1)
    npre = OPT.get("ukpre", 4)
    dma_loop(14, SB, 68, 66, npre, 3 * 800, 6 * 12288, OPT["xnt"])
    exec_all()
    lab("X_B1")
    get_tag()
    if OPT.get("diagw", 0):
        e("s_memtime s[76:77]"); e("s_waitcnt lgkmcnt(0)")
        e("s_barrier")
        e("s_memtime s[78:79]"); e("s_waitcnt vmcnt(0)"); e("s_memtime s[80:81]"); e("s_waitcnt lgkmcnt(0)")
        e("s_lshl_b32 s9, s2, 10"); e(f"s_lshl_b32 s10, {WAVE}, 6"); e("s_add_u32 s9, s9, s10"); e(f"s_add_u32 s9, s9, {WS_ST}")
        e("s_mov_b64 exec, 1"); e("v_mov_b32 v5, 0")
        for i, b in enumerate((72, 74, 76, 78, 80, 96)):
            e(f"v_mov_b32 v6, s{b}"); e(f"v_mov_b32 v7, s{b+1}")
            e(f"buffer_store_dwordx2 v[6:7], v5, {sr(WS)}, s9 offen offset:{8*i}"); e("s_nop 1")
        e("s_endpgm")
    stamp("x: wq landed", 9)
    barrier()
    stamp("x: after B1", 8)
    e(f"s_cmp_ge_u32 {WAVE}, 12"); e("s_cbranch_scc1 X_UK2")
    e(f"v_mul_u32_u24 v5, 3072, {G}"); e(f"v_lshl_add_u32 v5, {L15}, 3, v5")
    e(f"s_lshl_b32 s9, {WAVE}, 7"); e("v_add_u32 v13, s9, v5")
    e(f"s_mul_i32 s9, {R}, 320"); e(f"s_add_u32 s9, s9, {XL_XN}")
    e(f"v_lshl_add_u32 v6, {G}, 4, s9")
    for ks in range(5):
        e(f"ds_read_b128 {vr(64+4*ks,4)}, v6 offset:{64*ks}")
        e(f"ds_read_b64_tr_b16 {vr(40+4*ks,2)}, v13 offset:{XL_U+ks*12288}")
        e(f"ds_read_b64_tr_b16 {vr(42+4*ks,2)}, v13 offset:{XL_U+ks*12288+1536}")
    e(f"s_lshl_b32 s9, {H}, 2"); e(f"s_add_u32 s9, s9, {R}"); e("s_mul_i32 s9, s9, 1536")
    e(f"s_lshl_b32 s10, {WAVE}, 7"); e("s_add_u32 s9, s9, s10"); e(f"s_add_u32 s9, s9, {WS_E1}")
    e(f"v_lshlrev_b32 v5, 3, {L15}")
    for ks in range(5):
        e(f"s_waitcnt lgkmcnt({3*(4-ks)})")
        mfma(88, 64 + 4 * ks, 40 + 4 * ks, "0" if ks == 0 else None)
    e("s_nop 7")
    e(f"v_mov_b32 v89, {VTAG}")
    e("s_mov_b64 exec, 0xffff")
    e(f"buffer_store_dwordx2 v[88:89], v5, {sr(WS)}, s9 offen{SCG}")
    exec_all()
    stamp("x: q published", 9)
    e("s_branch X_B3")
    lab("X_UK2")
    e(f"s_cmp_eq_u32 {WAVE}, 15"); e("s_cbranch_scc1 X_B3")
    set_exec64((1<<48)-1)
    dma_loop(14, SB, 68, 66, 32 - OPT.get("ukpre", 4), 3 * 800, 6 * 12288, OPT["xnt"])
    exec_all()
    e(f"s_cmp_ge_u32 {WAVE}, 14"); e("s_cbranch_scc1 X_B3W")
    e(f"s_sub_u32 s9, {WAVE}, 12"); e("s_lshl_b32 s9, s9, 6"); e(f"v_add_u32 v5, s9, {LANE}")
    e("v_cmp_gt_u32 vcc, 96, v5"); e("s_and_saveexec_b64 s[42:43], vcc")
    e("v_lshlrev_b32 v6, 4, v5")
    e(f"s_mul_i32 s9, {H}, 6144"); e(f"s_add_u32 s9, s9, {WS_E1}")
    e("s_add_u32 s10, s9, 3072")
    stamp("x: E1 poll start", 8)
    poll([f"buffer_load_dwordx4 v[92:95], v6, {sr(WS)}, s9 offen sc1",
          f"buffer_load_dwordx4 v[96:99], v6, {sr(WS)}, s9 offen offset:1536 sc1",
          f"buffer_load_dwordx4 v[100:103], v6, {sr(WS)}, s10 offen sc1",
          f"buffer_load_dwordx4 v[104:107], v6, {sr(WS)}, s10 offen offset:1536 sc1"],
         [93, 95, 97, 99, 101, 103, 105, 107], 108)
    stamp("x: E1 poll end", 8); stamp_val("E1 iters", "s13", 8)
    e("v_add_f32 v92, v92, v96"); e("v_add_f32 v94, v94, v98")
    e("v_add_f32 v100, v100, v104"); e("v_add_f32 v102, v102, v106")
    e("v_add_f32 v92, v92, v100"); e("v_add_f32 v94, v94, v102")
    qs = 192 ** -0.5 * math.log2(math.e)
    e(f"v_mul_f32 v92, {F(qs)}, v92"); e(f"v_mul_f32 v94, {F(qs)}, v94")
    e("v_cvt_pk_bf16_f32 v92, v92, v94")
    e("v_lshlrev_b32 v6, 2, v5"); e(f"v_add_u32 v6, {XL_Q}, v6")
    e("ds_write_b32 v6, v92")
    e("s_mov_b64 exec, s[42:43]")
    lab("X_B3W")
    e("s_waitcnt vmcnt(0)")
    lab("X_B3")
    barrier()
    stamp("x: q gathered", 9)
    e(f"s_cmp_ge_u32 {WAVE}, 12"); e("s_cbranch_scc1 X_P2B")
    e(f"v_lshlrev_b32 v6, 4, {G}"); e(f"v_add_u32 v6, {XL_Q}, v6")
    e(f"v_lshrrev_b32 v7, 1, {L15}"); e("v_mul_u32_u24 v7, 800, v7")
    e(f"v_and_b32 v8, 1, {L15}"); e("v_mul_u32_u24 v8, 384, v8"); e("v_add_u32 v7, v7, v8")
    e(f"v_lshl_add_u32 v7, {G}, 4, v7")
    e(f"s_mul_i32 s9, {WAVE}, 6400"); e(f"s_add_u32 s9, s9, {XL_UK}"); e("v_add_u32 v7, s9, v7")
    for ks in range(6):
        e(f"ds_read_b128 {vr(16+4*ks,4)}, v7 offset:{64*ks}")
        e(f"ds_read_b128 {vr(64+4*ks,4)}, v6 offset:{64*ks}")
    for ks in range(6):
        e(f"s_waitcnt lgkmcnt({2*(5-ks)})")
        mfma(88, 16 + 4 * ks, 64 + 4 * ks, "0" if ks == 0 else None)
    e("s_nop 7")
    def soff_qa():
        e(f"s_mul_i32 s9, {H}, 3072"); e(f"s_mul_i32 s10, {R}, 768"); e("s_add_u32 s9, s9, s10"); e(f"s_add_u32 s9, s9, {WS_QA}")
    collect_store(88, XL_CB, soff_qa, st_global, "X_P2B")
    stamp("x: qabs published", 9|128|256)
    if OPT.get("xstop", 0) == 1:
        e("s_waitcnt vmcnt(0)"); barrier(); stamp("x: all waves done"); e("s_branch X_END")
    srd(SA, P_WUV, 9437184)
    e(f"s_cmp_ge_u32 {WAVE}, 12"); e("s_cbranch_scc1 X_B4")
    e(f"s_mul_i32 s10, {R}, 192"); e("s_lshl_b32 s11, s64, 3"); e("s_add_u32 s10, s10, s11")
    e("s_mul_i32 s11, s10, 12288"); e("s_add_u32 s11, s11, s67")
    e(f"s_lshl_b32 s10, {WAVE}, 10"); e(f"s_add_u32 s10, s10, {XL_U}")
    dma_loop(15, SA, 10, 11, 6, 12 * 1024, 32 * 12288, OPT["xnt"])
    lab("X_B4")
    PFNT = " nt" if OPT.get("pfnt", 0) else ""
    if OPT.get("wopf", 0):
        sk = uid("PFO")
        srd(SB, P_WO, 7864320)
        e(f"s_cmp_eq_u32 {WAVE}, 15"); e(f"s_cbranch_scc1 {sk}")
        e(f"s_mul_i32 s9, {X}, 768"); e(f"s_mul_i32 s10, {J}, 48"); e("s_add_u32 s9, s9, s10"); e("s_mul_i32 s9, s9, 1280")
        e(f"s_lshl_b32 s10, {WAVE}, 12"); e("s_add_u32 s9, s9, s10")
        e(f"v_lshlrev_b32 v8, 4, {LANE}")
        for i in range(4): e(f"buffer_load_dwordx4 v[120:123], v8, {sr(SB)}, s9 offen offset:{1024*i}{PFNT}")
        lab(sk)
    if OPT.get("l2pf", 1):
        srd(SB, P_WG, 1966080); srd(SD, P_WU, 1966080)
        e(f"v_cmp_lt_u32 vcc, 23, {LANE}"); e(f"v_subrev_u32 v7, 24, {LANE}"); e("s_nop 0")
        e(f"v_cndmask_b32 v8, {LANE}, v7, vcc"); e("v_lshlrev_b32 v8, 4, v8")
        e("v_mov_b32 v7, 3072"); e("v_cndmask_b32 v7, 0, v7, vcc"); e("v_add_u32 v8, v8, v7")
        sk = uid("PFG")
        e(f"s_cmp_ge_u32 {WAVE}, 10"); e(f"s_cbranch_scc1 {sk}")
        e(f"s_mul_i32 s9, {J}, 40"); e(f"s_lshl_b32 s10, {WAVE}, 2"); e("s_add_u32 s9, s9, s10"); e("s_mul_i32 s9, s9, 3072")
        e(f"s_mul_i32 s10, {X}, 384"); e("s_add_u32 s9, s9, s10"); e("s_add_u32 s10, s9, 6144")
        set_exec64((1 << 48) - 1)
        e(f"buffer_load_dwordx4 v[120:123], v8, {sr(SB)}, s9 offen{PFNT}"); e(f"buffer_load_dwordx4 v[120:123], v8, {sr(SB)}, s10 offen{PFNT}")
        e(f"buffer_load_dwordx4 v[120:123], v8, {sr(SD)}, s9 offen{PFNT}"); e(f"buffer_load_dwordx4 v[120:123], v8, {sr(SD)}, s10 offen{PFNT}")
        exec_all()
        lab(sk)
        sk = uid("PFD")
        e(f"s_cmp_lt_u32 {WAVE}, 10"); e(f"s_cbranch_scc1 {sk}")
        srd(SB, P_WD, 1966080)
        e(f"s_mul_i32 s9, {X}, 192"); e(f"s_mul_i32 s10, {J}, 12"); e("s_add_u32 s9, s9, s10"); e("s_mul_i32 s9, s9, 1280")
        e(f"s_sub_u32 s10, {WAVE}, 10"); e("s_mul_i32 s10, s10, 2560"); e("s_add_u32 s9, s9, s10")
        e(f"v_lshlrev_b32 v8, 4, {LANE}")
        e(f"buffer_load_dwordx4 v[120:123], v8, {sr(SB)}, s9 offen{PFNT}"); e(f"buffer_load_dwordx4 v[120:123], v8, {sr(SB)}, s9 offen offset:1024{PFNT}")
        set_exec64(0xffffffff)
        e(f"buffer_load_dwordx4 v[120:123], v8, {sr(SB)}, s9 offen offset:2048{PFNT}")
        exec_all()
        lab(sk)
    e(f"v_lshrrev_b32 v8, 5, {LANE}"); e(f"s_lshl_b32 s9, {WAVE}, 1"); e("v_add_u32 v8, s9, v8")
    e(f"v_and_b32 v9, 31, {LANE}")
    e("v_mul_u32_u24 v6, 2176, v8"); e("v_lshl_add_u32 v6, v9, 4, v6")
    e(f"v_mul_u32_u24 v10, {CL_RS}, v8"); e("v_mul_u32_u24 v11, 12, v9"); e("v_add_u32 v10, v10, v11")
    e(f"v_add_u32 v118, {XL_CL}, v10")
    e("s_waitcnt vmcnt(0)")
    code_touch_range("X_NPR", 3, 120, 14)
    stamp("x: burst2 landed", 1|256)
    barrier()
    if OPT.get("xstop", 0) == 2: e("s_branch X_END")
    e(f"s_cmp_ge_u32 {WAVE}, 12"); e("s_cbranch_scc1 X_NPR")
    for ks in range(6):
        e(f"ds_read_b64_tr_b16 {vr(40+4*ks,2)}, v13 offset:{XL_U+ks*12288}")
        e(f"ds_read_b64_tr_b16 {vr(42+4*ks,2)}, v13 offset:{XL_U+ks*12288+1536}")
    lab("X_NPR")
    e(f"v_lshrrev_b32 v16, 2, {L15}"); e(f"v_lshl_add_u32 v16, {G}, 3, v16"); e(f"v_mul_u32_u24 v16, {CL_RS}, v16")
    e(f"v_and_b32 v17, 3, {L15}"); e("v_lshl_add_u32 v16, v17, 3, v16")
    e(f"s_lshl_b32 s9, {WAVE}, 5"); e(f"s_add_u32 s10, s9, {XL_CL}"); e("v_add_u32 v16, s10, v16")
    e(f"v_and_b32 v17, 1, {LANE}"); e("v_lshlrev_b32 v17, 6, v17"); e(f"v_lshl_add_u32 v17, {G}, 4, v17"); e(f"v_add_u32 v17, {XL_W}, v17")
    e(f"v_lshlrev_b32 v18, 1, {L15}"); e(f"s_add_u32 s10, s9, {XL_CB}"); e("v_add_u32 v18, s10, v18")
    e(f"v_lshlrev_b32 v19, 4, {G}"); e(f"v_add_u32 v19, {XL_CB}, v19")
    e(f"s_mul_i32 s9, {H}, 69632"); e(f"s_add_u32 s69, s9, {WS_E3 + 2048}"); e(f"s_lshl_b32 s10, {R}, 9"); e("s_add_u32 s9, s9, s10")
    e(f"s_add_u32 s9, s9, {WS_E3}")
    e(f"s_cmp_eq_u32 {WAVE}, 12"); e("s_cbranch_scc1 X_ML")
    stamp("x: E3 poll start", 16)
    pollx([f"buffer_load_dwordx4 v[96:99], v6, {sr(WS)}, s9 offen sc1"], [96], 108)
    stamp("x: E3 poll end", 16|2048); stamp_val("E3 iters", "s13", 16)
    e("ds_write2_b32 v118, v96, v97 offset1:1"); e("ds_write_b32 v118, v98 offset:8")
    if OPT.get("local", 1):
        sk = uid("HCK")
        e(f"s_cmp_lg_u32 {WAVE}, 13"); e(f"s_cbranch_scc1 {sk}")
        e(f"v_lshlrev_b32 v5, 3, {LANE}")
        e(f"s_lshl_b32 s10, {X}, 8"); e(f"s_add_u32 s10, s10, {WS_HELLO + 128}")
        e("s_getreg_b32 s11, hwreg(HW_REG_XCC_ID, 0, 4)")
        e("s_mov_b64 exec, 0x3ff")
        e(f"buffer_load_dwordx2 v[100:101], v5, {sr(WS)}, s10 offen sc1")
        e("s_waitcnt vmcnt(0)")
        e("v_xor_b32 v100, s11, v100"); e(f"v_xor_b32 v101, {TAG}, v101"); e("v_or_b32 v100, v100, v101")
        e("v_cmp_ne_u32 vcc, 0, v100")
        e("s_cmp_eq_u64 vcc, 0"); e("s_cselect_b32 s10, 1, 0")
        e("s_mov_b64 exec, 1")
        e(f"v_mov_b32 v100, s10"); e(f"v_mov_b32 v5, {XL_FLAG}"); e("ds_write_b32 v5, v100")
        exec_all()
        lab(sk)
    e("s_branch X_B5")
    lab("X_ML")
    e(f"v_and_b32 v5, 31, {LANE}"); e("v_mul_u32_u24 v5, 2176, v5")
    pollx([f"buffer_load_dwordx4 v[100:103], v6, {sr(WS)}, s9 offen sc1",
           f"buffer_load_dwordx4 v[96:99], v5, {sr(WS)}, s69 offen sc1"], [100, 96], 108, init=[None, 0xffffffff])
    e("ds_write2_b32 v118, v100, v101 offset1:1"); e("ds_write_b32 v118, v102 offset:8")
    e("v_mov_b32 v98, v96")
    e("s_nop 1"); row16_allreduce("v_max_f32", 98); e("s_nop 1"); cross16("v_max_f32", 98, 99)
    e("v_sub_f32 v96, v96, v98"); e("v_exp_f32 v96, v96"); e("s_nop 0")
    e("v_mul_f32 v97, v96, v97")
    e("s_nop 1"); row16_allreduce("v_add_f32", 97); e("s_nop 1"); cross16("v_add_f32", 97, 99)
    e("v_rcp_f32 v97, v97"); e("s_nop 0")
    e("v_mul_f32 v96, v96, v97")
    e("v_cvt_pk_bf16_f32 v97, v96, v96")
    e("v_and_b32 v98, 0xffff0000, v97")
    e("v_sub_f32 v96, v96, v98")
    e("v_cvt_pk_bf16_f32 v96, v96, v96")
    e(f"v_and_b32 v5, 31, {LANE}"); e("v_lshlrev_b32 v5, 1, v5"); e(f"v_add_u32 v5, {XL_W}, v5")
    set_exec64(0xffffffff)
    e("ds_write_b16 v5, v97"); e("ds_write_b16 v5, v96 offset:64")
    exec_all()
    lab("X_B5")
    barrier()
    stamp("x: E3 gathered", 17|128|256|2048)
    e(f"s_cmp_ge_u32 {WAVE}, 12"); e("s_cbranch_scc1 X_B5b")
    e(f"ds_read_b64_tr_b16 v[96:97], v16"); e(f"ds_read_b64_tr_b16 v[98:99], v16 offset:{4*CL_RS}")
    e("ds_read_b128 v[100:103], v17")
    e("s_waitcnt lgkmcnt(0)")
    mfma(120, 100, 96, "0")
    e("s_nop 7")
    e("v_add_f32 v120, v120, v121")
    e("v_cvt_pk_bf16_f32 v120, v120, v120")
    e("s_mov_b64 exec, 0xffff")
    e("ds_write_b16 v18, v120")
    exec_all()
    lab("X_B5b")
    barrier()
    stamp("x: after B5b", 2048)
    e(f"s_cmp_ge_u32 {WAVE}, 12"); e("s_cbranch_scc1 X_UPD")
    for ks in range(6): e(f"ds_read_b128 {vr(96+4*ks,4)}, v19 offset:{64*ks}")
    for ks in range(6):
        e(f"s_waitcnt lgkmcnt({5-ks})")
        mfma(120, 40 + 4 * ks, 96 + 4 * ks, "0" if ks == 0 else None)
    e("s_nop 7")
    def soff_e4():
        e(f"s_lshl_b32 s9, {X}, 2"); e(f"s_add_u32 s9, s9, {R}"); e("s_mul_i32 s9, s9, 3072")
        e(f"s_and_b32 s10, {H}, 3"); e("s_mul_i32 s10, s10, 768"); e("s_add_u32 s9, s9, s10"); e(f"s_add_u32 s9, s9, {WS_E4}")
    collect_store(120, XL_Q, soff_e4, st_local if OPT.get("local", 1) else st_global, "X_UPD")
    stamp("x: ctx published", 1|128|256|2048)
    e(f"s_cmp_ge_u32 {J}, 5"); e("s_cbranch_scc1 X_END")
    e(f"s_mul_i32 s66, {X}, 5"); e(f"s_add_u32 s66, s66, {J}")
    e(f"s_cmp_ge_u32 {WAVE}, 7"); e("s_cbranch_scc1 X_B9")
    e(f"s_cmp_eq_u32 {WAVE}, 6"); e("s_cbranch_scc1 X_FH")
    e(f"v_lshrrev_b32 v5, 3, {LANE}"); e("v_mul_u32_u24 v5, 5120, v5")
    e(f"v_and_b32 v6, 7, {LANE}"); e("v_lshl_add_u32 v5, v6, 4, v5")
    e(f"s_mul_i32 s9, {WAVE}, 40960"); e("s_lshl_b32 s10, s66, 7"); e("s_add_u32 s9, s9, s10")
    e(f"s_add_u32 s9, s9, {WS_E6}")
    poll([f"buffer_load_dwordx4 v[92:95], v5, {sr(WS)}, s9 offen sc1"], [93, 95], 108)
    e("v_mov_b32 v93, v94")
    e("s_nop 1")
    for i in range(2):
        e(f"v_add_f32_dpp v{92+i}, v{92+i}, v{92+i} row_ror:8 row_mask:0xf bank_mask:0xf")
    for i in range(2):
        cross16("v_add_f32", 92 + i, 96); cross32("v_add_f32", 92 + i, 96)
    e("v_lshlrev_b32 v6, 3, v6"); e(f"s_lshl_b32 s9, {WAVE}, 6"); e(f"s_add_u32 s9, s9, {XL_R2}")
    e("v_add_u32 v6, s9, v6")
    e("s_mov_b64 exec, 0xff")
    e("ds_write_b64 v6, v[92:93]")
    exec_all()
    e("s_branch X_B9")
    lab("X_FH")
    e(f"v_bfe_u32 v5, {LANE}, 2, 3"); e("v_mul_u32_u24 v5, 2560, v5")
    e(f"v_and_b32 v6, 3, {LANE}"); e("v_lshl_add_u32 v5, v6, 4, v5")
    e("s_lshl_b32 s9, s66, 6"); e(f"s_add_u32 s9, s9, {WS_E5}")
    e("v_lshlrev_b32 v7, 3, v6"); e("s_lshl_b32 s10, s66, 5")
    e(f"buffer_load_dwordx2 v[104:105], v7, {sr(SC_)}, s10 offen")
    set_exec64(0xffffffff)
    poll([f"buffer_load_dwordx4 v[92:95], v5, {sr(WS)}, s9 offen sc1"], [93, 95], 108)
    exec_all()
    e("v_lshlrev_b32 v96, 16, v92"); e("v_and_b32 v97, 0xffff0000, v92")
    e("v_lshlrev_b32 v98, 16, v94"); e("v_and_b32 v99, 0xffff0000, v94")
    e("s_nop 1")
    for sh in (4, 8):
        for i in range(4):
            e(f"v_add_f32_dpp v{96+i}, v{96+i}, v{96+i} row_ror:{sh} row_mask:0xf bank_mask:0xf")
    for i in range(4): cross16("v_add_f32", 96 + i, 100)
    e("v_lshlrev_b32 v100, 16, v104"); e("v_and_b32 v101, 0xffff0000, v104")
    e("v_lshlrev_b32 v102, 16, v105"); e("v_and_b32 v103, 0xffff0000, v105")
    for i in range(4): e(f"v_add_f32 v{96+i}, v{96+i}, v{100+i}")
    e("v_lshlrev_b32 v6, 4, v6"); e(f"v_add_u32 v6, {XL_H}, v6")
    e("s_mov_b64 exec, 0xf")
    e("ds_write_b128 v6, v[96:99]")
    exec_all()
    lab("X_B9")
    barrier()
    e(f"s_cmp_lg_u32 {WAVE}, 0"); e("s_cbranch_scc1 X_END")
    e(f"v_lshlrev_b32 v5, 3, {LANE}"); e(f"v_add_u32 v6, {XL_R2}, v5"); e(f"v_add_u32 v7, {XL_H}, v5")
    e("s_mov_b64 exec, 0xff")
    for w in range(6): e(f"ds_read_b64 {vr(92+2*w,2)}, v6 offset:{64*w}")
    e("ds_read_b64 v[116:117], v7")
    srd(SD, P_OUT, 1280)
    e("s_waitcnt lgkmcnt(0)")
    for w in range(1, 6):
        e(f"v_add_f32 v92, v92, v{92+2*w}"); e(f"v_add_f32 v93, v93, v{93+2*w}")
    e("v_add_f32 v92, v92, v116"); e("v_add_f32 v93, v93, v117")
    e("v_cvt_pk_bf16_f32 v92, v92, v93")
    e(f"v_lshlrev_b32 v5, 2, {LANE}"); e("s_lshl_b32 s9, s66, 5")
    e(f"buffer_store_dword v92, v5, {sr(SD)}, s9 offen")
    e("s_cmp_lg_u32 s66, 0"); e("s_cbranch_scc1 X_EP")
    e("s_mov_b64 exec, 1")
    e("v_mov_b32 v5, 0")
    e(f"buffer_store_dword {VTAG}, v5, {sr(WS)}, 0 offen sc1")
    lab("X_EP")
    exec_all()
    lab("X_END")
    stamp("x: end", 1|128|1024)
    stamp_flush(nstamp[0])
    e("s_endpgm")
    lab("X_LN")
    for i in range(5):
        e(f"buffer_load_dword v{16+i}, v5, {sr(SC_)}, 0 offen offset:{256*i}")
    e("s_barrier")
    e("s_waitcnt vmcnt(0)")
    for i in range(5):
        e(f"v_lshlrev_b32 v{21+2*i}, 16, v{16+i}")
        e(f"v_and_b32 v{22+2*i}, 0xffff0000, v{16+i}")
    e("v_add_f32 v31, v21, v22")
    for i in range(23, 31): e(f"v_add_f32 v31, v31, v{i}")
    wave_allreduce("v_add_f32", 31, 32)
    e(f"v_mul_f32 v31, {F(1.0/640.0)}, v31")
    for i in range(21, 31): e(f"v_sub_f32 v{i}, v{i}, v31")
    e("v_mul_f32 v33, v21, v21")
    for i in range(22, 31): e(f"v_fmac_f32 v33, v{i}, v{i}")
    wave_allreduce("v_add_f32", 33, 32)
    e(f"v_mov_b32 v32, {F(1e-5)}")
    e(f"v_fmac_f32 v32, {F(1.0/640.0)}, v33")
    e("v_rsq_f32 v32, v32"); e("s_nop 0")
    for i in range(21, 31): e(f"v_mul_f32 v{i}, v{i}, v32")
    for i in range(5): e(f"v_cvt_pk_bf16_f32 v{16+i}, v{21+2*i}, v{22+2*i}")
    e(f"v_add_u32 v5, {XL_XN}, v5")
    for i in range(5): e(f"ds_write_b32 v5, v{16+i} offset:{256*i}")
    e("s_branch X_B1")

CH_KB = 6272
CH_SZ = 8 * CH_KB
YL_C = 0
YL_QA = 2 * CH_SZ
YL_SP = YL_QA + 12416
YL_PF = YL_SP + 34816
YL_M = YL_PF + 4096
YL_R = YL_M + 64
YL_MG, YL_MU, YL_MD = 0, 40960, 81920
YL_H = 131072
YL_ST = YL_H + 2560
YL_G = YL_H + 2688
YL_HH = YL_H + 5376
assert YL_R + 3072 <= 163840
HG = "s7"

def y_program():
    nstamp[0] = 0
    lab("L_Y")
    e(f"s_sub_u32 {J}, {J}, 16")
    e(f"s_and_b32 {HG}, {J}, 3"); e(f"s_lshr_b32 {KC}, {J}, 2")
    e(f"v_bfe_u32 v5, {LANE}, 1, 2"); e("v_mul_u32_u24 v5, 1536, v5")
    e(f"v_lshrrev_b32 v6, 3, {LANE}"); e("v_lshl_add_u32 v5, v6, 5, v5")
    e(f"v_and_b32 v6, 1, {LANE}"); e("v_lshl_add_u32 v15, v6, 4, v5")
    e(f"s_lshl_b32 s9, {X}, 9"); e(f"s_lshl_b32 s10, {KC}, 7"); e("s_add_u32 s9, s9, s10")
    e(f"s_lshr_b32 s10, {WAVE}, 1"); e("s_lshl_b32 s11, s10, 2"); e("s_add_u32 s9, s9, s11")
    e("s_mul_i32 s66, s9, 1536")
    e(f"s_and_b32 s11, {WAVE}, 1"); e("s_mul_i32 s11, s11, 3"); e("s_lshl_b32 s14, s11, 8"); e("s_add_u32 s66, s66, s14")
    e(f"s_mul_i32 s67, s10, {CH_KB}"); e("s_lshl_b32 s14, s11, 10"); e("s_add_u32 s67, s67, s14")
    kernarg_ready()
    srd(SA, P_CKV, 6291456)
    stamp("y: start", 8191)
    if OPT.get("ystop", 0) == 1: e("s_branch Y_END")
    code_touch(120)
    ynt = OPT["ynt"]
    def chunk_dma(ch):
        e(f"s_add_u32 s10, s67, {(ch % 2) * CH_SZ}"); e(f"s_add_u32 s11, s66, {ch * 32 * 1536}")
        for i in range(3):
            e("s_mov_b32 m0, s10"); e("s_add_u32 s10, s10, 1024")
            e(f"buffer_load_dwordx4 v15, {sr(SA)}, s11 offen{' nt' if ynt else ''} lds")
            e("s_add_u32 s11, s11, 256")
    chunk_dma(0); chunk_dma(1)
    e(f"v_lshlrev_b32 v5, 2, v0"); e(f"v_add_u32 v5, {YL_PF}, v5"); e("v_mov_b32 v6, 0"); e("ds_write_b32 v5, v6")
    e(f"s_and_b32 s68, {WAVE}, 3"); e(f"s_lshr_b32 s69, {WAVE}, 2")
    e(f"v_lshrrev_b32 v5, 2, {L15}")
    e(f"v_mul_u32_u24 v5, {CH_KB}, v5")
    e(f"v_and_b32 v6, 3, {L15}"); e("v_lshl_add_u32 v5, v6, 5, v5")
    e(f"v_lshrrev_b32 v6, 1, {G}"); e("v_lshl_add_u32 v5, v6, 7, v5")
    e(f"v_and_b32 v6, 1, {G}"); e("v_lshl_add_u32 v5, v6, 4, v5")
    e("s_mul_i32 s9, s69, 1536"); e("v_add_u32 v13, s9, v5")
    e(f"v_mul_u32_u24 v5, {CH_KB}, {G}"); e(f"v_lshl_add_u32 v5, {L15}, 3, v5")
    e(f"s_mul_i32 s9, {WAVE}, 384"); e("v_add_u32 v14, s9, v5")
    e(f"v_add_u32 v8, {CH_SZ}, v14"); e(f"v_add_u32 v11, {CH_SZ}, v13")
    for n in range(2):
        e(f"v_add_u32 v{6+n}, {1024*n}, v0")
        e(f"s_mov_b32 s9, 43691")
        e(f"v_mul_lo_u32 v{9+n}, v{6+n}, s9"); e(f"v_lshrrev_b32 v{9+n}, 23, v{9+n}")
        e(f"v_mul_u32_u24 v12, 192, v{9+n}"); e(f"v_sub_u32 v12, v{6+n}, v12")
        e(f"v_mul_u32_u24 v{9+n}, 1552, v{9+n}"); e(f"v_lshl_add_u32 v{9+n}, v12, 3, v{9+n}")
        e(f"v_add_u32 v{9+n}, {YL_QA}, v{9+n}")
        e(f"v_lshlrev_b32 v{6+n}, 4, v{6+n}")
    SF, PVF = 16, 64
    def read_frags(ch):
        sb, pb = ("v13", "v14") if ch % 2 == 0 else ("v11", "v8")
        sk = uid("YSR")
        e(f"s_cmp_lg_u32 s68, {ch}"); e(f"s_cbranch_scc1 {sk}")
        for a in range(2):
            for i in range(6): e(f"ds_read_b128 {vr(SF+4*(6*a+i),4)}, {sb} offset:{a*4*CH_KB+256*i}")
        e("s_waitcnt lgkmcnt(0)")
        lab(sk)
        for a in range(3):
            b = PVF + (ch * 3 + a) * 4
            e(f"ds_read_b64_tr_b16 {vr(b,2)}, {pb} offset:{a*128}")
            e(f"ds_read_b64_tr_b16 {vr(b+2,2)}, {pb} offset:{4*CH_KB+a*128}")
    e("s_waitcnt vmcnt(3)"); barrier(); read_frags(0); barrier(); chunk_dma(2)
    e("s_waitcnt vmcnt(3)"); barrier(); read_frags(1); barrier(); code_touch_range("Y_E2D", 2, 120, 15); chunk_dma(3)
    e("s_waitcnt vmcnt(3)"); barrier(); read_frags(2)
    e("s_waitcnt vmcnt(0)"); barrier(); read_frags(3)
    get_tag()
    hello_publish(120)
    stamp("y: C landed", 9)
    if OPT.get("ystop", 0) == 2:
        barrier(); stamp("y: all landed"); e("s_branch Y_END")
    srd(SA, P_WO, 7864320)
    e(f"v_lshrrev_b32 v5, 5, {LANE}"); e("v_lshlrev_b32 v5, 2, v5"); e(f"v_bfe_u32 v12, {LANE}, 1, 2"); e("v_add_u32 v5, v5, v12")
    e("v_mul_u32_u24 v5, 1280, v5")
    e(f"v_bfe_u32 v12, {LANE}, 3, 2"); e("v_lshl_add_u32 v5, v12, 5, v5")
    e(f"v_and_b32 v12, 1, {LANE}"); e("v_lshl_add_u32 v0, v12, 4, v5")
    e(f"s_mul_i32 s67, {X}, 768"); e(f"s_lshl_b32 s10, {WAVE}, 3"); e("s_add_u32 s67, s67, s10"); e("s_mul_i32 s67, s67, 1280")
    e(f"s_lshl_b32 s10, {J}, 7"); e("s_add_u32 s67, s67, s10")
    e(f"s_lshl_b32 s66, {WAVE}, 10")
    def wo_batch(vreg, late=False):
        if bool(OPT.get("wopf", 0)) != late: return
        sk = uid("YWO")
        e(f"s_cmp_ge_u32 {J}, 10"); e(f"s_cbranch_scc1 {sk}")
        for i in range(2):
            e("s_mov_b32 m0, s66"); e(f"s_add_u32 s66, s66, {16*1024}")
            e(f"buffer_load_dwordx4 {vreg}, {sr(SA)}, s67 offen{' nt' if (OPT.get('wont', 1) and not OPT.get('wopf', 0)) else ''} lds")
            e(f"s_add_u32 s67, s67, {128*1280}")
        lab(sk)
    wo_batch("v0")
    e(f"s_mul_i32 s9, {HG}, 24576"); e(f"s_add_u32 s9, s9, {WS_QA}")
    e(f"s_cmp_ge_u32 {WAVE}, 8"); e("s_cbranch_scc1 Y_E2B")
    poll([f"buffer_load_dwordx4 {vr(112+4*n,4)}, v{6+n}, {sr(WS)}, s9 offen sc1" for n in range(2)],
         [113, 115, 117, 119], 120)
    for n in range(2):
        e(f"v_mov_b32 v{113+4*n}, v{114+4*n}")
        e(f"ds_write_b64 v{9+n}, {vr(112+4*n,2)}")
    e("s_branch Y_E2D")
    lab("Y_E2B")
    poll([f"buffer_load_dwordx4 v[112:115], v6, {sr(WS)}, s9 offen sc1"], [113, 115], 120)
    e("v_mov_b32 v113, v114"); e("ds_write_b64 v9, v[112:113]")
    lab("Y_E2D")
    stamp("y: qabs gathered", 9|128)
    barrier()
    stamp("y: after E2 barrier", 8)
    wo_batch("v0")
    e(f"v_and_b32 v5, 7, {L15}"); e("v_mul_u32_u24 v5, 1552, v5"); e(f"v_lshl_add_u32 v5, {G}, 4, v5")
    e(f"s_mul_i32 s9, s69, 384"); e(f"s_add_u32 s9, s9, {YL_QA}"); e("v_add_u32 v5, s9, v5")
    for i in range(4): e(f"ds_read_b128 {vr(112+4*i,4)}, v5 offset:{64*i}")
    e(f"v_mul_u32_u24 v6, 272, {G}"); e(f"v_lshl_add_u32 v6, {L15}, 4, v6")
    e("s_lshl_b32 s9, s69, 3"); e("s_lshl_b32 s10, s68, 1"); e("s_add_u32 s9, s9, s10"); e("s_mul_i32 s9, s9, 1088")
    e(f"s_add_u32 s9, s9, {YL_SP}"); e("v_add_u32 v6, s9, v6")
    for i in range(6):
        rem = min(6, i + 4) - (i + 1)
        e(f"s_waitcnt lgkmcnt({rem})")
        mfma(8, SF + 4 * i, 112 + 4 * (i % 4), "0" if i == 0 else None)
        mfma(12, SF + 4 * (6 + i), 112 + 4 * (i % 4), "0" if i == 0 else None)
        if i + 4 < 6:
            e(f"ds_read_b128 {vr(112+4*(i%4),4)}, v5 offset:{64*(i+4)}")
    e("s_nop 7")
    e("ds_write_b128 v6, v[8:11]"); e("ds_write_b128 v6, v[12:15] offset:1088")
    barrier()
    stamp("y: S partial done", 10)
    wo_batch("v0")
    e(f"s_cmp_ge_u32 {WAVE}, 8"); e("s_cbranch_scc1 Y_SMD")
    e(f"v_mul_u32_u24 v5, 1088, {G}")
    e(f"v_bfe_u32 v6, {LANE}, 2, 2"); e("v_mul_u32_u24 v7, 272, v6")
    e(f"v_and_b32 v12, 3, {LANE}"); e("v_lshlrev_b32 v8, 2, v12")
    e("v_add3_u32 v5, v5, v7, v8")
    e(f"s_lshl_b32 s9, {WAVE}, 4"); e(f"s_add_u32 s9, s9, {YL_SP}"); e("v_add_u32 v5, s9, v5")
    for kq in range(4):
        e(f"ds_read_b32 v{112+kq}, v5 offset:{8704*kq}"); e(f"ds_read_b32 v{116+kq}, v5 offset:{8704*kq+4352}")
    e(f"v_lshrrev_b32 v7, 5, {LANE}"); e("v_lshlrev_b32 v7, 10, v7")
    e("v_lshl_add_u32 v7, v6, 8, v7")
    e(f"v_bfe_u32 v8, {LANE}, 4, 1"); e("v_lshl_add_u32 v7, v8, 3, v7")
    e("v_lshl_add_u32 v7, v12, 1, v7")
    e(f"s_lshl_b32 s9, {WAVE}, 4"); e(f"s_add_u32 s9, s9, {YL_PF}"); e("v_add_u32 v7, s9, v7")
    e("s_waitcnt lgkmcnt(0)")
    e("v_add_f32 v112, v112, v113"); e("v_add_f32 v114, v114, v115"); e("v_add_f32 v116, v116, v117"); e("v_add_f32 v118, v118, v119")
    e("v_add_f32 v112, v112, v114"); e("v_add_f32 v114, v116, v118")
    e("v_max_f32 v116, v112, v114")
    wave_allreduce("v_max_f32", 116, 117)
    e("v_sub_f32 v112, v112, v116"); e("v_sub_f32 v114, v114, v116")
    e("v_exp_f32 v112, v112"); e("v_exp_f32 v114, v114"); e("s_nop 0")
    e("v_cvt_pk_bf16_f32 v112, v112, v114")
    e("ds_write_b16 v7, v112"); e("ds_write_b16_d16_hi v7, v112 offset:2048")
    e(f"s_lshl_b32 s9, {WAVE}, 2"); e(f"s_add_u32 s9, s9, {YL_M}"); e("v_mov_b32 v5, s9")
    e("s_mov_b64 exec, 1")
    e("ds_write_b32 v5, v116")
    exec_all()
    lab("Y_SMD")
    barrier()
    stamp("y: P ready", 10)
    e(f"v_lshlrev_b32 v5, 4, {LANE}"); e(f"v_add_u32 v5, {YL_PF}, v5")
    for ks in range(4): e(f"ds_read_b128 {vr(112+4*ks,4)}, v5 offset:{1024*ks}")
    e(f"v_and_b32 v6, 7, {L15}"); e("v_mul_u32_u24 v6, 96, v6"); e(f"v_lshl_add_u32 v6, {G}, 3, v6")
    e(f"s_mul_i32 s9, {WAVE}, 768"); e(f"s_add_u32 s9, s9, {YL_SP}"); e("v_add_u32 v6, s9, v6")
    e(f"v_lshrrev_b32 v7, 3, {LANE}"); e("v_mul_u32_u24 v12, 96, v7"); e(f"v_and_b32 v5, 7, {LANE}"); e("v_mul_u32_u24 v8, 12, v5")
    e("v_add3_u32 v12, v12, v8, s9")
    e("v_mul_u32_u24 v7, 69632, v7"); e("v_lshl_add_u32 v5, v5, 4, v7")
    e(f"s_mul_i32 s9, {HG}, {8*69632}"); e(f"s_lshl_b32 s10, {X}, 2"); e(f"s_add_u32 s10, s10, {KC}")
    e("s_mul_i32 s11, s10, 2176"); e("s_add_u32 s9, s9, s11"); e(f"s_add_u32 s68, s9, {WS_E3 + 2048}")
    e(f"s_lshl_b32 s11, {WAVE}, 7"); e("s_add_u32 s9, s9, s11"); e(f"s_add_u32 s9, s9, {WS_E3}")
    for ks in range(4):
        e(f"s_waitcnt lgkmcnt({3-ks})")
        for a in range(3):
            mfma(16 + 4 * a, PVF + (ks * 3 + a) * 4, 112 + 4 * ks, "0" if ks == 0 else None)
    e(f"s_cmp_lg_u32 {WAVE}, 15"); e("s_cbranch_scc1 Y_NL")
    for i in range(4): e(f"v_mov_b32 v{32+i}, 0x3f803f80")
    e(f"v_and_b32 v41, 7, {L15}"); e("v_lshlrev_b32 v41, 2, v41"); e(f"v_add_u32 v41, {YL_M}, v41")
    e("ds_read_b32 v40, v41")
    for ks in range(4): mfma(36, 32, 112 + 4 * ks, "0" if ks == 0 else None)
    lab("Y_NL")
    e("s_nop 7")
    stamp("y: PV mfma done", 8)
    for a in range(3):
        e(f"v_cvt_pk_bf16_f32 v{44+2*a}, v{16+4*a}, v{17+4*a}"); e(f"v_cvt_pk_bf16_f32 v{45+2*a}, v{18+4*a}, v{19+4*a}")
    set_exec64(0x00ff00ff00ff00ff)
    for a in range(3): e(f"ds_write_b64 v6, {vr(44+2*a,2)} offset:{32*a}")
    exec_all()
    e("s_waitcnt lgkmcnt(0)")
    e("ds_read2_b32 v[52:53], v12 offset1:1"); e("ds_read_b32 v54, v12 offset:8")
    e("s_waitcnt lgkmcnt(0)")
    e("v_bitop3_b32 v55, v52, v53, v54 bitop3:0x96"); e(f"v_xor_b32 v55, {VTAG}, v55")
    e(f"buffer_store_dwordx4 v[52:55], v5, {sr(WS)}, s9 offen{SCG}")
    e(f"s_cmp_lg_u32 {WAVE}, 15"); e("s_cbranch_scc1 Y_P3D")
    e(f"s_mov_b32 s9, 69632"); e(f"v_mul_lo_u32 v5, {L15}, s9"); e("s_mov_b32 s9, s68")
    e("s_waitcnt lgkmcnt(0)")
    e("v_mov_b32 v56, v40"); e("v_mov_b32 v57, v36"); e("v_mov_b32 v58, 0"); e("v_bitop3_b32 v59, v56, v57, v4 bitop3:0x96")
    e("s_mov_b64 exec, 0xff")
    e(f"buffer_store_dwordx4 v[56:59], v5, {sr(WS)}, s9 offen{SCG}")
    exec_all()
    lab("Y_P3D")
    stamp("y: ctxlat published", 9|16|128|1024)
    if OPT["stamps"] & 16:
        e("s_waitcnt vmcnt(0)"); stamp("y: E3 stores complete", 16); barrier(); stamp("y: all waves stores complete", 16)
    if OPT.get("ystop", 0) == 3: e("s_branch Y_END")
    e(f"s_cmp_ge_u32 {J}, 10"); e("s_cbranch_scc1 Y_MLP")
    if OPT.get("wopf", 0):
        for _ in range(3): wo_batch("v0", late=True)
    e("s_waitcnt vmcnt(0)")
    code_touch_range("Y_B5", 1, 120, 15)
    stamp("y: wo landed", 1|256)
    barrier()
    e(f"s_cmp_ge_u32 {WAVE}, 12"); e("s_cbranch_scc1 Y_B5")
    e(f"v_lshlrev_b32 v5, 10, {G}"); e(f"v_lshl_add_u32 v5, {L15}, 3, v5")
    e(f"s_lshl_b32 s9, {WAVE}, 13"); e("v_add_u32 v5, s9, v5")
    for ksl in range(2):
        for t in range(4):
            b = 64 + (ksl * 4 + t) * 4
            e(f"ds_read_b64_tr_b16 {vr(b,2)}, v5 offset:{ksl*4096+t*128}")
            e(f"ds_read_b64_tr_b16 {vr(b+2,2)}, v5 offset:{ksl*4096+512+t*128}")
        if ksl == 0: e("s_waitcnt lgkmcnt(0)")
    e(f"v_lshlrev_b32 v5, 4, {LANE}")
    e(f"s_mul_i32 s9, {X}, 12288"); e(f"s_lshl_b32 s10, {WAVE}, 10"); e("s_add_u32 s9, s9, s10")
    e(f"s_add_u32 s9, s9, {WS_E4}")
    e(f"s_mul_i32 s10, s64, 1552"); e("s_lshl_b32 s11, s65, 9"); e("s_add_u32 s10, s10, s11"); e(f"s_add_u32 s10, s10, {YL_QA}")
    e(f"v_lshl_add_u32 v6, {LANE}, 3, s10")
    e(f"v_and_b32 v7, 3, {LANE}"); e("v_mul_u32_u24 v7, 1552, v7"); e(f"v_lshl_add_u32 v7, {G}, 4, v7")
    e(f"s_lshl_b32 s10, {WAVE}, 7"); e(f"s_add_u32 s10, s10, {YL_QA}"); e("v_add_u32 v7, s10, v7")
    e(f"v_lshlrev_b32 v9, 2, {LANE}"); e(f"v_add_u32 v9, {YL_R}, v9")
    e(f"s_lshl_b32 s10, {WAVE}, 8"); e("v_add_u32 v8, s10, v9")
    e(f"v_cmp_eq_u32 s[66:67], 1, {G}"); e(f"v_cmp_eq_u32 s[68:69], 2, {G}"); e(f"v_cmp_eq_u32 s[42:43], 3, {G}")
    stamp("y: E4 poll start", 256)
    poll([f"buffer_load_dwordx4 v[96:99], v5, {sr(WS)}, s9 offen sc1"], [97, 99], 112)
    stamp("y: ctx gathered", 1|128|256|2048)
    stamp_val("E4 iters", "s13", 256)
    e("v_mov_b32 v97, v98")
    e("ds_write_b64 v6, v[96:97]")
    lab("Y_B5")
    barrier()
    stamp("y: after B5", 2048)
    e(f"s_cmp_ge_u32 {WAVE}, 12"); e("s_cbranch_scc1 Y_B6")
    e("ds_read_b128 v[96:99], v7"); e("ds_read_b128 v[104:107], v7 offset:64")
    e("s_waitcnt lgkmcnt(1)")
    for t in range(4): mfma(16 + 4 * t, 96, 64 + 4 * t, "0")
    e("s_waitcnt lgkmcnt(0)")
    for t in range(4): mfma(16 + 4 * t, 104, 64 + 16 + 4 * t)
    e("s_nop 4")
    for t in range(4):
        b = 16 + 4 * t
        e(f"v_add_f32 v{b}, v{b}, v{b+1}"); e(f"v_add_f32 v{b+2}, v{b+2}, v{b+3}")
    for t in range(4):
        b = 16 + 4 * t
        e(f"v_add_f32 v{b}, v{b}, v{b+2}")
    e("v_cndmask_b32 v16, v16, v20, s[66:67]"); e("v_cndmask_b32 v16, v16, v24, s[68:69]"); e("v_cndmask_b32 v16, v16, v28, s[42:43]")
    e("ds_write_b32 v8, v16")
    lab("Y_B6")
    stamp("y: P5 mfma+red done", 2048)
    barrier()
    stamp("y: after B6", 2048)
    e(f"s_cmp_lg_u32 {WAVE}, 0"); e("s_cbranch_scc1 Y_END")
    for i in range(6): e(f"ds_read2st64_b32 {vr(16+2*i,2)}, v9 offset0:{2*i} offset1:{2*i+1}")
    e(f"s_mul_i32 s9, {X}, 2560"); e(f"s_lshl_b32 s10, {J}, 8"); e("s_add_u32 s9, s9, s10")
    e(f"s_add_u32 s9, s9, {WS_E5}")
    e(f"v_lshlrev_b32 v5, 2, {LANE}")
    e("s_waitcnt lgkmcnt(0)")
    for i in range(6): e(f"v_add_f32 v{16+2*i}, v{16+2*i}, v{17+2*i}")
    e("v_add_f32 v16, v16, v18"); e("v_add_f32 v20, v20, v22"); e("v_add_f32 v24, v24, v26")
    e("v_add_f32 v16, v16, v20"); e("v_add_f32 v16, v16, v24")
    e("s_nop 1")
    e("v_mov_b32_dpp v17, v16 quad_perm:[1,1,3,3] row_mask:0xf bank_mask:0xf")
    e("v_cvt_pk_bf16_f32 v16, v16, v17"); e(f"v_mov_b32 v17, {VTAG}")
    set_exec64(0x5555555555555555)
    e(f"buffer_store_dwordx2 v[16:17], v5, {sr(WS)}, s9 offen{SCG}")
    exec_all()
    e("s_branch Y_END")
    lab("Y_MLP")
    e(f"s_mul_i32 s66, {X}, 6"); e(f"s_add_u32 s66, s66, {J}"); e("s_sub_u32 s66, s66, 10")
    srd(SA, P_WG, 1966080); srd(SB, P_WU, 1966080); srd(SC_, P_WD, 1966080); srd(SD, P_X, 1280)
    e(f"v_lshrrev_b32 v5, 4, {LANE}"); e("v_lshlrev_b32 v5, 2, v5"); e(f"v_bfe_u32 v6, {LANE}, 1, 2"); e("v_add_u32 v5, v5, v6")
    e("v_mul_u32_u24 v5, 3072, v5")
    e(f"v_bfe_u32 v6, {LANE}, 3, 1"); e("v_lshl_add_u32 v5, v6, 5, v5")
    e(f"v_and_b32 v6, 1, {LANE}"); e("v_lshl_add_u32 v15, v6, 4, v5")
    e(f"v_bfe_u32 v5, {LANE}, 1, 2"); e("v_mul_u32_u24 v5, 1280, v5")
    e(f"v_lshrrev_b32 v6, 3, {LANE}"); e("v_lshl_add_u32 v5, v6, 5, v5")
    e(f"v_and_b32 v6, 1, {LANE}"); e("v_lshl_add_u32 v14, v6, 4, v5")
    barrier()
    e(f"s_and_b32 s9, {WAVE}, 7")
    e(f"s_mul_i32 s11, s9, {5*16*3072}"); e("s_lshl_b32 s10, s66, 6"); e("s_add_u32 s11, s11, s10")
    e("s_mul_i32 s10, s9, 5120")
    e(f"s_cmp_ge_u32 {WAVE}, 8"); e("s_cbranch_scc1 Y_MU")
    dma_loop(15, SA, 10, 11, 5, 1024, 16 * 3072, OPT.get("mnt", 1))
    e("s_lshl_b32 s11, s66, 5"); e(f"s_lshl_b32 s10, {WAVE}, 2"); e("s_add_u32 s11, s11, s10"); e("s_mul_i32 s11, s11, 1280")
    e(f"s_mul_i32 s10, {WAVE}, 5120"); e(f"s_add_u32 s10, s10, {YL_MD}")
    dma_loop(14, SC_, 10, 11, 5, 1024, 256, OPT["ynt"])
    e("s_branch Y_MW")
    lab("Y_MU")
    e(f"s_add_u32 s10, s10, {YL_MU}")
    dma_loop(15, SB, 10, 11, 5, 1024, 16 * 3072, OPT.get("mnt", 1))
    lab("Y_MW")
    e(f"v_and_b32 v5, 31, {LANE}"); e("v_lshlrev_b32 v5, 3, v5"); e(f"s_lshl_b32 s9, {WAVE}, 8")
    e(f"s_cmp_ge_u32 {WAVE}, 5"); e("s_cbranch_scc1 Y_NX")
    e(f"buffer_load_dwordx2 v[110:111], v5, {sr(SD)}, s9 offen")
    lab("Y_NX")
    e("s_waitcnt vmcnt(0)")
    code_touch_range("Y_MPD", 2, 120, 15)
    stamp("y: mlp landed", 1|1024)
    barrier()
    if OPT.get("ystop", 0) == 4: e("s_branch Y_END")
    e(f"s_cmp_ge_u32 {WAVE}, 10"); e("s_cbranch_scc1 Y_MPD")
    e(f"v_lshlrev_b32 v5, 9, {G}"); e(f"v_lshl_add_u32 v5, {L15}, 3, v5")
    e(f"s_lshl_b32 s9, {WAVE}, 12"); e("v_add_u32 v5, s9, v5")
    for mat, base in ((0, YL_MG), (1, YL_MU)):
        for ksl in range(2):
            for t in range(2):
                b = 16 + mat * 16 + (ksl * 2 + t) * 4
                e(f"ds_read_b64_tr_b16 {vr(b,2)}, v5 offset:{base+ksl*2048+t*128}")
                e(f"ds_read_b64_tr_b16 {vr(b+2,2)}, v5 offset:{base+ksl*2048+256+t*128}")
        e("s_waitcnt lgkmcnt(0)")
    e(f"v_mul_u32_u24 v5, 10240, {G}"); e(f"v_lshl_add_u32 v5, {L15}, 3, v5")
    e(f"s_lshl_b32 s9, {WAVE}, 9"); e(f"s_add_u32 s9, s9, {YL_MD}"); e("v_add_u32 v5, s9, v5")
    for a in range(4):
        e(f"ds_read_b64_tr_b16 {vr(48+4*a,2)}, v5 offset:{128*a}")
        e(f"ds_read_b64_tr_b16 {vr(50+4*a,2)}, v5 offset:{5120+128*a}")
    lab("Y_MPD")
    e(f"v_lshlrev_b32 v9, 2, {LANE}"); e(f"v_add_u32 v9, {YL_G}, v9")
    e(f"s_lshl_b32 s9, {WAVE}, 8"); e("v_add_u32 v8, s9, v9")
    e(f"v_and_b32 v12, 31, {LANE}")
    e(f"s_lshl_b32 s9, {WAVE}, 6"); e(f"s_add_u32 s9, s9, {YL_HH}")
    e("v_lshl_add_u32 v10, v12, 1, s9"); e(f"v_lshl_add_u32 v11, {G}, 4, s9")
    e(f"v_lshlrev_b32 v12, 3, {LANE}")
    e(f"v_mov_b32 v13, {YL_ST}")
    e(f"v_lshlrev_b32 v14, 5, {G}"); e(f"s_lshl_b32 s9, {WAVE}, 8"); e(f"s_add_u32 s9, s9, {YL_H}"); e("v_add_u32 v14, s9, v14")
    e("s_mul_i32 s65, s66, 5120"); e(f"s_lshl_b32 s10, {WAVE}, 9"); e("s_add_u32 s65, s65, s10"); e(f"s_add_u32 s65, s65, {WS_E6}")
    e(f"v_cmp_eq_u32 s[66:67], 1, {G}"); e(f"v_cmp_eq_u32 s[68:69], 2, {G}"); e(f"v_cmp_eq_u32 s[42:43], 3, {G}")
    e(f"s_cmp_ge_u32 {WAVE}, 5"); e("s_cbranch_scc1 Y_MB6")
    e(f"v_and_b32 v6, 31, {LANE}"); e(f"v_lshrrev_b32 v5, 5, {LANE}"); e("v_mul_u32_u24 v5, 10240, v5"); e("v_lshl_add_u32 v5, v6, 4, v5")
    e(f"s_lshl_b32 s9, {WAVE}, 9"); e(f"s_add_u32 s9, s9, {WS_E5}")
    e("s_add_u32 s10, s9, 5120")
    stamp("y: E5 poll start", 4096)
    poll([f"buffer_load_dwordx4 {vr(80+4*i,4)}, v5, {sr(WS)}, {'s9' if i < 2 else 's10'} offen offset:{2560*(i%2)} sc1" for i in range(4)],
         [81, 83, 85, 87, 89, 91, 93, 95], 96)
    stamp("y: E5 poll end", 4096); stamp_val("E5 iters", "s13", 4096)
    for i in range(4):
        b = 80 + 4 * i
        if i == 0:
            e(f"v_lshlrev_b32 v100, 16, v{b}"); e(f"v_and_b32 v101, 0xffff0000, v{b}")
            e(f"v_lshlrev_b32 v102, 16, v{b+2}"); e(f"v_and_b32 v103, 0xffff0000, v{b+2}")
        else:
            e(f"v_lshlrev_b32 v104, 16, v{b}"); e(f"v_and_b32 v105, 0xffff0000, v{b}")
            e(f"v_lshlrev_b32 v106, 16, v{b+2}"); e(f"v_and_b32 v107, 0xffff0000, v{b+2}")
            for k in range(4): e(f"v_add_f32 v{100+k}, v{100+k}, v{104+k}")
    for k in range(4): e(f"v_mov_b32 v{104+k}, v{100+k}")
    e("s_nop 1")
    for k in range(4): e(f"v_permlane32_swap_b32 v{100+k}, v{104+k}")
    e(f"v_lshlrev_b32 v80, 16, v110"); e("v_and_b32 v81, 0xffff0000, v110"); e("v_lshlrev_b32 v82, 16, v111"); e("v_and_b32 v83, 0xffff0000, v111")
    for k in range(4): e(f"v_add_f32 v{100+k}, v{100+k}, v{104+k}")
    for k in range(4): e(f"v_add_f32 v{100+k}, v{100+k}, v{80+k}")
    e("v_lshlrev_b32 v5, 4, v6"); e(f"s_lshl_b32 s9, {WAVE}, 9"); e(f"s_add_u32 s9, s9, {YL_H}"); e("v_add_u32 v5, s9, v5")
    set_exec64(0xffffffff)
    e("ds_write_b128 v5, v[100:103]")
    exec_all()
    e("v_add_f32 v104, v100, v101"); e("v_add_f32 v106, v102, v103"); e("v_mul_f32 v105, v100, v100")
    e("v_add_f32 v104, v104, v106"); e("v_fmac_f32 v105, v101, v101"); e("v_fmac_f32 v105, v102, v102"); e("v_fmac_f32 v105, v103, v103")
    e("s_nop 1")
    row16_allreduce("v_add_f32", 104, 2)
    e("s_nop 1")
    for i in range(2): cross16("v_add_f32", 104 + i, 106)
    e(f"s_lshl_b32 s9, {WAVE}, 3"); e(f"s_add_u32 s9, s9, {YL_ST}"); e("v_mov_b32 v5, s9")
    e("s_mov_b64 exec, 1")
    e("ds_write_b64 v5, v[104:105]")
    exec_all()
    lab("Y_MB6")
    stamp("y: h gathered", 65|128|1024|4096)
    barrier()
    stamp("y: after MB6", 64)
    e(f"s_cmp_ge_u32 {WAVE}, 10"); e("s_cbranch_scc1 Y_MB7")
    e("ds_read_b128 v[80:83], v13"); e("ds_read_b128 v[84:87], v13 offset:16"); e("ds_read_b64 v[88:89], v13 offset:32")
    for ksl in range(2):
        e(f"ds_read_b128 {vr(92+8*ksl,4)}, v14 offset:{128*ksl}")
        e(f"ds_read_b128 {vr(96+8*ksl,4)}, v14 offset:{128*ksl+16}")
    e("s_waitcnt lgkmcnt(4)")
    for a, b in ((82, 83), (84, 85), (86, 87), (88, 89)):
        e(f"v_add_f32 v80, v80, v{a}"); e(f"v_add_f32 v81, v81, v{b}")
    e(f"v_mul_f32 v80, {F(1.0/640.0)}, v80")
    e(f"v_mul_f32 v81, {F(1.0/640.0)}, v81")
    e("v_fma_f32 v81, -v80, v80, v81")
    e("v_max_f32 v81, 0, v81")
    e(f"v_add_f32 v81, {F(1e-5)}, v81")
    e("v_rsq_f32 v81, v81"); e("s_nop 0")
    e("v_mul_f32 v80, v80, v81")
    e("s_waitcnt lgkmcnt(0)")
    for i in range(16): e(f"v_fma_f32 v{92+i}, v{92+i}, v81, -v80")
    for ksl in range(2):
        for i in range(4): e(f"v_cvt_pk_bf16_f32 v{108+4*ksl+i}, v{92+8*ksl+2*i}, v{93+8*ksl+2*i}")
    e("s_nop 1")
    for ksl in range(2):
        for mat in range(2):
            for t in range(2):
                mfma(64 + 8 * mat + 4 * t, 108 + 4 * ksl, 16 + mat * 16 + (ksl * 2 + t) * 4, "0" if ksl == 0 else None)
    e("s_nop 5")
    e("v_cndmask_b32 v64, v64, v68, s[66:67]"); e("v_cndmask_b32 v64, v64, v72, s[68:69]"); e("v_cndmask_b32 v64, v64, v76, s[42:43]")
    e("ds_write_b32 v8, v64")
    lab("Y_MB7")
    stamp("y: P6 done", 64)
    barrier()
    stamp("y: after MB7", 64)
    e(f"s_cmp_ge_u32 {WAVE}, 10"); e("s_cbranch_scc1 Y_END")
    for i in range(5): e(f"ds_read2st64_b32 {vr(80+2*i,2)}, v9 offset0:{2*i} offset1:{2*i+1}")
    e("s_waitcnt lgkmcnt(0)")
    for i in range(5): e(f"v_add_f32 v{80+2*i}, v{80+2*i}, v{81+2*i}")
    e("v_add_f32 v80, v80, v82"); e("v_add_f32 v84, v84, v86"); e("v_add_f32 v80, v80, v88"); e("v_add_f32 v80, v80, v84")
    e("v_mov_b32 v88, v80"); e("s_nop 1")
    e("v_permlane32_swap_b32 v80, v88")
    e("s_nop 1")
    e(f"v_mul_f32 v80, {F(-math.log2(math.e))}, v80"); e("v_exp_f32 v80, v80"); e("s_nop 0")
    e("v_add_f32 v80, 1.0, v80"); e("v_rcp_f32 v80, v80"); e("s_nop 0")
    e("v_mul_f32 v80, v80, v88")
    e("v_cvt_pk_bf16_f32 v80, v80, v80")
    set_exec64(0xffffffff)
    e("ds_write_b16 v10, v80")
    exec_all()
    e("s_waitcnt lgkmcnt(0)")
    e("ds_read_b128 v[80:83], v11")
    e("s_waitcnt lgkmcnt(0)")
    for a in range(4): mfma(84 + 4 * a, 80, 48 + 4 * a, "0")
    e("s_nop 5")
    e("v_cndmask_b32 v84, v84, v88, s[66:67]"); e("v_cndmask_b32 v84, v84, v92, s[68:69]"); e("v_cndmask_b32 v84, v84, v96, s[42:43]")
    e(f"v_mov_b32 v85, {VTAG}")
    e(f"buffer_store_dwordx2 v[84:85], v12, {sr(WS)}, s65 offen{SCG}")
    lab("Y_END")
    stamp("y: end", 65|128|1024|2048|4096)
    stamp_flush(nstamp[0])
    e("s_endpgm")

hdr = f"""; Kernarg layout (104 bytes): d_in[0..9], d_out, d_debug, d_ws
; @launch grid=(256,1,1) block=(1024,1,1) lds=163840
.amdgcn_target "amdgcn-amd-amdhsa--gfx950"
.text
.globl {NAME}_kernel
.p2align 8
.type {NAME}_kernel,@function
{NAME}_kernel:
"""
prologue()
x_program()
y_program()
lab("L_END")
e("s_endpgm")
ftr = f""".section .rodata,"a"
.p2align 6
.amdhsa_kernel {NAME}_kernel
  .amdhsa_next_free_vgpr 128
  .amdhsa_next_free_sgpr 102
  .amdhsa_accum_offset 128
  .amdhsa_group_segment_fixed_size 0
  .amdhsa_kernarg_size 104
  .amdhsa_user_sgpr_count 2
  .amdhsa_user_sgpr_kernarg_segment_ptr 1
  .amdhsa_system_sgpr_workgroup_id_x 1
.end_amdhsa_kernel
"""
open(sys.argv[1], "w").write(hdr + "\n".join(L) + "\n" + ftr)
```

```python
import sys, math, struct
def F(x): return "0x%08x" % struct.unpack("<I", struct.pack("<f", x))[0]
NAME = "sequential_preLN__compressed_kv_cla__glu_gated_glu__decode"

OPT = dict(stamps=0, ynt=1, xnt=1, spin=1 << 16, cpv_early=1, prefetch_code=1)
for a in sys.argv[2:]:
    k, v = a.split("="); OPT[k] = int(v)

L = []
def e(s): L.append("    " + s)
def lab(s): L.append(s + ":")
def cm(s): L.append("    ; " + s)
_uid = [0]
def uid(p):
    _uid[0] += 1
    return f"{p}_{_uid[0]}"

WS_EPOCH = 0
WS_HELLO = 0x1000
WS_E1 = 0x10000
WS_QA = 0x40000
WS_ML = 0x60000
WS_E4 = 0x70000
WS_E5 = 0x90000
WS_E6 = 0x100000
WS_ST = 0x180000
WS_E3 = 0x200000
WS_SIZE = 0x700000

WAVE, X, J, TAG, H, R = "s3", "s4", "s5", "s6", "s7", "s8"
HH, KC = "s7", "s8"
P_X, P_CKV, P_WQ, P_WUK, P_WUV, P_WO, P_WG, P_WU, P_WD, P_OUT, P_WS = 16, 18, 20, 22, 24, 26, 30, 32, 34, 36, 40
WS, SA, SB, SC_, SD = 44, 48, 52, 56, 60
def sr(b, n=4): return f"s[{b}:{b+n-1}]"
def vr(b, n): return f"v[{b}:{b+n-1}]" if n > 1 else f"v{b}"
STAMP0 = 72
LANE, G, L15, VTAG = "v1", "v2", "v3", "v4"

def srd(b, ptr, size):
    e(f"s_mov_b32 s{b}, s{ptr}")
    e(f"s_mov_b32 s{b+1}, s{ptr+1}")
    e(f"s_mov_b32 s{b+2}, {size}")
    e(f"s_mov_b32 s{b+3}, 0x00020000")

nstamp = [0]
def stamp(name, grp=1):
    if not (OPT["stamps"] & grp): return
    i = nstamp[0]; nstamp[0] += 1
    if OPT.get("pmask", 1) and i >= 6: return
    cm(f"stamp {i}: {name}")
    sk = uid("STK")
    e(f"s_cmp_lg_u32 {WAVE}, {OPT.get('stampwave',0)}"); e(f"s_cbranch_scc1 {sk}")
    if i == 0:
        e("s_memrealtime s[98:99]")
    e(f"s_memtime s[{STAMP0+2*i}:{STAMP0+2*i+1}]")
    e("s_waitcnt lgkmcnt(0)")
    lab(sk)
def stamp_val(name, sreg, grp=1):
    if not (OPT["stamps"] & grp): return
    i = nstamp[0]; nstamp[0] += 1
    if OPT.get("pmask", 1) and i >= 6: return
    cm(f"stamp {i}: VALUE {name}")
    e(f"s_mov_b32 s{STAMP0+2*i}, {sreg}"); e(f"s_mov_b32 s{STAMP0+2*i+1}, 0x7fffffff")
def stamp_flush(n):
    if not OPT["stamps"]: return
    skip = uid("STF")
    e(f"s_cmp_lg_u32 {WAVE}, {OPT.get('stampwave',0)}"); e(f"s_cbranch_scc1 {skip}")
    e("s_mov_b64 exec, 1")
    e("s_lshl_b32 s9, s2, 8"); e(f"s_add_u32 s9, s9, {WS_ST}")
    e("v_mov_b32 v5, 0")
    if OPT.get("pmask", 1): n = min(n, 6)
    for i in range(n):
        e(f"v_mov_b32 v6, s{STAMP0+2*i}"); e(f"v_mov_b32 v7, s{STAMP0+2*i+1}")
        e(f"buffer_store_dwordx2 v[6:7], v5, {sr(WS)}, s9 offen offset:{8*i}")
        e("s_nop 1")
    e("v_mov_b32 v6, s98"); e("v_mov_b32 v7, s99")
    e(f"buffer_store_dwordx2 v[6:7], v5, {sr(WS)}, s9 offen offset:248")
    e("s_nop 1")
    e("v_mov_b32 v6, s96"); e("v_mov_b32 v7, s97")
    e(f"buffer_store_dwordx2 v[6:7], v5, {sr(WS)}, s9 offen offset:240")
    e("s_memrealtime s[96:97]"); e("s_waitcnt lgkmcnt(0)")
    e("v_mov_b32 v6, s96"); e("v_mov_b32 v7, s97")
    e(f"buffer_store_dwordx2 v[6:7], v5, {sr(WS)}, s9 offen offset:232")
    e("s_mov_b64 exec, -1")
    lab(skip)

def barrier():
    e("s_waitcnt lgkmcnt(0)")
    e("s_barrier")

def divmagic(T):
    return {12: (43, 9), 6: (43, 8), 3: (86, 8), 1: (1, 0)}[T]

def dma_pattern(vd, T, S, sp, t0, t1):
    M, sh = divmagic(T)
    e(f"v_lshrrev_b32 v{t0}, 3, {LANE}")
    if sp is not None:
        e(f"s_lshl_b32 s9, {sp}, 3")
        e(f"v_add_u32 v{t0}, s9, v{t0}")
    if T == 1:
        e(f"v_mov_b32 v{t1}, v{t0}")
        e(f"v_mov_b32 v{t0}, 0")
    else:
        e(f"v_mul_u32_u24 v{t1}, {M}, v{t0}")
        e(f"v_lshrrev_b32 v{t1}, {sh}, v{t1}")
        e(f"v_mul_u32_u24 v{vd}, {T}, v{t1}")
        e(f"v_sub_u32 v{t0}, v{t0}, v{vd}")
    e(f"v_lshlrev_b32 v{t1}, 2, v{t1}")
    e(f"v_bfe_u32 v{vd}, {LANE}, 1, 2")
    e(f"v_add_u32 v{t1}, v{t1}, v{vd}")
    e(f"s_mov_b32 s9, {S}")
    e(f"v_mul_lo_u32 v{t1}, v{t1}, s9")
    e(f"v_lshlrev_b32 v{t0}, 5, v{t0}")
    e(f"v_and_b32 v{vd}, 1, {LANE}")
    e(f"v_lshlrev_b32 v{vd}, 4, v{vd}")
    e(f"v_add3_u32 v{vd}, v{vd}, v{t0}, v{t1}")

def dma_loop(vd, srdb, s_m0, s_off, n, step_m, step_s, nt):
    lp = uid("DMA")
    e(f"s_mov_b32 s12, {n}")
    lab(lp)
    e(f"s_mov_b32 m0, s{s_m0}")
    e(f"s_add_u32 s{s_m0}, s{s_m0}, {step_m}")
    e(f"buffer_load_dwordx4 v{vd}, {sr(srdb)}, s{s_off} offen{' nt' if nt else ''} lds")
    e(f"s_add_u32 s{s_off}, s{s_off}, {step_s}")
    e("s_sub_u32 s12, s12, 1")
    e("s_cmp_lg_u32 s12, 0")
    e(f"s_cbranch_scc1 {lp}")

def row16_allreduce(op, v, nregs=1):
    for sh in (8, 4, 2, 1):
        if nregs < 3: e("s_nop 1")
        for i in range(nregs):
            e(f"{op}_dpp v{v+i}, v{v+i}, v{v+i} row_ror:{sh} row_mask:0xf bank_mask:0xf")
def cross16(op, v, t):
    e(f"v_mov_b32 v{t}, v{v}"); e("s_nop 1")
    e(f"v_permlane16_swap_b32 v{v}, v{t}"); e("s_nop 1")
    e(f"{op} v{v}, v{v}, v{t}")
def cross32(op, v, t):
    e(f"v_mov_b32 v{t}, v{v}"); e("s_nop 1")
    e(f"v_permlane32_swap_b32 v{v}, v{t}"); e("s_nop 1")
    e(f"{op} v{v}, v{v}, v{t}")
def wave_allreduce(op, v, t):
    e("s_nop 1")
    row16_allreduce(op, v)
    e("s_nop 1")
    cross16(op, v, t)
    cross32(op, v, t)

MASK0 = 84
def _poll_generic(loads, checks, vt, init=None):
    n = len(loads)
    lp = uid("POLL"); dn = uid("PDONE")
    masked = OPT.get("pmask", 1) and n <= 8
    e("s_mov_b32 s13, 0")
    if masked:
        e("s_mov_b64 s[100:101], exec")
        for i in range(n):
            if init and init[i] is not None:
                e(f"s_mov_b32 s{MASK0+2*i}, {init[i] & 0xffffffff:#x}"); e(f"s_mov_b32 s{MASK0+2*i+1}, {init[i] >> 32:#x}")
            else: e(f"s_mov_b64 s[{MASK0+2*i}:{MASK0+2*i+1}], exec")
    lab(lp)
    for i, s_ in enumerate(loads):
        if masked:
            sk = uid("PSK")
            e(f"s_mov_b64 exec, s[{MASK0+2*i}:{MASK0+2*i+1}]")
            if n > 1: e(f"s_cbranch_execz {sk}")
            e(s_)
            if n > 1: lab(sk)
        else: e(s_)
    e("s_waitcnt vmcnt(0)")
    if masked:
        for i in range(n):
            e(f"s_mov_b64 exec, s[{MASK0+2*i}:{MASK0+2*i+1}]")
            for c in checks[i]: e(c)
            e(f"v_cmp_ne_u32 vcc, 0, v{vt}")
            e(f"s_mov_b64 s[{MASK0+2*i}:{MASK0+2*i+1}], vcc")
            if i == 0: e("s_mov_b64 s[14:15], vcc")
            else: e("s_or_b64 s[14:15], s[14:15], vcc")
        e("s_mov_b64 exec, s[100:101]")
        e("s_add_u32 s13, s13, 1")
        e("s_cmp_eq_u64 s[14:15], 0")
    else:
        for i in range(n):
            for c in checks[i]: e(c.replace(f"v{vt},", f"v{vt+1},", 1).replace(f", v{vt}", f", v{vt+1}") if False else c)
            if i == 0: e(f"v_mov_b32 v{vt+2}, v{vt}")
            else: e(f"v_or_b32 v{vt+2}, v{vt+2}, v{vt}")
        e(f"v_cmp_ne_u32 vcc, 0, v{vt+2}")
        e("s_add_u32 s13, s13, 1")
        e("s_cmp_eq_u64 vcc, 0")
    e(f"s_cbranch_scc1 {dn}")
    if OPT.get("psleep", 0): e(f"s_sleep {OPT['psleep']}")
    e(f"s_cmp_lt_u32 s13, {OPT['spin']}")
    e(f"s_cbranch_scc1 {lp}")
    if masked: e("s_mov_b64 exec, s[100:101]")
    lab(dn)

def poll(loads, tagregs, vt):
    per = len(tagregs) // len(loads)
    checks = []
    for i in range(len(loads)):
        tr = tagregs[i*per:(i+1)*per]
        if per == 1: checks.append([f"v_xor_b32 v{vt}, {TAG}, v{tr[0]}"])
        else: checks.append([f"v_xor_b32 v{vt}, {TAG}, v{tr[0]}", f"v_xor_b32 v{vt+1}, {TAG}, v{tr[1]}", f"v_or_b32 v{vt}, v{vt}, v{vt+1}"])
    _poll_generic(loads, checks, vt)

def pollx(loads, bases, vt, init=None):
    checks = [[f"v_bitop3_b32 v{vt}, v{b}, v{b+1}, v{b+2} bitop3:0x96", f"v_bitop3_b32 v{vt}, v{vt}, v{b+3}, {VTAG} bitop3:0x96"] for b in bases]
    _poll_generic(loads, checks, vt, init)

def mfma(d, a, b, c=None):
    cs = vr(d, 4) if c is None else c
    e(f"v_mfma_f32_16x16x32_bf16 {vr(d,4)}, {vr(a,4)}, {vr(b,4)}, {cs}")

SCG = " sc1"
EXEC_L15_0 = 0x0001000100010001

def set_exec64(val):
    lo, hi = val & 0xffffffff, val >> 32
    e(f"s_mov_b32 exec_lo, {lo:#x}"); e(f"s_mov_b32 exec_hi, {hi:#x}")
def exec_all(): e("s_mov_b64 exec, -1")

def prologue():
    if OPT["stamps"] or OPT.get("diagx", 0): e("s_memrealtime s[96:97]")
    e("s_cmp_ge_u32 s2, 256")
    e("s_cbranch_scc1 L_END")
    e("s_load_dwordx16 s[16:31], s[0:1], 0")
    e("s_load_dwordx8 s[32:39], s[0:1], 64")
    e("s_load_dwordx2 s[40:41], s[0:1], 96")
    e(f"v_lshrrev_b32 v5, 6, v0")
    e(f"v_and_b32 {LANE}, 63, v0")
    e(f"v_readfirstlane_b32 {WAVE}, v5")
    e(f"v_lshrrev_b32 {G}, 4, {LANE}")
    e(f"v_and_b32 {L15}, 15, {LANE}")
    e(f"s_and_b32 {X}, s2, 7")
    e(f"s_lshr_b32 {J}, s2, 3")
    e(f"s_mul_i32 s64, {WAVE}, 11"); e("s_lshr_b32 s64, s64, 5")
    e("s_mul_i32 s65, s64, 3"); e(f"s_sub_u32 s65, {WAVE}, s65")
    e(f"s_cmp_ge_u32 {J}, 16")
    e("s_cbranch_scc1 L_Y")

def kernarg_ready():
    e("s_waitcnt lgkmcnt(0)")
    e(f"s_load_dword {TAG}, s[{P_WS}:{P_WS+1}], 0")
    srd(WS, P_WS, WS_SIZE)

def get_tag():
    e("s_waitcnt lgkmcnt(0)")
    e(f"s_mul_i32 {TAG}, {TAG}, 1664525")
    e(f"s_add_u32 {TAG}, {TAG}, 1013904223")
    e(f"v_mov_b32 {VTAG}, {TAG}")

def hello_publish(vt):
    if not OPT.get("local", 1): return
    sk = uid("HEL")
    e(f"s_cmp_lg_u32 {WAVE}, 15"); e(f"s_cbranch_scc1 {sk}")
    e("s_getreg_b32 s9, hwreg(HW_REG_XCC_ID, 0, 4)")
    e(f"s_lshl_b32 s10, {X}, 8"); e("s_lshr_b32 s11, s2, 3"); e("s_lshl_b32 s11, s11, 3"); e("s_add_u32 s10, s10, s11"); e(f"s_add_u32 s10, s10, {WS_HELLO}")
    e(f"v_mov_b32 v{vt}, s9"); e(f"v_mov_b32 v{vt+1}, {TAG}"); e(f"v_mov_b32 v{vt+2}, 0")
    e("s_mov_b64 exec, 1")
    e(f"buffer_store_dwordx2 v[{vt}:{vt+1}], v{vt+2}, {sr(WS)}, s10 offen sc1")
    exec_all()
    lab(sk)

XL_U = 0
XL_UK = 61440
XL_MG, XL_MU, XL_MD = 73728, 94208, 114688
XL_S = 147456
XL_XN = XL_S
XL_Q = XL_S + 1280
XL_CL = XL_S + 2048
CL_RS = 400
XL_CB = XL_S + 14848
XL_W = XL_S + 15232
XL_FLAG = XL_S + 15360
XL_H = XL_S + 2048
XL_ST = XL_S + 4608
XL_G = XL_S + 4736
XL_HH = XL_S + 6144
XL_R2 = XL_S + 6400
XL_R = XL_S + 8192

def st_global(data, voff, soff):
    e(f"buffer_store_dwordx4 {data}, {voff}, {sr(WS)}, {soff} offen sc1")
def st_local(data, voff, soff):
    g = uid("STG"); d = uid("STD")
    e("s_nop 0"); e("v_readfirstlane_b32 s10, v123"); e("s_nop 3")
    e("s_cmp_eq_u32 s10, 1"); e(f"s_cbranch_scc0 {g}")
    e(f"buffer_store_dwordx4 {data}, {voff}, {sr(WS)}, {soff} offen")
    e(f"s_branch {d}")
    lab(g)
    e(f"buffer_store_dwordx4 {data}, {voff}, {sr(WS)}, {soff} offen sc1")
    lab(d)

XL_CX = None
def collect_store(acc, lds_base, soff_code, flavor, lbl):
    e(f"v_cvt_pk_bf16_f32 v124, v{acc}, v{acc+1}"); e(f"v_cvt_pk_bf16_f32 v125, v{acc+2}, v{acc+3}")
    e(f"v_lshlrev_b32 v5, 3, {G}"); e(f"s_lshl_b32 s9, {WAVE}, 5"); e(f"s_add_u32 s9, s9, {lds_base}"); e("v_add_u32 v5, s9, v5")
    set_exec64(EXEC_L15_0)
    e("ds_write_b64 v5, v[124:125]")
    exec_all()
    lab(lbl)
    barrier()
    sk = uid("CST")
    e(f"s_cmp_lg_u32 {WAVE}, 0"); e(f"s_cbranch_scc1 {sk}")
    e(f"v_lshlrev_b32 v5, 3, {LANE}"); e(f"v_add_u32 v6, {lds_base}, v5")
    set_exec64((1 << 48) - 1)
    e("ds_read_b64 v[124:125], v6")
    if flavor is st_local:
        e(f"v_mov_b32 v7, {XL_FLAG}"); e("ds_read_b32 v123, v7")
    soff_code()
    e(f"v_lshlrev_b32 v5, 4, {LANE}")
    e("s_waitcnt lgkmcnt(0)")
    e("v_mov_b32 v126, v125"); e(f"v_mov_b32 v125, {VTAG}"); e(f"v_mov_b32 v127, {VTAG}")
    flavor("v[124:127]", "v5", "s9")
    exec_all()
    lab(sk)

def code_touch(vd, wave=15):
    if not OPT["prefetch_code"]: return
    sk = uid("CT"); pc = uid("PC")
    e(f"s_cmp_lg_u32 {WAVE}, {wave}"); e(f"s_cbranch_scc1 {sk}")
    e("s_getpc_b64 s[10:11]")
    lab(pc)
    e(f"s_sub_u32 s10, s10, {pc}-{NAME}_kernel"); e("s_subb_u32 s11, s11, 0")
    e("s_lshr_b32 s9, s2, 3"); e("s_and_b32 s9, s9, 15"); e("s_lshl_b32 s9, s9, 10")
    e(f"v_lshl_add_u32 v{vd}, {LANE}, 4, s9")
    e(f"s_mov_b32 s9, L_END-{NAME}_kernel-16")
    e(f"v_min_u32 v{vd}, s9, v{vd}")
    e(f"global_load_dwordx4 v[{vd}:{vd+3}], v{vd}, s[10:11]")
    lab(sk)

def code_touch_range(lbl, nkb, vd, wave=15):
    if not OPT.get("retouch", 1): return
    sk = uid("CT"); pc = uid("PC")
    e(f"s_cmp_lg_u32 {WAVE}, {wave}"); e(f"s_cbranch_scc1 {sk}")
    e("s_getpc_b64 s[10:11]")
    lab(pc)
    e(f"s_sub_u32 s10, s10, {pc}-{NAME}_kernel"); e("s_subb_u32 s11, s11, 0")
    e(f"s_mov_b32 s9, {lbl}-{NAME}_kernel")
    e(f"v_lshl_add_u32 v{vd+4}, {LANE}, 4, s9")
    e(f"s_mov_b32 s9, L_END-{NAME}_kernel-16")
    for i in range(nkb):
        e(f"v_min_u32 v{vd+5}, s9, v{vd+4}")
        e(f"global_load_dwordx4 v[{vd}:{vd+3}], v{vd+5}, s[10:11]")
        if i + 1 < nkb: e(f"v_add_u32 v{vd+4}, 1024, v{vd+4}")
    lab(sk)

def x_program():
    lab("L_X")
    e(f"s_lshr_b32 s9, {J}, 2"); e(f"s_lshl_b32 {H}, {X}, 2"); e(f"s_add_u32 {H}, {H}, s9")
    e(f"s_and_b32 {R}, {J}, 3")
    dma_pattern(15, 12, 12288, "s65", 17, 18)
    if OPT.get("dmaexp", 0):
        e(f"v_lshrrev_b32 v17, 4, {LANE}"); e("s_lshl_b32 s9, s65, 2"); e("v_add_u32 v17, s9, v17"); e("v_mul_u32_u24 v17, 12288, v17")
        e(f"v_lshl_add_u32 v17, {L15}, 4, v17")
        e(f"v_lshrrev_b32 v18, 3, {LANE}"); e("v_mul_u32_u24 v18, 12288, v18"); e(f"v_and_b32 v15, 7, {LANE}"); e("v_lshl_add_u32 v18, v15, 4, v18"); e("v_add_u32 v18, 256, v18")
        e("s_cmp_eq_u32 s65, 2"); e("s_cselect_b64 vcc, -1, 0"); e("s_nop 1"); e("v_cndmask_b32 v15, v17, v18, vcc")
    e(f"v_cmp_lt_u32 vcc, 23, {LANE}"); e(f"v_subrev_u32 v6, 24, {LANE}"); e("s_nop 0")
    e(f"v_cndmask_b32 v14, {LANE}, v6, vcc"); e("v_lshlrev_b32 v14, 4, v14")
    e("v_mov_b32 v6, 12288"); e("v_cndmask_b32 v6, 0, v6, vcc"); e("v_add_u32 v14, v14, v6")
    e(f"v_lshlrev_b32 v5, 2, {LANE}")
    e(f"s_mul_i32 s10, {R}, 160"); e("s_lshl_b32 s11, s64, 3"); e("s_add_u32 s10, s10, s11")
    e("s_mul_i32 s11, s10, 12288"); e(f"s_mul_i32 s67, {H}, 384"); e("s_add_u32 s11, s11, s67")
    e(f"s_sub_u32 s9, {WAVE}, 12")
    e(f"s_mul_i32 s66, {R}, 192"); e("s_lshl_b32 s10, s9, 1"); e("s_add_u32 s66, s66, s10")
    e("s_mul_i32 s66, s66, 12288"); e("s_add_u32 s66, s66, s67")
    e(f"s_mul_i32 s68, s9, 800"); e(f"s_add_u32 s68, s68, {XL_UK}")
    e(f"s_lshl_b32 s10, {WAVE}, 10")
    kernarg_ready()
    srd(SA, P_WQ, 7864320); srd(SB, P_WUK, 9437184); srd(SC_, P_X, 1280)
    stamp("x: start", 8191)
    e(f"s_cmp_eq_u32 {WAVE}, 15"); e("s_cbranch_scc1 X_LN")
    e(f"s_cmp_ge_u32 {WAVE}, 12"); e("s_cbranch_scc1 X_UKD")
    dma_loop(15, SA, 10, 11, 5, 12 * 1024, 32 * 12288, OPT["xnt"])
    e("s_barrier")
    e("s_waitcnt vmcnt(0)")
    e("s_branch X_B1")
    lab("X_UKD")
    e("s_barrier")
    set_exec64((1<<48)-1)
    npre = OPT.get("ukpre", 4)
    dma_loop(14, SB, 68, 66, npre, 3 * 800, 6 * 12288, OPT["xnt"])
    exec_all()
    lab("X_B1")
    get_tag()
    if OPT.get("diagw", 0):
        e("s_memtime s[76:77]"); e("s_waitcnt lgkmcnt(0)")
        e("s_barrier")
        e("s_memtime s[78:79]"); e("s_waitcnt vmcnt(0)"); e("s_memtime s[80:81]"); e("s_waitcnt lgkmcnt(0)")
        e("s_lshl_b32 s9, s2, 10"); e(f"s_lshl_b32 s10, {WAVE}, 6"); e("s_add_u32 s9, s9, s10"); e(f"s_add_u32 s9, s9, {WS_ST}")
        e("s_mov_b64 exec, 1"); e("v_mov_b32 v5, 0")
        for i, b in enumerate((72, 74, 76, 78, 80, 96)):
            e(f"v_mov_b32 v6, s{b}"); e(f"v_mov_b32 v7, s{b+1}")
            e(f"buffer_store_dwordx2 v[6:7], v5, {sr(WS)}, s9 offen offset:{8*i}"); e("s_nop 1")
        e("s_endpgm")
    stamp("x: wq landed", 9)
    barrier()
    stamp("x: after B1", 8)
    e(f"s_cmp_ge_u32 {WAVE}, 12"); e("s_cbranch_scc1 X_UK2")
    e(f"v_mul_u32_u24 v5, 3072, {G}"); e(f"v_lshl_add_u32 v5, {L15}, 3, v5")
    e(f"s_lshl_b32 s9, {WAVE}, 7"); e("v_add_u32 v13, s9, v5")
    e(f"s_mul_i32 s9, {R}, 320"); e(f"s_add_u32 s9, s9, {XL_XN}")
    e(f"v_lshl_add_u32 v6, {G}, 4, s9")
    for ks in range(5):
        e(f"ds_read_b128 {vr(64+4*ks,4)}, v6 offset:{64*ks}")
        e(f"ds_read_b64_tr_b16 {vr(40+4*ks,2)}, v13 offset:{XL_U+ks*12288}")
        e(f"ds_read_b64_tr_b16 {vr(42+4*ks,2)}, v13 offset:{XL_U+ks*12288+1536}")
    e(f"s_lshl_b32 s9, {H}, 2"); e(f"s_add_u32 s9, s9, {R}"); e("s_mul_i32 s9, s9, 1536")
    e(f"s_lshl_b32 s10, {WAVE}, 7"); e("s_add_u32 s9, s9, s10"); e(f"s_add_u32 s9, s9, {WS_E1}")
    e(f"v_lshlrev_b32 v5, 3, {L15}")
    for ks in range(5):
        e(f"s_waitcnt lgkmcnt({3*(4-ks)})")
        mfma(88, 64 + 4 * ks, 40 + 4 * ks, "0" if ks == 0 else None)
    e("s_nop 7")
    e(f"v_mov_b32 v89, {VTAG}")
    e("s_mov_b64 exec, 0xffff")
    e(f"buffer_store_dwordx2 v[88:89], v5, {sr(WS)}, s9 offen{SCG}")
    exec_all()
    stamp("x: q published", 9)
    e("s_branch X_B3")
    lab("X_UK2")
    e(f"s_cmp_eq_u32 {WAVE}, 15"); e("s_cbranch_scc1 X_B3")
    set_exec64((1<<48)-1)
    dma_loop(14, SB, 68, 66, 32 - OPT.get("ukpre", 4), 3 * 800, 6 * 12288, OPT["xnt"])
    exec_all()
    e(f"s_cmp_ge_u32 {WAVE}, 14"); e("s_cbranch_scc1 X_B3W")
    e(f"s_sub_u32 s9, {WAVE}, 12"); e("s_lshl_b32 s9, s9, 6"); e(f"v_add_u32 v5, s9, {LANE}")
    e("v_cmp_gt_u32 vcc, 96, v5"); e("s_and_saveexec_b64 s[42:43], vcc")
    e("v_lshlrev_b32 v6, 4, v5")
    e(f"s_mul_i32 s9, {H}, 6144"); e(f"s_add_u32 s9, s9, {WS_E1}")
    e("s_add_u32 s10, s9, 3072")
    stamp("x: E1 poll start", 8)
    poll([f"buffer_load_dwordx4 v[92:95], v6, {sr(WS)}, s9 offen sc1",
          f"buffer_load_dwordx4 v[96:99], v6, {sr(WS)}, s9 offen offset:1536 sc1",
          f"buffer_load_dwordx4 v[100:103], v6, {sr(WS)}, s10 offen sc1",
          f"buffer_load_dwordx4 v[104:107], v6, {sr(WS)}, s10 offen offset:1536 sc1"],
         [93, 95, 97, 99, 101, 103, 105, 107], 108)
    stamp("x: E1 poll end", 8); stamp_val("E1 iters", "s13", 8)
    e("v_add_f32 v92, v92, v96"); e("v_add_f32 v94, v94, v98")
    e("v_add_f32 v100, v100, v104"); e("v_add_f32 v102, v102, v106")
    e("v_add_f32 v92, v92, v100"); e("v_add_f32 v94, v94, v102")
    qs = 192 ** -0.5 * math.log2(math.e)
    e(f"v_mul_f32 v92, {F(qs)}, v92"); e(f"v_mul_f32 v94, {F(qs)}, v94")
    e("v_cvt_pk_bf16_f32 v92, v92, v94")
    e("v_lshlrev_b32 v6, 2, v5"); e(f"v_add_u32 v6, {XL_Q}, v6")
    e("ds_write_b32 v6, v92")
    e("s_mov_b64 exec, s[42:43]")
    lab("X_B3W")
    e("s_waitcnt vmcnt(0)")
    lab("X_B3")
    barrier()
    stamp("x: q gathered", 9)
    e(f"s_cmp_ge_u32 {WAVE}, 12"); e("s_cbranch_scc1 X_P2B")
    e(f"v_lshlrev_b32 v6, 4, {G}"); e(f"v_add_u32 v6, {XL_Q}, v6")
    e(f"v_lshrrev_b32 v7, 1, {L15}"); e("v_mul_u32_u24 v7, 800, v7")
    e(f"v_and_b32 v8, 1, {L15}"); e("v_mul_u32_u24 v8, 384, v8"); e("v_add_u32 v7, v7, v8")
    e(f"v_lshl_add_u32 v7, {G}, 4, v7")
    e(f"s_mul_i32 s9, {WAVE}, 6400"); e(f"s_add_u32 s9, s9, {XL_UK}"); e("v_add_u32 v7, s9, v7")
    for ks in range(6):
        e(f"ds_read_b128 {vr(16+4*ks,4)}, v7 offset:{64*ks}")
        e(f"ds_read_b128 {vr(64+4*ks,4)}, v6 offset:{64*ks}")
    for ks in range(6):
        e(f"s_waitcnt lgkmcnt({2*(5-ks)})")
        mfma(88, 16 + 4 * ks, 64 + 4 * ks, "0" if ks == 0 else None)
    e("s_nop 7")
    def soff_qa():
        e(f"s_mul_i32 s9, {H}, 3072"); e(f"s_mul_i32 s10, {R}, 768"); e("s_add_u32 s9, s9, s10"); e(f"s_add_u32 s9, s9, {WS_QA}")
    collect_store(88, XL_CB, soff_qa, st_global, "X_P2B")
    stamp("x: qabs published", 9|128|256)
    if OPT.get("xstop", 0) == 1:
        e("s_waitcnt vmcnt(0)"); barrier(); stamp("x: all waves done"); e("s_branch X_END")
    srd(SA, P_WUV, 9437184)
    e(f"s_cmp_ge_u32 {WAVE}, 12"); e("s_cbranch_scc1 X_B4")
    e(f"s_mul_i32 s10, {R}, 192"); e("s_lshl_b32 s11, s64, 3"); e("s_add_u32 s10, s10, s11")
    e("s_mul_i32 s11, s10, 12288"); e("s_add_u32 s11, s11, s67")
    e(f"s_lshl_b32 s10, {WAVE}, 10"); e(f"s_add_u32 s10, s10, {XL_U}")
    dma_loop(15, SA, 10, 11, 6, 12 * 1024, 32 * 12288, OPT["xnt"])
    lab("X_B4")
    PFNT = " nt" if OPT.get("pfnt", 0) else ""
    if OPT.get("wopf", 0):
        sk = uid("PFO")
        srd(SB, P_WO, 7864320)
        e(f"s_cmp_eq_u32 {WAVE}, 15"); e(f"s_cbranch_scc1 {sk}")
        e(f"s_mul_i32 s9, {X}, 768"); e(f"s_mul_i32 s10, {J}, 48"); e("s_add_u32 s9, s9, s10"); e("s_mul_i32 s9, s9, 1280")
        e(f"s_lshl_b32 s10, {WAVE}, 12"); e("s_add_u32 s9, s9, s10")
        e(f"v_lshlrev_b32 v8, 4, {LANE}")
        for i in range(4): e(f"buffer_load_dwordx4 v[120:123], v8, {sr(SB)}, s9 offen offset:{1024*i}{PFNT}")
        lab(sk)
    if OPT.get("l2pf", 1):
        srd(SB, P_WG, 1966080); srd(SD, P_WU, 1966080)
        e(f"v_cmp_lt_u32 vcc, 23, {LANE}"); e(f"v_subrev_u32 v7, 24, {LANE}"); e("s_nop 0")
        e(f"v_cndmask_b32 v8, {LANE}, v7, vcc"); e("v_lshlrev_b32 v8, 4, v8")
        e("v_mov_b32 v7, 3072"); e("v_cndmask_b32 v7, 0, v7, vcc"); e("v_add_u32 v8, v8, v7")
        sk = uid("PFG")
        e(f"s_cmp_ge_u32 {WAVE}, 10"); e(f"s_cbranch_scc1 {sk}")
        e(f"s_mul_i32 s9, {J}, 40"); e(f"s_lshl_b32 s10, {WAVE}, 2"); e("s_add_u32 s9, s9, s10"); e("s_mul_i32 s9, s9, 3072")
        e(f"s_mul_i32 s10, {X}, 384"); e("s_add_u32 s9, s9, s10"); e("s_add_u32 s10, s9, 6144")
        set_exec64((1 << 48) - 1)
        e(f"buffer_load_dwordx4 v[120:123], v8, {sr(SB)}, s9 offen{PFNT}"); e(f"buffer_load_dwordx4 v[120:123], v8, {sr(SB)}, s10 offen{PFNT}")
        e(f"buffer_load_dwordx4 v[120:123], v8, {sr(SD)}, s9 offen{PFNT}"); e(f"buffer_load_dwordx4 v[120:123], v8, {sr(SD)}, s10 offen{PFNT}")
        exec_all()
        lab(sk)
        sk = uid("PFD")
        e(f"s_cmp_lt_u32 {WAVE}, 10"); e(f"s_cbranch_scc1 {sk}")
        srd(SB, P_WD, 1966080)
        e(f"s_mul_i32 s9, {X}, 192"); e(f"s_mul_i32 s10, {J}, 12"); e("s_add_u32 s9, s9, s10"); e("s_mul_i32 s9, s9, 1280")
        e(f"s_sub_u32 s10, {WAVE}, 10"); e("s_mul_i32 s10, s10, 2560"); e("s_add_u32 s9, s9, s10")
        e(f"v_lshlrev_b32 v8, 4, {LANE}")
        e(f"buffer_load_dwordx4 v[120:123], v8, {sr(SB)}, s9 offen{PFNT}"); e(f"buffer_load_dwordx4 v[120:123], v8, {sr(SB)}, s9 offen offset:1024{PFNT}")
        set_exec64(0xffffffff)
        e(f"buffer_load_dwordx4 v[120:123], v8, {sr(SB)}, s9 offen offset:2048{PFNT}")
        exec_all()
        lab(sk)
    e(f"v_lshrrev_b32 v8, 5, {LANE}"); e(f"s_lshl_b32 s9, {WAVE}, 1"); e("v_add_u32 v8, s9, v8")
    e(f"v_and_b32 v9, 31, {LANE}")
    e("v_mul_u32_u24 v6, 2176, v8"); e("v_lshl_add_u32 v6, v9, 4, v6")
    e(f"v_mul_u32_u24 v10, {CL_RS}, v8"); e("v_mul_u32_u24 v11, 12, v9"); e("v_add_u32 v10, v10, v11")
    e(f"v_add_u32 v118, {XL_CL}, v10")
    e("s_waitcnt vmcnt(0)")
    code_touch_range("X_NPR", 3, 120, 14)
    stamp("x: burst2 landed", 1|256)
    barrier()
    if OPT.get("xstop", 0) == 2: e("s_branch X_END")
    e(f"s_cmp_ge_u32 {WAVE}, 12"); e("s_cbranch_scc1 X_NPR")
    for ks in range(6):
        e(f"ds_read_b64_tr_b16 {vr(40+4*ks,2)}, v13 offset:{XL_U+ks*12288}")
        e(f"ds_read_b64_tr_b16 {vr(42+4*ks,2)}, v13 offset:{XL_U+ks*12288+1536}")
    lab("X_NPR")
    e(f"v_lshrrev_b32 v16, 2, {L15}"); e(f"v_lshl_add_u32 v16, {G}, 3, v16"); e(f"v_mul_u32_u24 v16, {CL_RS}, v16")
    e(f"v_and_b32 v17, 3, {L15}"); e("v_lshl_add_u32 v16, v17, 3, v16")
    e(f"s_lshl_b32 s9, {WAVE}, 5"); e(f"s_add_u32 s10, s9, {XL_CL}"); e("v_add_u32 v16, s10, v16")
    e(f"v_and_b32 v17, 1, {LANE}"); e("v_lshlrev_b32 v17, 6, v17"); e(f"v_lshl_add_u32 v17, {G}, 4, v17"); e(f"v_add_u32 v17, {XL_W}, v17")
    e(f"v_lshlrev_b32 v18, 1, {L15}"); e(f"s_add_u32 s10, s9, {XL_CB}"); e("v_add_u32 v18, s10, v18")
    e(f"v_lshlrev_b32 v19, 4, {G}"); e(f"v_add_u32 v19, {XL_CB}, v19")
    e(f"s_mul_i32 s9, {H}, 69632"); e(f"s_add_u32 s69, s9, {WS_E3 + 2048}"); e(f"s_lshl_b32 s10, {R}, 9"); e("s_add_u32 s9, s9, s10")
    e(f"s_add_u32 s9, s9, {WS_E3}")
    e(f"s_cmp_eq_u32 {WAVE}, 12"); e("s_cbranch_scc1 X_ML")
    stamp("x: E3 poll start", 16)
    pollx([f"buffer_load_dwordx4 v[96:99], v6, {sr(WS)}, s9 offen sc1"], [96], 108)
    stamp("x: E3 poll end", 16|2048); stamp_val("E3 iters", "s13", 16)
    e("ds_write2_b32 v118, v96, v97 offset1:1"); e("ds_write_b32 v118, v98 offset:8")
    if OPT.get("local", 1):
        sk = uid("HCK")
        e(f"s_cmp_lg_u32 {WAVE}, 13"); e(f"s_cbranch_scc1 {sk}")
        e(f"v_lshlrev_b32 v5, 3, {LANE}")
        e(f"s_lshl_b32 s10, {X}, 8"); e(f"s_add_u32 s10, s10, {WS_HELLO + 128}")
        e("s_getreg_b32 s11, hwreg(HW_REG_XCC_ID, 0, 4)")
        e("s_mov_b64 exec, 0x3ff")
        e(f"buffer_load_dwordx2 v[100:101], v5, {sr(WS)}, s10 offen sc1")
        e("s_waitcnt vmcnt(0)")
        e("v_xor_b32 v100, s11, v100"); e(f"v_xor_b32 v101, {TAG}, v101"); e("v_or_b32 v100, v100, v101")
        e("v_cmp_ne_u32 vcc, 0, v100")
        e("s_cmp_eq_u64 vcc, 0"); e("s_cselect_b32 s10, 1, 0")
        e("s_mov_b64 exec, 1")
        e(f"v_mov_b32 v100, s10"); e(f"v_mov_b32 v5, {XL_FLAG}"); e("ds_write_b32 v5, v100")
        exec_all()
        lab(sk)
    e("s_branch X_B5")
    lab("X_ML")
    e(f"v_and_b32 v5, 31, {LANE}"); e("v_mul_u32_u24 v5, 2176, v5")
    pollx([f"buffer_load_dwordx4 v[100:103], v6, {sr(WS)}, s9 offen sc1",
           f"buffer_load_dwordx4 v[96:99], v5, {sr(WS)}, s69 offen sc1"], [100, 96], 108, init=[None, 0xffffffff])
    e("ds_write2_b32 v118, v100, v101 offset1:1"); e("ds_write_b32 v118, v102 offset:8")
    e("v_mov_b32 v98, v96")
    e("s_nop 1"); row16_allreduce("v_max_f32", 98); e("s_nop 1"); cross16("v_max_f32", 98, 99)
    e("v_sub_f32 v96, v96, v98"); e("v_exp_f32 v96, v96"); e("s_nop 0")
    e("v_mul_f32 v97, v96, v97")
    e("s_nop 1"); row16_allreduce("v_add_f32", 97); e("s_nop 1"); cross16("v_add_f32", 97, 99)
    e("v_rcp_f32 v97, v97"); e("s_nop 0")
    e("v_mul_f32 v96, v96, v97")
    e("v_cvt_pk_bf16_f32 v97, v96, v96")
    e("v_and_b32 v98, 0xffff0000, v97")
    e("v_sub_f32 v96, v96, v98")
    e("v_cvt_pk_bf16_f32 v96, v96, v96")
    e(f"v_and_b32 v5, 31, {LANE}"); e("v_lshlrev_b32 v5, 1, v5"); e(f"v_add_u32 v5, {XL_W}, v5")
    set_exec64(0xffffffff)
    e("ds_write_b16 v5, v97"); e("ds_write_b16 v5, v96 offset:64")
    exec_all()
    lab("X_B5")
    barrier()
    stamp("x: E3 gathered", 17|128|256|2048)
    e(f"s_cmp_ge_u32 {WAVE}, 12"); e("s_cbranch_scc1 X_B5b")
    e(f"ds_read_b64_tr_b16 v[96:97], v16"); e(f"ds_read_b64_tr_b16 v[98:99], v16 offset:{4*CL_RS}")
    e("ds_read_b128 v[100:103], v17")
    e("s_waitcnt lgkmcnt(0)")
    mfma(120, 100, 96, "0")
    e("s_nop 7")
    e("v_add_f32 v120, v120, v121")
    e("v_cvt_pk_bf16_f32 v120, v120, v120")
    e("s_mov_b64 exec, 0xffff")
    e("ds_write_b16 v18, v120")
    exec_all()
    lab("X_B5b")
    barrier()
    stamp("x: after B5b", 2048)
    e(f"s_cmp_ge_u32 {WAVE}, 12"); e("s_cbranch_scc1 X_UPD")
    for ks in range(6): e(f"ds_read_b128 {vr(96+4*ks,4)}, v19 offset:{64*ks}")
    for ks in range(6):
        e(f"s_waitcnt lgkmcnt({5-ks})")
        mfma(120, 40 + 4 * ks, 96 + 4 * ks, "0" if ks == 0 else None)
    e("s_nop 7")
    def soff_e4():
        e(f"s_lshl_b32 s9, {X}, 2"); e(f"s_add_u32 s9, s9, {R}"); e("s_mul_i32 s9, s9, 3072")
        e(f"s_and_b32 s10, {H}, 3"); e("s_mul_i32 s10, s10, 768"); e("s_add_u32 s9, s9, s10"); e(f"s_add_u32 s9, s9, {WS_E4}")
    collect_store(120, XL_Q, soff_e4, st_local if OPT.get("local", 1) else st_global, "X_UPD")
    stamp("x: ctx published", 1|128|256|2048)
    e(f"s_cmp_ge_u32 {J}, 5"); e("s_cbranch_scc1 X_END")
    e(f"s_mul_i32 s66, {X}, 5"); e(f"s_add_u32 s66, s66, {J}")
    e(f"s_cmp_ge_u32 {WAVE}, 7"); e("s_cbranch_scc1 X_B9")
    e(f"s_cmp_eq_u32 {WAVE}, 6"); e("s_cbranch_scc1 X_FH")
    e(f"v_lshrrev_b32 v5, 3, {LANE}"); e("v_mul_u32_u24 v5, 5120, v5")
    e(f"v_and_b32 v6, 7, {LANE}"); e("v_lshl_add_u32 v5, v6, 4, v5")
    e(f"s_mul_i32 s9, {WAVE}, 40960"); e("s_lshl_b32 s10, s66, 7"); e("s_add_u32 s9, s9, s10")
    e(f"s_add_u32 s9, s9, {WS_E6}")
    poll([f"buffer_load_dwordx4 v[92:95], v5, {sr(WS)}, s9 offen sc1"], [93, 95], 108)
    e("v_mov_b32 v93, v94")
    e("s_nop 1")
    for i in range(2):
        e(f"v_add_f32_dpp v{92+i}, v{92+i}, v{92+i} row_ror:8 row_mask:0xf bank_mask:0xf")
    for i in range(2):
        cross16("v_add_f32", 92 + i, 96); cross32("v_add_f32", 92 + i, 96)
    e("v_lshlrev_b32 v6, 3, v6"); e(f"s_lshl_b32 s9, {WAVE}, 6"); e(f"s_add_u32 s9, s9, {XL_R2}")
    e("v_add_u32 v6, s9, v6")
    e("s_mov_b64 exec, 0xff")
    e("ds_write_b64 v6, v[92:93]")
    exec_all()
    e("s_branch X_B9")
    lab("X_FH")
    e(f"v_bfe_u32 v5, {LANE}, 2, 3"); e("v_mul_u32_u24 v5, 2560, v5")
    e(f"v_and_b32 v6, 3, {LANE}"); e("v_lshl_add_u32 v5, v6, 4, v5")
    e("s_lshl_b32 s9, s66, 6"); e(f"s_add_u32 s9, s9, {WS_E5}")
    e("v_lshlrev_b32 v7, 3, v6"); e("s_lshl_b32 s10, s66, 5")
    e(f"buffer_load_dwordx2 v[104:105], v7, {sr(SC_)}, s10 offen")
    set_exec64(0xffffffff)
    poll([f"buffer_load_dwordx4 v[92:95], v5, {sr(WS)}, s9 offen sc1"], [93, 95], 108)
    exec_all()
    e("v_lshlrev_b32 v96, 16, v92"); e("v_and_b32 v97, 0xffff0000, v92")
    e("v_lshlrev_b32 v98, 16, v94"); e("v_and_b32 v99, 0xffff0000, v94")
    e("s_nop 1")
    for sh in (4, 8):
        for i in range(4):
            e(f"v_add_f32_dpp v{96+i}, v{96+i}, v{96+i} row_ror:{sh} row_mask:0xf bank_mask:0xf")
    for i in range(4): cross16("v_add_f32", 96 + i, 100)
    e("v_lshlrev_b32 v100, 16, v104"); e("v_and_b32 v101, 0xffff0000, v104")
    e("v_lshlrev_b32 v102, 16, v105"); e("v_and_b32 v103, 0xffff0000, v105")
    for i in range(4): e(f"v_add_f32 v{96+i}, v{96+i}, v{100+i}")
    e("v_lshlrev_b32 v6, 4, v6"); e(f"v_add_u32 v6, {XL_H}, v6")
    e("s_mov_b64 exec, 0xf")
    e("ds_write_b128 v6, v[96:99]")
    exec_all()
    lab("X_B9")
    barrier()
    e(f"s_cmp_lg_u32 {WAVE}, 0"); e("s_cbranch_scc1 X_END")
    e(f"v_lshlrev_b32 v5, 3, {LANE}"); e(f"v_add_u32 v6, {XL_R2}, v5"); e(f"v_add_u32 v7, {XL_H}, v5")
    e("s_mov_b64 exec, 0xff")
    for w in range(6): e(f"ds_read_b64 {vr(92+2*w,2)}, v6 offset:{64*w}")
    e("ds_read_b64 v[116:117], v7")
    srd(SD, P_OUT, 1280)
    e("s_waitcnt lgkmcnt(0)")
    for w in range(1, 6):
        e(f"v_add_f32 v92, v92, v{92+2*w}"); e(f"v_add_f32 v93, v93, v{93+2*w}")
    e("v_add_f32 v92, v92, v116"); e("v_add_f32 v93, v93, v117")
    e("v_cvt_pk_bf16_f32 v92, v92, v93")
    e(f"v_lshlrev_b32 v5, 2, {LANE}"); e("s_lshl_b32 s9, s66, 5")
    e(f"buffer_store_dword v92, v5, {sr(SD)}, s9 offen")
    e("s_cmp_lg_u32 s66, 0"); e("s_cbranch_scc1 X_EP")
    e("s_mov_b64 exec, 1")
    e("v_mov_b32 v5, 0")
    e(f"buffer_store_dword {VTAG}, v5, {sr(WS)}, 0 offen sc1")
    lab("X_EP")
    exec_all()
    lab("X_END")
    stamp("x: end", 1|128|1024)
    stamp_flush(nstamp[0])
    e("s_endpgm")
    lab("X_LN")
    for i in range(5):
        e(f"buffer_load_dword v{16+i}, v5, {sr(SC_)}, 0 offen offset:{256*i}")
    e("s_barrier")
    e("s_waitcnt vmcnt(0)")
    for i in range(5):
        e(f"v_lshlrev_b32 v{21+2*i}, 16, v{16+i}")
        e(f"v_and_b32 v{22+2*i}, 0xffff0000, v{16+i}")
    e("v_add_f32 v31, v21, v22")
    for i in range(23, 31): e(f"v_add_f32 v31, v31, v{i}")
    wave_allreduce("v_add_f32", 31, 32)
    e(f"v_mul_f32 v31, {F(1.0/640.0)}, v31")
    for i in range(21, 31): e(f"v_sub_f32 v{i}, v{i}, v31")
    e("v_mul_f32 v33, v21, v21")
    for i in range(22, 31): e(f"v_fmac_f32 v33, v{i}, v{i}")
    wave_allreduce("v_add_f32", 33, 32)
    e(f"v_mov_b32 v32, {F(1e-5)}")
    e(f"v_fmac_f32 v32, {F(1.0/640.0)}, v33")
    e("v_rsq_f32 v32, v32"); e("s_nop 0")
    for i in range(21, 31): e(f"v_mul_f32 v{i}, v{i}, v32")
    for i in range(5): e(f"v_cvt_pk_bf16_f32 v{16+i}, v{21+2*i}, v{22+2*i}")
    e(f"v_add_u32 v5, {XL_XN}, v5")
    for i in range(5): e(f"ds_write_b32 v5, v{16+i} offset:{256*i}")
    e("s_branch X_B1")

CH_KB = 6272
CH_SZ = 8 * CH_KB
YL_C = 0
YL_QA = 2 * CH_SZ
YL_SP = YL_QA + 12416
YL_PF = YL_SP + 34816
YL_M = YL_PF + 4096
YL_R = YL_M + 64
YL_MG, YL_MU, YL_MD = 0, 40960, 81920
YL_H = 131072
YL_ST = YL_H + 2560
YL_G = YL_H + 2688
YL_HH = YL_H + 5376
assert YL_R + 3072 <= 163840
HG = "s7"

def y_program():
    nstamp[0] = 0
    lab("L_Y")
    e(f"s_sub_u32 {J}, {J}, 16")
    e(f"s_and_b32 {HG}, {J}, 3"); e(f"s_lshr_b32 {KC}, {J}, 2")
    e(f"v_bfe_u32 v5, {LANE}, 1, 2"); e("v_mul_u32_u24 v5, 1536, v5")
    e(f"v_lshrrev_b32 v6, 3, {LANE}"); e("v_lshl_add_u32 v5, v6, 5, v5")
    e(f"v_and_b32 v6, 1, {LANE}"); e("v_lshl_add_u32 v15, v6, 4, v5")
    e(f"s_lshl_b32 s9, {X}, 9"); e(f"s_lshl_b32 s10, {KC}, 7"); e("s_add_u32 s9, s9, s10")
    e(f"s_lshr_b32 s10, {WAVE}, 1"); e("s_lshl_b32 s11, s10, 2"); e("s_add_u32 s9, s9, s11")
    e("s_mul_i32 s66, s9, 1536")
    e(f"s_and_b32 s11, {WAVE}, 1"); e("s_mul_i32 s11, s11, 3"); e("s_lshl_b32 s14, s11, 8"); e("s_add_u32 s66, s66, s14")
    e(f"s_mul_i32 s67, s10, {CH_KB}"); e("s_lshl_b32 s14, s11, 10"); e("s_add_u32 s67, s67, s14")
    kernarg_ready()
    srd(SA, P_CKV, 6291456)
    stamp("y: start", 8191)
    if OPT.get("ystop", 0) == 1: e("s_branch Y_END")
    code_touch(120)
    ynt = OPT["ynt"]
    def chunk_dma(ch):
        e(f"s_add_u32 s10, s67, {(ch % 2) * CH_SZ}"); e(f"s_add_u32 s11, s66, {ch * 32 * 1536}")
        for i in range(3):
            e("s_mov_b32 m0, s10"); e("s_add_u32 s10, s10, 1024")
            e(f"buffer_load_dwordx4 v15, {sr(SA)}, s11 offen{' nt' if ynt else ''} lds")
            e("s_add_u32 s11, s11, 256")
    chunk_dma(0); chunk_dma(1)
    e(f"v_lshlrev_b32 v5, 2, v0"); e(f"v_add_u32 v5, {YL_PF}, v5"); e("v_mov_b32 v6, 0"); e("ds_write_b32 v5, v6")
    e(f"s_and_b32 s68, {WAVE}, 3"); e(f"s_lshr_b32 s69, {WAVE}, 2")
    e(f"v_lshrrev_b32 v5, 2, {L15}")
    e(f"v_mul_u32_u24 v5, {CH_KB}, v5")
    e(f"v_and_b32 v6, 3, {L15}"); e("v_lshl_add_u32 v5, v6, 5, v5")
    e(f"v_lshrrev_b32 v6, 1, {G}"); e("v_lshl_add_u32 v5, v6, 7, v5")
    e(f"v_and_b32 v6, 1, {G}"); e("v_lshl_add_u32 v5, v6, 4, v5")
    e("s_mul_i32 s9, s69, 1536"); e("v_add_u32 v13, s9, v5")
    e(f"v_mul_u32_u24 v5, {CH_KB}, {G}"); e(f"v_lshl_add_u32 v5, {L15}, 3, v5")
    e(f"s_mul_i32 s9, {WAVE}, 384"); e("v_add_u32 v14, s9, v5")
    e(f"v_add_u32 v8, {CH_SZ}, v14"); e(f"v_add_u32 v11, {CH_SZ}, v13")
    for n in range(2):
        e(f"v_add_u32 v{6+n}, {1024*n}, v0")
        e(f"s_mov_b32 s9, 43691")
        e(f"v_mul_lo_u32 v{9+n}, v{6+n}, s9"); e(f"v_lshrrev_b32 v{9+n}, 23, v{9+n}")
        e(f"v_mul_u32_u24 v12, 192, v{9+n}"); e(f"v_sub_u32 v12, v{6+n}, v12")
        e(f"v_mul_u32_u24 v{9+n}, 1552, v{9+n}"); e(f"v_lshl_add_u32 v{9+n}, v12, 3, v{9+n}")
        e(f"v_add_u32 v{9+n}, {YL_QA}, v{9+n}")
        e(f"v_lshlrev_b32 v{6+n}, 4, v{6+n}")
    SF, PVF = 16, 64
    def read_frags(ch):
        sb, pb = ("v13", "v14") if ch % 2 == 0 else ("v11", "v8")
        sk = uid("YSR")
        e(f"s_cmp_lg_u32 s68, {ch}"); e(f"s_cbranch_scc1 {sk}")
        for a in range(2):
            for i in range(6): e(f"ds_read_b128 {vr(SF+4*(6*a+i),4)}, {sb} offset:{a*4*CH_KB+256*i}")
        e("s_waitcnt lgkmcnt(0)")
        lab(sk)
        for a in range(3):
            b = PVF + (ch * 3 + a) * 4
            e(f"ds_read_b64_tr_b16 {vr(b,2)}, {pb} offset:{a*128}")
            e(f"ds_read_b64_tr_b16 {vr(b+2,2)}, {pb} offset:{4*CH_KB+a*128}")
    e("s_waitcnt vmcnt(3)"); barrier(); read_frags(0); barrier(); chunk_dma(2)
    e("s_waitcnt vmcnt(3)"); barrier(); read_frags(1); barrier(); code_touch_range("Y_E2D", 2, 120, 15); chunk_dma(3)
    e("s_waitcnt vmcnt(3)"); barrier(); read_frags(2)
    e("s_waitcnt vmcnt(0)"); barrier(); read_frags(3)
    get_tag()
    hello_publish(120)
    stamp("y: C landed", 9)
    if OPT.get("ystop", 0) == 2:
        barrier(); stamp("y: all landed"); e("s_branch Y_END")
    srd(SA, P_WO, 7864320)
    e(f"v_lshrrev_b32 v5, 5, {LANE}"); e("v_lshlrev_b32 v5, 2, v5"); e(f"v_bfe_u32 v12, {LANE}, 1, 2"); e("v_add_u32 v5, v5, v12")
    e("v_mul_u32_u24 v5, 1280, v5")
    e(f"v_bfe_u32 v12, {LANE}, 3, 2"); e("v_lshl_add_u32 v5, v12, 5, v5")
    e(f"v_and_b32 v12, 1, {LANE}"); e("v_lshl_add_u32 v0, v12, 4, v5")
    e(f"s_mul_i32 s67, {X}, 768"); e(f"s_lshl_b32 s10, {WAVE}, 3"); e("s_add_u32 s67, s67, s10"); e("s_mul_i32 s67, s67, 1280")
    e(f"s_lshl_b32 s10, {J}, 7"); e("s_add_u32 s67, s67, s10")
    e(f"s_lshl_b32 s66, {WAVE}, 10")
    WOS = "%05d" % OPT.get("wos", 11100)
    assert sum(int(c) for c in WOS) == 3
    def wo_point(pt):
        for _ in range(int(WOS[pt])): wo_batch("v0")
    def wo_batch(vreg, late=False):
        sk = uid("YWO")
        e(f"s_cmp_ge_u32 {J}, 10"); e(f"s_cbranch_scc1 {sk}")
        for i in range(2):
            e("s_mov_b32 m0, s66"); e(f"s_add_u32 s66, s66, {16*1024}")
            e(f"buffer_load_dwordx4 {vreg}, {sr(SA)}, s67 offen{' nt' if (OPT.get('wont', 1) and not OPT.get('wopf', 0)) else ''} lds")
            e(f"s_add_u32 s67, s67, {128*1280}")
        lab(sk)
    wo_point(0)
    e(f"s_mul_i32 s9, {HG}, 24576"); e(f"s_add_u32 s9, s9, {WS_QA}")
    e(f"s_cmp_ge_u32 {WAVE}, 8"); e("s_cbranch_scc1 Y_E2B")
    poll([f"buffer_load_dwordx4 {vr(112+4*n,4)}, v{6+n}, {sr(WS)}, s9 offen sc1" for n in range(2)],
         [113, 115, 117, 119], 120)
    for n in range(2):
        e(f"v_mov_b32 v{113+4*n}, v{114+4*n}")
        e(f"ds_write_b64 v{9+n}, {vr(112+4*n,2)}")
    e("s_branch Y_E2D")
    lab("Y_E2B")
    poll([f"buffer_load_dwordx4 v[112:115], v6, {sr(WS)}, s9 offen sc1"], [113, 115], 120)
    e("v_mov_b32 v113, v114"); e("ds_write_b64 v9, v[112:113]")
    lab("Y_E2D")
    stamp("y: qabs gathered", 9|128)
    barrier()
    stamp("y: after E2 barrier", 8)
    wo_point(1)
    e(f"v_and_b32 v5, 7, {L15}"); e("v_mul_u32_u24 v5, 1552, v5"); e(f"v_lshl_add_u32 v5, {G}, 4, v5")
    e(f"s_mul_i32 s9, s69, 384"); e(f"s_add_u32 s9, s9, {YL_QA}"); e("v_add_u32 v5, s9, v5")
    for i in range(4): e(f"ds_read_b128 {vr(112+4*i,4)}, v5 offset:{64*i}")
    e(f"v_mul_u32_u24 v6, 272, {G}"); e(f"v_lshl_add_u32 v6, {L15}, 4, v6")
    e("s_lshl_b32 s9, s69, 3"); e("s_lshl_b32 s10, s68, 1"); e("s_add_u32 s9, s9, s10"); e("s_mul_i32 s9, s9, 1088")
    e(f"s_add_u32 s9, s9, {YL_SP}"); e("v_add_u32 v6, s9, v6")
    for i in range(6):
        rem = min(6, i + 4) - (i + 1)
        e(f"s_waitcnt lgkmcnt({rem})")
        mfma(8, SF + 4 * i, 112 + 4 * (i % 4), "0" if i == 0 else None)
        mfma(12, SF + 4 * (6 + i), 112 + 4 * (i % 4), "0" if i == 0 else None)
        if i + 4 < 6:
            e(f"ds_read_b128 {vr(112+4*(i%4),4)}, v5 offset:{64*(i+4)}")
    e("s_nop 7")
    e("ds_write_b128 v6, v[8:11]"); e("ds_write_b128 v6, v[12:15] offset:1088")
    barrier()
    stamp("y: S partial done", 10)
    wo_point(2)
    e(f"s_cmp_ge_u32 {WAVE}, 8"); e("s_cbranch_scc1 Y_SMD")
    e(f"v_mul_u32_u24 v5, 1088, {G}")
    e(f"v_bfe_u32 v6, {LANE}, 2, 2"); e("v_mul_u32_u24 v7, 272, v6")
    e(f"v_and_b32 v12, 3, {LANE}"); e("v_lshlrev_b32 v8, 2, v12")
    e("v_add3_u32 v5, v5, v7, v8")
    e(f"s_lshl_b32 s9, {WAVE}, 4"); e(f"s_add_u32 s9, s9, {YL_SP}"); e("v_add_u32 v5, s9, v5")
    for kq in range(4):
        e(f"ds_read_b32 v{112+kq}, v5 offset:{8704*kq}"); e(f"ds_read_b32 v{116+kq}, v5 offset:{8704*kq+4352}")
    e(f"v_lshrrev_b32 v7, 5, {LANE}"); e("v_lshlrev_b32 v7, 10, v7")
    e("v_lshl_add_u32 v7, v6, 8, v7")
    e(f"v_bfe_u32 v8, {LANE}, 4, 1"); e("v_lshl_add_u32 v7, v8, 3, v7")
    e("v_lshl_add_u32 v7, v12, 1, v7")
    e(f"s_lshl_b32 s9, {WAVE}, 4"); e(f"s_add_u32 s9, s9, {YL_PF}"); e("v_add_u32 v7, s9, v7")
    e("s_waitcnt lgkmcnt(0)")
    e("v_add_f32 v112, v112, v113"); e("v_add_f32 v114, v114, v115"); e("v_add_f32 v116, v116, v117"); e("v_add_f32 v118, v118, v119")
    e("v_add_f32 v112, v112, v114"); e("v_add_f32 v114, v116, v118")
    e("v_max_f32 v116, v112, v114")
    wave_allreduce("v_max_f32", 116, 117)
    e("v_sub_f32 v112, v112, v116"); e("v_sub_f32 v114, v114, v116")
    e("v_exp_f32 v112, v112"); e("v_exp_f32 v114, v114"); e("s_nop 0")
    e("v_cvt_pk_bf16_f32 v112, v112, v114")
    e("ds_write_b16 v7, v112"); e("ds_write_b16_d16_hi v7, v112 offset:2048")
    e(f"s_lshl_b32 s9, {WAVE}, 2"); e(f"s_add_u32 s9, s9, {YL_M}"); e("v_mov_b32 v5, s9")
    e("s_mov_b64 exec, 1")
    e("ds_write_b32 v5, v116")
    exec_all()
    lab("Y_SMD")
    barrier()
    stamp("y: P ready", 10)
    wo_point(3)
    e(f"v_lshlrev_b32 v5, 4, {LANE}"); e(f"v_add_u32 v5, {YL_PF}, v5")
    for ks in range(4): e(f"ds_read_b128 {vr(112+4*ks,4)}, v5 offset:{1024*ks}")
    e(f"v_and_b32 v6, 7, {L15}"); e("v_mul_u32_u24 v6, 96, v6"); e(f"v_lshl_add_u32 v6, {G}, 3, v6")
    e(f"s_mul_i32 s9, {WAVE}, 768"); e(f"s_add_u32 s9, s9, {YL_SP}"); e("v_add_u32 v6, s9, v6")
    e(f"v_lshrrev_b32 v7, 3, {LANE}"); e("v_mul_u32_u24 v12, 96, v7"); e(f"v_and_b32 v5, 7, {LANE}"); e("v_mul_u32_u24 v8, 12, v5")
    e("v_add3_u32 v12, v12, v8, s9")
    e("v_mul_u32_u24 v7, 69632, v7"); e("v_lshl_add_u32 v5, v5, 4, v7")
    e(f"s_mul_i32 s9, {HG}, {8*69632}"); e(f"s_lshl_b32 s10, {X}, 2"); e(f"s_add_u32 s10, s10, {KC}")
    e("s_mul_i32 s11, s10, 2176"); e("s_add_u32 s9, s9, s11"); e(f"s_add_u32 s68, s9, {WS_E3 + 2048}")
    e(f"s_lshl_b32 s11, {WAVE}, 7"); e("s_add_u32 s9, s9, s11"); e(f"s_add_u32 s9, s9, {WS_E3}")
    for ks in range(4):
        e(f"s_waitcnt lgkmcnt({3-ks})")
        for a in range(3):
            mfma(16 + 4 * a, PVF + (ks * 3 + a) * 4, 112 + 4 * ks, "0" if ks == 0 else None)
    e(f"s_cmp_lg_u32 {WAVE}, 15"); e("s_cbranch_scc1 Y_NL")
    for i in range(4): e(f"v_mov_b32 v{32+i}, 0x3f803f80")
    e(f"v_and_b32 v41, 7, {L15}"); e("v_lshlrev_b32 v41, 2, v41"); e(f"v_add_u32 v41, {YL_M}, v41")
    e("ds_read_b32 v40, v41")
    for ks in range(4): mfma(36, 32, 112 + 4 * ks, "0" if ks == 0 else None)
    lab("Y_NL")
    e("s_nop 7")
    stamp("y: PV mfma done", 8)
    for a in range(3):
        e(f"v_cvt_pk_bf16_f32 v{44+2*a}, v{16+4*a}, v{17+4*a}"); e(f"v_cvt_pk_bf16_f32 v{45+2*a}, v{18+4*a}, v{19+4*a}")
    set_exec64(0x00ff00ff00ff00ff)
    for a in range(3): e(f"ds_write_b64 v6, {vr(44+2*a,2)} offset:{32*a}")
    exec_all()
    e("s_waitcnt lgkmcnt(0)")
    e("ds_read2_b32 v[52:53], v12 offset1:1"); e("ds_read_b32 v54, v12 offset:8")
    e("s_waitcnt lgkmcnt(0)")
    e("v_bitop3_b32 v55, v52, v53, v54 bitop3:0x96"); e(f"v_xor_b32 v55, {VTAG}, v55")
    e(f"buffer_store_dwordx4 v[52:55], v5, {sr(WS)}, s9 offen{SCG}")
    e(f"s_cmp_lg_u32 {WAVE}, 15"); e("s_cbranch_scc1 Y_P3D")
    e(f"s_mov_b32 s9, 69632"); e(f"v_mul_lo_u32 v5, {L15}, s9"); e("s_mov_b32 s9, s68")
    e("s_waitcnt lgkmcnt(0)")
    e("v_mov_b32 v56, v40"); e("v_mov_b32 v57, v36"); e("v_mov_b32 v58, 0"); e("v_bitop3_b32 v59, v56, v57, v4 bitop3:0x96")
    e("s_mov_b64 exec, 0xff")
    e(f"buffer_store_dwordx4 v[56:59], v5, {sr(WS)}, s9 offen{SCG}")
    exec_all()
    lab("Y_P3D")
    stamp("y: ctxlat published", 9|16|128|1024)
    if OPT["stamps"] & 16:
        e("s_waitcnt vmcnt(0)"); stamp("y: E3 stores complete", 16); barrier(); stamp("y: all waves stores complete", 16)
    if OPT.get("ystop", 0) == 3: e("s_branch Y_END")
    e(f"s_cmp_ge_u32 {J}, 10"); e("s_cbranch_scc1 Y_MLP")
    wo_point(4)
    e("s_waitcnt vmcnt(0)")
    code_touch_range("Y_B5", 1, 120, 15)
    stamp("y: wo landed", 1|256)
    barrier()
    e(f"s_cmp_ge_u32 {WAVE}, 12"); e("s_cbranch_scc1 Y_B5")
    e(f"v_lshlrev_b32 v5, 10, {G}"); e(f"v_lshl_add_u32 v5, {L15}, 3, v5")
    e(f"s_lshl_b32 s9, {WAVE}, 13"); e("v_add_u32 v5, s9, v5")
    for ksl in range(2):
        for t in range(4):
            b = 64 + (ksl * 4 + t) * 4
            e(f"ds_read_b64_tr_b16 {vr(b,2)}, v5 offset:{ksl*4096+t*128}")
            e(f"ds_read_b64_tr_b16 {vr(b+2,2)}, v5 offset:{ksl*4096+512+t*128}")
        if ksl == 0: e("s_waitcnt lgkmcnt(0)")
    e(f"v_lshlrev_b32 v5, 4, {LANE}")
    e(f"s_mul_i32 s9, {X}, 12288"); e(f"s_lshl_b32 s10, {WAVE}, 10"); e("s_add_u32 s9, s9, s10")
    e(f"s_add_u32 s9, s9, {WS_E4}")
    e(f"s_mul_i32 s10, s64, 1552"); e("s_lshl_b32 s11, s65, 9"); e("s_add_u32 s10, s10, s11"); e(f"s_add_u32 s10, s10, {YL_QA}")
    e(f"v_lshl_add_u32 v6, {LANE}, 3, s10")
    e(f"v_and_b32 v7, 3, {LANE}"); e("v_mul_u32_u24 v7, 1552, v7"); e(f"v_lshl_add_u32 v7, {G}, 4, v7")
    e(f"s_lshl_b32 s10, {WAVE}, 7"); e(f"s_add_u32 s10, s10, {YL_QA}"); e("v_add_u32 v7, s10, v7")
    e(f"v_lshlrev_b32 v9, 2, {LANE}"); e(f"v_add_u32 v9, {YL_R}, v9")
    e(f"s_lshl_b32 s10, {WAVE}, 8"); e("v_add_u32 v8, s10, v9")
    e(f"v_cmp_eq_u32 s[66:67], 1, {G}"); e(f"v_cmp_eq_u32 s[68:69], 2, {G}"); e(f"v_cmp_eq_u32 s[42:43], 3, {G}")
    stamp("y: E4 poll start", 256)
    poll([f"buffer_load_dwordx4 v[96:99], v5, {sr(WS)}, s9 offen sc1"], [97, 99], 112)
    stamp("y: ctx gathered", 1|128|256|2048)
    stamp_val("E4 iters", "s13", 256)
    e("v_mov_b32 v97, v98")
    e("ds_write_b64 v6, v[96:97]")
    lab("Y_B5")
    barrier()
    stamp("y: after B5", 2048)
    e(f"s_cmp_ge_u32 {WAVE}, 12"); e("s_cbranch_scc1 Y_B6")
    e("ds_read_b128 v[96:99], v7"); e("ds_read_b128 v[104:107], v7 offset:64")
    e("s_waitcnt lgkmcnt(1)")
    for t in range(4): mfma(16 + 4 * t, 96, 64 + 4 * t, "0")
    e("s_waitcnt lgkmcnt(0)")
    for t in range(4): mfma(16 + 4 * t, 104, 64 + 16 + 4 * t)
    e("s_nop 4")
    for t in range(4):
        b = 16 + 4 * t
        e(f"v_add_f32 v{b}, v{b}, v{b+1}"); e(f"v_add_f32 v{b+2}, v{b+2}, v{b+3}")
    for t in range(4):
        b = 16 + 4 * t
        e(f"v_add_f32 v{b}, v{b}, v{b+2}")
    e("v_cndmask_b32 v16, v16, v20, s[66:67]"); e("v_cndmask_b32 v16, v16, v24, s[68:69]"); e("v_cndmask_b32 v16, v16, v28, s[42:43]")
    e("ds_write_b32 v8, v16")
    lab("Y_B6")
    stamp("y: P5 mfma+red done", 2048)
    barrier()
    stamp("y: after B6", 2048)
    e(f"s_cmp_lg_u32 {WAVE}, 0"); e("s_cbranch_scc1 Y_END")
    for i in range(6): e(f"ds_read2st64_b32 {vr(16+2*i,2)}, v9 offset0:{2*i} offset1:{2*i+1}")
    e(f"s_mul_i32 s9, {X}, 2560"); e(f"s_lshl_b32 s10, {J}, 8"); e("s_add_u32 s9, s9, s10")
    e(f"s_add_u32 s9, s9, {WS_E5}")
    e(f"v_lshlrev_b32 v5, 2, {LANE}")
    e("s_waitcnt lgkmcnt(0)")
    for i in range(6): e(f"v_add_f32 v{16+2*i}, v{16+2*i}, v{17+2*i}")
    e("v_add_f32 v16, v16, v18"); e("v_add_f32 v20, v20, v22"); e("v_add_f32 v24, v24, v26")
    e("v_add_f32 v16, v16, v20"); e("v_add_f32 v16, v16, v24")
    e("s_nop 1")
    e("v_mov_b32_dpp v17, v16 quad_perm:[1,1,3,3] row_mask:0xf bank_mask:0xf")
    e("v_cvt_pk_bf16_f32 v16, v16, v17"); e(f"v_mov_b32 v17, {VTAG}")
    set_exec64(0x5555555555555555)
    e(f"buffer_store_dwordx2 v[16:17], v5, {sr(WS)}, s9 offen{SCG}")
    exec_all()
    e("s_branch Y_END")
    lab("Y_MLP")
    e(f"s_mul_i32 s66, {X}, 6"); e(f"s_add_u32 s66, s66, {J}"); e("s_sub_u32 s66, s66, 10")
    srd(SA, P_WG, 1966080); srd(SB, P_WU, 1966080); srd(SC_, P_WD, 1966080); srd(SD, P_X, 1280)
    e(f"v_lshrrev_b32 v5, 4, {LANE}"); e("v_lshlrev_b32 v5, 2, v5"); e(f"v_bfe_u32 v6, {LANE}, 1, 2"); e("v_add_u32 v5, v5, v6")
    e("v_mul_u32_u24 v5, 3072, v5")
    e(f"v_bfe_u32 v6, {LANE}, 3, 1"); e("v_lshl_add_u32 v5, v6, 5, v5")
    e(f"v_and_b32 v6, 1, {LANE}"); e("v_lshl_add_u32 v15, v6, 4, v5")
    e(f"v_bfe_u32 v5, {LANE}, 1, 2"); e("v_mul_u32_u24 v5, 1280, v5")
    e(f"v_lshrrev_b32 v6, 3, {LANE}"); e("v_lshl_add_u32 v5, v6, 5, v5")
    e(f"v_and_b32 v6, 1, {LANE}"); e("v_lshl_add_u32 v14, v6, 4, v5")
    barrier()
    e(f"s_and_b32 s9, {WAVE}, 7")
    e(f"s_mul_i32 s11, s9, {5*16*3072}"); e("s_lshl_b32 s10, s66, 6"); e("s_add_u32 s11, s11, s10")
    e("s_mul_i32 s10, s9, 5120")
    e(f"s_cmp_ge_u32 {WAVE}, 8"); e("s_cbranch_scc1 Y_MU")
    dma_loop(15, SA, 10, 11, 5, 1024, 16 * 3072, OPT.get("mnt", 1))
    e("s_lshl_b32 s11, s66, 5"); e(f"s_lshl_b32 s10, {WAVE}, 2"); e("s_add_u32 s11, s11, s10"); e("s_mul_i32 s11, s11, 1280")
    e(f"s_mul_i32 s10, {WAVE}, 5120"); e(f"s_add_u32 s10, s10, {YL_MD}")
    dma_loop(14, SC_, 10, 11, 5, 1024, 256, OPT["ynt"])
    e("s_branch Y_MW")
    lab("Y_MU")
    e(f"s_add_u32 s10, s10, {YL_MU}")
    dma_loop(15, SB, 10, 11, 5, 1024, 16 * 3072, OPT.get("mnt", 1))
    lab("Y_MW")
    e(f"v_and_b32 v5, 31, {LANE}"); e("v_lshlrev_b32 v5, 3, v5"); e(f"s_lshl_b32 s9, {WAVE}, 8")
    e(f"s_cmp_ge_u32 {WAVE}, 5"); e("s_cbranch_scc1 Y_NX")
    e(f"buffer_load_dwordx2 v[110:111], v5, {sr(SD)}, s9 offen")
    lab("Y_NX")
    e("s_waitcnt vmcnt(0)")
    code_touch_range("Y_MPD", 2, 120, 15)
    stamp("y: mlp landed", 1|1024)
    barrier()
    if OPT.get("ystop", 0) == 4: e("s_branch Y_END")
    e(f"s_cmp_ge_u32 {WAVE}, 10"); e("s_cbranch_scc1 Y_MPD")
    e(f"v_lshlrev_b32 v5, 9, {G}"); e(f"v_lshl_add_u32 v5, {L15}, 3, v5")
    e(f"s_lshl_b32 s9, {WAVE}, 12"); e("v_add_u32 v5, s9, v5")
    for mat, base in ((0, YL_MG), (1, YL_MU)):
        for ksl in range(2):
            for t in range(2):
                b = 16 + mat * 16 + (ksl * 2 + t) * 4
                e(f"ds_read_b64_tr_b16 {vr(b,2)}, v5 offset:{base+ksl*2048+t*128}")
                e(f"ds_read_b64_tr_b16 {vr(b+2,2)}, v5 offset:{base+ksl*2048+256+t*128}")
        e("s_waitcnt lgkmcnt(0)")
    e(f"v_mul_u32_u24 v5, 10240, {G}"); e(f"v_lshl_add_u32 v5, {L15}, 3, v5")
    e(f"s_lshl_b32 s9, {WAVE}, 9"); e(f"s_add_u32 s9, s9, {YL_MD}"); e("v_add_u32 v5, s9, v5")
    for a in range(4):
        e(f"ds_read_b64_tr_b16 {vr(48+4*a,2)}, v5 offset:{128*a}")
        e(f"ds_read_b64_tr_b16 {vr(50+4*a,2)}, v5 offset:{5120+128*a}")
    lab("Y_MPD")
    e(f"v_lshlrev_b32 v9, 2, {LANE}"); e(f"v_add_u32 v9, {YL_G}, v9")
    e(f"s_lshl_b32 s9, {WAVE}, 8"); e("v_add_u32 v8, s9, v9")
    e(f"v_and_b32 v12, 31, {LANE}")
    e(f"s_lshl_b32 s9, {WAVE}, 6"); e(f"s_add_u32 s9, s9, {YL_HH}")
    e("v_lshl_add_u32 v10, v12, 1, s9"); e(f"v_lshl_add_u32 v11, {G}, 4, s9")
    e(f"v_lshlrev_b32 v12, 3, {LANE}")
    e(f"v_mov_b32 v13, {YL_ST}")
    e(f"v_lshlrev_b32 v14, 5, {G}"); e(f"s_lshl_b32 s9, {WAVE}, 8"); e(f"s_add_u32 s9, s9, {YL_H}"); e("v_add_u32 v14, s9, v14")
    e("s_mul_i32 s65, s66, 5120"); e(f"s_lshl_b32 s10, {WAVE}, 9"); e("s_add_u32 s65, s65, s10"); e(f"s_add_u32 s65, s65, {WS_E6}")
    e(f"v_cmp_eq_u32 s[66:67], 1, {G}"); e(f"v_cmp_eq_u32 s[68:69], 2, {G}"); e(f"v_cmp_eq_u32 s[42:43], 3, {G}")
    e(f"s_cmp_ge_u32 {WAVE}, 5"); e("s_cbranch_scc1 Y_MB6")
    e(f"v_and_b32 v6, 31, {LANE}"); e(f"v_lshrrev_b32 v5, 5, {LANE}"); e("v_mul_u32_u24 v5, 10240, v5"); e("v_lshl_add_u32 v5, v6, 4, v5")
    e(f"s_lshl_b32 s9, {WAVE}, 9"); e(f"s_add_u32 s9, s9, {WS_E5}")
    e("s_add_u32 s10, s9, 5120")
    stamp("y: E5 poll start", 4096)
    poll([f"buffer_load_dwordx4 {vr(80+4*i,4)}, v5, {sr(WS)}, {'s9' if i < 2 else 's10'} offen offset:{2560*(i%2)} sc1" for i in range(4)],
         [81, 83, 85, 87, 89, 91, 93, 95], 96)
    stamp("y: E5 poll end", 4096); stamp_val("E5 iters", "s13", 4096)
    for i in range(4):
        b = 80 + 4 * i
        if i == 0:
            e(f"v_lshlrev_b32 v100, 16, v{b}"); e(f"v_and_b32 v101, 0xffff0000, v{b}")
            e(f"v_lshlrev_b32 v102, 16, v{b+2}"); e(f"v_and_b32 v103, 0xffff0000, v{b+2}")
        else:
            e(f"v_lshlrev_b32 v104, 16, v{b}"); e(f"v_and_b32 v105, 0xffff0000, v{b}")
            e(f"v_lshlrev_b32 v106, 16, v{b+2}"); e(f"v_and_b32 v107, 0xffff0000, v{b+2}")
            for k in range(4): e(f"v_add_f32 v{100+k}, v{100+k}, v{104+k}")
    for k in range(4): e(f"v_mov_b32 v{104+k}, v{100+k}")
    e("s_nop 1")
    for k in range(4): e(f"v_permlane32_swap_b32 v{100+k}, v{104+k}")
    e(f"v_lshlrev_b32 v80, 16, v110"); e("v_and_b32 v81, 0xffff0000, v110"); e("v_lshlrev_b32 v82, 16, v111"); e("v_and_b32 v83, 0xffff0000, v111")
    for k in range(4): e(f"v_add_f32 v{100+k}, v{100+k}, v{104+k}")
    for k in range(4): e(f"v_add_f32 v{100+k}, v{100+k}, v{80+k}")
    e("v_lshlrev_b32 v5, 4, v6"); e(f"s_lshl_b32 s9, {WAVE}, 9"); e(f"s_add_u32 s9, s9, {YL_H}"); e("v_add_u32 v5, s9, v5")
    set_exec64(0xffffffff)
    e("ds_write_b128 v5, v[100:103]")
    exec_all()
    e("v_add_f32 v104, v100, v101"); e("v_add_f32 v106, v102, v103"); e("v_mul_f32 v105, v100, v100")
    e("v_add_f32 v104, v104, v106"); e("v_fmac_f32 v105, v101, v101"); e("v_fmac_f32 v105, v102, v102"); e("v_fmac_f32 v105, v103, v103")
    e("s_nop 1")
    row16_allreduce("v_add_f32", 104, 2)
    e("s_nop 1")
    for i in range(2): cross16("v_add_f32", 104 + i, 106)
    e(f"s_lshl_b32 s9, {WAVE}, 3"); e(f"s_add_u32 s9, s9, {YL_ST}"); e("v_mov_b32 v5, s9")
    e("s_mov_b64 exec, 1")
    e("ds_write_b64 v5, v[104:105]")
    exec_all()
    lab("Y_MB6")
    stamp("y: h gathered", 65|128|1024|4096)
    barrier()
    stamp("y: after MB6", 64)
    e(f"s_cmp_ge_u32 {WAVE}, 10"); e("s_cbranch_scc1 Y_MB7")
    e("ds_read_b128 v[80:83], v13"); e("ds_read_b128 v[84:87], v13 offset:16"); e("ds_read_b64 v[88:89], v13 offset:32")
    for ksl in range(2):
        e(f"ds_read_b128 {vr(92+8*ksl,4)}, v14 offset:{128*ksl}")
        e(f"ds_read_b128 {vr(96+8*ksl,4)}, v14 offset:{128*ksl+16}")
    e("s_waitcnt lgkmcnt(4)")
    for a, b in ((82, 83), (84, 85), (86, 87), (88, 89)):
        e(f"v_add_f32 v80, v80, v{a}"); e(f"v_add_f32 v81, v81, v{b}")
    e(f"v_mul_f32 v80, {F(1.0/640.0)}, v80")
    e(f"v_mul_f32 v81, {F(1.0/640.0)}, v81")
    e("v_fma_f32 v81, -v80, v80, v81")
    e("v_max_f32 v81, 0, v81")
    e(f"v_add_f32 v81, {F(1e-5)}, v81")
    e("v_rsq_f32 v81, v81"); e("s_nop 0")
    e("v_mul_f32 v80, v80, v81")
    e("s_waitcnt lgkmcnt(0)")
    for i in range(16): e(f"v_fma_f32 v{92+i}, v{92+i}, v81, -v80")
    for ksl in range(2):
        for i in range(4): e(f"v_cvt_pk_bf16_f32 v{108+4*ksl+i}, v{92+8*ksl+2*i}, v{93+8*ksl+2*i}")
    e("s_nop 1")
    for ksl in range(2):
        for mat in range(2):
            for t in range(2):
                mfma(64 + 8 * mat + 4 * t, 108 + 4 * ksl, 16 + mat * 16 + (ksl * 2 + t) * 4, "0" if ksl == 0 else None)
    e("s_nop 5")
    e("v_cndmask_b32 v64, v64, v68, s[66:67]"); e("v_cndmask_b32 v64, v64, v72, s[68:69]"); e("v_cndmask_b32 v64, v64, v76, s[42:43]")
    e("ds_write_b32 v8, v64")
    lab("Y_MB7")
    stamp("y: P6 done", 64)
    barrier()
    stamp("y: after MB7", 64)
    e(f"s_cmp_ge_u32 {WAVE}, 10"); e("s_cbranch_scc1 Y_END")
    for i in range(5): e(f"ds_read2st64_b32 {vr(80+2*i,2)}, v9 offset0:{2*i} offset1:{2*i+1}")
    e("s_waitcnt lgkmcnt(0)")
    for i in range(5): e(f"v_add_f32 v{80+2*i}, v{80+2*i}, v{81+2*i}")
    e("v_add_f32 v80, v80, v82"); e("v_add_f32 v84, v84, v86"); e("v_add_f32 v80, v80, v88"); e("v_add_f32 v80, v80, v84")
    e("v_mov_b32 v88, v80"); e("s_nop 1")
    e("v_permlane32_swap_b32 v80, v88")
    e("s_nop 1")
    e(f"v_mul_f32 v80, {F(-math.log2(math.e))}, v80"); e("v_exp_f32 v80, v80"); e("s_nop 0")
    e("v_add_f32 v80, 1.0, v80"); e("v_rcp_f32 v80, v80"); e("s_nop 0")
    e("v_mul_f32 v80, v80, v88")
    e("v_cvt_pk_bf16_f32 v80, v80, v80")
    set_exec64(0xffffffff)
    e("ds_write_b16 v10, v80")
    exec_all()
    e("s_waitcnt lgkmcnt(0)")
    e("ds_read_b128 v[80:83], v11")
    e("s_waitcnt lgkmcnt(0)")
    for a in range(4): mfma(84 + 4 * a, 80, 48 + 4 * a, "0")
    e("s_nop 5")
    e("v_cndmask_b32 v84, v84, v88, s[66:67]"); e("v_cndmask_b32 v84, v84, v92, s[68:69]"); e("v_cndmask_b32 v84, v84, v96, s[42:43]")
    e(f"v_mov_b32 v85, {VTAG}")
    e(f"buffer_store_dwordx2 v[84:85], v12, {sr(WS)}, s65 offen{SCG}")
    lab("Y_END")
    stamp("y: end", 65|128|1024|2048|4096)
    stamp_flush(nstamp[0])
    e("s_endpgm")

hdr = f"""; Kernarg layout (104 bytes): d_in[0..9], d_out, d_debug, d_ws
; @launch grid=(256,1,1) block=(1024,1,1) lds=163840
.amdgcn_target "amdgcn-amd-amdhsa--gfx950"
.text
.globl {NAME}_kernel
.p2align 8
.type {NAME}_kernel,@function
{NAME}_kernel:
"""
prologue()
x_program()
y_program()
lab("L_END")
e("s_endpgm")
ftr = f""".section .rodata,"a"
.p2align 6
.amdhsa_kernel {NAME}_kernel
  .amdhsa_next_free_vgpr 128
  .amdhsa_next_free_sgpr 102
  .amdhsa_accum_offset 128
  .amdhsa_group_segment_fixed_size 0
  .amdhsa_kernarg_size 104
  .amdhsa_user_sgpr_count 2
  .amdhsa_user_sgpr_kernarg_segment_ptr 1
  .amdhsa_system_sgpr_workgroup_id_x 1
.end_amdhsa_kernel
"""
open(sys.argv[1], "w").write(hdr + "\n".join(L) + "\n" + ftr)
```

```python
import sys, math, struct
def F(x): return "0x%08x" % struct.unpack("<I", struct.pack("<f", x))[0]
NAME = "sequential_preLN__compressed_kv_cla__glu_gated_glu__decode"

OPT = dict(stamps=0, ynt=1, xnt=1, spin=1 << 16, cpv_early=1, prefetch_code=1)
for a in sys.argv[2:]:
    k, v = a.split("="); OPT[k] = int(v)

L = []
def e(s): L.append("    " + s)
def lab(s): L.append(s + ":")
def cm(s): L.append("    ; " + s)
_uid = [0]
def uid(p):
    _uid[0] += 1
    return f"{p}_{_uid[0]}"

WS_EPOCH = 0
WS_HELLO = 0x1000
WS_E1 = 0x10000
WS_QA = 0x40000
WS_ML = 0x60000
WS_E4 = 0x70000
WS_E5 = 0x90000
WS_E6 = 0x100000
WS_ST = 0x180000
WS_E3 = 0x200000
WS_SIZE = 0x700000

WAVE, X, J, TAG, H, R = "s3", "s4", "s5", "s6", "s7", "s8"
HH, KC = "s7", "s8"
P_X, P_CKV, P_WQ, P_WUK, P_WUV, P_WO, P_WG, P_WU, P_WD, P_OUT, P_WS = 16, 18, 20, 22, 24, 26, 30, 32, 34, 36, 40
WS, SA, SB, SC_, SD = 44, 48, 52, 56, 60
def sr(b, n=4): return f"s[{b}:{b+n-1}]"
def vr(b, n): return f"v[{b}:{b+n-1}]" if n > 1 else f"v{b}"
STAMP0 = 72
LANE, G, L15, VTAG = "v1", "v2", "v3", "v4"

def srd(b, ptr, size):
    e(f"s_mov_b32 s{b}, s{ptr}")
    e(f"s_mov_b32 s{b+1}, s{ptr+1}")
    e(f"s_mov_b32 s{b+2}, {size}")
    e(f"s_mov_b32 s{b+3}, 0x00020000")

nstamp = [0]
def stamp(name, grp=1):
    if not (OPT["stamps"] & grp): return
    i = nstamp[0]; nstamp[0] += 1
    if OPT.get("pmask", 1) and i >= 6: return
    cm(f"stamp {i}: {name}")
    sk = uid("STK")
    e(f"s_cmp_lg_u32 {WAVE}, {OPT.get('stampwave',0)}"); e(f"s_cbranch_scc1 {sk}")
    if i == 0:
        e("s_memrealtime s[98:99]")
    e(f"s_memtime s[{STAMP0+2*i}:{STAMP0+2*i+1}]")
    e("s_waitcnt lgkmcnt(0)")
    lab(sk)
def stamp_val(name, sreg, grp=1):
    if not (OPT["stamps"] & grp): return
    i = nstamp[0]; nstamp[0] += 1
    if OPT.get("pmask", 1) and i >= 6: return
    cm(f"stamp {i}: VALUE {name}")
    e(f"s_mov_b32 s{STAMP0+2*i}, {sreg}"); e(f"s_mov_b32 s{STAMP0+2*i+1}, 0x7fffffff")
def stamp_flush(n):
    if not OPT["stamps"]: return
    skip = uid("STF")
    e(f"s_cmp_lg_u32 {WAVE}, {OPT.get('stampwave',0)}"); e(f"s_cbranch_scc1 {skip}")
    e("s_mov_b64 exec, 1")
    e("s_lshl_b32 s9, s2, 8"); e(f"s_add_u32 s9, s9, {WS_ST}")
    e("v_mov_b32 v5, 0")
    if OPT.get("pmask", 1): n = min(n, 6)
    for i in range(n):
        e(f"v_mov_b32 v6, s{STAMP0+2*i}"); e(f"v_mov_b32 v7, s{STAMP0+2*i+1}")
        e(f"buffer_store_dwordx2 v[6:7], v5, {sr(WS)}, s9 offen offset:{8*i}")
        e("s_nop 1")
    e("v_mov_b32 v6, s98"); e("v_mov_b32 v7, s99")
    e(f"buffer_store_dwordx2 v[6:7], v5, {sr(WS)}, s9 offen offset:248")
    e("s_nop 1")
    e("v_mov_b32 v6, s96"); e("v_mov_b32 v7, s97")
    e(f"buffer_store_dwordx2 v[6:7], v5, {sr(WS)}, s9 offen offset:240")
    e("s_memrealtime s[96:97]"); e("s_waitcnt lgkmcnt(0)")
    e("v_mov_b32 v6, s96"); e("v_mov_b32 v7, s97")
    e(f"buffer_store_dwordx2 v[6:7], v5, {sr(WS)}, s9 offen offset:232")
    e("s_mov_b64 exec, -1")
    lab(skip)

def barrier():
    e("s_waitcnt lgkmcnt(0)")
    e("s_barrier")

def divmagic(T):
    return {12: (43, 9), 6: (43, 8), 3: (86, 8), 1: (1, 0)}[T]

def dma_pattern(vd, T, S, sp, t0, t1):
    M, sh = divmagic(T)
    e(f"v_lshrrev_b32 v{t0}, 3, {LANE}")
    if sp is not None:
        e(f"s_lshl_b32 s9, {sp}, 3")
        e(f"v_add_u32 v{t0}, s9, v{t0}")
    if T == 1:
        e(f"v_mov_b32 v{t1}, v{t0}")
        e(f"v_mov_b32 v{t0}, 0")
    else:
        e(f"v_mul_u32_u24 v{t1}, {M}, v{t0}")
        e(f"v_lshrrev_b32 v{t1}, {sh}, v{t1}")
        e(f"v_mul_u32_u24 v{vd}, {T}, v{t1}")
        e(f"v_sub_u32 v{t0}, v{t0}, v{vd}")
    e(f"v_lshlrev_b32 v{t1}, 2, v{t1}")
    e(f"v_bfe_u32 v{vd}, {LANE}, 1, 2")
    e(f"v_add_u32 v{t1}, v{t1}, v{vd}")
    e(f"s_mov_b32 s9, {S}")
    e(f"v_mul_lo_u32 v{t1}, v{t1}, s9")
    e(f"v_lshlrev_b32 v{t0}, 5, v{t0}")
    e(f"v_and_b32 v{vd}, 1, {LANE}")
    e(f"v_lshlrev_b32 v{vd}, 4, v{vd}")
    e(f"v_add3_u32 v{vd}, v{vd}, v{t0}, v{t1}")

def dma_loop(vd, srdb, s_m0, s_off, n, step_m, step_s, nt):
    lp = uid("DMA")
    e(f"s_mov_b32 s12, {n}")
    lab(lp)
    e(f"s_mov_b32 m0, s{s_m0}")
    e(f"s_add_u32 s{s_m0}, s{s_m0}, {step_m}")
    e(f"buffer_load_dwordx4 v{vd}, {sr(srdb)}, s{s_off} offen{' nt' if nt else ''} lds")
    e(f"s_add_u32 s{s_off}, s{s_off}, {step_s}")
    e("s_sub_u32 s12, s12, 1")
    e("s_cmp_lg_u32 s12, 0")
    e(f"s_cbranch_scc1 {lp}")

def row16_allreduce(op, v, nregs=1):
    for sh in (8, 4, 2, 1):
        if nregs < 3: e("s_nop 1")
        for i in range(nregs):
            e(f"{op}_dpp v{v+i}, v{v+i}, v{v+i} row_ror:{sh} row_mask:0xf bank_mask:0xf")
def cross16(op, v, t):
    e(f"v_mov_b32 v{t}, v{v}"); e("s_nop 1")
    e(f"v_permlane16_swap_b32 v{v}, v{t}"); e("s_nop 1")
    e(f"{op} v{v}, v{v}, v{t}")
def cross32(op, v, t):
    e(f"v_mov_b32 v{t}, v{v}"); e("s_nop 1")
    e(f"v_permlane32_swap_b32 v{v}, v{t}"); e("s_nop 1")
    e(f"{op} v{v}, v{v}, v{t}")
def wave_allreduce(op, v, t):
    e("s_nop 1")
    row16_allreduce(op, v)
    e("s_nop 1")
    cross16(op, v, t)
    cross32(op, v, t)

MASK0 = 84
def _poll_generic(loads, checks, vt, init=None):
    n = len(loads)
    lp = uid("POLL"); dn = uid("PDONE")
    masked = OPT.get("pmask", 1) and n <= 8
    e("s_mov_b32 s13, 0")
    if masked:
        e("s_mov_b64 s[100:101], exec")
        for i in range(n):
            if init and init[i] is not None:
                e(f"s_mov_b32 s{MASK0+2*i}, {init[i] & 0xffffffff:#x}"); e(f"s_mov_b32 s{MASK0+2*i+1}, {init[i] >> 32:#x}")
            else: e(f"s_mov_b64 s[{MASK0+2*i}:{MASK0+2*i+1}], exec")
    lab(lp)
    for i, s_ in enumerate(loads):
        if masked:
            sk = uid("PSK")
            e(f"s_mov_b64 exec, s[{MASK0+2*i}:{MASK0+2*i+1}]")
            if n > 1: e(f"s_cbranch_execz {sk}")
            e(s_)
            if n > 1: lab(sk)
        else: e(s_)
    e("s_waitcnt vmcnt(0)")
    if masked:
        for i in range(n):
            e(f"s_mov_b64 exec, s[{MASK0+2*i}:{MASK0+2*i+1}]")
            for c in checks[i]: e(c)
            e(f"v_cmp_ne_u32 vcc, 0, v{vt}")
            e(f"s_mov_b64 s[{MASK0+2*i}:{MASK0+2*i+1}], vcc")
            if i == 0: e("s_mov_b64 s[14:15], vcc")
            else: e("s_or_b64 s[14:15], s[14:15], vcc")
        e("s_mov_b64 exec, s[100:101]")
        e("s_add_u32 s13, s13, 1")
        e("s_cmp_eq_u64 s[14:15], 0")
    else:
        for i in range(n):
            for c in checks[i]: e(c.replace(f"v{vt},", f"v{vt+1},", 1).replace(f", v{vt}", f", v{vt+1}") if False else c)
            if i == 0: e(f"v_mov_b32 v{vt+2}, v{vt}")
            else: e(f"v_or_b32 v{vt+2}, v{vt+2}, v{vt}")
        e(f"v_cmp_ne_u32 vcc, 0, v{vt+2}")
        e("s_add_u32 s13, s13, 1")
        e("s_cmp_eq_u64 vcc, 0")
    e(f"s_cbranch_scc1 {dn}")
    if OPT.get("psleep", 0): e(f"s_sleep {OPT['psleep']}")
    e(f"s_cmp_lt_u32 s13, {OPT['spin']}")
    e(f"s_cbranch_scc1 {lp}")
    if masked: e("s_mov_b64 exec, s[100:101]")
    lab(dn)

def poll(loads, tagregs, vt):
    per = len(tagregs) // len(loads)
    checks = []
    for i in range(len(loads)):
        tr = tagregs[i*per:(i+1)*per]
        if per == 1: checks.append([f"v_xor_b32 v{vt}, {TAG}, v{tr[0]}"])
        else: checks.append([f"v_xor_b32 v{vt}, {TAG}, v{tr[0]}", f"v_xor_b32 v{vt+1}, {TAG}, v{tr[1]}", f"v_or_b32 v{vt}, v{vt}, v{vt+1}"])
    _poll_generic(loads, checks, vt)

def pollx(loads, bases, vt, init=None):
    checks = [[f"v_bitop3_b32 v{vt}, v{b}, v{b+1}, v{b+2} bitop3:0x96", f"v_bitop3_b32 v{vt}, v{vt}, v{b+3}, {VTAG} bitop3:0x96"] for b in bases]
    _poll_generic(loads, checks, vt, init)

def mfma(d, a, b, c=None):
    cs = vr(d, 4) if c is None else c
    e(f"v_mfma_f32_16x16x32_bf16 {vr(d,4)}, {vr(a,4)}, {vr(b,4)}, {cs}")

SCG = " sc1"
EXEC_L15_0 = 0x0001000100010001

def set_exec64(val):
    lo, hi = val & 0xffffffff, val >> 32
    e(f"s_mov_b32 exec_lo, {lo:#x}"); e(f"s_mov_b32 exec_hi, {hi:#x}")
def exec_all(): e("s_mov_b64 exec, -1")

def prologue():
    if OPT["stamps"] or OPT.get("diagx", 0): e("s_memrealtime s[96:97]")
    e("s_cmp_ge_u32 s2, 256")
    e("s_cbranch_scc1 L_END")
    e("s_load_dwordx16 s[16:31], s[0:1], 0")
    e("s_load_dwordx8 s[32:39], s[0:1], 64")
    e("s_load_dwordx2 s[40:41], s[0:1], 96")
    e(f"v_lshrrev_b32 v5, 6, v0")
    e(f"v_and_b32 {LANE}, 63, v0")
    e(f"v_readfirstlane_b32 {WAVE}, v5")
    e(f"v_lshrrev_b32 {G}, 4, {LANE}")
    if OPT.get("earlytouch", 1): code_touch(120)
    e(f"v_and_b32 {L15}, 15, {LANE}")
    e(f"s_and_b32 {X}, s2, 7")
    e(f"s_lshr_b32 {J}, s2, 3")
    e(f"s_mul_i32 s64, {WAVE}, 11"); e("s_lshr_b32 s64, s64, 5")
    e("s_mul_i32 s65, s64, 3"); e(f"s_sub_u32 s65, {WAVE}, s65")
    e(f"s_cmp_ge_u32 {J}, 16")
    e("s_cbranch_scc1 L_Y")

def kernarg_ready():
    e("s_waitcnt lgkmcnt(0)")
    e(f"s_load_dword {TAG}, s[{P_WS}:{P_WS+1}], 0")
    srd(WS, P_WS, WS_SIZE)

def get_tag():
    e("s_waitcnt lgkmcnt(0)")
    e(f"s_mul_i32 {TAG}, {TAG}, 1664525")
    e(f"s_add_u32 {TAG}, {TAG}, 1013904223")
    e(f"v_mov_b32 {VTAG}, {TAG}")

def hello_publish(vt):
    if not OPT.get("local", 1): return
    sk = uid("HEL")
    e(f"s_cmp_lg_u32 {WAVE}, 15"); e(f"s_cbranch_scc1 {sk}")
    e("s_getreg_b32 s9, hwreg(HW_REG_XCC_ID, 0, 4)")
    e(f"s_lshl_b32 s10, {X}, 8"); e("s_lshr_b32 s11, s2, 3"); e("s_lshl_b32 s11, s11, 3"); e("s_add_u32 s10, s10, s11"); e(f"s_add_u32 s10, s10, {WS_HELLO}")
    e(f"v_mov_b32 v{vt}, s9"); e(f"v_mov_b32 v{vt+1}, {TAG}"); e(f"v_mov_b32 v{vt+2}, 0")
    e("s_mov_b64 exec, 1")
    e(f"buffer_store_dwordx2 v[{vt}:{vt+1}], v{vt+2}, {sr(WS)}, s10 offen sc1")
    exec_all()
    lab(sk)

XL_U = 0
XL_UK = 61440
XL_MG, XL_MU, XL_MD = 73728, 94208, 114688
XL_S = 147456
XL_XN = XL_S
XL_Q = XL_S + 1280
XL_CL = XL_S + 2048
CL_RS = 400
XL_CB = XL_S + 14848
XL_W = XL_S + 15232
XL_FLAG = XL_S + 15360
XL_H = XL_S + 2048
XL_ST = XL_S + 4608
XL_G = XL_S + 4736
XL_HH = XL_S + 6144
XL_R2 = XL_S + 6400
XL_R = XL_S + 8192

def st_global(data, voff, soff):
    e(f"buffer_store_dwordx4 {data}, {voff}, {sr(WS)}, {soff} offen sc1")
def st_local(data, voff, soff):
    g = uid("STG"); d = uid("STD")
    e("s_nop 0"); e("v_readfirstlane_b32 s10, v123"); e("s_nop 3")
    e("s_cmp_eq_u32 s10, 1"); e(f"s_cbranch_scc0 {g}")
    e(f"buffer_store_dwordx4 {data}, {voff}, {sr(WS)}, {soff} offen")
    e(f"s_branch {d}")
    lab(g)
    e(f"buffer_store_dwordx4 {data}, {voff}, {sr(WS)}, {soff} offen sc1")
    lab(d)

XL_CX = None
def collect_store(acc, lds_base, soff_code, flavor, lbl):
    e(f"v_cvt_pk_bf16_f32 v124, v{acc}, v{acc+1}"); e(f"v_cvt_pk_bf16_f32 v125, v{acc+2}, v{acc+3}")
    e(f"v_lshlrev_b32 v5, 3, {G}"); e(f"s_lshl_b32 s9, {WAVE}, 5"); e(f"s_add_u32 s9, s9, {lds_base}"); e("v_add_u32 v5, s9, v5")
    set_exec64(EXEC_L15_0)
    e("ds_write_b64 v5, v[124:125]")
    exec_all()
    lab(lbl)
    barrier()
    sk = uid("CST")
    e(f"s_cmp_lg_u32 {WAVE}, 0"); e(f"s_cbranch_scc1 {sk}")
    e(f"v_lshlrev_b32 v5, 3, {LANE}"); e(f"v_add_u32 v6, {lds_base}, v5")
    set_exec64((1 << 48) - 1)
    e("ds_read_b64 v[124:125], v6")
    if flavor is st_local:
        e(f"v_mov_b32 v7, {XL_FLAG}"); e("ds_read_b32 v123, v7")
    soff_code()
    e(f"v_lshlrev_b32 v5, 4, {LANE}")
    e("s_waitcnt lgkmcnt(0)")
    e("v_mov_b32 v126, v125"); e(f"v_mov_b32 v125, {VTAG}"); e(f"v_mov_b32 v127, {VTAG}")
    flavor("v[124:127]", "v5", "s9")
    exec_all()
    lab(sk)

def code_touch(vd, wave=15):
    if not OPT["prefetch_code"]: return
    sk = uid("CT"); pc = uid("PC")
    e(f"s_cmp_lg_u32 {WAVE}, {wave}"); e(f"s_cbranch_scc1 {sk}")
    e("s_getpc_b64 s[10:11]")
    lab(pc)
    e(f"s_sub_u32 s10, s10, {pc}-{NAME}_kernel"); e("s_subb_u32 s11, s11, 0")
    e("s_lshr_b32 s9, s2, 3"); e("s_and_b32 s9, s9, 15"); e("s_lshl_b32 s9, s9, 10")
    e(f"v_lshl_add_u32 v{vd}, {LANE}, 4, s9")
    e(f"s_mov_b32 s9, L_END-{NAME}_kernel-16")
    e(f"v_min_u32 v{vd}, s9, v{vd}")
    e(f"global_load_dwordx4 v[{vd}:{vd+3}], v{vd}, s[10:11]")
    lab(sk)

def code_touch_range(lbl, nkb, vd, wave=15):
    if not OPT.get("retouch", 0): return
    sk = uid("CT"); pc = uid("PC")
    e(f"s_cmp_lg_u32 {WAVE}, {wave}"); e(f"s_cbranch_scc1 {sk}")
    e("s_getpc_b64 s[10:11]")
    lab(pc)
    e(f"s_sub_u32 s10, s10, {pc}-{NAME}_kernel"); e("s_subb_u32 s11, s11, 0")
    e(f"s_mov_b32 s9, {lbl}-{NAME}_kernel")
    e(f"v_lshl_add_u32 v{vd+4}, {LANE}, 4, s9")
    e(f"s_mov_b32 s9, L_END-{NAME}_kernel-16")
    for i in range(nkb):
        e(f"v_min_u32 v{vd+5}, s9, v{vd+4}")
        e(f"global_load_dwordx4 v[{vd}:{vd+3}], v{vd+5}, s[10:11]")
        if i + 1 < nkb: e(f"v_add_u32 v{vd+4}, 1024, v{vd+4}")
    lab(sk)

def tlb_warm(wave):
    if not OPT.get("tlbwarm", 0): return
    sk = uid("TW")
    e(f"s_cmp_lg_u32 {WAVE}, {wave}"); e(f"s_cbranch_scc1 {sk}")
    step = 1 << 20
    lst = [(P_WUV, 9437184), (P_WO, 7864320), (P_WG, 1966080), (P_WU, 1966080), (P_WD, 1966080), (P_WS, WS_SIZE), (P_OUT, 1280)]
    k = 0
    for ptr, size in lst:
        off = 0
        while off < size:
            if off < (1 << 20):
                e(f"s_load_dword s{84 + (k % 8)}, s[{ptr}:{ptr+1}], {off:#x}")
            else:
                e(f"s_mov_b32 s9, {off:#x}")
                e(f"s_load_dword s{84 + (k % 8)}, s[{ptr}:{ptr+1}], s9")
            k += 1; off += step
    lab(sk)

def x_program():
    lab("L_X")
    e(f"s_lshr_b32 s9, {J}, 2"); e(f"s_lshl_b32 {H}, {X}, 2"); e(f"s_add_u32 {H}, {H}, s9")
    e(f"s_and_b32 {R}, {J}, 3")
    dma_pattern(15, 12, 12288, "s65", 17, 18)
    if OPT.get("dmaexp", 0):
        e(f"v_lshrrev_b32 v17, 4, {LANE}"); e("s_lshl_b32 s9, s65, 2"); e("v_add_u32 v17, s9, v17"); e("v_mul_u32_u24 v17, 12288, v17")
        e(f"v_lshl_add_u32 v17, {L15}, 4, v17")
        e(f"v_lshrrev_b32 v18, 3, {LANE}"); e("v_mul_u32_u24 v18, 12288, v18"); e(f"v_and_b32 v15, 7, {LANE}"); e("v_lshl_add_u32 v18, v15, 4, v18"); e("v_add_u32 v18, 256, v18")
        e("s_cmp_eq_u32 s65, 2"); e("s_cselect_b64 vcc, -1, 0"); e("s_nop 1"); e("v_cndmask_b32 v15, v17, v18, vcc")
    e(f"v_cmp_lt_u32 vcc, 23, {LANE}"); e(f"v_subrev_u32 v6, 24, {LANE}"); e("s_nop 0")
    e(f"v_cndmask_b32 v14, {LANE}, v6, vcc"); e("v_lshlrev_b32 v14, 4, v14")
    e("v_mov_b32 v6, 12288"); e("v_cndmask_b32 v6, 0, v6, vcc"); e("v_add_u32 v14, v14, v6")
    e(f"v_lshlrev_b32 v5, 2, {LANE}")
    e(f"s_mul_i32 s10, {R}, 160"); e("s_lshl_b32 s11, s64, 3"); e("s_add_u32 s10, s10, s11")
    e("s_mul_i32 s11, s10, 12288"); e(f"s_mul_i32 s67, {H}, 384"); e("s_add_u32 s11, s11, s67")
    e(f"s_sub_u32 s9, {WAVE}, 12")
    e(f"s_mul_i32 s66, {R}, 192"); e("s_lshl_b32 s10, s9, 1"); e("s_add_u32 s66, s66, s10")
    e("s_mul_i32 s66, s66, 12288"); e("s_add_u32 s66, s66, s67")
    e(f"s_mul_i32 s68, s9, 800"); e(f"s_add_u32 s68, s68, {XL_UK}")
    e(f"s_lshl_b32 s10, {WAVE}, 10")
    kernarg_ready()
    srd(SA, P_WQ, 7864320); srd(SB, P_WUK, 9437184); srd(SC_, P_X, 1280)
    stamp("x: start", 0xfffff)
    e(f"s_cmp_eq_u32 {WAVE}, 15"); e("s_cbranch_scc1 X_LN")
    e(f"s_cmp_ge_u32 {WAVE}, 12"); e("s_cbranch_scc1 X_UKD")
    dma_loop(15, SA, 10, 11, 5, 12 * 1024, 32 * 12288, OPT["xnt"])
    e("s_barrier")
    e("s_waitcnt vmcnt(0)")
    e("s_branch X_B1")
    lab("X_UKD")
    e("s_barrier")
    set_exec64((1<<48)-1)
    npre = OPT.get("ukpre", 4)
    dma_loop(14, SB, 68, 66, npre, 3 * 800, 6 * 12288, OPT["xnt"])
    exec_all()
    lab("X_B1")
    get_tag()
    if OPT.get("diagw", 0):
        e("s_memtime s[76:77]"); e("s_waitcnt lgkmcnt(0)")
        e("s_barrier")
        e("s_memtime s[78:79]"); e("s_waitcnt vmcnt(0)"); e("s_memtime s[80:81]"); e("s_waitcnt lgkmcnt(0)")
        e("s_lshl_b32 s9, s2, 10"); e(f"s_lshl_b32 s10, {WAVE}, 6"); e("s_add_u32 s9, s9, s10"); e(f"s_add_u32 s9, s9, {WS_ST}")
        e("s_mov_b64 exec, 1"); e("v_mov_b32 v5, 0")
        for i, b in enumerate((72, 74, 76, 78, 80, 96)):
            e(f"v_mov_b32 v6, s{b}"); e(f"v_mov_b32 v7, s{b+1}")
            e(f"buffer_store_dwordx2 v[6:7], v5, {sr(WS)}, s9 offen offset:{8*i}"); e("s_nop 1")
        e("s_endpgm")
    stamp("x: wq landed", 9|32768)
    barrier()
    stamp("x: after B1", 8)
    e(f"s_cmp_ge_u32 {WAVE}, 12"); e("s_cbranch_scc1 X_UK2")
    e(f"v_mul_u32_u24 v5, 3072, {G}"); e(f"v_lshl_add_u32 v5, {L15}, 3, v5")
    e(f"s_lshl_b32 s9, {WAVE}, 7"); e("v_add_u32 v13, s9, v5")
    e(f"s_mul_i32 s9, {R}, 320"); e(f"s_add_u32 s9, s9, {XL_XN}")
    e(f"v_lshl_add_u32 v6, {G}, 4, s9")
    for ks in range(5):
        e(f"ds_read_b128 {vr(64+4*ks,4)}, v6 offset:{64*ks}")
        e(f"ds_read_b64_tr_b16 {vr(40+4*ks,2)}, v13 offset:{XL_U+ks*12288}")
        e(f"ds_read_b64_tr_b16 {vr(42+4*ks,2)}, v13 offset:{XL_U+ks*12288+1536}")
    e(f"s_lshl_b32 s9, {H}, 2"); e(f"s_add_u32 s9, s9, {R}"); e("s_mul_i32 s9, s9, 1536")
    e(f"s_lshl_b32 s10, {WAVE}, 7"); e("s_add_u32 s9, s9, s10"); e(f"s_add_u32 s9, s9, {WS_E1}")
    e(f"v_lshlrev_b32 v5, 3, {L15}")
    for ks in range(5):
        e(f"s_waitcnt lgkmcnt({3*(4-ks)})")
        mfma(88, 64 + 4 * ks, 40 + 4 * ks, "0" if ks == 0 else None)
    e("s_nop 7")
    e(f"v_mov_b32 v89, {VTAG}")
    e("s_mov_b64 exec, 0xffff")
    e(f"buffer_store_dwordx2 v[88:89], v5, {sr(WS)}, s9 offen{SCG}")
    exec_all()
    stamp("x: q published", 9)
    e("s_branch X_B3")
    lab("X_UK2")
    e(f"s_cmp_eq_u32 {WAVE}, 15"); e("s_cbranch_scc1 X_B3")
    set_exec64((1<<48)-1)
    dma_loop(14, SB, 68, 66, 32 - OPT.get("ukpre", 4), 3 * 800, 6 * 12288, OPT["xnt"])
    exec_all()
    e(f"s_cmp_ge_u32 {WAVE}, 14"); e("s_cbranch_scc1 X_B3W")
    e(f"s_sub_u32 s9, {WAVE}, 12"); e("s_lshl_b32 s9, s9, 6"); e(f"v_add_u32 v5, s9, {LANE}")
    e("v_cmp_gt_u32 vcc, 96, v5"); e("s_and_saveexec_b64 s[42:43], vcc")
    e("v_lshlrev_b32 v6, 4, v5")
    e(f"s_mul_i32 s9, {H}, 6144"); e(f"s_add_u32 s9, s9, {WS_E1}")
    e("s_add_u32 s10, s9, 3072")
    stamp("x: E1 poll start", 8|32768)
    poll([f"buffer_load_dwordx4 v[92:95], v6, {sr(WS)}, s9 offen sc1",
          f"buffer_load_dwordx4 v[96:99], v6, {sr(WS)}, s9 offen offset:1536 sc1",
          f"buffer_load_dwordx4 v[100:103], v6, {sr(WS)}, s10 offen sc1",
          f"buffer_load_dwordx4 v[104:107], v6, {sr(WS)}, s10 offen offset:1536 sc1"],
         [93, 95, 97, 99, 101, 103, 105, 107], 108)
    stamp("x: E1 poll end", 8|32768); stamp_val("E1 iters", "s13", 8)
    e("v_add_f32 v92, v92, v96"); e("v_add_f32 v94, v94, v98")
    e("v_add_f32 v100, v100, v104"); e("v_add_f32 v102, v102, v106")
    e("v_add_f32 v92, v92, v100"); e("v_add_f32 v94, v94, v102")
    qs = 192 ** -0.5 * math.log2(math.e)
    e(f"v_mul_f32 v92, {F(qs)}, v92"); e(f"v_mul_f32 v94, {F(qs)}, v94")
    e("v_cvt_pk_bf16_f32 v92, v92, v94")
    e("v_lshlrev_b32 v6, 2, v5"); e(f"v_add_u32 v6, {XL_Q}, v6")
    e("ds_write_b32 v6, v92")
    e("s_mov_b64 exec, s[42:43]")
    lab("X_B3W")
    e("s_waitcnt vmcnt(0)")
    lab("X_B3")
    barrier()
    stamp("x: q gathered", 9|32768)
    e(f"s_cmp_ge_u32 {WAVE}, 12"); e("s_cbranch_scc1 X_P2B")
    e(f"v_lshlrev_b32 v6, 4, {G}"); e(f"v_add_u32 v6, {XL_Q}, v6")
    e(f"v_lshrrev_b32 v7, 1, {L15}"); e("v_mul_u32_u24 v7, 800, v7")
    e(f"v_and_b32 v8, 1, {L15}"); e("v_mul_u32_u24 v8, 384, v8"); e("v_add_u32 v7, v7, v8")
    e(f"v_lshl_add_u32 v7, {G}, 4, v7")
    e(f"s_mul_i32 s9, {WAVE}, 6400"); e(f"s_add_u32 s9, s9, {XL_UK}"); e("v_add_u32 v7, s9, v7")
    for ks in range(6):
        e(f"ds_read_b128 {vr(16+4*ks,4)}, v7 offset:{64*ks}")
        e(f"ds_read_b128 {vr(64+4*ks,4)}, v6 offset:{64*ks}")
    for ks in range(6):
        e(f"s_waitcnt lgkmcnt({2*(5-ks)})")
        mfma(88, 16 + 4 * ks, 64 + 4 * ks, "0" if ks == 0 else None)
    e("s_nop 7")
    def soff_qa():
        e(f"s_mul_i32 s9, {H}, 3072"); e(f"s_mul_i32 s10, {R}, 768"); e("s_add_u32 s9, s9, s10"); e(f"s_add_u32 s9, s9, {WS_QA}")
    collect_store(88, XL_CB, soff_qa, st_global, "X_P2B")
    stamp("x: qabs published", 9|128|256|32768|(1<<16))
    if OPT.get("xstop", 0) == 1:
        e("s_waitcnt vmcnt(0)"); barrier(); stamp("x: all waves done"); e("s_branch X_END")
    srd(SA, P_WUV, 9437184)
    e(f"s_cmp_ge_u32 {WAVE}, 12"); e("s_cbranch_scc1 X_B4")
    e(f"s_mul_i32 s10, {R}, 192"); e("s_lshl_b32 s11, s64, 3"); e("s_add_u32 s10, s10, s11")
    e("s_mul_i32 s11, s10, 12288"); e("s_add_u32 s11, s11, s67")
    e(f"s_lshl_b32 s10, {WAVE}, 10"); e(f"s_add_u32 s10, s10, {XL_U}")
    dma_loop(15, SA, 10, 11, 6, 12 * 1024, 32 * 12288, OPT["xnt"])
    lab("X_B4")
    PFNT = " nt" if OPT.get("pfnt", 0) else ""
    if OPT.get("wopf", 0):
        sk = uid("PFO")
        srd(SB, P_WO, 7864320)
        e(f"s_cmp_eq_u32 {WAVE}, 15"); e(f"s_cbranch_scc1 {sk}")
        e(f"s_mul_i32 s9, {X}, 768"); e(f"s_mul_i32 s10, {J}, 48"); e("s_add_u32 s9, s9, s10"); e("s_mul_i32 s9, s9, 1280")
        e(f"s_lshl_b32 s10, {WAVE}, 12"); e("s_add_u32 s9, s9, s10")
        e(f"v_lshlrev_b32 v8, 4, {LANE}")
        for i in range(4): e(f"buffer_load_dwordx4 v[120:123], v8, {sr(SB)}, s9 offen offset:{1024*i}{PFNT}")
        lab(sk)
    if OPT.get("l2pf", 1):
        srd(SB, P_WG, 1966080); srd(SD, P_WU, 1966080)
        e(f"v_cmp_lt_u32 vcc, 23, {LANE}"); e(f"v_subrev_u32 v7, 24, {LANE}"); e("s_nop 0")
        e(f"v_cndmask_b32 v8, {LANE}, v7, vcc"); e("v_lshlrev_b32 v8, 4, v8")
        e("v_mov_b32 v7, 3072"); e("v_cndmask_b32 v7, 0, v7, vcc"); e("v_add_u32 v8, v8, v7")
        sk = uid("PFG")
        e(f"s_cmp_ge_u32 {WAVE}, 10"); e(f"s_cbranch_scc1 {sk}")
        e(f"s_mul_i32 s9, {J}, 40"); e(f"s_lshl_b32 s10, {WAVE}, 2"); e("s_add_u32 s9, s9, s10"); e("s_mul_i32 s9, s9, 3072")
        e(f"s_mul_i32 s10, {X}, 384"); e("s_add_u32 s9, s9, s10"); e("s_add_u32 s10, s9, 6144")
        set_exec64((1 << 48) - 1)
        e(f"buffer_load_dwordx4 v[120:123], v8, {sr(SB)}, s9 offen{PFNT}"); e(f"buffer_load_dwordx4 v[120:123], v8, {sr(SB)}, s10 offen{PFNT}")
        e(f"buffer_load_dwordx4 v[120:123], v8, {sr(SD)}, s9 offen{PFNT}"); e(f"buffer_load_dwordx4 v[120:123], v8, {sr(SD)}, s10 offen{PFNT}")
        exec_all()
        lab(sk)
        sk = uid("PFD")
        e(f"s_cmp_lt_u32 {WAVE}, 10"); e(f"s_cbranch_scc1 {sk}")
        srd(SB, P_WD, 1966080)
        e(f"s_mul_i32 s9, {X}, 192"); e(f"s_mul_i32 s10, {J}, 12"); e("s_add_u32 s9, s9, s10"); e("s_mul_i32 s9, s9, 1280")
        e(f"s_sub_u32 s10, {WAVE}, 10"); e("s_mul_i32 s10, s10, 2560"); e("s_add_u32 s9, s9, s10")
        e(f"v_lshlrev_b32 v8, 4, {LANE}")
        e(f"buffer_load_dwordx4 v[120:123], v8, {sr(SB)}, s9 offen{PFNT}"); e(f"buffer_load_dwordx4 v[120:123], v8, {sr(SB)}, s9 offen offset:1024{PFNT}")
        set_exec64(0xffffffff)
        e(f"buffer_load_dwordx4 v[120:123], v8, {sr(SB)}, s9 offen offset:2048{PFNT}")
        exec_all()
        lab(sk)
    e(f"v_lshrrev_b32 v8, 5, {LANE}"); e(f"s_lshl_b32 s9, {WAVE}, 1"); e("v_add_u32 v8, s9, v8")
    e(f"v_and_b32 v9, 31, {LANE}")
    e("v_mul_u32_u24 v6, 2176, v8"); e("v_lshl_add_u32 v6, v9, 4, v6")
    e(f"v_mul_u32_u24 v10, {CL_RS}, v8"); e("v_mul_u32_u24 v11, 12, v9"); e("v_add_u32 v10, v10, v11")
    e(f"v_add_u32 v118, {XL_CL}, v10")
    e("s_waitcnt vmcnt(0)")
    code_touch_range("X_NPR", 3, 120, 14)
    stamp("x: burst2 landed", 1|256)
    barrier()
    if OPT.get("xstop", 0) == 2: e("s_branch X_END")
    e(f"s_cmp_ge_u32 {WAVE}, 12"); e("s_cbranch_scc1 X_NPR")
    for ks in range(6):
        e(f"ds_read_b64_tr_b16 {vr(40+4*ks,2)}, v13 offset:{XL_U+ks*12288}")
        e(f"ds_read_b64_tr_b16 {vr(42+4*ks,2)}, v13 offset:{XL_U+ks*12288+1536}")
    lab("X_NPR")
    e(f"v_lshrrev_b32 v16, 2, {L15}"); e(f"v_lshl_add_u32 v16, {G}, 3, v16"); e(f"v_mul_u32_u24 v16, {CL_RS}, v16")
    e(f"v_and_b32 v17, 3, {L15}"); e("v_lshl_add_u32 v16, v17, 3, v16")
    e(f"s_lshl_b32 s9, {WAVE}, 5"); e(f"s_add_u32 s10, s9, {XL_CL}"); e("v_add_u32 v16, s10, v16")
    e(f"v_and_b32 v17, 1, {LANE}"); e("v_lshlrev_b32 v17, 6, v17"); e(f"v_lshl_add_u32 v17, {G}, 4, v17"); e(f"v_add_u32 v17, {XL_W}, v17")
    e(f"v_lshlrev_b32 v18, 1, {L15}"); e(f"s_add_u32 s10, s9, {XL_CB}"); e("v_add_u32 v18, s10, v18")
    e(f"v_lshlrev_b32 v19, 4, {G}"); e(f"v_add_u32 v19, {XL_CB}, v19")
    e(f"s_mul_i32 s9, {H}, 69632"); e(f"s_add_u32 s69, s9, {WS_E3 + 2048}"); e(f"s_lshl_b32 s10, {R}, 9"); e("s_add_u32 s9, s9, s10")
    e(f"s_add_u32 s9, s9, {WS_E3}")
    e(f"s_cmp_eq_u32 {WAVE}, 12"); e("s_cbranch_scc1 X_ML")
    stamp("x: E3 poll start", 16)
    pollx([f"buffer_load_dwordx4 v[96:99], v6, {sr(WS)}, s9 offen sc1"], [96], 108)
    stamp("x: E3 poll end", 16|2048); stamp_val("E3 iters", "s13", 16)
    e("ds_write2_b32 v118, v96, v97 offset1:1"); e("ds_write_b32 v118, v98 offset:8")
    if OPT.get("local", 1):
        sk = uid("HCK")
        e(f"s_cmp_lg_u32 {WAVE}, 13"); e(f"s_cbranch_scc1 {sk}")
        e(f"v_lshlrev_b32 v5, 3, {LANE}")
        e(f"s_lshl_b32 s10, {X}, 8"); e(f"s_add_u32 s10, s10, {WS_HELLO + 128}")
        e("s_getreg_b32 s11, hwreg(HW_REG_XCC_ID, 0, 4)")
        e("s_mov_b64 exec, 0x3ff")
        e(f"buffer_load_dwordx2 v[100:101], v5, {sr(WS)}, s10 offen sc1")
        e("s_waitcnt vmcnt(0)")
        e("v_xor_b32 v100, s11, v100"); e(f"v_xor_b32 v101, {TAG}, v101"); e("v_or_b32 v100, v100, v101")
        e("v_cmp_ne_u32 vcc, 0, v100")
        e("s_cmp_eq_u64 vcc, 0"); e("s_cselect_b32 s10, 1, 0")
        e("s_mov_b64 exec, 1")
        e(f"v_mov_b32 v100, s10"); e(f"v_mov_b32 v5, {XL_FLAG}"); e("ds_write_b32 v5, v100")
        exec_all()
        lab(sk)
    e("s_branch X_B5")
    lab("X_ML")
    e(f"v_and_b32 v5, 31, {LANE}"); e("v_mul_u32_u24 v5, 2176, v5")
    pollx([f"buffer_load_dwordx4 v[100:103], v6, {sr(WS)}, s9 offen sc1",
           f"buffer_load_dwordx4 v[96:99], v5, {sr(WS)}, s69 offen sc1"], [100, 96], 108, init=[None, 0xffffffff])
    e("ds_write2_b32 v118, v100, v101 offset1:1"); e("ds_write_b32 v118, v102 offset:8")
    e("v_mov_b32 v98, v96")
    e("s_nop 1"); row16_allreduce("v_max_f32", 98); e("s_nop 1"); cross16("v_max_f32", 98, 99)
    e("v_sub_f32 v96, v96, v98"); e("v_exp_f32 v96, v96"); e("s_nop 0")
    e("v_mul_f32 v97, v96, v97")
    e("s_nop 1"); row16_allreduce("v_add_f32", 97); e("s_nop 1"); cross16("v_add_f32", 97, 99)
    e("v_rcp_f32 v97, v97"); e("s_nop 0")
    e("v_mul_f32 v96, v96, v97")
    e("v_cvt_pk_bf16_f32 v97, v96, v96")
    e("v_and_b32 v98, 0xffff0000, v97")
    e("v_sub_f32 v96, v96, v98")
    e("v_cvt_pk_bf16_f32 v96, v96, v96")
    e(f"v_and_b32 v5, 31, {LANE}"); e("v_lshlrev_b32 v5, 1, v5"); e(f"v_add_u32 v5, {XL_W}, v5")
    set_exec64(0xffffffff)
    e("ds_write_b16 v5, v97"); e("ds_write_b16 v5, v96 offset:64")
    exec_all()
    lab("X_B5")
    barrier()
    stamp("x: E3 gathered", 17|128|256|2048)
    e(f"s_cmp_ge_u32 {WAVE}, 12"); e("s_cbranch_scc1 X_B5b")
    e(f"ds_read_b64_tr_b16 v[96:97], v16"); e(f"ds_read_b64_tr_b16 v[98:99], v16 offset:{4*CL_RS}")
    e("ds_read_b128 v[100:103], v17")
    e("s_waitcnt lgkmcnt(0)")
    mfma(120, 100, 96, "0")
    e("s_nop 7")
    e("v_add_f32 v120, v120, v121")
    e("v_cvt_pk_bf16_f32 v120, v120, v120")
    e("s_mov_b64 exec, 0xffff")
    e("ds_write_b16 v18, v120")
    exec_all()
    lab("X_B5b")
    barrier()
    stamp("x: after B5b", 2048)
    e(f"s_cmp_ge_u32 {WAVE}, 12"); e("s_cbranch_scc1 X_UPD")
    for ks in range(6): e(f"ds_read_b128 {vr(96+4*ks,4)}, v19 offset:{64*ks}")
    for ks in range(6):
        e(f"s_waitcnt lgkmcnt({5-ks})")
        mfma(120, 40 + 4 * ks, 96 + 4 * ks, "0" if ks == 0 else None)
    e("s_nop 7")
    def soff_e4():
        e(f"s_lshl_b32 s9, {X}, 2"); e(f"s_add_u32 s9, s9, {R}"); e("s_mul_i32 s9, s9, 3072")
        e(f"s_and_b32 s10, {H}, 3"); e("s_mul_i32 s10, s10, 768"); e("s_add_u32 s9, s9, s10"); e(f"s_add_u32 s9, s9, {WS_E4}")
    collect_store(120, XL_Q, soff_e4, st_local if OPT.get("local", 1) else st_global, "X_UPD")
    stamp("x: ctx published", 1|128|256|2048)
    e(f"s_cmp_ge_u32 {J}, 5"); e("s_cbranch_scc1 X_END")
    e(f"s_mul_i32 s66, {X}, 5"); e(f"s_add_u32 s66, s66, {J}")
    e(f"s_cmp_ge_u32 {WAVE}, 7"); e("s_cbranch_scc1 X_B9")
    e(f"s_cmp_eq_u32 {WAVE}, 6"); e("s_cbranch_scc1 X_FH")
    e(f"v_lshrrev_b32 v5, 3, {LANE}"); e("v_mul_u32_u24 v5, 5120, v5")
    e(f"v_and_b32 v6, 7, {LANE}"); e("v_lshl_add_u32 v5, v6, 4, v5")
    e(f"s_mul_i32 s9, {WAVE}, 40960"); e("s_lshl_b32 s10, s66, 7"); e("s_add_u32 s9, s9, s10")
    e(f"s_add_u32 s9, s9, {WS_E6}")
    poll([f"buffer_load_dwordx4 v[92:95], v5, {sr(WS)}, s9 offen sc1"], [93, 95], 108)
    e("v_mov_b32 v93, v94")
    e("s_nop 1")
    for i in range(2):
        e(f"v_add_f32_dpp v{92+i}, v{92+i}, v{92+i} row_ror:8 row_mask:0xf bank_mask:0xf")
    for i in range(2):
        cross16("v_add_f32", 92 + i, 96); cross32("v_add_f32", 92 + i, 96)
    e("v_lshlrev_b32 v6, 3, v6"); e(f"s_lshl_b32 s9, {WAVE}, 6"); e(f"s_add_u32 s9, s9, {XL_R2}")
    e("v_add_u32 v6, s9, v6")
    e("s_mov_b64 exec, 0xff")
    e("ds_write_b64 v6, v[92:93]")
    exec_all()
    e("s_branch X_B9")
    lab("X_FH")
    e(f"v_bfe_u32 v5, {LANE}, 2, 3"); e("v_mul_u32_u24 v5, 2560, v5")
    e(f"v_and_b32 v6, 3, {LANE}"); e("v_lshl_add_u32 v5, v6, 4, v5")
    e("s_lshl_b32 s9, s66, 6"); e(f"s_add_u32 s9, s9, {WS_E5}")
    e("v_lshlrev_b32 v7, 3, v6"); e("s_lshl_b32 s10, s66, 5")
    e(f"buffer_load_dwordx2 v[104:105], v7, {sr(SC_)}, s10 offen")
    set_exec64(0xffffffff)
    poll([f"buffer_load_dwordx4 v[92:95], v5, {sr(WS)}, s9 offen sc1"], [93, 95], 108)
    exec_all()
    e("v_lshlrev_b32 v96, 16, v92"); e("v_and_b32 v97, 0xffff0000, v92")
    e("v_lshlrev_b32 v98, 16, v94"); e("v_and_b32 v99, 0xffff0000, v94")
    e("s_nop 1")
    for sh in (4, 8):
        for i in range(4):
            e(f"v_add_f32_dpp v{96+i}, v{96+i}, v{96+i} row_ror:{sh} row_mask:0xf bank_mask:0xf")
    for i in range(4): cross16("v_add_f32", 96 + i, 100)
    e("v_lshlrev_b32 v100, 16, v104"); e("v_and_b32 v101, 0xffff0000, v104")
    e("v_lshlrev_b32 v102, 16, v105"); e("v_and_b32 v103, 0xffff0000, v105")
    for i in range(4): e(f"v_add_f32 v{96+i}, v{96+i}, v{100+i}")
    e("v_lshlrev_b32 v6, 4, v6"); e(f"v_add_u32 v6, {XL_H}, v6")
    e("s_mov_b64 exec, 0xf")
    e("ds_write_b128 v6, v[96:99]")
    exec_all()
    lab("X_B9")
    barrier()
    e(f"s_cmp_lg_u32 {WAVE}, 0"); e("s_cbranch_scc1 X_END")
    e(f"v_lshlrev_b32 v5, 3, {LANE}"); e(f"v_add_u32 v6, {XL_R2}, v5"); e(f"v_add_u32 v7, {XL_H}, v5")
    e("s_mov_b64 exec, 0xff")
    for w in range(6): e(f"ds_read_b64 {vr(92+2*w,2)}, v6 offset:{64*w}")
    e("ds_read_b64 v[116:117], v7")
    srd(SD, P_OUT, 1280)
    e("s_waitcnt lgkmcnt(0)")
    for w in range(1, 6):
        e(f"v_add_f32 v92, v92, v{92+2*w}"); e(f"v_add_f32 v93, v93, v{93+2*w}")
    e("v_add_f32 v92, v92, v116"); e("v_add_f32 v93, v93, v117")
    e("v_cvt_pk_bf16_f32 v92, v92, v93")
    e(f"v_lshlrev_b32 v5, 2, {LANE}"); e("s_lshl_b32 s9, s66, 5")
    e(f"buffer_store_dword v92, v5, {sr(SD)}, s9 offen")
    e("s_cmp_lg_u32 s66, 0"); e("s_cbranch_scc1 X_EP")
    e("s_mov_b64 exec, 1")
    e("v_mov_b32 v5, 0")
    e(f"buffer_store_dword {VTAG}, v5, {sr(WS)}, 0 offen sc1")
    lab("X_EP")
    exec_all()
    lab("X_END")
    stamp("x: end", 1|128|1024)
    stamp_flush(nstamp[0])
    e("s_endpgm")
    lab("X_LN")
    for i in range(5):
        e(f"buffer_load_dword v{16+i}, v5, {sr(SC_)}, 0 offen offset:{256*i}")
    e("s_barrier")
    e("s_waitcnt vmcnt(0)")
    for i in range(5):
        e(f"v_lshlrev_b32 v{21+2*i}, 16, v{16+i}")
        e(f"v_and_b32 v{22+2*i}, 0xffff0000, v{16+i}")
    e("v_add_f32 v31, v21, v22")
    for i in range(23, 31): e(f"v_add_f32 v31, v31, v{i}")
    wave_allreduce("v_add_f32", 31, 32)
    e(f"v_mul_f32 v31, {F(1.0/640.0)}, v31")
    for i in range(21, 31): e(f"v_sub_f32 v{i}, v{i}, v31")
    e("v_mul_f32 v33, v21, v21")
    for i in range(22, 31): e(f"v_fmac_f32 v33, v{i}, v{i}")
    wave_allreduce("v_add_f32", 33, 32)
    e(f"v_mov_b32 v32, {F(1e-5)}")
    e(f"v_fmac_f32 v32, {F(1.0/640.0)}, v33")
    e("v_rsq_f32 v32, v32"); e("s_nop 0")
    for i in range(21, 31): e(f"v_mul_f32 v{i}, v{i}, v32")
    for i in range(5): e(f"v_cvt_pk_bf16_f32 v{16+i}, v{21+2*i}, v{22+2*i}")
    e(f"v_add_u32 v5, {XL_XN}, v5")
    for i in range(5): e(f"ds_write_b32 v5, v{16+i} offset:{256*i}")
    e("s_branch X_B1")

CH_KB = 6272
CH_SZ = 8 * CH_KB
YL_C = 0
YL_QA = 2 * CH_SZ
YL_SP = YL_QA + 12416
YL_PF = YL_SP + 34816
YL_M = YL_PF + 4096
YL_R = YL_M + 64
YL_MG, YL_MU, YL_MD = 0, 40960, 81920
YL_H = 131072
YL_ST = YL_H + 2560
YL_G = YL_H + 2688
YL_HH = YL_H + 5376
assert YL_R + 3072 <= 163840
HG = "s7"

def y_program():
    nstamp[0] = 0
    lab("L_Y")
    e(f"s_sub_u32 {J}, {J}, 16")
    e(f"s_and_b32 {HG}, {J}, 3"); e(f"s_lshr_b32 {KC}, {J}, 2")
    e(f"v_bfe_u32 v5, {LANE}, 1, 2"); e("v_mul_u32_u24 v5, 1536, v5")
    e(f"v_lshrrev_b32 v6, 3, {LANE}"); e("v_lshl_add_u32 v5, v6, 5, v5")
    e(f"v_and_b32 v6, 1, {LANE}"); e("v_lshl_add_u32 v15, v6, 4, v5")
    e(f"s_lshl_b32 s9, {X}, 9"); e(f"s_lshl_b32 s10, {KC}, 7"); e("s_add_u32 s9, s9, s10")
    e(f"s_lshr_b32 s10, {WAVE}, 1"); e("s_lshl_b32 s11, s10, 2"); e("s_add_u32 s9, s9, s11")
    e("s_mul_i32 s66, s9, 1536")
    e(f"s_and_b32 s11, {WAVE}, 1"); e("s_mul_i32 s11, s11, 3"); e("s_lshl_b32 s14, s11, 8"); e("s_add_u32 s66, s66, s14")
    e(f"s_mul_i32 s67, s10, {CH_KB}"); e("s_lshl_b32 s14, s11, 10"); e("s_add_u32 s67, s67, s14")
    kernarg_ready()
    srd(SA, P_CKV, 6291456)
    stamp("y: start", 0xfffff)
    if OPT.get("ystop", 0) == 1: e("s_branch Y_END")
    if not OPT.get("earlytouch", 1): code_touch(120)
    tlb_warm(14)
    ynt = OPT["ynt"]
    def chunk_dma(ch):
        e(f"s_add_u32 s10, s67, {(ch % 2) * CH_SZ}"); e(f"s_add_u32 s11, s66, {ch * 32 * 1536}")
        for i in range(3):
            e("s_mov_b32 m0, s10"); e("s_add_u32 s10, s10, 1024")
            e(f"buffer_load_dwordx4 v15, {sr(SA)}, s11 offen{' nt' if ynt else ''} lds")
            e("s_add_u32 s11, s11, 256")
    chunk_dma(0); chunk_dma(1)
    e(f"v_lshlrev_b32 v5, 2, v0"); e(f"v_add_u32 v5, {YL_PF}, v5"); e("v_mov_b32 v6, 0"); e("ds_write_b32 v5, v6")
    e(f"s_and_b32 s68, {WAVE}, 3"); e(f"s_lshr_b32 s69, {WAVE}, 2")
    e(f"v_lshrrev_b32 v5, 2, {L15}")
    e(f"v_mul_u32_u24 v5, {CH_KB}, v5")
    e(f"v_and_b32 v6, 3, {L15}"); e("v_lshl_add_u32 v5, v6, 5, v5")
    e(f"v_lshrrev_b32 v6, 1, {G}"); e("v_lshl_add_u32 v5, v6, 7, v5")
    e(f"v_and_b32 v6, 1, {G}"); e("v_lshl_add_u32 v5, v6, 4, v5")
    e("s_mul_i32 s9, s69, 1536"); e("v_add_u32 v13, s9, v5")
    e(f"v_mul_u32_u24 v5, {CH_KB}, {G}"); e(f"v_lshl_add_u32 v5, {L15}, 3, v5")
    e(f"s_mul_i32 s9, {WAVE}, 384"); e("v_add_u32 v14, s9, v5")
    e(f"v_add_u32 v8, {CH_SZ}, v14"); e(f"v_add_u32 v11, {CH_SZ}, v13")
    for n in range(2):
        e(f"v_add_u32 v{6+n}, {1024*n}, v0")
        e(f"s_mov_b32 s9, 43691")
        e(f"v_mul_lo_u32 v{9+n}, v{6+n}, s9"); e(f"v_lshrrev_b32 v{9+n}, 23, v{9+n}")
        e(f"v_mul_u32_u24 v12, 192, v{9+n}"); e(f"v_sub_u32 v12, v{6+n}, v12")
        e(f"v_mul_u32_u24 v{9+n}, 1552, v{9+n}"); e(f"v_lshl_add_u32 v{9+n}, v12, 3, v{9+n}")
        e(f"v_add_u32 v{9+n}, {YL_QA}, v{9+n}")
        e(f"v_lshlrev_b32 v{6+n}, 4, v{6+n}")
    SF, PVF = 16, 64
    def read_frags(ch):
        sb, pb = ("v13", "v14") if ch % 2 == 0 else ("v11", "v8")
        sk = uid("YSR")
        e(f"s_cmp_lg_u32 s68, {ch}"); e(f"s_cbranch_scc1 {sk}")
        for a in range(2):
            for i in range(6): e(f"ds_read_b128 {vr(SF+4*(6*a+i),4)}, {sb} offset:{a*4*CH_KB+256*i}")
        e("s_waitcnt lgkmcnt(0)")
        lab(sk)
        for a in range(3):
            b = PVF + (ch * 3 + a) * 4
            e(f"ds_read_b64_tr_b16 {vr(b,2)}, {pb} offset:{a*128}")
            e(f"ds_read_b64_tr_b16 {vr(b+2,2)}, {pb} offset:{4*CH_KB+a*128}")
    e("s_waitcnt vmcnt(3)"); barrier(); read_frags(0); barrier(); chunk_dma(2)
    e("s_waitcnt vmcnt(3)"); barrier(); read_frags(1); barrier(); code_touch_range("Y_E2D", 2, 120, 15); chunk_dma(3)
    e("s_waitcnt vmcnt(3)"); barrier(); read_frags(2)
    e("s_waitcnt vmcnt(0)"); barrier(); read_frags(3)
    get_tag()
    hello_publish(120)
    stamp("y: C landed", 9|(1<<16))
    if OPT.get("ystop", 0) == 2:
        barrier(); stamp("y: all landed"); e("s_branch Y_END")
    srd(SA, P_WO, 7864320)
    e(f"v_lshrrev_b32 v5, 5, {LANE}"); e("v_lshlrev_b32 v5, 2, v5"); e(f"v_bfe_u32 v12, {LANE}, 1, 2"); e("v_add_u32 v5, v5, v12")
    e("v_mul_u32_u24 v5, 1280, v5")
    e(f"v_bfe_u32 v12, {LANE}, 3, 2"); e("v_lshl_add_u32 v5, v12, 5, v5")
    e(f"v_and_b32 v12, 1, {LANE}"); e("v_lshl_add_u32 v0, v12, 4, v5")
    e(f"s_mul_i32 s67, {X}, 768"); e(f"s_lshl_b32 s10, {WAVE}, 3"); e("s_add_u32 s67, s67, s10"); e("s_mul_i32 s67, s67, 1280")
    e(f"s_lshl_b32 s10, {J}, 7"); e("s_add_u32 s67, s67, s10")
    e(f"s_lshl_b32 s66, {WAVE}, 10")
    WOS = "%05d" % OPT.get("wos", 2100)
    assert sum(int(c) for c in WOS) == 3
    def wo_point(pt):
        for _ in range(int(WOS[pt])):
            if pt == 2 and OPT.get("wohi", 1): wo_batch_hi("v0")
            else: wo_batch("v0")
    def wo_batch_hi(vreg):
        sk = uid("YWH"); lo = uid("YWL")
        nt_ = ' nt' if OPT.get('wont', 1) else ''
        e(f"s_cmp_ge_u32 {J}, 10"); e(f"s_cbranch_scc1 {sk}")
        e(f"s_cmp_lt_u32 {WAVE}, 8"); e(f"s_cbranch_scc1 {lo}")
        for i in range(2):
            e("s_mov_b32 m0, s66"); e(f"s_sub_u32 s9, s66, {8*1024}"); e(f"s_sub_u32 s10, s67, {64*1280}")
            e(f"buffer_load_dwordx4 {vreg}, {sr(SA)}, s67 offen{nt_} lds")
            e("s_mov_b32 m0, s9"); e(f"s_add_u32 s66, s66, {16*1024}")
            e(f"buffer_load_dwordx4 {vreg}, {sr(SA)}, s10 offen{nt_} lds")
            e(f"s_add_u32 s67, s67, {128*1280}")
        e(f"s_branch {sk}")
        lab(lo)
        e(f"s_add_u32 s66, s66, {32*1024}"); e(f"s_add_u32 s67, s67, {256*1280}")
        lab(sk)
    def wo_batch(vreg, late=False):
        sk = uid("YWO")
        e(f"s_cmp_ge_u32 {J}, 10"); e(f"s_cbranch_scc1 {sk}")
        for i in range(2):
            e("s_mov_b32 m0, s66"); e(f"s_add_u32 s66, s66, {16*1024}")
            e(f"buffer_load_dwordx4 {vreg}, {sr(SA)}, s67 offen{' nt' if (OPT.get('wont', 1) and not OPT.get('wopf', 0)) else ''} lds")
            e(f"s_add_u32 s67, s67, {128*1280}")
        lab(sk)
    wo_point(0)
    e(f"s_mul_i32 s9, {HG}, 24576"); e(f"s_add_u32 s9, s9, {WS_QA}")
    e(f"s_cmp_ge_u32 {WAVE}, 8"); e("s_cbranch_scc1 Y_E2B")
    stamp("y: E2 poll start", 1<<16)
    poll([f"buffer_load_dwordx4 {vr(112+4*n,4)}, v{6+n}, {sr(WS)}, s9 offen sc1" for n in range(2)],
         [113, 115, 117, 119], 120)
    stamp("y: E2 poll end", 1<<16); stamp_val("E2 iters", "s13", 1<<16)
    for n in range(2):
        e(f"v_mov_b32 v{113+4*n}, v{114+4*n}")
        e(f"ds_write_b64 v{9+n}, {vr(112+4*n,2)}")
    e("s_branch Y_E2D")
    lab("Y_E2B")
    poll([f"buffer_load_dwordx4 v[112:115], v6, {sr(WS)}, s9 offen sc1"], [113, 115], 120)
    e("v_mov_b32 v113, v114"); e("ds_write_b64 v9, v[112:113]")
    lab("Y_E2D")
    stamp("y: qabs gathered", 9|128)
    barrier()
    stamp("y: after E2 barrier", 8|(1<<16))
    wo_point(1)
    e(f"v_and_b32 v5, 7, {L15}"); e("v_mul_u32_u24 v5, 1552, v5"); e(f"v_lshl_add_u32 v5, {G}, 4, v5")
    e(f"s_mul_i32 s9, s69, 384"); e(f"s_add_u32 s9, s9, {YL_QA}"); e("v_add_u32 v5, s9, v5")
    for i in range(4): e(f"ds_read_b128 {vr(112+4*i,4)}, v5 offset:{64*i}")
    e(f"v_mul_u32_u24 v6, 272, {G}"); e(f"v_lshl_add_u32 v6, {L15}, 4, v6")
    e("s_lshl_b32 s9, s69, 3"); e("s_lshl_b32 s10, s68, 1"); e("s_add_u32 s9, s9, s10"); e("s_mul_i32 s9, s9, 1088")
    e(f"s_add_u32 s9, s9, {YL_SP}"); e("v_add_u32 v6, s9, v6")
    for i in range(6):
        rem = min(6, i + 4) - (i + 1)
        e(f"s_waitcnt lgkmcnt({rem})")
        mfma(8, SF + 4 * i, 112 + 4 * (i % 4), "0" if i == 0 else None)
        mfma(12, SF + 4 * (6 + i), 112 + 4 * (i % 4), "0" if i == 0 else None)
        if i + 4 < 6:
            e(f"ds_read_b128 {vr(112+4*(i%4),4)}, v5 offset:{64*(i+4)}")
    e("s_nop 7")
    e("ds_write_b128 v6, v[8:11]"); e("ds_write_b128 v6, v[12:15] offset:1088")
    barrier()
    stamp("y: S partial done", 10)
    wo_point(2)
    e(f"s_cmp_ge_u32 {WAVE}, 8"); e("s_cbranch_scc1 Y_SMD")
    e(f"v_mul_u32_u24 v5, 1088, {G}")
    e(f"v_bfe_u32 v6, {LANE}, 2, 2"); e("v_mul_u32_u24 v7, 272, v6")
    e(f"v_and_b32 v12, 3, {LANE}"); e("v_lshlrev_b32 v8, 2, v12")
    e("v_add3_u32 v5, v5, v7, v8")
    e(f"s_lshl_b32 s9, {WAVE}, 4"); e(f"s_add_u32 s9, s9, {YL_SP}"); e("v_add_u32 v5, s9, v5")
    for kq in range(4):
        e(f"ds_read_b32 v{112+kq}, v5 offset:{8704*kq}"); e(f"ds_read_b32 v{116+kq}, v5 offset:{8704*kq+4352}")
    e(f"v_lshrrev_b32 v7, 5, {LANE}"); e("v_lshlrev_b32 v7, 10, v7")
    e("v_lshl_add_u32 v7, v6, 8, v7")
    e(f"v_bfe_u32 v8, {LANE}, 4, 1"); e("v_lshl_add_u32 v7, v8, 3, v7")
    e("v_lshl_add_u32 v7, v12, 1, v7")
    e(f"s_lshl_b32 s9, {WAVE}, 4"); e(f"s_add_u32 s9, s9, {YL_PF}"); e("v_add_u32 v7, s9, v7")
    e("s_waitcnt lgkmcnt(0)")
    e("v_add_f32 v112, v112, v113"); e("v_add_f32 v114, v114, v115"); e("v_add_f32 v116, v116, v117"); e("v_add_f32 v118, v118, v119")
    e("v_add_f32 v112, v112, v114"); e("v_add_f32 v114, v116, v118")
    e("v_max_f32 v116, v112, v114")
    wave_allreduce("v_max_f32", 116, 117)
    e("v_sub_f32 v112, v112, v116"); e("v_sub_f32 v114, v114, v116")
    e("v_exp_f32 v112, v112"); e("v_exp_f32 v114, v114"); e("s_nop 0")
    e("v_cvt_pk_bf16_f32 v112, v112, v114")
    e("ds_write_b16 v7, v112"); e("ds_write_b16_d16_hi v7, v112 offset:2048")
    e(f"s_lshl_b32 s9, {WAVE}, 2"); e(f"s_add_u32 s9, s9, {YL_M}"); e("v_mov_b32 v5, s9")
    e("s_mov_b64 exec, 1")
    e("ds_write_b32 v5, v116")
    exec_all()
    lab("Y_SMD")
    barrier()
    stamp("y: P ready", 10)
    wo_point(3)
    e(f"v_lshlrev_b32 v5, 4, {LANE}"); e(f"v_add_u32 v5, {YL_PF}, v5")
    for ks in range(4): e(f"ds_read_b128 {vr(112+4*ks,4)}, v5 offset:{1024*ks}")
    e(f"v_and_b32 v6, 7, {L15}"); e("v_mul_u32_u24 v6, 96, v6"); e(f"v_lshl_add_u32 v6, {G}, 3, v6")
    e(f"s_mul_i32 s9, {WAVE}, 768"); e(f"s_add_u32 s9, s9, {YL_SP}"); e("v_add_u32 v6, s9, v6")
    e(f"v_lshrrev_b32 v7, 3, {LANE}"); e("v_mul_u32_u24 v12, 96, v7"); e(f"v_and_b32 v5, 7, {LANE}"); e("v_mul_u32_u24 v8, 12, v5")
    e("v_add3_u32 v12, v12, v8, s9")
    e("v_mul_u32_u24 v7, 69632, v7"); e("v_lshl_add_u32 v5, v5, 4, v7")
    e(f"s_mul_i32 s9, {HG}, {8*69632}"); e(f"s_lshl_b32 s10, {X}, 2"); e(f"s_add_u32 s10, s10, {KC}")
    e("s_mul_i32 s11, s10, 2176"); e("s_add_u32 s9, s9, s11"); e(f"s_add_u32 s68, s9, {WS_E3 + 2048}")
    e(f"s_lshl_b32 s11, {WAVE}, 7"); e("s_add_u32 s9, s9, s11"); e(f"s_add_u32 s9, s9, {WS_E3}")
    if OPT.get("pvprio", 1):
        for q in range(3):
            sk = uid("PR")
            e(f"s_cmp_lg_u32 s69, {q}"); e(f"s_cbranch_scc1 {sk}"); e(f"s_setprio {3-q}"); lab(sk)
    for ks in range(4):
        e(f"s_waitcnt lgkmcnt({3-ks})")
        for a in range(3):
            mfma(16 + 4 * a, PVF + (ks * 3 + a) * 4, 112 + 4 * ks, "0" if ks == 0 else None)
    e(f"s_cmp_lg_u32 {WAVE}, 15"); e("s_cbranch_scc1 Y_NL")
    for i in range(4): e(f"v_mov_b32 v{32+i}, 0x3f803f80")
    e(f"v_and_b32 v41, 7, {L15}"); e("v_lshlrev_b32 v41, 2, v41"); e(f"v_add_u32 v41, {YL_M}, v41")
    e("ds_read_b32 v40, v41")
    for ks in range(4): mfma(36, 32, 112 + 4 * ks, "0" if ks == 0 else None)
    lab("Y_NL")
    e("s_nop 7")
    stamp("y: PV mfma done", 8)
    for a in range(3):
        e(f"v_cvt_pk_bf16_f32 v{44+2*a}, v{16+4*a}, v{17+4*a}"); e(f"v_cvt_pk_bf16_f32 v{45+2*a}, v{18+4*a}, v{19+4*a}")
    set_exec64(0x00ff00ff00ff00ff)
    for a in range(3): e(f"ds_write_b64 v6, {vr(44+2*a,2)} offset:{32*a}")
    exec_all()
    e("s_waitcnt lgkmcnt(0)")
    e("ds_read2_b32 v[52:53], v12 offset1:1"); e("ds_read_b32 v54, v12 offset:8")
    e("s_waitcnt lgkmcnt(0)")
    e("v_bitop3_b32 v55, v52, v53, v54 bitop3:0x96"); e(f"v_xor_b32 v55, {VTAG}, v55")
    e(f"buffer_store_dwordx4 v[52:55], v5, {sr(WS)}, s9 offen{SCG}")
    e(f"s_cmp_lg_u32 {WAVE}, 15"); e("s_cbranch_scc1 Y_P3D")
    e(f"s_mov_b32 s9, 69632"); e(f"v_mul_lo_u32 v5, {L15}, s9"); e("s_mov_b32 s9, s68")
    e("s_waitcnt lgkmcnt(0)")
    e("v_mov_b32 v56, v40"); e("v_mov_b32 v57, v36"); e("v_mov_b32 v58, 0"); e("v_bitop3_b32 v59, v56, v57, v4 bitop3:0x96")
    e("s_mov_b64 exec, 0xff")
    e(f"buffer_store_dwordx4 v[56:59], v5, {sr(WS)}, s9 offen{SCG}")
    exec_all()
    lab("Y_P3D")
    stamp("y: ctxlat published", 9|16|128|1024)
    if OPT["stamps"] & 16:
        e("s_waitcnt vmcnt(0)"); stamp("y: E3 stores complete", 16); barrier(); stamp("y: all waves stores complete", 16)
    if OPT.get("ystop", 0) == 3: e("s_branch Y_END")
    e(f"s_cmp_ge_u32 {J}, 10"); e("s_cbranch_scc1 Y_MLP")
    wo_point(4)
    e("s_waitcnt vmcnt(0)")
    code_touch_range("Y_B5", 1, 120, 15)
    stamp("y: wo landed", 1|256)
    barrier()
    e(f"s_cmp_ge_u32 {WAVE}, 12"); e("s_cbranch_scc1 Y_B5")
    e(f"v_lshlrev_b32 v5, 10, {G}"); e(f"v_lshl_add_u32 v5, {L15}, 3, v5")
    e(f"s_lshl_b32 s9, {WAVE}, 13"); e("v_add_u32 v5, s9, v5")
    for ksl in range(2):
        for t in range(4):
            b = 64 + (ksl * 4 + t) * 4
            e(f"ds_read_b64_tr_b16 {vr(b,2)}, v5 offset:{ksl*4096+t*128}")
            e(f"ds_read_b64_tr_b16 {vr(b+2,2)}, v5 offset:{ksl*4096+512+t*128}")
        if ksl == 0: e("s_waitcnt lgkmcnt(0)")
    e(f"v_lshlrev_b32 v5, 4, {LANE}")
    e(f"s_mul_i32 s9, {X}, 12288"); e(f"s_lshl_b32 s10, {WAVE}, 10"); e("s_add_u32 s9, s9, s10")
    e(f"s_add_u32 s9, s9, {WS_E4}")
    e(f"s_mul_i32 s10, s64, 1552"); e("s_lshl_b32 s11, s65, 9"); e("s_add_u32 s10, s10, s11"); e(f"s_add_u32 s10, s10, {YL_QA}")
    e(f"v_lshl_add_u32 v6, {LANE}, 3, s10")
    e(f"v_and_b32 v7, 3, {LANE}"); e("v_mul_u32_u24 v7, 1552, v7"); e(f"v_lshl_add_u32 v7, {G}, 4, v7")
    e(f"s_lshl_b32 s10, {WAVE}, 7"); e(f"s_add_u32 s10, s10, {YL_QA}"); e("v_add_u32 v7, s10, v7")
    e(f"v_lshlrev_b32 v9, 2, {LANE}"); e(f"v_add_u32 v9, {YL_R}, v9")
    e(f"s_lshl_b32 s10, {WAVE}, 8"); e("v_add_u32 v8, s10, v9")
    e(f"v_cmp_eq_u32 s[66:67], 1, {G}"); e(f"v_cmp_eq_u32 s[68:69], 2, {G}"); e(f"v_cmp_eq_u32 s[42:43], 3, {G}")
    stamp("y: E4 poll start", 256)
    poll([f"buffer_load_dwordx4 v[96:99], v5, {sr(WS)}, s9 offen sc1"], [97, 99], 112)
    stamp("y: ctx gathered", 1|128|256|2048)
    stamp_val("E4 iters", "s13", 256)
    e("v_mov_b32 v97, v98")
    e("ds_write_b64 v6, v[96:97]")
    lab("Y_B5")
    barrier()
    stamp("y: after B5", 2048)
    e(f"s_cmp_ge_u32 {WAVE}, 12"); e("s_cbranch_scc1 Y_B6")
    e("ds_read_b128 v[96:99], v7"); e("ds_read_b128 v[104:107], v7 offset:64")
    e("s_waitcnt lgkmcnt(1)")
    for t in range(4): mfma(16 + 4 * t, 96, 64 + 4 * t, "0")
    e("s_waitcnt lgkmcnt(0)")
    for t in range(4): mfma(16 + 4 * t, 104, 64 + 16 + 4 * t)
    e("s_nop 4")
    for t in range(4):
        b = 16 + 4 * t
        e(f"v_add_f32 v{b}, v{b}, v{b+1}"); e(f"v_add_f32 v{b+2}, v{b+2}, v{b+3}")
    for t in range(4):
        b = 16 + 4 * t
        e(f"v_add_f32 v{b}, v{b}, v{b+2}")
    e("v_cndmask_b32 v16, v16, v20, s[66:67]"); e("v_cndmask_b32 v16, v16, v24, s[68:69]"); e("v_cndmask_b32 v16, v16, v28, s[42:43]")
    e("ds_write_b32 v8, v16")
    lab("Y_B6")
    stamp("y: P5 mfma+red done", 2048)
    barrier()
    stamp("y: after B6", 2048)
    e(f"s_cmp_lg_u32 {WAVE}, 0"); e("s_cbranch_scc1 Y_END")
    for i in range(6): e(f"ds_read2st64_b32 {vr(16+2*i,2)}, v9 offset0:{2*i} offset1:{2*i+1}")
    e(f"s_mul_i32 s9, {X}, 2560"); e(f"s_lshl_b32 s10, {J}, 8"); e("s_add_u32 s9, s9, s10")
    e(f"s_add_u32 s9, s9, {WS_E5}")
    e(f"v_lshlrev_b32 v5, 2, {LANE}")
    e("s_waitcnt lgkmcnt(0)")
    for i in range(6): e(f"v_add_f32 v{16+2*i}, v{16+2*i}, v{17+2*i}")
    e("v_add_f32 v16, v16, v18"); e("v_add_f32 v20, v20, v22"); e("v_add_f32 v24, v24, v26")
    e("v_add_f32 v16, v16, v20"); e("v_add_f32 v16, v16, v24")
    e("s_nop 1")
    e("v_mov_b32_dpp v17, v16 quad_perm:[1,1,3,3] row_mask:0xf bank_mask:0xf")
    e("v_cvt_pk_bf16_f32 v16, v16, v17"); e(f"v_mov_b32 v17, {VTAG}")
    set_exec64(0x5555555555555555)
    e(f"buffer_store_dwordx2 v[16:17], v5, {sr(WS)}, s9 offen{SCG}")
    exec_all()
    e("s_branch Y_END")
    lab("Y_MLP")
    e(f"s_mul_i32 s66, {X}, 6"); e(f"s_add_u32 s66, s66, {J}"); e("s_sub_u32 s66, s66, 10")
    srd(SA, P_WG, 1966080); srd(SB, P_WU, 1966080); srd(SC_, P_WD, 1966080); srd(SD, P_X, 1280)
    e(f"v_lshrrev_b32 v5, 4, {LANE}"); e("v_lshlrev_b32 v5, 2, v5"); e(f"v_bfe_u32 v6, {LANE}, 1, 2"); e("v_add_u32 v5, v5, v6")
    e("v_mul_u32_u24 v5, 3072, v5")
    e(f"v_bfe_u32 v6, {LANE}, 3, 1"); e("v_lshl_add_u32 v5, v6, 5, v5")
    e(f"v_and_b32 v6, 1, {LANE}"); e("v_lshl_add_u32 v15, v6, 4, v5")
    e(f"v_bfe_u32 v5, {LANE}, 1, 2"); e("v_mul_u32_u24 v5, 1280, v5")
    e(f"v_lshrrev_b32 v6, 3, {LANE}"); e("v_lshl_add_u32 v5, v6, 5, v5")
    e(f"v_and_b32 v6, 1, {LANE}"); e("v_lshl_add_u32 v14, v6, 4, v5")
    barrier()
    e(f"s_and_b32 s9, {WAVE}, 7")
    e(f"s_mul_i32 s11, s9, {5*16*3072}"); e("s_lshl_b32 s10, s66, 6"); e("s_add_u32 s11, s11, s10")
    e("s_mul_i32 s10, s9, 5120")
    e(f"s_cmp_ge_u32 {WAVE}, 8"); e("s_cbranch_scc1 Y_MU")
    dma_loop(15, SA, 10, 11, 5, 1024, 16 * 3072, OPT.get("mnt", 1))
    e("s_lshl_b32 s11, s66, 5"); e(f"s_lshl_b32 s10, {WAVE}, 2"); e("s_add_u32 s11, s11, s10"); e("s_mul_i32 s11, s11, 1280")
    e(f"s_mul_i32 s10, {WAVE}, 5120"); e(f"s_add_u32 s10, s10, {YL_MD}")
    dma_loop(14, SC_, 10, 11, 5, 1024, 256, OPT["ynt"])
    e("s_branch Y_MW")
    lab("Y_MU")
    e(f"s_add_u32 s10, s10, {YL_MU}")
    dma_loop(15, SB, 10, 11, 5, 1024, 16 * 3072, OPT.get("mnt", 1))
    lab("Y_MW")
    e(f"v_and_b32 v5, 31, {LANE}"); e("v_lshlrev_b32 v5, 3, v5"); e(f"s_lshl_b32 s9, {WAVE}, 8")
    e(f"s_cmp_ge_u32 {WAVE}, 5"); e("s_cbranch_scc1 Y_NX")
    e(f"buffer_load_dwordx2 v[110:111], v5, {sr(SD)}, s9 offen")
    lab("Y_NX")
    e("s_waitcnt vmcnt(0)")
    code_touch_range("Y_MPD", 2, 120, 15)
    stamp("y: mlp landed", 1|1024)
    barrier()
    if OPT.get("ystop", 0) == 4: e("s_branch Y_END")
    e(f"s_cmp_ge_u32 {WAVE}, 10"); e("s_cbranch_scc1 Y_MPD")
    e(f"v_lshlrev_b32 v5, 9, {G}"); e(f"v_lshl_add_u32 v5, {L15}, 3, v5")
    e(f"s_lshl_b32 s9, {WAVE}, 12"); e("v_add_u32 v5, s9, v5")
    for mat, base in ((0, YL_MG), (1, YL_MU)):
        for ksl in range(2):
            for t in range(2):
                b = 16 + mat * 16 + (ksl * 2 + t) * 4
                e(f"ds_read_b64_tr_b16 {vr(b,2)}, v5 offset:{base+ksl*2048+t*128}")
                e(f"ds_read_b64_tr_b16 {vr(b+2,2)}, v5 offset:{base+ksl*2048+256+t*128}")
        e("s_waitcnt lgkmcnt(0)")
    e(f"v_mul_u32_u24 v5, 10240, {G}"); e(f"v_lshl_add_u32 v5, {L15}, 3, v5")
    e(f"s_lshl_b32 s9, {WAVE}, 9"); e(f"s_add_u32 s9, s9, {YL_MD}"); e("v_add_u32 v5, s9, v5")
    for a in range(4):
        e(f"ds_read_b64_tr_b16 {vr(48+4*a,2)}, v5 offset:{128*a}")
        e(f"ds_read_b64_tr_b16 {vr(50+4*a,2)}, v5 offset:{5120+128*a}")
    lab("Y_MPD")
    e(f"v_lshlrev_b32 v9, 2, {LANE}"); e(f"v_add_u32 v9, {YL_G}, v9")
    e(f"s_lshl_b32 s9, {WAVE}, 8"); e("v_add_u32 v8, s9, v9")
    e(f"v_and_b32 v12, 31, {LANE}")
    e(f"s_lshl_b32 s9, {WAVE}, 6"); e(f"s_add_u32 s9, s9, {YL_HH}")
    e("v_lshl_add_u32 v10, v12, 1, s9"); e(f"v_lshl_add_u32 v11, {G}, 4, s9")
    e(f"v_lshlrev_b32 v12, 3, {LANE}")
    e(f"v_mov_b32 v13, {YL_ST}")
    e(f"v_lshlrev_b32 v14, 5, {G}"); e(f"s_lshl_b32 s9, {WAVE}, 8"); e(f"s_add_u32 s9, s9, {YL_H}"); e("v_add_u32 v14, s9, v14")
    e("s_mul_i32 s65, s66, 5120"); e(f"s_lshl_b32 s10, {WAVE}, 9"); e("s_add_u32 s65, s65, s10"); e(f"s_add_u32 s65, s65, {WS_E6}")
    e(f"v_cmp_eq_u32 s[66:67], 1, {G}"); e(f"v_cmp_eq_u32 s[68:69], 2, {G}"); e(f"v_cmp_eq_u32 s[42:43], 3, {G}")
    e(f"s_cmp_ge_u32 {WAVE}, 5"); e("s_cbranch_scc1 Y_MB6")
    e(f"v_and_b32 v6, 31, {LANE}"); e(f"v_lshrrev_b32 v5, 5, {LANE}"); e("v_mul_u32_u24 v5, 10240, v5"); e("v_lshl_add_u32 v5, v6, 4, v5")
    e(f"s_lshl_b32 s9, {WAVE}, 9"); e(f"s_add_u32 s9, s9, {WS_E5}")
    e("s_add_u32 s10, s9, 5120")
    stamp("y: E5 poll start", 4096)
    poll([f"buffer_load_dwordx4 {vr(80+4*i,4)}, v5, {sr(WS)}, {'s9' if i < 2 else 's10'} offen offset:{2560*(i%2)} sc1" for i in range(4)],
         [81, 83, 85, 87, 89, 91, 93, 95], 96)
    stamp("y: E5 poll end", 4096); stamp_val("E5 iters", "s13", 4096)
    for i in range(4):
        b = 80 + 4 * i
        if i == 0:
            e(f"v_lshlrev_b32 v100, 16, v{b}"); e(f"v_and_b32 v101, 0xffff0000, v{b}")
            e(f"v_lshlrev_b32 v102, 16, v{b+2}"); e(f"v_and_b32 v103, 0xffff0000, v{b+2}")
        else:
            e(f"v_lshlrev_b32 v104, 16, v{b}"); e(f"v_and_b32 v105, 0xffff0000, v{b}")
            e(f"v_lshlrev_b32 v106, 16, v{b+2}"); e(f"v_and_b32 v107, 0xffff0000, v{b+2}")
            for k in range(4): e(f"v_add_f32 v{100+k}, v{100+k}, v{104+k}")
    for k in range(4): e(f"v_mov_b32 v{104+k}, v{100+k}")
    e("s_nop 1")
    for k in range(4): e(f"v_permlane32_swap_b32 v{100+k}, v{104+k}")
    e(f"v_lshlrev_b32 v80, 16, v110"); e("v_and_b32 v81, 0xffff0000, v110"); e("v_lshlrev_b32 v82, 16, v111"); e("v_and_b32 v83, 0xffff0000, v111")
    for k in range(4): e(f"v_add_f32 v{100+k}, v{100+k}, v{104+k}")
    for k in range(4): e(f"v_add_f32 v{100+k}, v{100+k}, v{80+k}")
    e("v_lshlrev_b32 v5, 4, v6"); e(f"s_lshl_b32 s9, {WAVE}, 9"); e(f"s_add_u32 s9, s9, {YL_H}"); e("v_add_u32 v5, s9, v5")
    set_exec64(0xffffffff)
    e("ds_write_b128 v5, v[100:103]")
    exec_all()
    e("v_add_f32 v104, v100, v101"); e("v_add_f32 v106, v102, v103"); e("v_mul_f32 v105, v100, v100")
    e("v_add_f32 v104, v104, v106"); e("v_fmac_f32 v105, v101, v101"); e("v_fmac_f32 v105, v102, v102"); e("v_fmac_f32 v105, v103, v103")
    e("s_nop 1")
    row16_allreduce("v_add_f32", 104, 2)
    e("s_nop 1")
    for i in range(2): cross16("v_add_f32", 104 + i, 106)
    e(f"s_lshl_b32 s9, {WAVE}, 3"); e(f"s_add_u32 s9, s9, {YL_ST}"); e("v_mov_b32 v5, s9")
    e("s_mov_b64 exec, 1")
    e("ds_write_b64 v5, v[104:105]")
    exec_all()
    lab("Y_MB6")
    stamp("y: h gathered", 65|128|1024|4096)
    barrier()
    stamp("y: after MB6", 64)
    e(f"s_cmp_ge_u32 {WAVE}, 10"); e("s_cbranch_scc1 Y_MB7")
    e("ds_read_b128 v[80:83], v13"); e("ds_read_b128 v[84:87], v13 offset:16"); e("ds_read_b64 v[88:89], v13 offset:32")
    for ksl in range(2):
        e(f"ds_read_b128 {vr(92+8*ksl,4)}, v14 offset:{128*ksl}")
        e(f"ds_read_b128 {vr(96+8*ksl,4)}, v14 offset:{128*ksl+16}")
    e("s_waitcnt lgkmcnt(4)")
    for a, b in ((82, 83), (84, 85), (86, 87), (88, 89)):
        e(f"v_add_f32 v80, v80, v{a}"); e(f"v_add_f32 v81, v81, v{b}")
    e(f"v_mul_f32 v80, {F(1.0/640.0)}, v80")
    e(f"v_mul_f32 v81, {F(1.0/640.0)}, v81")
    e("v_fma_f32 v81, -v80, v80, v81")
    e("v_max_f32 v81, 0, v81")
    e(f"v_add_f32 v81, {F(1e-5)}, v81")
    e("v_rsq_f32 v81, v81"); e("s_nop 0")
    e("v_mul_f32 v80, v80, v81")
    e("s_waitcnt lgkmcnt(0)")
    for i in range(16): e(f"v_fma_f32 v{92+i}, v{92+i}, v81, -v80")
    for ksl in range(2):
        for i in range(4): e(f"v_cvt_pk_bf16_f32 v{108+4*ksl+i}, v{92+8*ksl+2*i}, v{93+8*ksl+2*i}")
    e("s_nop 1")
    for ksl in range(2):
        for mat in range(2):
            for t in range(2):
                mfma(64 + 8 * mat + 4 * t, 108 + 4 * ksl, 16 + mat * 16 + (ksl * 2 + t) * 4, "0" if ksl == 0 else None)
    e("s_nop 5")
    e("v_cndmask_b32 v64, v64, v68, s[66:67]"); e("v_cndmask_b32 v64, v64, v72, s[68:69]"); e("v_cndmask_b32 v64, v64, v76, s[42:43]")
    e("ds_write_b32 v8, v64")
    lab("Y_MB7")
    stamp("y: P6 done", 64)
    barrier()
    stamp("y: after MB7", 64)
    e(f"s_cmp_ge_u32 {WAVE}, 10"); e("s_cbranch_scc1 Y_END")
    for i in range(5): e(f"ds_read2st64_b32 {vr(80+2*i,2)}, v9 offset0:{2*i} offset1:{2*i+1}")
    e("s_waitcnt lgkmcnt(0)")
    for i in range(5): e(f"v_add_f32 v{80+2*i}, v{80+2*i}, v{81+2*i}")
    e("v_add_f32 v80, v80, v82"); e("v_add_f32 v84, v84, v86"); e("v_add_f32 v80, v80, v88"); e("v_add_f32 v80, v80, v84")
    e("v_mov_b32 v88, v80"); e("s_nop 1")
    e("v_permlane32_swap_b32 v80, v88")
    e("s_nop 1")
    e(f"v_mul_f32 v80, {F(-math.log2(math.e))}, v80"); e("v_exp_f32 v80, v80"); e("s_nop 0")
    e("v_add_f32 v80, 1.0, v80"); e("v_rcp_f32 v80, v80"); e("s_nop 0")
    e("v_mul_f32 v80, v80, v88")
    e("v_cvt_pk_bf16_f32 v80, v80, v80")
    set_exec64(0xffffffff)
    e("ds_write_b16 v10, v80")
    exec_all()
    e("s_waitcnt lgkmcnt(0)")
    e("ds_read_b128 v[80:83], v11")
    e("s_waitcnt lgkmcnt(0)")
    for a in range(4): mfma(84 + 4 * a, 80, 48 + 4 * a, "0")
    e("s_nop 5")
    e("v_cndmask_b32 v84, v84, v88, s[66:67]"); e("v_cndmask_b32 v84, v84, v92, s[68:69]"); e("v_cndmask_b32 v84, v84, v96, s[42:43]")
    e(f"v_mov_b32 v85, {VTAG}")
    e(f"buffer_store_dwordx2 v[84:85], v12, {sr(WS)}, s65 offen{SCG}")
    lab("Y_END")
    stamp("y: end", 65|128|1024|2048|4096)
    stamp_flush(nstamp[0])
    e("s_endpgm")

hdr = f"""; Kernarg layout (104 bytes): d_in[0..9], d_out, d_debug, d_ws
; @launch grid=(256,1,1) block=(1024,1,1) lds=163840
.amdgcn_target "amdgcn-amd-amdhsa--gfx950"
.text
.globl {NAME}_kernel
.p2align 8
.type {NAME}_kernel,@function
{NAME}_kernel:
"""
prologue()
x_program()
y_program()
lab("L_END")
e("s_endpgm")
ftr = f""".section .rodata,"a"
.p2align 6
.amdhsa_kernel {NAME}_kernel
  .amdhsa_next_free_vgpr 128
  .amdhsa_next_free_sgpr 102
  .amdhsa_accum_offset 128
  .amdhsa_group_segment_fixed_size 0
  .amdhsa_kernarg_size 104
  .amdhsa_user_sgpr_count 2
  .amdhsa_user_sgpr_kernarg_segment_ptr 1
  .amdhsa_system_sgpr_workgroup_id_x 1
.end_amdhsa_kernel
"""
open(sys.argv[1], "w").write(hdr + "\n".join(L) + "\n" + ftr)
```

```python
import sys, math, struct
def F(x): return "0x%08x" % struct.unpack("<I", struct.pack("<f", x))[0]
NAME = "sequential_preLN__compressed_kv_cla__glu_gated_glu__decode"

OPT = dict(stamps=0, ynt=1, xnt=1, spin=1 << 16, cpv_early=1, prefetch_code=1)
for a in sys.argv[2:]:
    k, v = a.split("="); OPT[k] = int(v)

L = []
def e(s): L.append("    " + s)
def lab(s): L.append(s + ":")
def cm(s): L.append("    ; " + s)
_uid = [0]
def uid(p):
    _uid[0] += 1
    return f"{p}_{_uid[0]}"

WS_EPOCH = 0
WS_HELLO = 0x1000
WS_E1 = 0x10000
WS_QA = 0x40000
WS_ML = 0x60000
WS_E4 = 0x70000
WS_E5 = 0x90000
WS_E6 = 0x100000
WS_ST = 0x180000
WS_E3 = 0x200000
WS_E1L = 0x600000
WS_SIZE = 0x700000

WAVE, X, J, TAG, H, R = "s3", "s4", "s5", "s6", "s7", "s8"
HH, KC = "s7", "s8"
P_X, P_CKV, P_WQ, P_WUK, P_WUV, P_WO, P_WG, P_WU, P_WD, P_OUT, P_WS = 16, 18, 20, 22, 24, 26, 30, 32, 34, 36, 40
WS, SA, SB, SC_, SD = 44, 48, 52, 56, 60
def sr(b, n=4): return f"s[{b}:{b+n-1}]"
def vr(b, n): return f"v[{b}:{b+n-1}]" if n > 1 else f"v{b}"
STAMP0 = 72
LANE, G, L15, VTAG = "v1", "v2", "v3", "v4"

def srd(b, ptr, size):
    e(f"s_mov_b32 s{b}, s{ptr}")
    e(f"s_mov_b32 s{b+1}, s{ptr+1}")
    e(f"s_mov_b32 s{b+2}, {size}")
    e(f"s_mov_b32 s{b+3}, 0x00020000")

nstamp = [0]
def stamp(name, grp=1):
    if not (OPT["stamps"] & grp): return
    i = nstamp[0]; nstamp[0] += 1
    if OPT.get("pmask", 1) and i >= 6: return
    cm(f"stamp {i}: {name}")
    sk = uid("STK")
    e(f"s_cmp_lg_u32 {WAVE}, {OPT.get('stampwave',0)}"); e(f"s_cbranch_scc1 {sk}")
    if i == 0:
        e("s_memrealtime s[98:99]")
    e(f"s_memtime s[{STAMP0+2*i}:{STAMP0+2*i+1}]")
    e("s_waitcnt lgkmcnt(0)")
    lab(sk)
def stamp_val(name, sreg, grp=1):
    if not (OPT["stamps"] & grp): return
    i = nstamp[0]; nstamp[0] += 1
    if OPT.get("pmask", 1) and i >= 6: return
    cm(f"stamp {i}: VALUE {name}")
    e(f"s_mov_b32 s{STAMP0+2*i}, {sreg}"); e(f"s_mov_b32 s{STAMP0+2*i+1}, 0x7fffffff")
def stamp_flush(n):
    if not OPT["stamps"]: return
    skip = uid("STF")
    e(f"s_cmp_lg_u32 {WAVE}, {OPT.get('stampwave',0)}"); e(f"s_cbranch_scc1 {skip}")
    e("s_mov_b64 exec, 1")
    e("s_lshl_b32 s9, s2, 8"); e(f"s_add_u32 s9, s9, {WS_ST}")
    e("v_mov_b32 v5, 0")
    if OPT.get("pmask", 1): n = min(n, 6)
    for i in range(n):
        e(f"v_mov_b32 v6, s{STAMP0+2*i}"); e(f"v_mov_b32 v7, s{STAMP0+2*i+1}")
        e(f"buffer_store_dwordx2 v[6:7], v5, {sr(WS)}, s9 offen offset:{8*i}")
        e("s_nop 1")
    e("v_mov_b32 v6, s98"); e("v_mov_b32 v7, s99")
    e(f"buffer_store_dwordx2 v[6:7], v5, {sr(WS)}, s9 offen offset:248")
    e("s_nop 1")
    e("v_mov_b32 v6, s96"); e("v_mov_b32 v7, s97")
    e(f"buffer_store_dwordx2 v[6:7], v5, {sr(WS)}, s9 offen offset:240")
    e("s_memrealtime s[96:97]"); e("s_waitcnt lgkmcnt(0)")
    e("v_mov_b32 v6, s96"); e("v_mov_b32 v7, s97")
    e(f"buffer_store_dwordx2 v[6:7], v5, {sr(WS)}, s9 offen offset:232")
    e("s_mov_b64 exec, -1")
    lab(skip)

def barrier():
    e("s_waitcnt lgkmcnt(0)")
    e("s_barrier")

def divmagic(T):
    return {12: (43, 9), 6: (43, 8), 3: (86, 8), 1: (1, 0)}[T]

def dma_pattern(vd, T, S, sp, t0, t1):
    M, sh = divmagic(T)
    e(f"v_lshrrev_b32 v{t0}, 3, {LANE}")
    if sp is not None:
        e(f"s_lshl_b32 s9, {sp}, 3")
        e(f"v_add_u32 v{t0}, s9, v{t0}")
    if T == 1:
        e(f"v_mov_b32 v{t1}, v{t0}")
        e(f"v_mov_b32 v{t0}, 0")
    else:
        e(f"v_mul_u32_u24 v{t1}, {M}, v{t0}")
        e(f"v_lshrrev_b32 v{t1}, {sh}, v{t1}")
        e(f"v_mul_u32_u24 v{vd}, {T}, v{t1}")
        e(f"v_sub_u32 v{t0}, v{t0}, v{vd}")
    e(f"v_lshlrev_b32 v{t1}, 2, v{t1}")
    e(f"v_bfe_u32 v{vd}, {LANE}, 1, 2")
    e(f"v_add_u32 v{t1}, v{t1}, v{vd}")
    e(f"s_mov_b32 s9, {S}")
    e(f"v_mul_lo_u32 v{t1}, v{t1}, s9")
    e(f"v_lshlrev_b32 v{t0}, 5, v{t0}")
    e(f"v_and_b32 v{vd}, 1, {LANE}")
    e(f"v_lshlrev_b32 v{vd}, 4, v{vd}")
    e(f"v_add3_u32 v{vd}, v{vd}, v{t0}, v{t1}")

def dma_loop(vd, srdb, s_m0, s_off, n, step_m, step_s, nt):
    lp = uid("DMA")
    e(f"s_mov_b32 s12, {n}")
    lab(lp)
    e(f"s_mov_b32 m0, s{s_m0}")
    e(f"s_add_u32 s{s_m0}, s{s_m0}, {step_m}")
    e(f"buffer_load_dwordx4 v{vd}, {sr(srdb)}, s{s_off} offen{' nt' if nt else ''} lds")
    e(f"s_add_u32 s{s_off}, s{s_off}, {step_s}")
    e("s_sub_u32 s12, s12, 1")
    e("s_cmp_lg_u32 s12, 0")
    e(f"s_cbranch_scc1 {lp}")

def row16_allreduce(op, v, nregs=1):
    for sh in (8, 4, 2, 1):
        if nregs < 3: e("s_nop 1")
        for i in range(nregs):
            e(f"{op}_dpp v{v+i}, v{v+i}, v{v+i} row_ror:{sh} row_mask:0xf bank_mask:0xf")
def cross16(op, v, t):
    e(f"v_mov_b32 v{t}, v{v}"); e("s_nop 1")
    e(f"v_permlane16_swap_b32 v{v}, v{t}"); e("s_nop 1")
    e(f"{op} v{v}, v{v}, v{t}")
def cross32(op, v, t):
    e(f"v_mov_b32 v{t}, v{v}"); e("s_nop 1")
    e(f"v_permlane32_swap_b32 v{v}, v{t}"); e("s_nop 1")
    e(f"{op} v{v}, v{v}, v{t}")
def wave_allreduce(op, v, t):
    e("s_nop 1")
    row16_allreduce(op, v)
    e("s_nop 1")
    cross16(op, v, t)
    cross32(op, v, t)

MASK0 = 84
def _poll_generic(loads, checks, vt, init=None):
    n = len(loads)
    lp = uid("POLL"); dn = uid("PDONE")
    masked = OPT.get("pmask", 1) and n <= 8
    e("s_mov_b32 s13, 0")
    if masked:
        e("s_mov_b64 s[100:101], exec")
        for i in range(n):
            if init and init[i] is not None:
                e(f"s_mov_b32 s{MASK0+2*i}, {init[i] & 0xffffffff:#x}"); e(f"s_mov_b32 s{MASK0+2*i+1}, {init[i] >> 32:#x}")
            else: e(f"s_mov_b64 s[{MASK0+2*i}:{MASK0+2*i+1}], exec")
    lab(lp)
    for i, s_ in enumerate(loads):
        if masked:
            sk = uid("PSK")
            e(f"s_mov_b64 exec, s[{MASK0+2*i}:{MASK0+2*i+1}]")
            if n > 1: e(f"s_cbranch_execz {sk}")
            e(s_)
            if n > 1: lab(sk)
        else: e(s_)
    e("s_waitcnt vmcnt(0)")
    if masked:
        for i in range(n):
            e(f"s_mov_b64 exec, s[{MASK0+2*i}:{MASK0+2*i+1}]")
            for c in checks[i]: e(c)
            e(f"v_cmp_ne_u32 vcc, 0, v{vt}")
            e(f"s_mov_b64 s[{MASK0+2*i}:{MASK0+2*i+1}], vcc")
            if i == 0: e("s_mov_b64 s[14:15], vcc")
            else: e("s_or_b64 s[14:15], s[14:15], vcc")
        e("s_mov_b64 exec, s[100:101]")
        e("s_add_u32 s13, s13, 1")
        e("s_cmp_eq_u64 s[14:15], 0")
    else:
        for i in range(n):
            for c in checks[i]: e(c.replace(f"v{vt},", f"v{vt+1},", 1).replace(f", v{vt}", f", v{vt+1}") if False else c)
            if i == 0: e(f"v_mov_b32 v{vt+2}, v{vt}")
            else: e(f"v_or_b32 v{vt+2}, v{vt+2}, v{vt}")
        e(f"v_cmp_ne_u32 vcc, 0, v{vt+2}")
        e("s_add_u32 s13, s13, 1")
        e("s_cmp_eq_u64 vcc, 0")
    e(f"s_cbranch_scc1 {dn}")
    if OPT.get("psleep", 0): e(f"s_sleep {OPT['psleep']}")
    e(f"s_cmp_lt_u32 s13, {OPT['spin']}")
    e(f"s_cbranch_scc1 {lp}")
    if masked: e("s_mov_b64 exec, s[100:101]")
    lab(dn)

def poll(loads, tagregs, vt):
    per = len(tagregs) // len(loads)
    checks = []
    for i in range(len(loads)):
        tr = tagregs[i*per:(i+1)*per]
        if per == 1: checks.append([f"v_xor_b32 v{vt}, {TAG}, v{tr[0]}"])
        else: checks.append([f"v_xor_b32 v{vt}, {TAG}, v{tr[0]}", f"v_xor_b32 v{vt+1}, {TAG}, v{tr[1]}", f"v_or_b32 v{vt}, v{vt}, v{vt+1}"])
    _poll_generic(loads, checks, vt)

def pollx(loads, bases, vt, init=None):
    checks = [[f"v_bitop3_b32 v{vt}, v{b}, v{b+1}, v{b+2} bitop3:0x96", f"v_bitop3_b32 v{vt}, v{vt}, v{b+3}, {VTAG} bitop3:0x96"] for b in bases]
    _poll_generic(loads, checks, vt, init)

def poll2(loadsA, loadsB, tagregs, vt):
    lp = uid("POLL"); dn = uid("PDONE")
    e("s_mov_b32 s13, 0")
    lab(lp)
    for loads in (loadsA, loadsB):
        for s_ in loads: e(s_)
        e("s_waitcnt vmcnt(0)")
        tr = list(tagregs); first = True
        while tr:
            a_, b_ = tr.pop(0), tr.pop(0)
            e(f"v_xor_b32 v{vt+1}, {TAG}, v{a_}"); e(f"v_xor_b32 v{vt+2}, {TAG}, v{b_}")
            if first: e(f"v_or_b32 v{vt}, v{vt+1}, v{vt+2}")
            else: e(f"v_or3_b32 v{vt}, v{vt+1}, v{vt+2}, v{vt}")
            first = False
        e(f"v_cmp_ne_u32 vcc, 0, v{vt}")
        e("s_cmp_eq_u64 vcc, 0")
        e(f"s_cbranch_scc1 {dn}")
    e("s_add_u32 s13, s13, 1")
    e(f"s_cmp_lt_u32 s13, {OPT['spin']}")
    e(f"s_cbranch_scc1 {lp}")
    lab(dn)

def mfma(d, a, b, c=None):
    cs = vr(d, 4) if c is None else c
    e(f"v_mfma_f32_16x16x32_bf16 {vr(d,4)}, {vr(a,4)}, {vr(b,4)}, {cs}")

SCG = " sc1"
EXEC_L15_0 = 0x0001000100010001

def set_exec64(val):
    lo, hi = val & 0xffffffff, val >> 32
    e(f"s_mov_b32 exec_lo, {lo:#x}"); e(f"s_mov_b32 exec_hi, {hi:#x}")
def exec_all(): e("s_mov_b64 exec, -1")

def prologue():
    if OPT["stamps"] or OPT.get("diagx", 0): e("s_memrealtime s[96:97]")
    e("s_cmp_ge_u32 s2, 256")
    e("s_cbranch_scc1 L_END")
    e("s_load_dwordx16 s[16:31], s[0:1], 0")
    e("s_load_dwordx8 s[32:39], s[0:1], 64")
    e("s_load_dwordx2 s[40:41], s[0:1], 96")
    e(f"v_lshrrev_b32 v5, 6, v0")
    e(f"v_and_b32 {LANE}, 63, v0")
    e(f"v_readfirstlane_b32 {WAVE}, v5")
    e(f"v_lshrrev_b32 {G}, 4, {LANE}")
    if OPT.get("earlytouch", 1): code_touch(120)
    e(f"v_and_b32 {L15}, 15, {LANE}")
    e(f"s_and_b32 {X}, s2, 7")
    e(f"s_lshr_b32 {J}, s2, 3")
    e(f"s_mul_i32 s64, {WAVE}, 11"); e("s_lshr_b32 s64, s64, 5")
    e("s_mul_i32 s65, s64, 3"); e(f"s_sub_u32 s65, {WAVE}, s65")
    e(f"s_cmp_ge_u32 {J}, 16")
    e("s_cbranch_scc1 L_Y")

def kernarg_ready():
    e("s_waitcnt lgkmcnt(0)")
    e(f"s_load_dword {TAG}, s[{P_WS}:{P_WS+1}], 0")
    srd(WS, P_WS, WS_SIZE)

def get_tag():
    e("s_waitcnt lgkmcnt(0)")
    e(f"s_mul_i32 {TAG}, {TAG}, 1664525")
    e(f"s_add_u32 {TAG}, {TAG}, 1013904223")
    e(f"v_mov_b32 {VTAG}, {TAG}")

def hello_publish(vt):
    if not OPT.get("local", 1): return
    sk = uid("HEL")
    e(f"s_cmp_lg_u32 {WAVE}, 15"); e(f"s_cbranch_scc1 {sk}")
    e("s_getreg_b32 s9, hwreg(HW_REG_XCC_ID, 0, 4)")
    e(f"s_lshl_b32 s10, {X}, 8"); e("s_lshr_b32 s11, s2, 3"); e("s_lshl_b32 s11, s11, 3"); e("s_add_u32 s10, s10, s11"); e(f"s_add_u32 s10, s10, {WS_HELLO}")
    e(f"v_mov_b32 v{vt}, s9"); e(f"v_mov_b32 v{vt+1}, {TAG}"); e(f"v_mov_b32 v{vt+2}, 0")
    e("s_mov_b64 exec, 1")
    e(f"buffer_store_dwordx2 v[{vt}:{vt+1}], v{vt+2}, {sr(WS)}, s10 offen sc1")
    exec_all()
    lab(sk)

XL_U = 0
XL_UK = 61440
XL_MG, XL_MU, XL_MD = 73728, 94208, 114688
XL_S = 147456
XL_XN = XL_S
XL_Q = XL_S + 1280
XL_CL = XL_S + 2048
CL_RS = 400
XL_CB = XL_S + 14848
XL_W = XL_S + 15232
XL_FLAG = XL_S + 15360
XL_H = XL_S + 2048
XL_ST = XL_S + 4608
XL_G = XL_S + 4736
XL_HH = XL_S + 6144
XL_R2 = XL_S + 6400
XL_R = XL_S + 8192

def st_global(data, voff, soff):
    e(f"buffer_store_dwordx4 {data}, {voff}, {sr(WS)}, {soff} offen sc1")
def st_local(data, voff, soff):
    g = uid("STG"); d = uid("STD")
    e("s_nop 0"); e("v_readfirstlane_b32 s10, v123"); e("s_nop 3")
    e("s_cmp_eq_u32 s10, 1"); e(f"s_cbranch_scc0 {g}")
    e(f"buffer_store_dwordx4 {data}, {voff}, {sr(WS)}, {soff} offen")
    e(f"s_branch {d}")
    lab(g)
    e(f"buffer_store_dwordx4 {data}, {voff}, {sr(WS)}, {soff} offen sc1")
    lab(d)

XL_CX = None
def collect_store(acc, lds_base, soff_code, flavor, lbl):
    e(f"v_cvt_pk_bf16_f32 v124, v{acc}, v{acc+1}"); e(f"v_cvt_pk_bf16_f32 v125, v{acc+2}, v{acc+3}")
    e(f"v_lshlrev_b32 v5, 3, {G}"); e(f"s_lshl_b32 s9, {WAVE}, 5"); e(f"s_add_u32 s9, s9, {lds_base}"); e("v_add_u32 v5, s9, v5")
    set_exec64(EXEC_L15_0)
    e("ds_write_b64 v5, v[124:125]")
    exec_all()
    lab(lbl)
    barrier()
    sk = uid("CST")
    e(f"s_cmp_lg_u32 {WAVE}, 0"); e(f"s_cbranch_scc1 {sk}")
    e(f"v_lshlrev_b32 v5, 3, {LANE}"); e(f"v_add_u32 v6, {lds_base}, v5")
    set_exec64((1 << 48) - 1)
    e("ds_read_b64 v[124:125], v6")
    if flavor is st_local:
        e(f"v_mov_b32 v7, {XL_FLAG}"); e("ds_read_b32 v123, v7")
    soff_code()
    e(f"v_lshlrev_b32 v5, 4, {LANE}")
    e("s_waitcnt lgkmcnt(0)")
    e("v_mov_b32 v126, v125"); e(f"v_mov_b32 v125, {VTAG}"); e(f"v_mov_b32 v127, {VTAG}")
    flavor("v[124:127]", "v5", "s9")
    exec_all()
    lab(sk)

def code_touch(vd, wave=15):
    if not OPT["prefetch_code"]: return
    sk = uid("CT"); pc = uid("PC")
    e(f"s_cmp_lg_u32 {WAVE}, {wave}"); e(f"s_cbranch_scc1 {sk}")
    e("s_getpc_b64 s[10:11]")
    lab(pc)
    e(f"s_sub_u32 s10, s10, {pc}-{NAME}_kernel"); e("s_subb_u32 s11, s11, 0")
    e("s_lshr_b32 s9, s2, 3"); e("s_and_b32 s9, s9, 15"); e("s_lshl_b32 s9, s9, 10")
    e(f"v_lshl_add_u32 v{vd}, {LANE}, 4, s9")
    e(f"s_mov_b32 s9, L_END-{NAME}_kernel-16")
    e(f"v_min_u32 v{vd}, s9, v{vd}")
    e(f"global_load_dwordx4 v[{vd}:{vd+3}], v{vd}, s[10:11]")
    lab(sk)

def code_touch_range(lbl, nkb, vd, wave=15):
    if not OPT.get("retouch", 0): return
    sk = uid("CT"); pc = uid("PC")
    e(f"s_cmp_lg_u32 {WAVE}, {wave}"); e(f"s_cbranch_scc1 {sk}")
    e("s_getpc_b64 s[10:11]")
    lab(pc)
    e(f"s_sub_u32 s10, s10, {pc}-{NAME}_kernel"); e("s_subb_u32 s11, s11, 0")
    e(f"s_mov_b32 s9, {lbl}-{NAME}_kernel")
    e(f"v_lshl_add_u32 v{vd+4}, {LANE}, 4, s9")
    e(f"s_mov_b32 s9, L_END-{NAME}_kernel-16")
    for i in range(nkb):
        e(f"v_min_u32 v{vd+5}, s9, v{vd+4}")
        e(f"global_load_dwordx4 v[{vd}:{vd+3}], v{vd+5}, s[10:11]")
        if i + 1 < nkb: e(f"v_add_u32 v{vd+4}, 1024, v{vd+4}")
    lab(sk)

def tlb_warm(wave):
    if not OPT.get("tlbwarm", 0): return
    sk = uid("TW")
    e(f"s_cmp_lg_u32 {WAVE}, {wave}"); e(f"s_cbranch_scc1 {sk}")
    step = 1 << 20
    lst = [(P_WUV, 9437184), (P_WO, 7864320), (P_WG, 1966080), (P_WU, 1966080), (P_WD, 1966080), (P_WS, WS_SIZE), (P_OUT, 1280)]
    k = 0
    for ptr, size in lst:
        off = 0
        while off < size:
            if off < (1 << 20):
                e(f"s_load_dword s{84 + (k % 8)}, s[{ptr}:{ptr+1}], {off:#x}")
            else:
                e(f"s_mov_b32 s9, {off:#x}")
                e(f"s_load_dword s{84 + (k % 8)}, s[{ptr}:{ptr+1}], s9")
            k += 1; off += step
    lab(sk)

def x_program():
    lab("L_X")
    e(f"s_lshr_b32 s9, {J}, 2"); e(f"s_lshl_b32 {H}, {X}, 2"); e(f"s_add_u32 {H}, {H}, s9")
    e(f"s_and_b32 {R}, {J}, 3")
    dma_pattern(15, 12, 12288, "s65", 17, 18)
    if OPT.get("dmaexp", 0):
        e(f"v_lshrrev_b32 v17, 4, {LANE}"); e("s_lshl_b32 s9, s65, 2"); e("v_add_u32 v17, s9, v17"); e("v_mul_u32_u24 v17, 12288, v17")
        e(f"v_lshl_add_u32 v17, {L15}, 4, v17")
        e(f"v_lshrrev_b32 v18, 3, {LANE}"); e("v_mul_u32_u24 v18, 12288, v18"); e(f"v_and_b32 v15, 7, {LANE}"); e("v_lshl_add_u32 v18, v15, 4, v18"); e("v_add_u32 v18, 256, v18")
        e("s_cmp_eq_u32 s65, 2"); e("s_cselect_b64 vcc, -1, 0"); e("s_nop 1"); e("v_cndmask_b32 v15, v17, v18, vcc")
    e(f"v_cmp_lt_u32 vcc, 23, {LANE}"); e(f"v_subrev_u32 v6, 24, {LANE}"); e("s_nop 0")
    e(f"v_cndmask_b32 v14, {LANE}, v6, vcc"); e("v_lshlrev_b32 v14, 4, v14")
    e("v_mov_b32 v6, 12288"); e("v_cndmask_b32 v6, 0, v6, vcc"); e("v_add_u32 v14, v14, v6")
    e(f"v_lshlrev_b32 v5, 2, {LANE}")
    e(f"s_mul_i32 s10, {R}, 160"); e("s_lshl_b32 s11, s64, 3"); e("s_add_u32 s10, s10, s11")
    e("s_mul_i32 s11, s10, 12288"); e(f"s_mul_i32 s67, {H}, 384"); e("s_add_u32 s11, s11, s67")
    e(f"s_sub_u32 s9, {WAVE}, 12")
    e(f"s_mul_i32 s66, {R}, 192"); e("s_lshl_b32 s10, s9, 1"); e("s_add_u32 s66, s66, s10")
    e("s_mul_i32 s66, s66, 12288"); e("s_add_u32 s66, s66, s67")
    e(f"s_mul_i32 s68, s9, 800"); e(f"s_add_u32 s68, s68, {XL_UK}")
    e(f"s_lshl_b32 s10, {WAVE}, 10")
    kernarg_ready()
    srd(SA, P_WQ, 7864320); srd(SB, P_WUK, 9437184); srd(SC_, P_X, 1280)
    stamp("x: start", 0xfffff)
    e(f"s_cmp_eq_u32 {WAVE}, 15"); e("s_cbranch_scc1 X_LN")
    e(f"s_cmp_ge_u32 {WAVE}, 12"); e("s_cbranch_scc1 X_UKD")
    dma_loop(15, SA, 10, 11, 5, 12 * 1024, 32 * 12288, OPT["xnt"])
    e("s_barrier")
    e("s_waitcnt vmcnt(0)")
    e("s_branch X_B1")
    lab("X_UKD")
    e("s_barrier")
    set_exec64((1<<48)-1)
    npre = OPT.get("ukpre", 4)
    dma_loop(14, SB, 68, 66, npre, 3 * 800, 6 * 12288, OPT["xnt"])
    exec_all()
    lab("X_B1")
    get_tag()
    if OPT.get("diagw", 0):
        e("s_memtime s[76:77]"); e("s_waitcnt lgkmcnt(0)")
        e("s_barrier")
        e("s_memtime s[78:79]"); e("s_waitcnt vmcnt(0)"); e("s_memtime s[80:81]"); e("s_waitcnt lgkmcnt(0)")
        e("s_lshl_b32 s9, s2, 10"); e(f"s_lshl_b32 s10, {WAVE}, 6"); e("s_add_u32 s9, s9, s10"); e(f"s_add_u32 s9, s9, {WS_ST}")
        e("s_mov_b64 exec, 1"); e("v_mov_b32 v5, 0")
        for i, b in enumerate((72, 74, 76, 78, 80, 96)):
            e(f"v_mov_b32 v6, s{b}"); e(f"v_mov_b32 v7, s{b+1}")
            e(f"buffer_store_dwordx2 v[6:7], v5, {sr(WS)}, s9 offen offset:{8*i}"); e("s_nop 1")
        e("s_endpgm")
    stamp("x: wq landed", 9|32768)
    barrier()
    stamp("x: after B1", 8)
    e(f"s_cmp_ge_u32 {WAVE}, 12"); e("s_cbranch_scc1 X_UK2")
    e(f"v_mul_u32_u24 v5, 3072, {G}"); e(f"v_lshl_add_u32 v5, {L15}, 3, v5")
    e(f"s_lshl_b32 s9, {WAVE}, 7"); e("v_add_u32 v13, s9, v5")
    e(f"s_mul_i32 s9, {R}, 320"); e(f"s_add_u32 s9, s9, {XL_XN}")
    e(f"v_lshl_add_u32 v6, {G}, 4, s9")
    for ks in range(5):
        e(f"ds_read_b128 {vr(64+4*ks,4)}, v6 offset:{64*ks}")
        e(f"ds_read_b64_tr_b16 {vr(40+4*ks,2)}, v13 offset:{XL_U+ks*12288}")
        e(f"ds_read_b64_tr_b16 {vr(42+4*ks,2)}, v13 offset:{XL_U+ks*12288+1536}")
    e(f"s_lshl_b32 s9, {H}, 2"); e(f"s_add_u32 s9, s9, {R}"); e("s_mul_i32 s9, s9, 1536")
    e(f"s_lshl_b32 s10, {WAVE}, 7"); e("s_add_u32 s9, s9, s10"); e(f"s_add_u32 s9, s9, {WS_E1}")
    e(f"v_lshlrev_b32 v5, 3, {L15}")
    for ks in range(5):
        e(f"s_waitcnt lgkmcnt({3*(4-ks)})")
        mfma(88, 64 + 4 * ks, 40 + 4 * ks, "0" if ks == 0 else None)
    e("s_nop 7")
    e(f"v_mov_b32 v89, {VTAG}")
    e("s_mov_b64 exec, 0xffff")
    if OPT.get("e1dual", 1):
        e(f"s_add_u32 s10, s9, {WS_E1L - WS_E1}")
        e(f"buffer_store_dwordx2 v[88:89], v5, {sr(WS)}, s10 offen")
    e(f"buffer_store_dwordx2 v[88:89], v5, {sr(WS)}, s9 offen{SCG}")
    exec_all()
    stamp("x: q published", 9)
    e("s_branch X_B3")
    lab("X_UK2")
    e(f"s_cmp_eq_u32 {WAVE}, 15"); e("s_cbranch_scc1 X_B3")
    set_exec64((1<<48)-1)
    dma_loop(14, SB, 68, 66, 32 - OPT.get("ukpre", 4), 3 * 800, 6 * 12288, OPT["xnt"])
    exec_all()
    e(f"s_cmp_ge_u32 {WAVE}, 14"); e("s_cbranch_scc1 X_B3W")
    e(f"s_sub_u32 s9, {WAVE}, 12"); e("s_lshl_b32 s9, s9, 6"); e(f"v_add_u32 v5, s9, {LANE}")
    e("v_cmp_gt_u32 vcc, 96, v5"); e("s_and_saveexec_b64 s[42:43], vcc")
    e("v_lshlrev_b32 v6, 4, v5")
    e(f"s_mul_i32 s9, {H}, 6144"); e(f"s_add_u32 s9, s9, {WS_E1}")
    e("s_add_u32 s10, s9, 3072")
    stamp("x: E1 poll start", 8|32768)
    if OPT.get("e1dual", 1):
        e(f"s_add_u32 s11, s9, {WS_E1L - WS_E1}"); e(f"s_add_u32 s69, s10, {WS_E1L - WS_E1}")
        mk = lambda sa, sb: [f"buffer_load_dwordx4 v[92:95], v6, {sr(WS)}, {sa} offen sc1",
                             f"buffer_load_dwordx4 v[96:99], v6, {sr(WS)}, {sa} offen offset:1536 sc1",
                             f"buffer_load_dwordx4 v[100:103], v6, {sr(WS)}, {sb} offen sc1",
                             f"buffer_load_dwordx4 v[104:107], v6, {sr(WS)}, {sb} offen offset:1536 sc1"]
        poll2(mk("s11", "s69"), mk("s9", "s10"), [93, 95, 97, 99, 101, 103, 105, 107], 108)
    else:
        poll([f"buffer_load_dwordx4 v[92:95], v6, {sr(WS)}, s9 offen sc1",
              f"buffer_load_dwordx4 v[96:99], v6, {sr(WS)}, s9 offen offset:1536 sc1",
              f"buffer_load_dwordx4 v[100:103], v6, {sr(WS)}, s10 offen sc1",
              f"buffer_load_dwordx4 v[104:107], v6, {sr(WS)}, s10 offen offset:1536 sc1"],
             [93, 95, 97, 99, 101, 103, 105, 107], 108)
    stamp("x: E1 poll end", 8|32768); stamp_val("E1 iters", "s13", 8)
    e("v_add_f32 v92, v92, v96"); e("v_add_f32 v94, v94, v98")
    e("v_add_f32 v100, v100, v104"); e("v_add_f32 v102, v102, v106")
    e("v_add_f32 v92, v92, v100"); e("v_add_f32 v94, v94, v102")
    qs = 192 ** -0.5 * math.log2(math.e)
    e(f"v_mul_f32 v92, {F(qs)}, v92"); e(f"v_mul_f32 v94, {F(qs)}, v94")
    e("v_cvt_pk_bf16_f32 v92, v92, v94")
    e("v_lshlrev_b32 v6, 2, v5"); e(f"v_add_u32 v6, {XL_Q}, v6")
    e("ds_write_b32 v6, v92")
    e("s_mov_b64 exec, s[42:43]")
    lab("X_B3W")
    e("s_waitcnt vmcnt(0)")
    lab("X_B3")
    barrier()
    stamp("x: q gathered", 9|32768)
    e(f"s_cmp_ge_u32 {WAVE}, 12"); e("s_cbranch_scc1 X_P2B")
    e(f"v_lshlrev_b32 v6, 4, {G}"); e(f"v_add_u32 v6, {XL_Q}, v6")
    e(f"v_lshrrev_b32 v7, 1, {L15}"); e("v_mul_u32_u24 v7, 800, v7")
    e(f"v_and_b32 v8, 1, {L15}"); e("v_mul_u32_u24 v8, 384, v8"); e("v_add_u32 v7, v7, v8")
    e(f"v_lshl_add_u32 v7, {G}, 4, v7")
    e(f"s_mul_i32 s9, {WAVE}, 6400"); e(f"s_add_u32 s9, s9, {XL_UK}"); e("v_add_u32 v7, s9, v7")
    for ks in range(6):
        e(f"ds_read_b128 {vr(16+4*ks,4)}, v7 offset:{64*ks}")
        e(f"ds_read_b128 {vr(64+4*ks,4)}, v6 offset:{64*ks}")
    for ks in range(6):
        e(f"s_waitcnt lgkmcnt({2*(5-ks)})")
        mfma(88, 16 + 4 * ks, 64 + 4 * ks, "0" if ks == 0 else None)
    e("s_nop 7")
    def soff_qa():
        e(f"s_mul_i32 s9, {H}, 3072"); e(f"s_mul_i32 s10, {R}, 768"); e("s_add_u32 s9, s9, s10"); e(f"s_add_u32 s9, s9, {WS_QA}")
    collect_store(88, XL_CB, soff_qa, st_global, "X_P2B")
    stamp("x: qabs published", 9|128|256|32768|(1<<16))
    if OPT.get("xstop", 0) == 1:
        e("s_waitcnt vmcnt(0)"); barrier(); stamp("x: all waves done"); e("s_branch X_END")
    srd(SA, P_WUV, 9437184)
    e(f"s_cmp_ge_u32 {WAVE}, 12"); e("s_cbranch_scc1 X_B4")
    e(f"s_mul_i32 s10, {R}, 192"); e("s_lshl_b32 s11, s64, 3"); e("s_add_u32 s10, s10, s11")
    e("s_mul_i32 s11, s10, 12288"); e("s_add_u32 s11, s11, s67")
    e(f"s_lshl_b32 s10, {WAVE}, 10"); e(f"s_add_u32 s10, s10, {XL_U}")
    dma_loop(15, SA, 10, 11, 6, 12 * 1024, 32 * 12288, OPT["xnt"])
    lab("X_B4")
    PFNT = " nt" if OPT.get("pfnt", 0) else ""
    if OPT.get("wopf", 0):
        sk = uid("PFO")
        srd(SB, P_WO, 7864320)
        e(f"s_cmp_eq_u32 {WAVE}, 15"); e(f"s_cbranch_scc1 {sk}")
        e(f"s_mul_i32 s9, {X}, 768"); e(f"s_mul_i32 s10, {J}, 48"); e("s_add_u32 s9, s9, s10"); e("s_mul_i32 s9, s9, 1280")
        e(f"s_lshl_b32 s10, {WAVE}, 12"); e("s_add_u32 s9, s9, s10")
        e(f"v_lshlrev_b32 v8, 4, {LANE}")
        for i in range(4): e(f"buffer_load_dwordx4 v[120:123], v8, {sr(SB)}, s9 offen offset:{1024*i}{PFNT}")
        lab(sk)
    if OPT.get("l2pf", 1):
        srd(SB, P_WG, 1966080); srd(SD, P_WU, 1966080)
        e(f"v_cmp_lt_u32 vcc, 23, {LANE}"); e(f"v_subrev_u32 v7, 24, {LANE}"); e("s_nop 0")
        e(f"v_cndmask_b32 v8, {LANE}, v7, vcc"); e("v_lshlrev_b32 v8, 4, v8")
        e("v_mov_b32 v7, 3072"); e("v_cndmask_b32 v7, 0, v7, vcc"); e("v_add_u32 v8, v8, v7")
        sk = uid("PFG")
        e(f"s_cmp_ge_u32 {WAVE}, 10"); e(f"s_cbranch_scc1 {sk}")
        e(f"s_mul_i32 s9, {J}, 40"); e(f"s_lshl_b32 s10, {WAVE}, 2"); e("s_add_u32 s9, s9, s10"); e("s_mul_i32 s9, s9, 3072")
        e(f"s_mul_i32 s10, {X}, 384"); e("s_add_u32 s9, s9, s10"); e("s_add_u32 s10, s9, 6144")
        set_exec64((1 << 48) - 1)
        e(f"buffer_load_dwordx4 v[120:123], v8, {sr(SB)}, s9 offen{PFNT}"); e(f"buffer_load_dwordx4 v[120:123], v8, {sr(SB)}, s10 offen{PFNT}")
        e(f"buffer_load_dwordx4 v[120:123], v8, {sr(SD)}, s9 offen{PFNT}"); e(f"buffer_load_dwordx4 v[120:123], v8, {sr(SD)}, s10 offen{PFNT}")
        exec_all()
        lab(sk)
        sk = uid("PFD")
        e(f"s_cmp_lt_u32 {WAVE}, 10"); e(f"s_cbranch_scc1 {sk}")
        srd(SB, P_WD, 1966080)
        e(f"s_mul_i32 s9, {X}, 192"); e(f"s_mul_i32 s10, {J}, 12"); e("s_add_u32 s9, s9, s10"); e("s_mul_i32 s9, s9, 1280")
        e(f"s_sub_u32 s10, {WAVE}, 10"); e("s_mul_i32 s10, s10, 2560"); e("s_add_u32 s9, s9, s10")
        e(f"v_lshlrev_b32 v8, 4, {LANE}")
        e(f"buffer_load_dwordx4 v[120:123], v8, {sr(SB)}, s9 offen{PFNT}"); e(f"buffer_load_dwordx4 v[120:123], v8, {sr(SB)}, s9 offen offset:1024{PFNT}")
        set_exec64(0xffffffff)
        e(f"buffer_load_dwordx4 v[120:123], v8, {sr(SB)}, s9 offen offset:2048{PFNT}")
        exec_all()
        lab(sk)
    e(f"v_lshrrev_b32 v8, 5, {LANE}"); e(f"s_lshl_b32 s9, {WAVE}, 1"); e("v_add_u32 v8, s9, v8")
    e(f"v_and_b32 v9, 31, {LANE}")
    e("v_mul_u32_u24 v6, 2176, v8"); e("v_lshl_add_u32 v6, v9, 4, v6")
    e(f"v_mul_u32_u24 v10, {CL_RS}, v8"); e("v_mul_u32_u24 v11, 12, v9"); e("v_add_u32 v10, v10, v11")
    e(f"v_add_u32 v118, {XL_CL}, v10")
    e("s_waitcnt vmcnt(0)")
    code_touch_range("X_NPR", 3, 120, 14)
    stamp("x: burst2 landed", 1|256)
    barrier()
    if OPT.get("xstop", 0) == 2: e("s_branch X_END")
    e(f"s_cmp_ge_u32 {WAVE}, 12"); e("s_cbranch_scc1 X_NPR")
    for ks in range(6):
        e(f"ds_read_b64_tr_b16 {vr(40+4*ks,2)}, v13 offset:{XL_U+ks*12288}")
        e(f"ds_read_b64_tr_b16 {vr(42+4*ks,2)}, v13 offset:{XL_U+ks*12288+1536}")
    lab("X_NPR")
    e(f"v_lshrrev_b32 v16, 2, {L15}"); e(f"v_lshl_add_u32 v16, {G}, 3, v16"); e(f"v_mul_u32_u24 v16, {CL_RS}, v16")
    e(f"v_and_b32 v17, 3, {L15}"); e("v_lshl_add_u32 v16, v17, 3, v16")
    e(f"s_lshl_b32 s9, {WAVE}, 5"); e(f"s_add_u32 s10, s9, {XL_CL}"); e("v_add_u32 v16, s10, v16")
    e(f"v_and_b32 v17, 1, {LANE}"); e("v_lshlrev_b32 v17, 6, v17"); e(f"v_lshl_add_u32 v17, {G}, 4, v17"); e(f"v_add_u32 v17, {XL_W}, v17")
    e(f"v_lshlrev_b32 v18, 1, {L15}"); e(f"s_add_u32 s10, s9, {XL_CB}"); e("v_add_u32 v18, s10, v18")
    e(f"v_lshlrev_b32 v19, 4, {G}"); e(f"v_add_u32 v19, {XL_CB}, v19")
    e(f"s_mul_i32 s9, {H}, 69632"); e(f"s_add_u32 s69, s9, {WS_E3 + 2048}"); e(f"s_lshl_b32 s10, {R}, 9"); e("s_add_u32 s9, s9, s10")
    e(f"s_add_u32 s9, s9, {WS_E3}")
    e(f"s_cmp_eq_u32 {WAVE}, 12"); e("s_cbranch_scc1 X_ML")
    stamp("x: E3 poll start", 16)
    pollx([f"buffer_load_dwordx4 v[96:99], v6, {sr(WS)}, s9 offen sc1"], [96], 108)
    stamp("x: E3 poll end", 16|2048); stamp_val("E3 iters", "s13", 16)
    e("ds_write2_b32 v118, v96, v97 offset1:1"); e("ds_write_b32 v118, v98 offset:8")
    if OPT.get("local", 1):
        sk = uid("HCK")
        e(f"s_cmp_lg_u32 {WAVE}, 13"); e(f"s_cbranch_scc1 {sk}")
        e(f"v_lshlrev_b32 v5, 3, {LANE}")
        e(f"s_lshl_b32 s10, {X}, 8"); e(f"s_add_u32 s10, s10, {WS_HELLO + 128}")
        e("s_getreg_b32 s11, hwreg(HW_REG_XCC_ID, 0, 4)")
        e("s_mov_b64 exec, 0x3ff")
        e(f"buffer_load_dwordx2 v[100:101], v5, {sr(WS)}, s10 offen sc1")
        e("s_waitcnt vmcnt(0)")
        e("v_xor_b32 v100, s11, v100"); e(f"v_xor_b32 v101, {TAG}, v101"); e("v_or_b32 v100, v100, v101")
        e("v_cmp_ne_u32 vcc, 0, v100")
        e("s_cmp_eq_u64 vcc, 0"); e("s_cselect_b32 s10, 1, 0")
        e("s_mov_b64 exec, 1")
        e(f"v_mov_b32 v100, s10"); e(f"v_mov_b32 v5, {XL_FLAG}"); e("ds_write_b32 v5, v100")
        exec_all()
        lab(sk)
    e("s_branch X_B5")
    lab("X_ML")
    e(f"v_and_b32 v5, 31, {LANE}"); e("v_mul_u32_u24 v5, 2176, v5")
    pollx([f"buffer_load_dwordx4 v[100:103], v6, {sr(WS)}, s9 offen sc1",
           f"buffer_load_dwordx4 v[96:99], v5, {sr(WS)}, s69 offen sc1"], [100, 96], 108, init=[None, 0xffffffff])
    e("ds_write2_b32 v118, v100, v101 offset1:1"); e("ds_write_b32 v118, v102 offset:8")
    e("v_mov_b32 v98, v96")
    e("s_nop 1"); row16_allreduce("v_max_f32", 98); e("s_nop 1"); cross16("v_max_f32", 98, 99)
    e("v_sub_f32 v96, v96, v98"); e("v_exp_f32 v96, v96"); e("s_nop 0")
    e("v_mul_f32 v97, v96, v97")
    e("s_nop 1"); row16_allreduce("v_add_f32", 97); e("s_nop 1"); cross16("v_add_f32", 97, 99)
    e("v_rcp_f32 v97, v97"); e("s_nop 0")
    e("v_mul_f32 v96, v96, v97")
    e("v_cvt_pk_bf16_f32 v97, v96, v96")
    e("v_and_b32 v98, 0xffff0000, v97")
    e("v_sub_f32 v96, v96, v98")
    e("v_cvt_pk_bf16_f32 v96, v96, v96")
    e(f"v_and_b32 v5, 31, {LANE}"); e("v_lshlrev_b32 v5, 1, v5"); e(f"v_add_u32 v5, {XL_W}, v5")
    set_exec64(0xffffffff)
    e("ds_write_b16 v5, v97"); e("ds_write_b16 v5, v96 offset:64")
    exec_all()
    lab("X_B5")
    barrier()
    stamp("x: E3 gathered", 17|128|256|2048)
    e(f"s_cmp_ge_u32 {WAVE}, 12"); e("s_cbranch_scc1 X_B5b")
    e(f"ds_read_b64_tr_b16 v[96:97], v16"); e(f"ds_read_b64_tr_b16 v[98:99], v16 offset:{4*CL_RS}")
    e("ds_read_b128 v[100:103], v17")
    e("s_waitcnt lgkmcnt(0)")
    mfma(120, 100, 96, "0")
    e("s_nop 7")
    e("v_add_f32 v120, v120, v121")
    e("v_cvt_pk_bf16_f32 v120, v120, v120")
    e("s_mov_b64 exec, 0xffff")
    e("ds_write_b16 v18, v120")
    exec_all()
    lab("X_B5b")
    barrier()
    stamp("x: after B5b", 2048)
    e(f"s_cmp_ge_u32 {WAVE}, 12"); e("s_cbranch_scc1 X_UPD")
    for ks in range(6): e(f"ds_read_b128 {vr(96+4*ks,4)}, v19 offset:{64*ks}")
    for ks in range(6):
        e(f"s_waitcnt lgkmcnt({5-ks})")
        mfma(120, 40 + 4 * ks, 96 + 4 * ks, "0" if ks == 0 else None)
    e("s_nop 7")
    def soff_e4():
        e(f"s_lshl_b32 s9, {X}, 2"); e(f"s_add_u32 s9, s9, {R}"); e("s_mul_i32 s9, s9, 3072")
        e(f"s_and_b32 s10, {H}, 3"); e("s_mul_i32 s10, s10, 768"); e("s_add_u32 s9, s9, s10"); e(f"s_add_u32 s9, s9, {WS_E4}")
    collect_store(120, XL_Q, soff_e4, st_local if OPT.get("local", 1) else st_global, "X_UPD")
    stamp("x: ctx published", 1|128|256|2048)
    e(f"s_cmp_ge_u32 {J}, 5"); e("s_cbranch_scc1 X_END")
    e(f"s_mul_i32 s66, {X}, 5"); e(f"s_add_u32 s66, s66, {J}")
    e(f"s_cmp_ge_u32 {WAVE}, 7"); e("s_cbranch_scc1 X_B9")
    e(f"s_cmp_eq_u32 {WAVE}, 6"); e("s_cbranch_scc1 X_FH")
    e(f"v_lshrrev_b32 v5, 3, {LANE}"); e("v_mul_u32_u24 v5, 5120, v5")
    e(f"v_and_b32 v6, 7, {LANE}"); e("v_lshl_add_u32 v5, v6, 4, v5")
    e(f"s_mul_i32 s9, {WAVE}, 40960"); e("s_lshl_b32 s10, s66, 7"); e("s_add_u32 s9, s9, s10")
    e(f"s_add_u32 s9, s9, {WS_E6}")
    poll([f"buffer_load_dwordx4 v[92:95], v5, {sr(WS)}, s9 offen sc1"], [93, 95], 108)
    e("v_mov_b32 v93, v94")
    e("s_nop 1")
    for i in range(2):
        e(f"v_add_f32_dpp v{92+i}, v{92+i}, v{92+i} row_ror:8 row_mask:0xf bank_mask:0xf")
    for i in range(2):
        cross16("v_add_f32", 92 + i, 96); cross32("v_add_f32", 92 + i, 96)
    e("v_lshlrev_b32 v6, 3, v6"); e(f"s_lshl_b32 s9, {WAVE}, 6"); e(f"s_add_u32 s9, s9, {XL_R2}")
    e("v_add_u32 v6, s9, v6")
    e("s_mov_b64 exec, 0xff")
    e("ds_write_b64 v6, v[92:93]")
    exec_all()
    e("s_branch X_B9")
    lab("X_FH")
    e(f"v_bfe_u32 v5, {LANE}, 2, 3"); e("v_mul_u32_u24 v5, 2560, v5")
    e(f"v_and_b32 v6, 3, {LANE}"); e("v_lshl_add_u32 v5, v6, 4, v5")
    e("s_lshl_b32 s9, s66, 6"); e(f"s_add_u32 s9, s9, {WS_E5}")
    e("v_lshlrev_b32 v7, 3, v6"); e("s_lshl_b32 s10, s66, 5")
    e(f"buffer_load_dwordx2 v[104:105], v7, {sr(SC_)}, s10 offen")
    set_exec64(0xffffffff)
    poll([f"buffer_load_dwordx4 v[92:95], v5, {sr(WS)}, s9 offen sc1"], [93, 95], 108)
    exec_all()
    e("v_lshlrev_b32 v96, 16, v92"); e("v_and_b32 v97, 0xffff0000, v92")
    e("v_lshlrev_b32 v98, 16, v94"); e("v_and_b32 v99, 0xffff0000, v94")
    e("s_nop 1")
    for sh in (4, 8):
        for i in range(4):
            e(f"v_add_f32_dpp v{96+i}, v{96+i}, v{96+i} row_ror:{sh} row_mask:0xf bank_mask:0xf")
    for i in range(4): cross16("v_add_f32", 96 + i, 100)
    e("v_lshlrev_b32 v100, 16, v104"); e("v_and_b32 v101, 0xffff0000, v104")
    e("v_lshlrev_b32 v102, 16, v105"); e("v_and_b32 v103, 0xffff0000, v105")
    for i in range(4): e(f"v_add_f32 v{96+i}, v{96+i}, v{100+i}")
    e("v_lshlrev_b32 v6, 4, v6"); e(f"v_add_u32 v6, {XL_H}, v6")
    e("s_mov_b64 exec, 0xf")
    e("ds_write_b128 v6, v[96:99]")
    exec_all()
    lab("X_B9")
    barrier()
    e(f"s_cmp_lg_u32 {WAVE}, 0"); e("s_cbranch_scc1 X_END")
    e(f"v_lshlrev_b32 v5, 3, {LANE}"); e(f"v_add_u32 v6, {XL_R2}, v5"); e(f"v_add_u32 v7, {XL_H}, v5")
    e("s_mov_b64 exec, 0xff")
    for w in range(6): e(f"ds_read_b64 {vr(92+2*w,2)}, v6 offset:{64*w}")
    e("ds_read_b64 v[116:117], v7")
    srd(SD, P_OUT, 1280)
    e("s_waitcnt lgkmcnt(0)")
    for w in range(1, 6):
        e(f"v_add_f32 v92, v92, v{92+2*w}"); e(f"v_add_f32 v93, v93, v{93+2*w}")
    e("v_add_f32 v92, v92, v116"); e("v_add_f32 v93, v93, v117")
    e("v_cvt_pk_bf16_f32 v92, v92, v93")
    e(f"v_lshlrev_b32 v5, 2, {LANE}"); e("s_lshl_b32 s9, s66, 5")
    e(f"buffer_store_dword v92, v5, {sr(SD)}, s9 offen")
    e("s_cmp_lg_u32 s66, 0"); e("s_cbranch_scc1 X_EP")
    e("s_mov_b64 exec, 1")
    e("v_mov_b32 v5, 0")
    e(f"buffer_store_dword {VTAG}, v5, {sr(WS)}, 0 offen sc1")
    lab("X_EP")
    exec_all()
    lab("X_END")
    stamp("x: end", 1|128|1024)
    stamp_flush(nstamp[0])
    e("s_endpgm")
    lab("X_LN")
    for i in range(5):
        e(f"buffer_load_dword v{16+i}, v5, {sr(SC_)}, 0 offen offset:{256*i}")
    e("s_barrier")
    e("s_waitcnt vmcnt(0)")
    for i in range(5):
        e(f"v_lshlrev_b32 v{21+2*i}, 16, v{16+i}")
        e(f"v_and_b32 v{22+2*i}, 0xffff0000, v{16+i}")
    e("v_add_f32 v31, v21, v22")
    for i in range(23, 31): e(f"v_add_f32 v31, v31, v{i}")
    wave_allreduce("v_add_f32", 31, 32)
    e(f"v_mul_f32 v31, {F(1.0/640.0)}, v31")
    for i in range(21, 31): e(f"v_sub_f32 v{i}, v{i}, v31")
    e("v_mul_f32 v33, v21, v21")
    for i in range(22, 31): e(f"v_fmac_f32 v33, v{i}, v{i}")
    wave_allreduce("v_add_f32", 33, 32)
    e(f"v_mov_b32 v32, {F(1e-5)}")
    e(f"v_fmac_f32 v32, {F(1.0/640.0)}, v33")
    e("v_rsq_f32 v32, v32"); e("s_nop 0")
    for i in range(21, 31): e(f"v_mul_f32 v{i}, v{i}, v32")
    for i in range(5): e(f"v_cvt_pk_bf16_f32 v{16+i}, v{21+2*i}, v{22+2*i}")
    e(f"v_add_u32 v5, {XL_XN}, v5")
    for i in range(5): e(f"ds_write_b32 v5, v{16+i} offset:{256*i}")
    e("s_branch X_B1")

CH_KB = 6272
CH_SZ = 8 * CH_KB
YL_C = 0
YL_QA = 2 * CH_SZ
YL_SP = YL_QA + 12416
YL_PF = YL_SP + 34816
YL_M = YL_PF + 4096
YL_R = YL_M + 64
YL_MG, YL_MU, YL_MD = 0, 40960, 81920
YL_H = 131072
YL_ST = YL_H + 2560
YL_G = YL_H + 2688
YL_HH = YL_H + 5376
assert YL_R + 3072 <= 163840
HG = "s7"

def y_program():
    nstamp[0] = 0
    lab("L_Y")
    e(f"s_sub_u32 {J}, {J}, 16")
    e(f"s_and_b32 {HG}, {J}, 3"); e(f"s_lshr_b32 {KC}, {J}, 2")
    e(f"v_bfe_u32 v5, {LANE}, 1, 2"); e("v_mul_u32_u24 v5, 1536, v5")
    e(f"v_lshrrev_b32 v6, 3, {LANE}"); e("v_lshl_add_u32 v5, v6, 5, v5")
    e(f"v_and_b32 v6, 1, {LANE}"); e("v_lshl_add_u32 v15, v6, 4, v5")
    e(f"s_lshl_b32 s9, {X}, 9"); e(f"s_lshl_b32 s10, {KC}, 7"); e("s_add_u32 s9, s9, s10")
    e(f"s_mul_i32 s10, {WAVE}, 43"); e("s_lshr_b32 s10, s10, 8")
    e("s_mul_i32 s11, s10, 6"); e(f"s_sub_u32 s11, {WAVE}, s11")
    e("s_lshl_b32 s14, s10, 2"); e("s_add_u32 s9, s9, s14")
    e("s_mul_i32 s66, s9, 1536"); e("s_lshl_b32 s14, s11, 8"); e("s_add_u32 s66, s66, s14")
    e(f"s_mul_i32 s67, s10, {CH_KB}"); e("s_lshl_b32 s14, s11, 10"); e("s_add_u32 s67, s67, s14")
    kernarg_ready()
    srd(SA, P_CKV, 6291456)
    stamp("y: start", 0xfffff)
    if OPT.get("ystop", 0) == 1: e("s_branch Y_END")
    if not OPT.get("earlytouch", 1): code_touch(120)
    tlb_warm(14)
    ynt = OPT["ynt"]
    SL = 4 * CH_KB
    def chunk_dma(ch):
        sk = uid("YCD")
        e(f"s_cmp_ge_u32 {WAVE}, 12"); e(f"s_cbranch_scc1 {sk}")
        e(f"s_add_u32 s10, s67, {(ch % 4) * SL}"); e(f"s_add_u32 s11, s66, {ch * 16 * 1536}")
        for i in range(2):
            e("s_mov_b32 m0, s10"); e(f"s_add_u32 s10, s10, {2*CH_KB}")
            e(f"buffer_load_dwordx4 v15, {sr(SA)}, s11 offen{' nt' if ynt else ''} lds")
            e(f"s_add_u32 s11, s11, {8*1536}")
        lab(sk)
    chunk_dma(0); chunk_dma(1); chunk_dma(2)
    e(f"v_lshlrev_b32 v5, 2, v0"); e(f"v_add_u32 v5, {YL_PF}, v5"); e("v_mov_b32 v6, 0"); e("ds_write_b32 v5, v6")
    e(f"s_and_b32 s68, {WAVE}, 3"); e(f"s_lshr_b32 s69, {WAVE}, 2")
    e(f"v_lshrrev_b32 v5, 2, {L15}")
    e(f"v_mul_u32_u24 v5, {CH_KB}, v5")
    e(f"v_and_b32 v6, 3, {L15}"); e("v_lshl_add_u32 v5, v6, 5, v5")
    e(f"v_lshrrev_b32 v6, 1, {G}"); e("v_lshl_add_u32 v5, v6, 7, v5")
    e(f"v_and_b32 v6, 1, {G}"); e("v_lshl_add_u32 v5, v6, 4, v5")
    e("s_mul_i32 s9, s69, 1536"); e("v_add_u32 v13, s9, v5")
    e(f"v_mul_u32_u24 v5, {CH_KB}, {G}"); e(f"v_lshl_add_u32 v5, {L15}, 3, v5")
    e(f"s_mul_i32 s9, {WAVE}, 384"); e("v_add_u32 v14, s9, v5")
    e(f"v_add_u32 v8, {2*SL}, v14"); e(f"v_add_u32 v11, {2*SL}, v13")
    for n in range(2):
        e(f"v_add_u32 v{6+n}, {1024*n}, v0")
        e(f"s_mov_b32 s9, 43691")
        e(f"v_mul_lo_u32 v{9+n}, v{6+n}, s9"); e(f"v_lshrrev_b32 v{9+n}, 23, v{9+n}")
        e(f"v_mul_u32_u24 v12, 192, v{9+n}"); e(f"v_sub_u32 v12, v{6+n}, v12")
        e(f"v_mul_u32_u24 v{9+n}, 1552, v{9+n}"); e(f"v_lshl_add_u32 v{9+n}, v12, 3, v{9+n}")
        e(f"v_add_u32 v{9+n}, {YL_QA}, v{9+n}")
        e(f"v_lshlrev_b32 v{6+n}, 4, v{6+n}")
    SF, PVF = 16, 64
    def read_frags(c):
        sb, pb = ("v13", "v14") if (c % 4) < 2 else ("v11", "v8")
        so = (c % 2) * SL
        sk = uid("YSR")
        e(f"s_cmp_lg_u32 s68, {c >> 1}"); e(f"s_cbranch_scc1 {sk}")
        for i in range(6): e(f"ds_read_b128 {vr(SF+4*(6*(c&1)+i),4)}, {sb} offset:{so+256*i}")
        lab(sk)
        for a in range(3):
            b = PVF + ((c >> 1) * 3 + a) * 4 + 2 * (c & 1)
            e(f"ds_read_b64_tr_b16 {vr(b,2)}, {pb} offset:{so+a*128}")
    for c in range(8):
        rem = min(7, c + 2) - c
        e(f"s_waitcnt vmcnt({2*rem})"); barrier()
        if c + 3 <= 7: chunk_dma(c + 3)
        if c == 3: code_touch_range("Y_E2D", 2, 120, 15)
        read_frags(c)
    get_tag()
    hello_publish(120)
    stamp("y: C landed", 9|(1<<16))
    if OPT.get("ystop", 0) == 2:
        barrier(); stamp("y: all landed"); e("s_branch Y_END")
    srd(SA, P_WO, 7864320)
    e(f"v_lshrrev_b32 v5, 5, {LANE}"); e("v_lshlrev_b32 v5, 2, v5"); e(f"v_bfe_u32 v12, {LANE}, 1, 2"); e("v_add_u32 v5, v5, v12")
    e("v_mul_u32_u24 v5, 1280, v5")
    e(f"v_bfe_u32 v12, {LANE}, 3, 2"); e("v_lshl_add_u32 v5, v12, 5, v5")
    e(f"v_and_b32 v12, 1, {LANE}"); e("v_lshl_add_u32 v0, v12, 4, v5")
    e(f"s_mul_i32 s67, {X}, 768"); e(f"s_lshl_b32 s10, {WAVE}, 3"); e("s_add_u32 s67, s67, s10"); e("s_mul_i32 s67, s67, 1280")
    e(f"s_lshl_b32 s10, {J}, 7"); e("s_add_u32 s67, s67, s10")
    e(f"s_lshl_b32 s66, {WAVE}, 10")
    WOS = "%05d" % OPT.get("wos", 11103)
    assert sum(int(c) for c in WOS) == 6
    def wo_point(pt):
        for _ in range(int(WOS[pt])):
            if pt == 2 and OPT.get("wohi", 1): wo_batch_hi("v0")
            else: wo_batch("v0")
    def wo_batch_hi(vreg):
        sk = uid("YWH"); lo = uid("YWL")
        nt_ = ' nt' if OPT.get('wont', 1) else ''
        e(f"s_cmp_ge_u32 {J}, 10"); e(f"s_cbranch_scc1 {sk}")
        e(f"s_cmp_lt_u32 {WAVE}, 8"); e(f"s_cbranch_scc1 {lo}")
        e("s_mov_b32 m0, s66"); e(f"s_sub_u32 s9, s66, {8*1024}"); e(f"s_sub_u32 s10, s67, {64*1280}")
        e(f"buffer_load_dwordx4 {vreg}, {sr(SA)}, s67 offen{nt_} lds")
        e("s_mov_b32 m0, s9"); e("s_nop 0")
        e(f"buffer_load_dwordx4 {vreg}, {sr(SA)}, s10 offen{nt_} lds")
        lab(lo)
        e(f"s_add_u32 s66, s66, {16*1024}"); e(f"s_add_u32 s67, s67, {128*1280}")
        lab(sk)
    def wo_batch(vreg, late=False):
        sk = uid("YWO")
        e(f"s_cmp_ge_u32 {J}, 10"); e(f"s_cbranch_scc1 {sk}")
        e("s_mov_b32 m0, s66"); e(f"s_add_u32 s66, s66, {16*1024}")
        e(f"buffer_load_dwordx4 {vreg}, {sr(SA)}, s67 offen{' nt' if OPT.get('wont', 1) else ''} lds")
        e(f"s_add_u32 s67, s67, {128*1280}")
        lab(sk)
    wo_point(0)
    e(f"s_mul_i32 s9, {HG}, 24576"); e(f"s_add_u32 s9, s9, {WS_QA}")
    e(f"s_cmp_ge_u32 {WAVE}, 8"); e("s_cbranch_scc1 Y_E2B")
    stamp("y: E2 poll start", 1<<16)
    poll([f"buffer_load_dwordx4 {vr(112+4*n,4)}, v{6+n}, {sr(WS)}, s9 offen sc1" for n in range(2)],
         [113, 115, 117, 119], 120)
    stamp("y: E2 poll end", 1<<16); stamp_val("E2 iters", "s13", 1<<16)
    for n in range(2):
        e(f"v_mov_b32 v{113+4*n}, v{114+4*n}")
        e(f"ds_write_b64 v{9+n}, {vr(112+4*n,2)}")
    e("s_branch Y_E2D")
    lab("Y_E2B")
    poll([f"buffer_load_dwordx4 v[112:115], v6, {sr(WS)}, s9 offen sc1"], [113, 115], 120)
    e("v_mov_b32 v113, v114"); e("ds_write_b64 v9, v[112:113]")
    lab("Y_E2D")
    stamp("y: qabs gathered", 9|128)
    barrier()
    stamp("y: after E2 barrier", 8|(1<<16))
    wo_point(1)
    e(f"v_and_b32 v5, 7, {L15}"); e("v_mul_u32_u24 v5, 1552, v5"); e(f"v_lshl_add_u32 v5, {G}, 4, v5")
    e(f"s_mul_i32 s9, s69, 384"); e(f"s_add_u32 s9, s9, {YL_QA}"); e("v_add_u32 v5, s9, v5")
    for i in range(4): e(f"ds_read_b128 {vr(112+4*i,4)}, v5 offset:{64*i}")
    e(f"v_mul_u32_u24 v6, 272, {G}"); e(f"v_lshl_add_u32 v6, {L15}, 4, v6")
    e("s_lshl_b32 s9, s69, 3"); e("s_lshl_b32 s10, s68, 1"); e("s_add_u32 s9, s9, s10"); e("s_mul_i32 s9, s9, 1088")
    e(f"s_add_u32 s9, s9, {YL_SP}"); e("v_add_u32 v6, s9, v6")
    for i in range(6):
        rem = min(6, i + 4) - (i + 1)
        e(f"s_waitcnt lgkmcnt({rem})")
        mfma(8, SF + 4 * i, 112 + 4 * (i % 4), "0" if i == 0 else None)
        mfma(12, SF + 4 * (6 + i), 112 + 4 * (i % 4), "0" if i == 0 else None)
        if i + 4 < 6:
            e(f"ds_read_b128 {vr(112+4*(i%4),4)}, v5 offset:{64*(i+4)}")
    e("s_nop 7")
    e("ds_write_b128 v6, v[8:11]"); e("ds_write_b128 v6, v[12:15] offset:1088")
    barrier()
    stamp("y: S partial done", 10)
    wo_point(2)
    e(f"s_cmp_ge_u32 {WAVE}, 8"); e("s_cbranch_scc1 Y_SMD")
    e(f"v_mul_u32_u24 v5, 1088, {G}")
    e(f"v_bfe_u32 v6, {LANE}, 2, 2"); e("v_mul_u32_u24 v7, 272, v6")
    e(f"v_and_b32 v12, 3, {LANE}"); e("v_lshlrev_b32 v8, 2, v12")
    e("v_add3_u32 v5, v5, v7, v8")
    e(f"s_lshl_b32 s9, {WAVE}, 4"); e(f"s_add_u32 s9, s9, {YL_SP}"); e("v_add_u32 v5, s9, v5")
    for kq in range(4):
        e(f"ds_read_b32 v{112+kq}, v5 offset:{8704*kq}"); e(f"ds_read_b32 v{116+kq}, v5 offset:{8704*kq+4352}")
    e(f"v_lshrrev_b32 v7, 5, {LANE}"); e("v_lshlrev_b32 v7, 10, v7")
    e("v_lshl_add_u32 v7, v6, 8, v7")
    e(f"v_bfe_u32 v8, {LANE}, 4, 1"); e("v_lshl_add_u32 v7, v8, 3, v7")
    e("v_lshl_add_u32 v7, v12, 1, v7")
    e(f"s_lshl_b32 s9, {WAVE}, 4"); e(f"s_add_u32 s9, s9, {YL_PF}"); e("v_add_u32 v7, s9, v7")
    e("s_waitcnt lgkmcnt(0)")
    e("v_add_f32 v112, v112, v113"); e("v_add_f32 v114, v114, v115"); e("v_add_f32 v116, v116, v117"); e("v_add_f32 v118, v118, v119")
    e("v_add_f32 v112, v112, v114"); e("v_add_f32 v114, v116, v118")
    e("v_max_f32 v116, v112, v114")
    wave_allreduce("v_max_f32", 116, 117)
    e("v_sub_f32 v112, v112, v116"); e("v_sub_f32 v114, v114, v116")
    e("v_exp_f32 v112, v112"); e("v_exp_f32 v114, v114"); e("s_nop 0")
    e("v_cvt_pk_bf16_f32 v112, v112, v114")
    e("ds_write_b16 v7, v112"); e("ds_write_b16_d16_hi v7, v112 offset:2048")
    e(f"s_lshl_b32 s9, {WAVE}, 2"); e(f"s_add_u32 s9, s9, {YL_M}"); e("v_mov_b32 v5, s9")
    e("s_mov_b64 exec, 1")
    e("ds_write_b32 v5, v116")
    exec_all()
    lab("Y_SMD")
    barrier()
    stamp("y: P ready", 10)
    wo_point(3)
    e(f"v_lshlrev_b32 v5, 4, {LANE}"); e(f"v_add_u32 v5, {YL_PF}, v5")
    for ks in range(4): e(f"ds_read_b128 {vr(112+4*ks,4)}, v5 offset:{1024*ks}")
    e(f"v_and_b32 v6, 7, {L15}"); e("v_mul_u32_u24 v6, 96, v6"); e(f"v_lshl_add_u32 v6, {G}, 3, v6")
    e(f"s_mul_i32 s9, {WAVE}, 768"); e(f"s_add_u32 s9, s9, {YL_SP}"); e("v_add_u32 v6, s9, v6")
    e(f"v_lshrrev_b32 v7, 3, {LANE}"); e("v_mul_u32_u24 v12, 96, v7"); e(f"v_and_b32 v5, 7, {LANE}"); e("v_mul_u32_u24 v8, 12, v5")
    e("v_add3_u32 v12, v12, v8, s9")
    e("v_mul_u32_u24 v7, 69632, v7"); e("v_lshl_add_u32 v5, v5, 4, v7")
    e(f"s_mul_i32 s9, {HG}, {8*69632}"); e(f"s_lshl_b32 s10, {X}, 2"); e(f"s_add_u32 s10, s10, {KC}")
    e("s_mul_i32 s11, s10, 2176"); e("s_add_u32 s9, s9, s11"); e(f"s_add_u32 s68, s9, {WS_E3 + 2048}")
    e(f"s_lshl_b32 s11, {WAVE}, 7"); e("s_add_u32 s9, s9, s11"); e(f"s_add_u32 s9, s9, {WS_E3}")
    if OPT.get("pvprio", 1):
        for q in range(3):
            sk = uid("PR")
            e(f"s_cmp_lg_u32 s69, {q}"); e(f"s_cbranch_scc1 {sk}"); e(f"s_setprio {3-q}"); lab(sk)
    for ks in range(4):
        e(f"s_waitcnt lgkmcnt({3-ks})")
        for a in range(3):
            mfma(16 + 4 * a, PVF + (ks * 3 + a) * 4, 112 + 4 * ks, "0" if ks == 0 else None)
    e(f"s_cmp_lg_u32 {WAVE}, 15"); e("s_cbranch_scc1 Y_NL")
    for i in range(4): e(f"v_mov_b32 v{32+i}, 0x3f803f80")
    e(f"v_and_b32 v41, 7, {L15}"); e("v_lshlrev_b32 v41, 2, v41"); e(f"v_add_u32 v41, {YL_M}, v41")
    e("ds_read_b32 v40, v41")
    for ks in range(4): mfma(36, 32, 112 + 4 * ks, "0" if ks == 0 else None)
    lab("Y_NL")
    e("s_nop 7")
    stamp("y: PV mfma done", 8)
    for a in range(3):
        e(f"v_cvt_pk_bf16_f32 v{44+2*a}, v{16+4*a}, v{17+4*a}"); e(f"v_cvt_pk_bf16_f32 v{45+2*a}, v{18+4*a}, v{19+4*a}")
    set_exec64(0x00ff00ff00ff00ff)
    for a in range(3): e(f"ds_write_b64 v6, {vr(44+2*a,2)} offset:{32*a}")
    exec_all()
    e("s_waitcnt lgkmcnt(0)")
    e("ds_read2_b32 v[52:53], v12 offset1:1"); e("ds_read_b32 v54, v12 offset:8")
    e("s_waitcnt lgkmcnt(0)")
    e("v_bitop3_b32 v55, v52, v53, v54 bitop3:0x96"); e(f"v_xor_b32 v55, {VTAG}, v55")
    e(f"buffer_store_dwordx4 v[52:55], v5, {sr(WS)}, s9 offen{SCG}")
    e(f"s_cmp_lg_u32 {WAVE}, 15"); e("s_cbranch_scc1 Y_P3D")
    e(f"s_mov_b32 s9, 69632"); e(f"v_mul_lo_u32 v5, {L15}, s9"); e("s_mov_b32 s9, s68")
    e("s_waitcnt lgkmcnt(0)")
    e("v_mov_b32 v56, v40"); e("v_mov_b32 v57, v36"); e("v_mov_b32 v58, 0"); e("v_bitop3_b32 v59, v56, v57, v4 bitop3:0x96")
    e("s_mov_b64 exec, 0xff")
    e(f"buffer_store_dwordx4 v[56:59], v5, {sr(WS)}, s9 offen{SCG}")
    exec_all()
    lab("Y_P3D")
    stamp("y: ctxlat published", 9|16|128|1024)
    if OPT["stamps"] & 16:
        e("s_waitcnt vmcnt(0)"); stamp("y: E3 stores complete", 16); barrier(); stamp("y: all waves stores complete", 16)
    if OPT.get("ystop", 0) == 3: e("s_branch Y_END")
    e(f"s_cmp_ge_u32 {J}, 10"); e("s_cbranch_scc1 Y_MLP")
    wo_point(4)
    e("s_waitcnt vmcnt(0)")
    code_touch_range("Y_B5", 1, 120, 15)
    stamp("y: wo landed", 1|256)
    barrier()
    e(f"s_cmp_ge_u32 {WAVE}, 12"); e("s_cbranch_scc1 Y_B5")
    e(f"v_lshlrev_b32 v5, 10, {G}"); e(f"v_lshl_add_u32 v5, {L15}, 3, v5")
    e(f"s_lshl_b32 s9, {WAVE}, 13"); e("v_add_u32 v5, s9, v5")
    for ksl in range(2):
        for t in range(4):
            b = 64 + (ksl * 4 + t) * 4
            e(f"ds_read_b64_tr_b16 {vr(b,2)}, v5 offset:{ksl*4096+t*128}")
            e(f"ds_read_b64_tr_b16 {vr(b+2,2)}, v5 offset:{ksl*4096+512+t*128}")
        if ksl == 0: e("s_waitcnt lgkmcnt(0)")
    e(f"v_lshlrev_b32 v5, 4, {LANE}")
    e(f"s_mul_i32 s9, {X}, 12288"); e(f"s_lshl_b32 s10, {WAVE}, 10"); e("s_add_u32 s9, s9, s10")
    e(f"s_add_u32 s9, s9, {WS_E4}")
    e(f"s_mul_i32 s10, s64, 1552"); e("s_lshl_b32 s11, s65, 9"); e("s_add_u32 s10, s10, s11"); e(f"s_add_u32 s10, s10, {YL_QA}")
    e(f"v_lshl_add_u32 v6, {LANE}, 3, s10")
    e(f"v_and_b32 v7, 3, {LANE}"); e("v_mul_u32_u24 v7, 1552, v7"); e(f"v_lshl_add_u32 v7, {G}, 4, v7")
    e(f"s_lshl_b32 s10, {WAVE}, 7"); e(f"s_add_u32 s10, s10, {YL_QA}"); e("v_add_u32 v7, s10, v7")
    e(f"v_lshlrev_b32 v9, 2, {LANE}"); e(f"v_add_u32 v9, {YL_R}, v9")
    e(f"s_lshl_b32 s10, {WAVE}, 8"); e("v_add_u32 v8, s10, v9")
    e(f"v_cmp_eq_u32 s[66:67], 1, {G}"); e(f"v_cmp_eq_u32 s[68:69], 2, {G}"); e(f"v_cmp_eq_u32 s[42:43], 3, {G}")
    stamp("y: E4 poll start", 256)
    poll([f"buffer_load_dwordx4 v[96:99], v5, {sr(WS)}, s9 offen sc1"], [97, 99], 112)
    stamp("y: ctx gathered", 1|128|256|2048)
    stamp_val("E4 iters", "s13", 256)
    e("v_mov_b32 v97, v98")
    e("ds_write_b64 v6, v[96:97]")
    lab("Y_B5")
    barrier()
    stamp("y: after B5", 2048)
    e(f"s_cmp_ge_u32 {WAVE}, 12"); e("s_cbranch_scc1 Y_B6")
    e("ds_read_b128 v[96:99], v7"); e("ds_read_b128 v[104:107], v7 offset:64")
    e("s_waitcnt lgkmcnt(1)")
    for t in range(4): mfma(16 + 4 * t, 96, 64 + 4 * t, "0")
    e("s_waitcnt lgkmcnt(0)")
    for t in range(4): mfma(16 + 4 * t, 104, 64 + 16 + 4 * t)
    e("s_nop 4")
    for t in range(4):
        b = 16 + 4 * t
        e(f"v_add_f32 v{b}, v{b}, v{b+1}"); e(f"v_add_f32 v{b+2}, v{b+2}, v{b+3}")
    for t in range(4):
        b = 16 + 4 * t
        e(f"v_add_f32 v{b}, v{b}, v{b+2}")
    e("v_cndmask_b32 v16, v16, v20, s[66:67]"); e("v_cndmask_b32 v16, v16, v24, s[68:69]"); e("v_cndmask_b32 v16, v16, v28, s[42:43]")
    e("ds_write_b32 v8, v16")
    lab("Y_B6")
    stamp("y: P5 mfma+red done", 2048)
    barrier()
    stamp("y: after B6", 2048)
    e(f"s_cmp_lg_u32 {WAVE}, 0"); e("s_cbranch_scc1 Y_END")
    for i in range(6): e(f"ds_read2st64_b32 {vr(16+2*i,2)}, v9 offset0:{2*i} offset1:{2*i+1}")
    e(f"s_mul_i32 s9, {X}, 2560"); e(f"s_lshl_b32 s10, {J}, 8"); e("s_add_u32 s9, s9, s10")
    e(f"s_add_u32 s9, s9, {WS_E5}")
    e(f"v_lshlrev_b32 v5, 2, {LANE}")
    e("s_waitcnt lgkmcnt(0)")
    for i in range(6): e(f"v_add_f32 v{16+2*i}, v{16+2*i}, v{17+2*i}")
    e("v_add_f32 v16, v16, v18"); e("v_add_f32 v20, v20, v22"); e("v_add_f32 v24, v24, v26")
    e("v_add_f32 v16, v16, v20"); e("v_add_f32 v16, v16, v24")
    e("s_nop 1")
    e("v_mov_b32_dpp v17, v16 quad_perm:[1,1,3,3] row_mask:0xf bank_mask:0xf")
    e("v_cvt_pk_bf16_f32 v16, v16, v17"); e(f"v_mov_b32 v17, {VTAG}")
    set_exec64(0x5555555555555555)
    e(f"buffer_store_dwordx2 v[16:17], v5, {sr(WS)}, s9 offen{SCG}")
    exec_all()
    e("s_branch Y_END")
    lab("Y_MLP")
    e(f"s_mul_i32 s66, {X}, 6"); e(f"s_add_u32 s66, s66, {J}"); e("s_sub_u32 s66, s66, 10")
    srd(SA, P_WG, 1966080); srd(SB, P_WU, 1966080); srd(SC_, P_WD, 1966080); srd(SD, P_X, 1280)
    e(f"v_lshrrev_b32 v5, 4, {LANE}"); e("v_lshlrev_b32 v5, 2, v5"); e(f"v_bfe_u32 v6, {LANE}, 1, 2"); e("v_add_u32 v5, v5, v6")
    e("v_mul_u32_u24 v5, 3072, v5")
    e(f"v_bfe_u32 v6, {LANE}, 3, 1"); e("v_lshl_add_u32 v5, v6, 5, v5")
    e(f"v_and_b32 v6, 1, {LANE}"); e("v_lshl_add_u32 v15, v6, 4, v5")
    e(f"v_bfe_u32 v5, {LANE}, 1, 2"); e("v_mul_u32_u24 v5, 1280, v5")
    e(f"v_lshrrev_b32 v6, 3, {LANE}"); e("v_lshl_add_u32 v5, v6, 5, v5")
    e(f"v_and_b32 v6, 1, {LANE}"); e("v_lshl_add_u32 v14, v6, 4, v5")
    barrier()
    e(f"s_and_b32 s9, {WAVE}, 7")
    e(f"s_mul_i32 s11, s9, {5*16*3072}"); e("s_lshl_b32 s10, s66, 6"); e("s_add_u32 s11, s11, s10")
    e("s_mul_i32 s10, s9, 5120")
    e(f"s_cmp_ge_u32 {WAVE}, 8"); e("s_cbranch_scc1 Y_MU")
    dma_loop(15, SA, 10, 11, 5, 1024, 16 * 3072, OPT.get("mnt", 1))
    e("s_lshl_b32 s11, s66, 5"); e(f"s_lshl_b32 s10, {WAVE}, 2"); e("s_add_u32 s11, s11, s10"); e("s_mul_i32 s11, s11, 1280")
    e(f"s_mul_i32 s10, {WAVE}, 5120"); e(f"s_add_u32 s10, s10, {YL_MD}")
    dma_loop(14, SC_, 10, 11, 5, 1024, 256, OPT["ynt"])
    e("s_branch Y_MW")
    lab("Y_MU")
    e(f"s_add_u32 s10, s10, {YL_MU}")
    dma_loop(15, SB, 10, 11, 5, 1024, 16 * 3072, OPT.get("mnt", 1))
    lab("Y_MW")
    e(f"v_and_b32 v5, 31, {LANE}"); e("v_lshlrev_b32 v5, 3, v5"); e(f"s_lshl_b32 s9, {WAVE}, 8")
    e(f"s_cmp_ge_u32 {WAVE}, 5"); e("s_cbranch_scc1 Y_NX")
    e(f"buffer_load_dwordx2 v[110:111], v5, {sr(SD)}, s9 offen")
    lab("Y_NX")
    e("s_waitcnt vmcnt(0)")
    code_touch_range("Y_MPD", 2, 120, 15)
    stamp("y: mlp landed", 1|1024)
    barrier()
    if OPT.get("ystop", 0) == 4: e("s_branch Y_END")
    e(f"s_cmp_ge_u32 {WAVE}, 10"); e("s_cbranch_scc1 Y_MPD")
    e(f"v_lshlrev_b32 v5, 9, {G}"); e(f"v_lshl_add_u32 v5, {L15}, 3, v5")
    e(f"s_lshl_b32 s9, {WAVE}, 12"); e("v_add_u32 v5, s9, v5")
    for mat, base in ((0, YL_MG), (1, YL_MU)):
        for ksl in range(2):
            for t in range(2):
                b = 16 + mat * 16 + (ksl * 2 + t) * 4
                e(f"ds_read_b64_tr_b16 {vr(b,2)}, v5 offset:{base+ksl*2048+t*128}")
                e(f"ds_read_b64_tr_b16 {vr(b+2,2)}, v5 offset:{base+ksl*2048+256+t*128}")
        e("s_waitcnt lgkmcnt(0)")
    e(f"v_mul_u32_u24 v5, 10240, {G}"); e(f"v_lshl_add_u32 v5, {L15}, 3, v5")
    e(f"s_lshl_b32 s9, {WAVE}, 9"); e(f"s_add_u32 s9, s9, {YL_MD}"); e("v_add_u32 v5, s9, v5")
    for a in range(4):
        e(f"ds_read_b64_tr_b16 {vr(48+4*a,2)}, v5 offset:{128*a}")
        e(f"ds_read_b64_tr_b16 {vr(50+4*a,2)}, v5 offset:{5120+128*a}")
    lab("Y_MPD")
    e(f"v_lshlrev_b32 v9, 2, {LANE}"); e(f"v_add_u32 v9, {YL_G}, v9")
    e(f"s_lshl_b32 s9, {WAVE}, 8"); e("v_add_u32 v8, s9, v9")
    e(f"v_and_b32 v12, 31, {LANE}")
    e(f"s_lshl_b32 s9, {WAVE}, 6"); e(f"s_add_u32 s9, s9, {YL_HH}")
    e("v_lshl_add_u32 v10, v12, 1, s9"); e(f"v_lshl_add_u32 v11, {G}, 4, s9")
    e(f"v_lshlrev_b32 v12, 3, {LANE}")
    e(f"v_mov_b32 v13, {YL_ST}")
    e(f"v_lshlrev_b32 v14, 5, {G}"); e(f"s_lshl_b32 s9, {WAVE}, 8"); e(f"s_add_u32 s9, s9, {YL_H}"); e("v_add_u32 v14, s9, v14")
    e("s_mul_i32 s65, s66, 5120"); e(f"s_lshl_b32 s10, {WAVE}, 9"); e("s_add_u32 s65, s65, s10"); e(f"s_add_u32 s65, s65, {WS_E6}")
    e(f"v_cmp_eq_u32 s[66:67], 1, {G}"); e(f"v_cmp_eq_u32 s[68:69], 2, {G}"); e(f"v_cmp_eq_u32 s[42:43], 3, {G}")
    e(f"s_cmp_ge_u32 {WAVE}, 5"); e("s_cbranch_scc1 Y_MB6")
    e(f"v_and_b32 v6, 31, {LANE}"); e(f"v_lshrrev_b32 v5, 5, {LANE}"); e("v_mul_u32_u24 v5, 10240, v5"); e("v_lshl_add_u32 v5, v6, 4, v5")
    e(f"s_lshl_b32 s9, {WAVE}, 9"); e(f"s_add_u32 s9, s9, {WS_E5}")
    e("s_add_u32 s10, s9, 5120")
    stamp("y: E5 poll start", 4096)
    poll([f"buffer_load_dwordx4 {vr(80+4*i,4)}, v5, {sr(WS)}, {'s9' if i < 2 else 's10'} offen offset:{2560*(i%2)} sc1" for i in range(4)],
         [81, 83, 85, 87, 89, 91, 93, 95], 96)
    stamp("y: E5 poll end", 4096); stamp_val("E5 iters", "s13", 4096)
    for i in range(4):
        b = 80 + 4 * i
        if i == 0:
            e(f"v_lshlrev_b32 v100, 16, v{b}"); e(f"v_and_b32 v101, 0xffff0000, v{b}")
            e(f"v_lshlrev_b32 v102, 16, v{b+2}"); e(f"v_and_b32 v103, 0xffff0000, v{b+2}")
        else:
            e(f"v_lshlrev_b32 v104, 16, v{b}"); e(f"v_and_b32 v105, 0xffff0000, v{b}")
            e(f"v_lshlrev_b32 v106, 16, v{b+2}"); e(f"v_and_b32 v107, 0xffff0000, v{b+2}")
            for k in range(4): e(f"v_add_f32 v{100+k}, v{100+k}, v{104+k}")
    for k in range(4): e(f"v_mov_b32 v{104+k}, v{100+k}")
    e("s_nop 1")
    for k in range(4): e(f"v_permlane32_swap_b32 v{100+k}, v{104+k}")
    e(f"v_lshlrev_b32 v80, 16, v110"); e("v_and_b32 v81, 0xffff0000, v110"); e("v_lshlrev_b32 v82, 16, v111"); e("v_and_b32 v83, 0xffff0000, v111")
    for k in range(4): e(f"v_add_f32 v{100+k}, v{100+k}, v{104+k}")
    for k in range(4): e(f"v_add_f32 v{100+k}, v{100+k}, v{80+k}")
    e("v_lshlrev_b32 v5, 4, v6"); e(f"s_lshl_b32 s9, {WAVE}, 9"); e(f"s_add_u32 s9, s9, {YL_H}"); e("v_add_u32 v5, s9, v5")
    set_exec64(0xffffffff)
    e("ds_write_b128 v5, v[100:103]")
    exec_all()
    e("v_add_f32 v104, v100, v101"); e("v_add_f32 v106, v102, v103"); e("v_mul_f32 v105, v100, v100")
    e("v_add_f32 v104, v104, v106"); e("v_fmac_f32 v105, v101, v101"); e("v_fmac_f32 v105, v102, v102"); e("v_fmac_f32 v105, v103, v103")
    e("s_nop 1")
    row16_allreduce("v_add_f32", 104, 2)
    e("s_nop 1")
    for i in range(2): cross16("v_add_f32", 104 + i, 106)
    e(f"s_lshl_b32 s9, {WAVE}, 3"); e(f"s_add_u32 s9, s9, {YL_ST}"); e("v_mov_b32 v5, s9")
    e("s_mov_b64 exec, 1")
    e("ds_write_b64 v5, v[104:105]")
    exec_all()
    lab("Y_MB6")
    stamp("y: h gathered", 65|128|1024|4096)
    barrier()
    stamp("y: after MB6", 64)
    e(f"s_cmp_ge_u32 {WAVE}, 10"); e("s_cbranch_scc1 Y_MB7")
    e("ds_read_b128 v[80:83], v13"); e("ds_read_b128 v[84:87], v13 offset:16"); e("ds_read_b64 v[88:89], v13 offset:32")
    for ksl in range(2):
        e(f"ds_read_b128 {vr(92+8*ksl,4)}, v14 offset:{128*ksl}")
        e(f"ds_read_b128 {vr(96+8*ksl,4)}, v14 offset:{128*ksl+16}")
    e("s_waitcnt lgkmcnt(4)")
    for a, b in ((82, 83), (84, 85), (86, 87), (88, 89)):
        e(f"v_add_f32 v80, v80, v{a}"); e(f"v_add_f32 v81, v81, v{b}")
    e(f"v_mul_f32 v80, {F(1.0/640.0)}, v80")
    e(f"v_mul_f32 v81, {F(1.0/640.0)}, v81")
    e("v_fma_f32 v81, -v80, v80, v81")
    e("v_max_f32 v81, 0, v81")
    e(f"v_add_f32 v81, {F(1e-5)}, v81")
    e("v_rsq_f32 v81, v81"); e("s_nop 0")
    e("v_mul_f32 v80, v80, v81")
    e("s_waitcnt lgkmcnt(0)")
    for i in range(16): e(f"v_fma_f32 v{92+i}, v{92+i}, v81, -v80")
    for ksl in range(2):
        for i in range(4): e(f"v_cvt_pk_bf16_f32 v{108+4*ksl+i}, v{92+8*ksl+2*i}, v{93+8*ksl+2*i}")
    e("s_nop 1")
    for ksl in range(2):
        for mat in range(2):
            for t in range(2):
                mfma(64 + 8 * mat + 4 * t, 108 + 4 * ksl, 16 + mat * 16 + (ksl * 2 + t) * 4, "0" if ksl == 0 else None)
    e("s_nop 5")
    e("v_cndmask_b32 v64, v64, v68, s[66:67]"); e("v_cndmask_b32 v64, v64, v72, s[68:69]"); e("v_cndmask_b32 v64, v64, v76, s[42:43]")
    e("ds_write_b32 v8, v64")
    lab("Y_MB7")
    stamp("y: P6 done", 64)
    barrier()
    stamp("y: after MB7", 64)
    e(f"s_cmp_ge_u32 {WAVE}, 10"); e("s_cbranch_scc1 Y_END")
    for i in range(5): e(f"ds_read2st64_b32 {vr(80+2*i,2)}, v9 offset0:{2*i} offset1:{2*i+1}")
    e("s_waitcnt lgkmcnt(0)")
    for i in range(5): e(f"v_add_f32 v{80+2*i}, v{80+2*i}, v{81+2*i}")
    e("v_add_f32 v80, v80, v82"); e("v_add_f32 v84, v84, v86"); e("v_add_f32 v80, v80, v88"); e("v_add_f32 v80, v80, v84")
    e("v_mov_b32 v88, v80"); e("s_nop 1")
    e("v_permlane32_swap_b32 v80, v88")
    e("s_nop 1")
    e(f"v_mul_f32 v80, {F(-math.log2(math.e))}, v80"); e("v_exp_f32 v80, v80"); e("s_nop 0")
    e("v_add_f32 v80, 1.0, v80"); e("v_rcp_f32 v80, v80"); e("s_nop 0")
    e("v_mul_f32 v80, v80, v88")
    e("v_cvt_pk_bf16_f32 v80, v80, v80")
    set_exec64(0xffffffff)
    e("ds_write_b16 v10, v80")
    exec_all()
    e("s_waitcnt lgkmcnt(0)")
    e("ds_read_b128 v[80:83], v11")
    e("s_waitcnt lgkmcnt(0)")
    for a in range(4): mfma(84 + 4 * a, 80, 48 + 4 * a, "0")
    e("s_nop 5")
    e("v_cndmask_b32 v84, v84, v88, s[66:67]"); e("v_cndmask_b32 v84, v84, v92, s[68:69]"); e("v_cndmask_b32 v84, v84, v96, s[42:43]")
    e(f"v_mov_b32 v85, {VTAG}")
    e(f"buffer_store_dwordx2 v[84:85], v12, {sr(WS)}, s65 offen{SCG}")
    lab("Y_END")
    stamp("y: end", 65|128|1024|2048|4096)
    stamp_flush(nstamp[0])
    e("s_endpgm")

hdr = f"""; Kernarg layout (104 bytes): d_in[0..9], d_out, d_debug, d_ws
; @launch grid=(256,1,1) block=(1024,1,1) lds=163840
.amdgcn_target "amdgcn-amd-amdhsa--gfx950"
.text
.globl {NAME}_kernel
.p2align 8
.type {NAME}_kernel,@function
{NAME}_kernel:
"""
prologue()
x_program()
y_program()
lab("L_END")
e("s_endpgm")
ftr = f""".section .rodata,"a"
.p2align 6
.amdhsa_kernel {NAME}_kernel
  .amdhsa_next_free_vgpr 128
  .amdhsa_next_free_sgpr 102
  .amdhsa_accum_offset 128
  .amdhsa_group_segment_fixed_size 0
  .amdhsa_kernarg_size 104
  .amdhsa_user_sgpr_count 2
  .amdhsa_user_sgpr_kernarg_segment_ptr 1
  .amdhsa_system_sgpr_workgroup_id_x 1
.end_amdhsa_kernel
"""
open(sys.argv[1], "w").write(hdr + "\n".join(L) + "\n" + ftr)
```

```python
import sys, math, struct
def F(x): return "0x%08x" % struct.unpack("<I", struct.pack("<f", x))[0]
NAME = "sequential_preLN__compressed_kv_cla__glu_gated_glu__decode"

OPT = dict(stamps=0, ynt=1, xnt=1, spin=1 << 16, cpv_early=1, prefetch_code=1)
for a in sys.argv[2:]:
    k, v = a.split("="); OPT[k] = int(v)

L = []
def e(s): L.append("    " + s)
def lab(s): L.append(s + ":")
def cm(s): L.append("    ; " + s)
_uid = [0]
def uid(p):
    _uid[0] += 1
    return f"{p}_{_uid[0]}"

WS_EPOCH = 0
WS_HELLO = 0x1000
WS_E1 = 0x10000
WS_QA = 0x40000
WS_ML = 0x60000
WS_E4 = 0x70000
WS_E5 = 0x90000
WS_E6 = 0x100000
WS_ST = 0x180000
WS_E3 = 0x200000
WS_E1L = 0x600000
WS_SIZE = 0x700000

WAVE, X, J, TAG, H, R = "s3", "s4", "s5", "s6", "s7", "s8"
HH, KC = "s7", "s8"
P_X, P_CKV, P_WQ, P_WUK, P_WUV, P_WO, P_WG, P_WU, P_WD, P_OUT, P_WS = 16, 18, 20, 22, 24, 26, 30, 32, 34, 36, 40
WS, SA, SB, SC_, SD = 44, 48, 52, 56, 60
def sr(b, n=4): return f"s[{b}:{b+n-1}]"
def vr(b, n): return f"v[{b}:{b+n-1}]" if n > 1 else f"v{b}"
STAMP0 = 72
LANE, G, L15, VTAG = "v1", "v2", "v3", "v4"

def srd(b, ptr, size):
    e(f"s_mov_b32 s{b}, s{ptr}")
    e(f"s_mov_b32 s{b+1}, s{ptr+1}")
    e(f"s_mov_b32 s{b+2}, {size}")
    e(f"s_mov_b32 s{b+3}, 0x00020000")

nstamp = [0]
def stamp(name, grp=1):
    if not (OPT["stamps"] & grp): return
    i = nstamp[0]; nstamp[0] += 1
    if OPT.get("pmask", 1) and i >= 6: return
    cm(f"stamp {i}: {name}")
    sk = uid("STK")
    e(f"s_cmp_lg_u32 {WAVE}, {OPT.get('stampwave',0)}"); e(f"s_cbranch_scc1 {sk}")
    if i == 0:
        e("s_memrealtime s[98:99]")
    e(f"s_memtime s[{STAMP0+2*i}:{STAMP0+2*i+1}]")
    e("s_waitcnt lgkmcnt(0)")
    lab(sk)
def stamp_val(name, sreg, grp=1):
    if not (OPT["stamps"] & grp): return
    i = nstamp[0]; nstamp[0] += 1
    if OPT.get("pmask", 1) and i >= 6: return
    cm(f"stamp {i}: VALUE {name}")
    e(f"s_mov_b32 s{STAMP0+2*i}, {sreg}"); e(f"s_mov_b32 s{STAMP0+2*i+1}, 0x7fffffff")
def stamp_flush(n):
    if not OPT["stamps"]: return
    skip = uid("STF")
    e(f"s_cmp_lg_u32 {WAVE}, {OPT.get('stampwave',0)}"); e(f"s_cbranch_scc1 {skip}")
    e("s_mov_b64 exec, 1")
    e("s_lshl_b32 s9, s2, 8"); e(f"s_add_u32 s9, s9, {WS_ST}")
    e("v_mov_b32 v5, 0")
    if OPT.get("pmask", 1): n = min(n, 6)
    for i in range(n):
        e(f"v_mov_b32 v6, s{STAMP0+2*i}"); e(f"v_mov_b32 v7, s{STAMP0+2*i+1}")
        e(f"buffer_store_dwordx2 v[6:7], v5, {sr(WS)}, s9 offen offset:{8*i}")
        e("s_nop 1")
    e("v_mov_b32 v6, s98"); e("v_mov_b32 v7, s99")
    e(f"buffer_store_dwordx2 v[6:7], v5, {sr(WS)}, s9 offen offset:248")
    e("s_nop 1")
    e("v_mov_b32 v6, s96"); e("v_mov_b32 v7, s97")
    e(f"buffer_store_dwordx2 v[6:7], v5, {sr(WS)}, s9 offen offset:240")
    e("s_memrealtime s[96:97]"); e("s_waitcnt lgkmcnt(0)")
    e("v_mov_b32 v6, s96"); e("v_mov_b32 v7, s97")
    e(f"buffer_store_dwordx2 v[6:7], v5, {sr(WS)}, s9 offen offset:232")
    e("s_mov_b64 exec, -1")
    lab(skip)

def barrier():
    e("s_waitcnt lgkmcnt(0)")
    e("s_barrier")

def divmagic(T):
    return {12: (43, 9), 6: (43, 8), 3: (86, 8), 1: (1, 0)}[T]

def dma_pattern(vd, T, S, sp, t0, t1):
    M, sh = divmagic(T)
    e(f"v_lshrrev_b32 v{t0}, 3, {LANE}")
    if sp is not None:
        e(f"s_lshl_b32 s9, {sp}, 3")
        e(f"v_add_u32 v{t0}, s9, v{t0}")
    if T == 1:
        e(f"v_mov_b32 v{t1}, v{t0}")
        e(f"v_mov_b32 v{t0}, 0")
    else:
        e(f"v_mul_u32_u24 v{t1}, {M}, v{t0}")
        e(f"v_lshrrev_b32 v{t1}, {sh}, v{t1}")
        e(f"v_mul_u32_u24 v{vd}, {T}, v{t1}")
        e(f"v_sub_u32 v{t0}, v{t0}, v{vd}")
    e(f"v_lshlrev_b32 v{t1}, 2, v{t1}")
    e(f"v_bfe_u32 v{vd}, {LANE}, 1, 2")
    e(f"v_add_u32 v{t1}, v{t1}, v{vd}")
    e(f"s_mov_b32 s9, {S}")
    e(f"v_mul_lo_u32 v{t1}, v{t1}, s9")
    e(f"v_lshlrev_b32 v{t0}, 5, v{t0}")
    e(f"v_and_b32 v{vd}, 1, {LANE}")
    e(f"v_lshlrev_b32 v{vd}, 4, v{vd}")
    e(f"v_add3_u32 v{vd}, v{vd}, v{t0}, v{t1}")

def dma_loop(vd, srdb, s_m0, s_off, n, step_m, step_s, nt):
    lp = uid("DMA")
    e(f"s_mov_b32 s12, {n}")
    lab(lp)
    e(f"s_mov_b32 m0, s{s_m0}")
    e(f"s_add_u32 s{s_m0}, s{s_m0}, {step_m}")
    e(f"buffer_load_dwordx4 v{vd}, {sr(srdb)}, s{s_off} offen{' nt' if nt else ''} lds")
    e(f"s_add_u32 s{s_off}, s{s_off}, {step_s}")
    e("s_sub_u32 s12, s12, 1")
    e("s_cmp_lg_u32 s12, 0")
    e(f"s_cbranch_scc1 {lp}")

def row16_allreduce(op, v, nregs=1):
    for sh in (8, 4, 2, 1):
        if nregs < 3: e("s_nop 1")
        for i in range(nregs):
            e(f"{op}_dpp v{v+i}, v{v+i}, v{v+i} row_ror:{sh} row_mask:0xf bank_mask:0xf")
def cross16(op, v, t):
    e(f"v_mov_b32 v{t}, v{v}"); e("s_nop 1")
    e(f"v_permlane16_swap_b32 v{v}, v{t}"); e("s_nop 1")
    e(f"{op} v{v}, v{v}, v{t}")
def cross32(op, v, t):
    e(f"v_mov_b32 v{t}, v{v}"); e("s_nop 1")
    e(f"v_permlane32_swap_b32 v{v}, v{t}"); e("s_nop 1")
    e(f"{op} v{v}, v{v}, v{t}")
def wave_allreduce(op, v, t):
    e("s_nop 1")
    row16_allreduce(op, v)
    e("s_nop 1")
    cross16(op, v, t)
    cross32(op, v, t)

MASK0 = 84
def _poll_generic(loads, checks, vt, init=None, sleep=0):
    n = len(loads)
    lp = uid("POLL"); dn = uid("PDONE")
    masked = OPT.get("pmask", 1) and n <= 8
    e("s_mov_b32 s13, 0")
    if masked:
        e("s_mov_b64 s[100:101], exec")
        for i in range(n):
            if init and init[i] is not None:
                e(f"s_mov_b32 s{MASK0+2*i}, {init[i] & 0xffffffff:#x}"); e(f"s_mov_b32 s{MASK0+2*i+1}, {init[i] >> 32:#x}")
            else: e(f"s_mov_b64 s[{MASK0+2*i}:{MASK0+2*i+1}], exec")
    lab(lp)
    for i, s_ in enumerate(loads):
        if masked:
            sk = uid("PSK")
            e(f"s_mov_b64 exec, s[{MASK0+2*i}:{MASK0+2*i+1}]")
            if n > 1: e(f"s_cbranch_execz {sk}")
            e(s_)
            if n > 1: lab(sk)
        else: e(s_)
    e("s_waitcnt vmcnt(0)")
    if masked:
        for i in range(n):
            e(f"s_mov_b64 exec, s[{MASK0+2*i}:{MASK0+2*i+1}]")
            for c in checks[i]: e(c)
            e(f"v_cmp_ne_u32 vcc, 0, v{vt}")
            e(f"s_mov_b64 s[{MASK0+2*i}:{MASK0+2*i+1}], vcc")
            if i == 0: e("s_mov_b64 s[14:15], vcc")
            else: e("s_or_b64 s[14:15], s[14:15], vcc")
        e("s_mov_b64 exec, s[100:101]")
        e("s_add_u32 s13, s13, 1")
        e("s_cmp_eq_u64 s[14:15], 0")
    else:
        for i in range(n):
            for c in checks[i]: e(c.replace(f"v{vt},", f"v{vt+1},", 1).replace(f", v{vt}", f", v{vt+1}") if False else c)
            if i == 0: e(f"v_mov_b32 v{vt+2}, v{vt}")
            else: e(f"v_or_b32 v{vt+2}, v{vt+2}, v{vt}")
        e(f"v_cmp_ne_u32 vcc, 0, v{vt+2}")
        e("s_add_u32 s13, s13, 1")
        e("s_cmp_eq_u64 vcc, 0")
    e(f"s_cbranch_scc1 {dn}")
    if OPT.get("psleep", 0): e(f"s_sleep {OPT['psleep']}")
    elif sleep: e(f"s_sleep {sleep}")
    e(f"s_cmp_lt_u32 s13, {OPT['spin']}")
    e(f"s_cbranch_scc1 {lp}")
    if masked: e("s_mov_b64 exec, s[100:101]")
    lab(dn)

def poll(loads, tagregs, vt):
    per = len(tagregs) // len(loads)
    checks = []
    for i in range(len(loads)):
        tr = tagregs[i*per:(i+1)*per]
        if per == 1: checks.append([f"v_xor_b32 v{vt}, {TAG}, v{tr[0]}"])
        else: checks.append([f"v_xor_b32 v{vt}, {TAG}, v{tr[0]}", f"v_xor_b32 v{vt+1}, {TAG}, v{tr[1]}", f"v_or_b32 v{vt}, v{vt}, v{vt+1}"])
    _poll_generic(loads, checks, vt)

def pollx(loads, bases, vt, init=None, sleep=0):
    checks = [[f"v_bitop3_b32 v{vt}, v{b}, v{b+1}, v{b+2} bitop3:0x96", f"v_bitop3_b32 v{vt}, v{vt}, v{b+3}, {VTAG} bitop3:0x96"] for b in bases]
    _poll_generic(loads, checks, vt, init, sleep=sleep)

def poll2(loadsA, loadsB, tagregs, vt):
    lp = uid("POLL"); dn = uid("PDONE")
    e("s_mov_b32 s13, 0")
    lab(lp)
    for loads in (loadsA, loadsB):
        for s_ in loads: e(s_)
        e("s_waitcnt vmcnt(0)")
        tr = list(tagregs); first = True
        while tr:
            a_, b_ = tr.pop(0), tr.pop(0)
            e(f"v_xor_b32 v{vt+1}, {TAG}, v{a_}"); e(f"v_xor_b32 v{vt+2}, {TAG}, v{b_}")
            if first: e(f"v_or_b32 v{vt}, v{vt+1}, v{vt+2}")
            else: e(f"v_or3_b32 v{vt}, v{vt+1}, v{vt+2}, v{vt}")
            first = False
        e(f"v_cmp_ne_u32 vcc, 0, v{vt}")
        e("s_cmp_eq_u64 vcc, 0")
        e(f"s_cbranch_scc1 {dn}")
    e("s_add_u32 s13, s13, 1")
    e(f"s_cmp_lt_u32 s13, {OPT['spin']}")
    e(f"s_cbranch_scc1 {lp}")
    lab(dn)

def mfma(d, a, b, c=None):
    cs = vr(d, 4) if c is None else c
    e(f"v_mfma_f32_16x16x32_bf16 {vr(d,4)}, {vr(a,4)}, {vr(b,4)}, {cs}")

SCG = " sc1"
EXEC_L15_0 = 0x0001000100010001

def set_exec64(val):
    lo, hi = val & 0xffffffff, val >> 32
    e(f"s_mov_b32 exec_lo, {lo:#x}"); e(f"s_mov_b32 exec_hi, {hi:#x}")
def exec_all(): e("s_mov_b64 exec, -1")

def prologue():
    if OPT["stamps"] or OPT.get("diagx", 0): e("s_memrealtime s[96:97]")
    e("s_cmp_ge_u32 s2, 256")
    e("s_cbranch_scc1 L_END")
    e("s_load_dwordx16 s[16:31], s[0:1], 0")
    e("s_load_dwordx8 s[32:39], s[0:1], 64")
    e("s_load_dwordx2 s[40:41], s[0:1], 96")
    e(f"v_lshrrev_b32 v5, 6, v0")
    e(f"v_and_b32 {LANE}, 63, v0")
    e(f"v_readfirstlane_b32 {WAVE}, v5")
    e(f"v_lshrrev_b32 {G}, 4, {LANE}")
    if OPT.get("earlytouch", 1): code_touch(120)
    e(f"v_and_b32 {L15}, 15, {LANE}")
    e(f"s_and_b32 {X}, s2, 7")
    e(f"s_lshr_b32 {J}, s2, 3")
    e(f"s_mul_i32 s64, {WAVE}, 11"); e("s_lshr_b32 s64, s64, 5")
    e("s_mul_i32 s65, s64, 3"); e(f"s_sub_u32 s65, {WAVE}, s65")
    e(f"s_cmp_ge_u32 {J}, 16")
    e("s_cbranch_scc1 L_Y")

def kernarg_ready():
    e("s_waitcnt lgkmcnt(0)")
    e(f"s_load_dword {TAG}, s[{P_WS}:{P_WS+1}], 0")
    srd(WS, P_WS, WS_SIZE)

def get_tag():
    e("s_waitcnt lgkmcnt(0)")
    e(f"s_mul_i32 {TAG}, {TAG}, 1664525")
    e(f"s_add_u32 {TAG}, {TAG}, 1013904223")
    e(f"v_mov_b32 {VTAG}, {TAG}")

def hello_publish(vt):
    if not OPT.get("local", 1): return
    sk = uid("HEL")
    e(f"s_cmp_lg_u32 {WAVE}, 15"); e(f"s_cbranch_scc1 {sk}")
    e("s_getreg_b32 s9, hwreg(HW_REG_XCC_ID, 0, 4)")
    e(f"s_lshl_b32 s10, {X}, 8"); e("s_lshr_b32 s11, s2, 3"); e("s_lshl_b32 s11, s11, 3"); e("s_add_u32 s10, s10, s11"); e(f"s_add_u32 s10, s10, {WS_HELLO}")
    e(f"v_mov_b32 v{vt}, s9"); e(f"v_mov_b32 v{vt+1}, {TAG}"); e(f"v_mov_b32 v{vt+2}, 0")
    e("s_mov_b64 exec, 1")
    e(f"buffer_store_dwordx2 v[{vt}:{vt+1}], v{vt+2}, {sr(WS)}, s10 offen sc1")
    exec_all()
    lab(sk)

XL_U = 0
XL_UK = 61440
XL_MG, XL_MU, XL_MD = 73728, 94208, 114688
XL_S = 147456
XL_XN = XL_S
XL_Q = XL_S + 1280
XL_CL = XL_S + 2048
CL_RS = 400
XL_CB = XL_S + 14848
XL_W = XL_S + 15232
XL_FLAG = XL_S + 15360
XL_H = XL_S + 2048
XL_ST = XL_S + 4608
XL_G = XL_S + 4736
XL_HH = XL_S + 6144
XL_R2 = XL_S + 6400
XL_R = XL_S + 8192

def st_global(data, voff, soff):
    e(f"buffer_store_dwordx4 {data}, {voff}, {sr(WS)}, {soff} offen sc1")
def st_local(data, voff, soff):
    g = uid("STG"); d = uid("STD")
    e("s_nop 0"); e("v_readfirstlane_b32 s10, v123"); e("s_nop 3")
    e("s_cmp_eq_u32 s10, 1"); e(f"s_cbranch_scc0 {g}")
    e(f"buffer_store_dwordx4 {data}, {voff}, {sr(WS)}, {soff} offen")
    e(f"s_branch {d}")
    lab(g)
    e(f"buffer_store_dwordx4 {data}, {voff}, {sr(WS)}, {soff} offen sc1")
    lab(d)

XL_CX = None
def collect_store(acc, lds_base, soff_code, flavor, lbl):
    e(f"v_cvt_pk_bf16_f32 v124, v{acc}, v{acc+1}"); e(f"v_cvt_pk_bf16_f32 v125, v{acc+2}, v{acc+3}")
    e(f"v_lshlrev_b32 v5, 3, {G}"); e(f"s_lshl_b32 s9, {WAVE}, 5"); e(f"s_add_u32 s9, s9, {lds_base}"); e("v_add_u32 v5, s9, v5")
    set_exec64(EXEC_L15_0)
    e("ds_write_b64 v5, v[124:125]")
    exec_all()
    lab(lbl)
    barrier()
    sk = uid("CST")
    e(f"s_cmp_lg_u32 {WAVE}, 0"); e(f"s_cbranch_scc1 {sk}")
    e(f"v_lshlrev_b32 v5, 3, {LANE}"); e(f"v_add_u32 v6, {lds_base}, v5")
    set_exec64((1 << 48) - 1)
    e("ds_read_b64 v[124:125], v6")
    if flavor is st_local:
        e(f"v_mov_b32 v7, {XL_FLAG}"); e("ds_read_b32 v123, v7")
    soff_code()
    e(f"v_lshlrev_b32 v5, 4, {LANE}")
    e("s_waitcnt lgkmcnt(0)")
    e("v_mov_b32 v126, v125"); e(f"v_mov_b32 v125, {VTAG}"); e(f"v_mov_b32 v127, {VTAG}")
    flavor("v[124:127]", "v5", "s9")
    exec_all()
    lab(sk)

def code_touch(vd, wave=15):
    if not OPT["prefetch_code"]: return
    sk = uid("CT"); pc = uid("PC")
    e(f"s_cmp_lg_u32 {WAVE}, {wave}"); e(f"s_cbranch_scc1 {sk}")
    e("s_getpc_b64 s[10:11]")
    lab(pc)
    e(f"s_sub_u32 s10, s10, {pc}-{NAME}_kernel"); e("s_subb_u32 s11, s11, 0")
    e("s_lshr_b32 s9, s2, 3"); e("s_and_b32 s9, s9, 15"); e("s_lshl_b32 s9, s9, 10")
    e(f"v_lshl_add_u32 v{vd}, {LANE}, 4, s9")
    e(f"s_mov_b32 s9, L_END-{NAME}_kernel-16")
    e(f"v_min_u32 v{vd}, s9, v{vd}")
    e(f"global_load_dwordx4 v[{vd}:{vd+3}], v{vd}, s[10:11]")
    lab(sk)

def code_touch_range(lbl, nkb, vd, wave=15):
    if not OPT.get("retouch", 0): return
    sk = uid("CT"); pc = uid("PC")
    e(f"s_cmp_lg_u32 {WAVE}, {wave}"); e(f"s_cbranch_scc1 {sk}")
    e("s_getpc_b64 s[10:11]")
    lab(pc)
    e(f"s_sub_u32 s10, s10, {pc}-{NAME}_kernel"); e("s_subb_u32 s11, s11, 0")
    e(f"s_mov_b32 s9, {lbl}-{NAME}_kernel")
    e(f"v_lshl_add_u32 v{vd+4}, {LANE}, 4, s9")
    e(f"s_mov_b32 s9, L_END-{NAME}_kernel-16")
    for i in range(nkb):
        e(f"v_min_u32 v{vd+5}, s9, v{vd+4}")
        e(f"global_load_dwordx4 v[{vd}:{vd+3}], v{vd+5}, s[10:11]")
        if i + 1 < nkb: e(f"v_add_u32 v{vd+4}, 1024, v{vd+4}")
    lab(sk)

def tlb_warm(wave):
    if not OPT.get("tlbwarm", 0): return
    sk = uid("TW")
    e(f"s_cmp_lg_u32 {WAVE}, {wave}"); e(f"s_cbranch_scc1 {sk}")
    step = 1 << 20
    lst = [(P_WUV, 9437184), (P_WO, 7864320), (P_WG, 1966080), (P_WU, 1966080), (P_WD, 1966080), (P_WS, WS_SIZE), (P_OUT, 1280)]
    k = 0
    for ptr, size in lst:
        off = 0
        while off < size:
            if off < (1 << 20):
                e(f"s_load_dword s{84 + (k % 8)}, s[{ptr}:{ptr+1}], {off:#x}")
            else:
                e(f"s_mov_b32 s9, {off:#x}")
                e(f"s_load_dword s{84 + (k % 8)}, s[{ptr}:{ptr+1}], s9")
            k += 1; off += step
    lab(sk)

def x_program():
    lab("L_X")
    e(f"s_lshr_b32 s9, {J}, 2"); e(f"s_lshl_b32 {H}, {X}, 2"); e(f"s_add_u32 {H}, {H}, s9")
    e(f"s_and_b32 {R}, {J}, 3")
    dma_pattern(15, 12, 12288, "s65", 17, 18)
    if OPT.get("dmaexp", 0):
        e(f"v_lshrrev_b32 v17, 4, {LANE}"); e("s_lshl_b32 s9, s65, 2"); e("v_add_u32 v17, s9, v17"); e("v_mul_u32_u24 v17, 12288, v17")
        e(f"v_lshl_add_u32 v17, {L15}, 4, v17")
        e(f"v_lshrrev_b32 v18, 3, {LANE}"); e("v_mul_u32_u24 v18, 12288, v18"); e(f"v_and_b32 v15, 7, {LANE}"); e("v_lshl_add_u32 v18, v15, 4, v18"); e("v_add_u32 v18, 256, v18")
        e("s_cmp_eq_u32 s65, 2"); e("s_cselect_b64 vcc, -1, 0"); e("s_nop 1"); e("v_cndmask_b32 v15, v17, v18, vcc")
    e(f"v_cmp_lt_u32 vcc, 23, {LANE}"); e(f"v_subrev_u32 v6, 24, {LANE}"); e("s_nop 0")
    e(f"v_cndmask_b32 v14, {LANE}, v6, vcc"); e("v_lshlrev_b32 v14, 4, v14")
    e("v_mov_b32 v6, 12288"); e("v_cndmask_b32 v6, 0, v6, vcc"); e("v_add_u32 v14, v14, v6")
    e(f"v_lshlrev_b32 v5, 2, {LANE}")
    e(f"s_mul_i32 s10, {R}, 160"); e("s_lshl_b32 s11, s64, 3"); e("s_add_u32 s10, s10, s11")
    e("s_mul_i32 s11, s10, 12288"); e(f"s_mul_i32 s67, {H}, 384"); e("s_add_u32 s11, s11, s67")
    e(f"s_sub_u32 s9, {WAVE}, 12")
    e(f"s_mul_i32 s66, {R}, 192"); e("s_lshl_b32 s10, s9, 1"); e("s_add_u32 s66, s66, s10")
    e("s_mul_i32 s66, s66, 12288"); e("s_add_u32 s66, s66, s67")
    e(f"s_mul_i32 s68, s9, 800"); e(f"s_add_u32 s68, s68, {XL_UK}")
    e(f"s_lshl_b32 s10, {WAVE}, 10")
    kernarg_ready()
    srd(SA, P_WQ, 7864320); srd(SB, P_WUK, 9437184); srd(SC_, P_X, 1280)
    stamp("x: start", 0xfffff)
    e(f"s_cmp_eq_u32 {WAVE}, 15"); e("s_cbranch_scc1 X_LN")
    e(f"s_cmp_ge_u32 {WAVE}, 12"); e("s_cbranch_scc1 X_UKD")
    dma_loop(15, SA, 10, 11, 5, 12 * 1024, 32 * 12288, OPT["xnt"])
    e("s_barrier")
    e("s_waitcnt vmcnt(0)")
    e("s_branch X_B1")
    lab("X_UKD")
    e("s_barrier")
    set_exec64((1<<48)-1)
    npre = OPT.get("ukpre", 4)
    dma_loop(14, SB, 68, 66, npre, 3 * 800, 6 * 12288, OPT["xnt"])
    exec_all()
    lab("X_B1")
    get_tag()
    if OPT.get("diagw", 0):
        e("s_memtime s[76:77]"); e("s_waitcnt lgkmcnt(0)")
        e("s_barrier")
        e("s_memtime s[78:79]"); e("s_waitcnt vmcnt(0)"); e("s_memtime s[80:81]"); e("s_waitcnt lgkmcnt(0)")
        e("s_lshl_b32 s9, s2, 10"); e(f"s_lshl_b32 s10, {WAVE}, 6"); e("s_add_u32 s9, s9, s10"); e(f"s_add_u32 s9, s9, {WS_ST}")
        e("s_mov_b64 exec, 1"); e("v_mov_b32 v5, 0")
        for i, b in enumerate((72, 74, 76, 78, 80, 96)):
            e(f"v_mov_b32 v6, s{b}"); e(f"v_mov_b32 v7, s{b+1}")
            e(f"buffer_store_dwordx2 v[6:7], v5, {sr(WS)}, s9 offen offset:{8*i}"); e("s_nop 1")
        e("s_endpgm")
    stamp("x: wq landed", 9|32768)
    barrier()
    stamp("x: after B1", 8)
    e(f"s_cmp_ge_u32 {WAVE}, 12"); e("s_cbranch_scc1 X_UK2")
    e(f"v_mul_u32_u24 v5, 3072, {G}"); e(f"v_lshl_add_u32 v5, {L15}, 3, v5")
    e(f"s_lshl_b32 s9, {WAVE}, 7"); e("v_add_u32 v13, s9, v5")
    e(f"s_mul_i32 s9, {R}, 320"); e(f"s_add_u32 s9, s9, {XL_XN}")
    e(f"v_lshl_add_u32 v6, {G}, 4, s9")
    for ks in range(5):
        e(f"ds_read_b128 {vr(64+4*ks,4)}, v6 offset:{64*ks}")
        e(f"ds_read_b64_tr_b16 {vr(40+4*ks,2)}, v13 offset:{XL_U+ks*12288}")
        e(f"ds_read_b64_tr_b16 {vr(42+4*ks,2)}, v13 offset:{XL_U+ks*12288+1536}")
    e(f"s_lshl_b32 s9, {H}, 2"); e(f"s_add_u32 s9, s9, {R}"); e("s_mul_i32 s9, s9, 1536")
    e(f"s_lshl_b32 s10, {WAVE}, 7"); e("s_add_u32 s9, s9, s10"); e(f"s_add_u32 s9, s9, {WS_E1}")
    e(f"v_lshlrev_b32 v5, 3, {L15}")
    for ks in range(5):
        e(f"s_waitcnt lgkmcnt({3*(4-ks)})")
        mfma(88, 64 + 4 * ks, 40 + 4 * ks, "0" if ks == 0 else None)
    e("s_nop 7")
    e(f"v_mov_b32 v89, {VTAG}")
    e("s_mov_b64 exec, 0xffff")
    if OPT.get("e1dual", 1):
        e(f"s_add_u32 s10, s9, {WS_E1L - WS_E1}")
        e(f"buffer_store_dwordx2 v[88:89], v5, {sr(WS)}, s10 offen")
    e(f"buffer_store_dwordx2 v[88:89], v5, {sr(WS)}, s9 offen{SCG}")
    exec_all()
    stamp("x: q published", 9)
    e("s_branch X_B3")
    lab("X_UK2")
    e(f"s_cmp_eq_u32 {WAVE}, 15"); e("s_cbranch_scc1 X_B3")
    set_exec64((1<<48)-1)
    dma_loop(14, SB, 68, 66, 32 - OPT.get("ukpre", 4), 3 * 800, 6 * 12288, OPT["xnt"])
    exec_all()
    e(f"s_cmp_ge_u32 {WAVE}, 14"); e("s_cbranch_scc1 X_B3W")
    e(f"s_sub_u32 s9, {WAVE}, 12"); e("s_lshl_b32 s9, s9, 6"); e(f"v_add_u32 v5, s9, {LANE}")
    e("v_cmp_gt_u32 vcc, 96, v5"); e("s_and_saveexec_b64 s[42:43], vcc")
    e("v_lshlrev_b32 v6, 4, v5")
    e(f"s_mul_i32 s9, {H}, 6144"); e(f"s_add_u32 s9, s9, {WS_E1}")
    e("s_add_u32 s10, s9, 3072")
    stamp("x: E1 poll start", 8|32768)
    if OPT.get("e1dual", 1):
        e(f"s_add_u32 s11, s9, {WS_E1L - WS_E1}"); e(f"s_add_u32 s69, s10, {WS_E1L - WS_E1}")
        mk = lambda sa, sb: [f"buffer_load_dwordx4 v[92:95], v6, {sr(WS)}, {sa} offen sc1",
                             f"buffer_load_dwordx4 v[96:99], v6, {sr(WS)}, {sa} offen offset:1536 sc1",
                             f"buffer_load_dwordx4 v[100:103], v6, {sr(WS)}, {sb} offen sc1",
                             f"buffer_load_dwordx4 v[104:107], v6, {sr(WS)}, {sb} offen offset:1536 sc1"]
        poll2(mk("s11", "s69"), mk("s9", "s10"), [93, 95, 97, 99, 101, 103, 105, 107], 108)
    else:
        poll([f"buffer_load_dwordx4 v[92:95], v6, {sr(WS)}, s9 offen sc1",
              f"buffer_load_dwordx4 v[96:99], v6, {sr(WS)}, s9 offen offset:1536 sc1",
              f"buffer_load_dwordx4 v[100:103], v6, {sr(WS)}, s10 offen sc1",
              f"buffer_load_dwordx4 v[104:107], v6, {sr(WS)}, s10 offen offset:1536 sc1"],
             [93, 95, 97, 99, 101, 103, 105, 107], 108)
    stamp("x: E1 poll end", 8|32768); stamp_val("E1 iters", "s13", 8)
    e("v_add_f32 v92, v92, v96"); e("v_add_f32 v94, v94, v98")
    e("v_add_f32 v100, v100, v104"); e("v_add_f32 v102, v102, v106")
    e("v_add_f32 v92, v92, v100"); e("v_add_f32 v94, v94, v102")
    qs = 192 ** -0.5 * math.log2(math.e)
    e(f"v_mul_f32 v92, {F(qs)}, v92"); e(f"v_mul_f32 v94, {F(qs)}, v94")
    e("v_cvt_pk_bf16_f32 v92, v92, v94")
    e("v_lshlrev_b32 v6, 2, v5"); e(f"v_add_u32 v6, {XL_Q}, v6")
    e("ds_write_b32 v6, v92")
    e("s_mov_b64 exec, s[42:43]")
    lab("X_B3W")
    e("s_waitcnt vmcnt(0)")
    lab("X_B3")
    barrier()
    stamp("x: q gathered", 9|32768)
    e(f"s_cmp_ge_u32 {WAVE}, 12"); e("s_cbranch_scc1 X_P2B")
    e(f"v_lshlrev_b32 v6, 4, {G}"); e(f"v_add_u32 v6, {XL_Q}, v6")
    e(f"v_lshrrev_b32 v7, 1, {L15}"); e("v_mul_u32_u24 v7, 800, v7")
    e(f"v_and_b32 v8, 1, {L15}"); e("v_mul_u32_u24 v8, 384, v8"); e("v_add_u32 v7, v7, v8")
    e(f"v_lshl_add_u32 v7, {G}, 4, v7")
    e(f"s_mul_i32 s9, {WAVE}, 6400"); e(f"s_add_u32 s9, s9, {XL_UK}"); e("v_add_u32 v7, s9, v7")
    for ks in range(6):
        e(f"ds_read_b128 {vr(16+4*ks,4)}, v7 offset:{64*ks}")
        e(f"ds_read_b128 {vr(64+4*ks,4)}, v6 offset:{64*ks}")
    for ks in range(6):
        e(f"s_waitcnt lgkmcnt({2*(5-ks)})")
        mfma(88, 16 + 4 * ks, 64 + 4 * ks, "0" if ks == 0 else None)
    e("s_nop 7")
    def soff_qa():
        e(f"s_mul_i32 s9, {H}, 3072"); e(f"s_mul_i32 s10, {R}, 768"); e("s_add_u32 s9, s9, s10"); e(f"s_add_u32 s9, s9, {WS_QA}")
    collect_store(88, XL_CB, soff_qa, st_global, "X_P2B")
    stamp("x: qabs published", 9|128|256|32768|(1<<16))
    if OPT.get("xstop", 0) == 1:
        e("s_waitcnt vmcnt(0)"); barrier(); stamp("x: all waves done"); e("s_branch X_END")
    if OPT.get("qawait", 0):
        e("s_waitcnt vmcnt(0)"); barrier()
    srd(SA, P_WUV, 9437184)
    e(f"s_cmp_ge_u32 {WAVE}, 12"); e("s_cbranch_scc1 X_B4")
    e(f"s_mul_i32 s10, {R}, 192"); e("s_lshl_b32 s11, s64, 3"); e("s_add_u32 s10, s10, s11")
    e("s_mul_i32 s11, s10, 12288"); e("s_add_u32 s11, s11, s67")
    e(f"s_lshl_b32 s10, {WAVE}, 10"); e(f"s_add_u32 s10, s10, {XL_U}")
    dma_loop(15, SA, 10, 11, 6, 12 * 1024, 32 * 12288, OPT["xnt"])
    lab("X_B4")
    PFNT = " nt" if OPT.get("pfnt", 0) else ""
    if OPT.get("wopf", 0):
        sk = uid("PFO")
        srd(SB, P_WO, 7864320)
        e(f"s_cmp_eq_u32 {WAVE}, 15"); e(f"s_cbranch_scc1 {sk}")
        e(f"s_mul_i32 s9, {X}, 768"); e(f"s_mul_i32 s10, {J}, 48"); e("s_add_u32 s9, s9, s10"); e("s_mul_i32 s9, s9, 1280")
        e(f"s_lshl_b32 s10, {WAVE}, 12"); e("s_add_u32 s9, s9, s10")
        e(f"v_lshlrev_b32 v8, 4, {LANE}")
        for i in range(4): e(f"buffer_load_dwordx4 v[120:123], v8, {sr(SB)}, s9 offen offset:{1024*i}{PFNT}")
        lab(sk)
    if OPT.get("l2pf", 1):
        srd(SB, P_WG, 1966080); srd(SD, P_WU, 1966080)
        e(f"v_cmp_lt_u32 vcc, 23, {LANE}"); e(f"v_subrev_u32 v7, 24, {LANE}"); e("s_nop 0")
        e(f"v_cndmask_b32 v8, {LANE}, v7, vcc"); e("v_lshlrev_b32 v8, 4, v8")
        e("v_mov_b32 v7, 3072"); e("v_cndmask_b32 v7, 0, v7, vcc"); e("v_add_u32 v8, v8, v7")
        sk = uid("PFG")
        e(f"s_cmp_ge_u32 {WAVE}, 10"); e(f"s_cbranch_scc1 {sk}")
        e(f"s_mul_i32 s9, {J}, 40"); e(f"s_lshl_b32 s10, {WAVE}, 2"); e("s_add_u32 s9, s9, s10"); e("s_mul_i32 s9, s9, 3072")
        e(f"s_mul_i32 s10, {X}, 384"); e("s_add_u32 s9, s9, s10"); e("s_add_u32 s10, s9, 6144")
        set_exec64((1 << 48) - 1)
        e(f"buffer_load_dwordx4 v[120:123], v8, {sr(SB)}, s9 offen{PFNT}"); e(f"buffer_load_dwordx4 v[120:123], v8, {sr(SB)}, s10 offen{PFNT}")
        e(f"buffer_load_dwordx4 v[120:123], v8, {sr(SD)}, s9 offen{PFNT}"); e(f"buffer_load_dwordx4 v[120:123], v8, {sr(SD)}, s10 offen{PFNT}")
        exec_all()
        lab(sk)
        sk = uid("PFD")
        e(f"s_cmp_lt_u32 {WAVE}, 10"); e(f"s_cbranch_scc1 {sk}")
        srd(SB, P_WD, 1966080)
        e(f"s_mul_i32 s9, {X}, 192"); e(f"s_mul_i32 s10, {J}, 12"); e("s_add_u32 s9, s9, s10"); e("s_mul_i32 s9, s9, 1280")
        e(f"s_sub_u32 s10, {WAVE}, 10"); e("s_mul_i32 s10, s10, 2560"); e("s_add_u32 s9, s9, s10")
        e(f"v_lshlrev_b32 v8, 4, {LANE}")
        e(f"buffer_load_dwordx4 v[120:123], v8, {sr(SB)}, s9 offen{PFNT}"); e(f"buffer_load_dwordx4 v[120:123], v8, {sr(SB)}, s9 offen offset:1024{PFNT}")
        set_exec64(0xffffffff)
        e(f"buffer_load_dwordx4 v[120:123], v8, {sr(SB)}, s9 offen offset:2048{PFNT}")
        exec_all()
        lab(sk)
    e(f"v_lshrrev_b32 v8, 5, {LANE}"); e(f"s_lshl_b32 s9, {WAVE}, 1"); e("v_add_u32 v8, s9, v8")
    e(f"v_and_b32 v9, 31, {LANE}")
    e("v_mul_u32_u24 v6, 2176, v8"); e("v_lshl_add_u32 v6, v9, 4, v6")
    e(f"v_mul_u32_u24 v10, {CL_RS}, v8"); e("v_mul_u32_u24 v11, 12, v9"); e("v_add_u32 v10, v10, v11")
    e(f"v_add_u32 v118, {XL_CL}, v10")
    e("s_waitcnt vmcnt(0)")
    code_touch_range("X_NPR", 3, 120, 14)
    stamp("x: burst2 landed", 1|256)
    barrier()
    if OPT.get("xstop", 0) == 2: e("s_branch X_END")
    e(f"s_cmp_ge_u32 {WAVE}, 12"); e("s_cbranch_scc1 X_NPR")
    for ks in range(6):
        e(f"ds_read_b64_tr_b16 {vr(40+4*ks,2)}, v13 offset:{XL_U+ks*12288}")
        e(f"ds_read_b64_tr_b16 {vr(42+4*ks,2)}, v13 offset:{XL_U+ks*12288+1536}")
    lab("X_NPR")
    e(f"v_lshrrev_b32 v16, 2, {L15}"); e(f"v_lshl_add_u32 v16, {G}, 3, v16"); e(f"v_mul_u32_u24 v16, {CL_RS}, v16")
    e(f"v_and_b32 v17, 3, {L15}"); e("v_lshl_add_u32 v16, v17, 3, v16")
    e(f"s_lshl_b32 s9, {WAVE}, 5"); e(f"s_add_u32 s10, s9, {XL_CL}"); e("v_add_u32 v16, s10, v16")
    e(f"v_and_b32 v17, 1, {LANE}"); e("v_lshlrev_b32 v17, 6, v17"); e(f"v_lshl_add_u32 v17, {G}, 4, v17"); e(f"v_add_u32 v17, {XL_W}, v17")
    e(f"v_lshlrev_b32 v18, 1, {L15}"); e(f"s_add_u32 s10, s9, {XL_CB}"); e("v_add_u32 v18, s10, v18")
    e(f"v_lshlrev_b32 v19, 4, {G}"); e(f"v_add_u32 v19, {XL_CB}, v19")
    e(f"s_mul_i32 s9, {H}, 69632"); e(f"s_add_u32 s69, s9, {WS_E3 + 2048}"); e(f"s_lshl_b32 s10, {R}, 9"); e("s_add_u32 s9, s9, s10")
    e(f"s_add_u32 s9, s9, {WS_E3}")
    e(f"s_cmp_eq_u32 {WAVE}, 12"); e("s_cbranch_scc1 X_ML")
    stamp("x: E3 poll start", 16)
    pollx([f"buffer_load_dwordx4 v[96:99], v6, {sr(WS)}, s9 offen sc1"], [96], 108, sleep=OPT.get("e3sleep", 0))
    stamp("x: E3 poll end", 16|2048); stamp_val("E3 iters", "s13", 16)
    e("ds_write2_b32 v118, v96, v97 offset1:1"); e("ds_write_b32 v118, v98 offset:8")
    if OPT.get("local", 1):
        sk = uid("HCK")
        e(f"s_cmp_lg_u32 {WAVE}, 13"); e(f"s_cbranch_scc1 {sk}")
        e(f"v_lshlrev_b32 v5, 3, {LANE}")
        e(f"s_lshl_b32 s10, {X}, 8"); e(f"s_add_u32 s10, s10, {WS_HELLO + 128}")
        e("s_getreg_b32 s11, hwreg(HW_REG_XCC_ID, 0, 4)")
        e("s_mov_b64 exec, 0x3ff")
        e(f"buffer_load_dwordx2 v[100:101], v5, {sr(WS)}, s10 offen sc1")
        e("s_waitcnt vmcnt(0)")
        e("v_xor_b32 v100, s11, v100"); e(f"v_xor_b32 v101, {TAG}, v101"); e("v_or_b32 v100, v100, v101")
        e("v_cmp_ne_u32 vcc, 0, v100")
        e("s_cmp_eq_u64 vcc, 0"); e("s_cselect_b32 s10, 1, 0")
        e("s_mov_b64 exec, 1")
        e(f"v_mov_b32 v100, s10"); e(f"v_mov_b32 v5, {XL_FLAG}"); e("ds_write_b32 v5, v100")
        exec_all()
        lab(sk)
    e("s_branch X_B5")
    lab("X_ML")
    e(f"v_and_b32 v5, 31, {LANE}"); e("v_mul_u32_u24 v5, 2176, v5")
    pollx([f"buffer_load_dwordx4 v[100:103], v6, {sr(WS)}, s9 offen sc1",
           f"buffer_load_dwordx4 v[96:99], v5, {sr(WS)}, s69 offen sc1"], [100, 96], 108, init=[None, 0xffffffff], sleep=OPT.get("e3sleep", 0))
    e("ds_write2_b32 v118, v100, v101 offset1:1"); e("ds_write_b32 v118, v102 offset:8")
    e("v_mov_b32 v98, v96")
    e("s_nop 1"); row16_allreduce("v_max_f32", 98); e("s_nop 1"); cross16("v_max_f32", 98, 99)
    e("v_sub_f32 v96, v96, v98"); e("v_exp_f32 v96, v96"); e("s_nop 0")
    e("v_mul_f32 v97, v96, v97")
    e("s_nop 1"); row16_allreduce("v_add_f32", 97); e("s_nop 1"); cross16("v_add_f32", 97, 99)
    e("v_rcp_f32 v97, v97"); e("s_nop 0")
    e("v_mul_f32 v96, v96, v97")
    e("v_cvt_pk_bf16_f32 v97, v96, v96")
    e("v_and_b32 v98, 0xffff0000, v97")
    e("v_sub_f32 v96, v96, v98")
    e("v_cvt_pk_bf16_f32 v96, v96, v96")
    e(f"v_and_b32 v5, 31, {LANE}"); e("v_lshlrev_b32 v5, 1, v5"); e(f"v_add_u32 v5, {XL_W}, v5")
    set_exec64(0xffffffff)
    e("ds_write_b16 v5, v97"); e("ds_write_b16 v5, v96 offset:64")
    exec_all()
    lab("X_B5")
    barrier()
    stamp("x: E3 gathered", 17|128|256|2048)
    e(f"s_cmp_ge_u32 {WAVE}, 12"); e("s_cbranch_scc1 X_B5b")
    e(f"ds_read_b64_tr_b16 v[96:97], v16"); e(f"ds_read_b64_tr_b16 v[98:99], v16 offset:{4*CL_RS}")
    e("ds_read_b128 v[100:103], v17")
    e("s_waitcnt lgkmcnt(0)")
    mfma(120, 100, 96, "0")
    e("s_nop 7")
    e("v_add_f32 v120, v120, v121")
    e("v_cvt_pk_bf16_f32 v120, v120, v120")
    e("s_mov_b64 exec, 0xffff")
    e("ds_write_b16 v18, v120")
    exec_all()
    lab("X_B5b")
    barrier()
    stamp("x: after B5b", 2048)
    e(f"s_cmp_ge_u32 {WAVE}, 12"); e("s_cbranch_scc1 X_UPD")
    for ks in range(6): e(f"ds_read_b128 {vr(96+4*ks,4)}, v19 offset:{64*ks}")
    for ks in range(6):
        e(f"s_waitcnt lgkmcnt({5-ks})")
        mfma(120, 40 + 4 * ks, 96 + 4 * ks, "0" if ks == 0 else None)
    e("s_nop 7")
    def soff_e4():
        e(f"s_lshl_b32 s9, {X}, 2"); e(f"s_add_u32 s9, s9, {R}"); e("s_mul_i32 s9, s9, 3072")
        e(f"s_and_b32 s10, {H}, 3"); e("s_mul_i32 s10, s10, 768"); e("s_add_u32 s9, s9, s10"); e(f"s_add_u32 s9, s9, {WS_E4}")
    collect_store(120, XL_Q, soff_e4, st_local if OPT.get("local", 1) else st_global, "X_UPD")
    stamp("x: ctx published", 1|128|256|2048)
    e(f"s_cmp_ge_u32 {J}, 5"); e("s_cbranch_scc1 X_END")
    e(f"s_mul_i32 s66, {X}, 5"); e(f"s_add_u32 s66, s66, {J}")
    e(f"s_cmp_ge_u32 {WAVE}, 7"); e("s_cbranch_scc1 X_B9")
    e(f"s_cmp_eq_u32 {WAVE}, 6"); e("s_cbranch_scc1 X_FH")
    e(f"v_lshrrev_b32 v5, 3, {LANE}"); e("v_mul_u32_u24 v5, 5120, v5")
    e(f"v_and_b32 v6, 7, {LANE}"); e("v_lshl_add_u32 v5, v6, 4, v5")
    e(f"s_mul_i32 s9, {WAVE}, 40960"); e("s_lshl_b32 s10, s66, 7"); e("s_add_u32 s9, s9, s10")
    e(f"s_add_u32 s9, s9, {WS_E6}")
    poll([f"buffer_load_dwordx4 v[92:95], v5, {sr(WS)}, s9 offen sc1"], [93, 95], 108)
    e("v_mov_b32 v93, v94")
    e("s_nop 1")
    for i in range(2):
        e(f"v_add_f32_dpp v{92+i}, v{92+i}, v{92+i} row_ror:8 row_mask:0xf bank_mask:0xf")
    for i in range(2):
        cross16("v_add_f32", 92 + i, 96); cross32("v_add_f32", 92 + i, 96)
    e("v_lshlrev_b32 v6, 3, v6"); e(f"s_lshl_b32 s9, {WAVE}, 6"); e(f"s_add_u32 s9, s9, {XL_R2}")
    e("v_add_u32 v6, s9, v6")
    e("s_mov_b64 exec, 0xff")
    e("ds_write_b64 v6, v[92:93]")
    exec_all()
    e("s_branch X_B9")
    lab("X_FH")
    e(f"v_bfe_u32 v5, {LANE}, 2, 3"); e("v_mul_u32_u24 v5, 2560, v5")
    e(f"v_and_b32 v6, 3, {LANE}"); e("v_lshl_add_u32 v5, v6, 4, v5")
    e("s_lshl_b32 s9, s66, 6"); e(f"s_add_u32 s9, s9, {WS_E5}")
    e("v_lshlrev_b32 v7, 3, v6"); e("s_lshl_b32 s10, s66, 5")
    e(f"buffer_load_dwordx2 v[104:105], v7, {sr(SC_)}, s10 offen")
    set_exec64(0xffffffff)
    poll([f"buffer_load_dwordx4 v[92:95], v5, {sr(WS)}, s9 offen sc1"], [93, 95], 108)
    exec_all()
    e("v_lshlrev_b32 v96, 16, v92"); e("v_and_b32 v97, 0xffff0000, v92")
    e("v_lshlrev_b32 v98, 16, v94"); e("v_and_b32 v99, 0xffff0000, v94")
    e("s_nop 1")
    for sh in (4, 8):
        for i in range(4):
            e(f"v_add_f32_dpp v{96+i}, v{96+i}, v{96+i} row_ror:{sh} row_mask:0xf bank_mask:0xf")
    for i in range(4): cross16("v_add_f32", 96 + i, 100)
    e("v_lshlrev_b32 v100, 16, v104"); e("v_and_b32 v101, 0xffff0000, v104")
    e("v_lshlrev_b32 v102, 16, v105"); e("v_and_b32 v103, 0xffff0000, v105")
    for i in range(4): e(f"v_add_f32 v{96+i}, v{96+i}, v{100+i}")
    e("v_lshlrev_b32 v6, 4, v6"); e(f"v_add_u32 v6, {XL_H}, v6")
    e("s_mov_b64 exec, 0xf")
    e("ds_write_b128 v6, v[96:99]")
    exec_all()
    lab("X_B9")
    barrier()
    e(f"s_cmp_lg_u32 {WAVE}, 0"); e("s_cbranch_scc1 X_END")
    e(f"v_lshlrev_b32 v5, 3, {LANE}"); e(f"v_add_u32 v6, {XL_R2}, v5"); e(f"v_add_u32 v7, {XL_H}, v5")
    e("s_mov_b64 exec, 0xff")
    for w in range(6): e(f"ds_read_b64 {vr(92+2*w,2)}, v6 offset:{64*w}")
    e("ds_read_b64 v[116:117], v7")
    srd(SD, P_OUT, 1280)
    e("s_waitcnt lgkmcnt(0)")
    for w in range(1, 6):
        e(f"v_add_f32 v92, v92, v{92+2*w}"); e(f"v_add_f32 v93, v93, v{93+2*w}")
    e("v_add_f32 v92, v92, v116"); e("v_add_f32 v93, v93, v117")
    e("v_cvt_pk_bf16_f32 v92, v92, v93")
    e(f"v_lshlrev_b32 v5, 2, {LANE}"); e("s_lshl_b32 s9, s66, 5")
    e(f"buffer_store_dword v92, v5, {sr(SD)}, s9 offen")
    e("s_cmp_lg_u32 s66, 0"); e("s_cbranch_scc1 X_EP")
    e("s_mov_b64 exec, 1")
    e("v_mov_b32 v5, 0")
    e(f"buffer_store_dword {VTAG}, v5, {sr(WS)}, 0 offen sc1")
    lab("X_EP")
    exec_all()
    lab("X_END")
    stamp("x: end", 1|128|1024)
    stamp_flush(nstamp[0])
    e("s_endpgm")
    lab("X_LN")
    for i in range(5):
        e(f"buffer_load_dword v{16+i}, v5, {sr(SC_)}, 0 offen offset:{256*i}")
    e("s_barrier")
    e("s_waitcnt vmcnt(0)")
    for i in range(5):
        e(f"v_lshlrev_b32 v{21+2*i}, 16, v{16+i}")
        e(f"v_and_b32 v{22+2*i}, 0xffff0000, v{16+i}")
    e("v_add_f32 v31, v21, v22")
    for i in range(23, 31): e(f"v_add_f32 v31, v31, v{i}")
    wave_allreduce("v_add_f32", 31, 32)
    e(f"v_mul_f32 v31, {F(1.0/640.0)}, v31")
    for i in range(21, 31): e(f"v_sub_f32 v{i}, v{i}, v31")
    e("v_mul_f32 v33, v21, v21")
    for i in range(22, 31): e(f"v_fmac_f32 v33, v{i}, v{i}")
    wave_allreduce("v_add_f32", 33, 32)
    e(f"v_mov_b32 v32, {F(1e-5)}")
    e(f"v_fmac_f32 v32, {F(1.0/640.0)}, v33")
    e("v_rsq_f32 v32, v32"); e("s_nop 0")
    for i in range(21, 31): e(f"v_mul_f32 v{i}, v{i}, v32")
    for i in range(5): e(f"v_cvt_pk_bf16_f32 v{16+i}, v{21+2*i}, v{22+2*i}")
    e(f"v_add_u32 v5, {XL_XN}, v5")
    for i in range(5): e(f"ds_write_b32 v5, v{16+i} offset:{256*i}")
    e("s_branch X_B1")

CH_KB = 6272
CH_SZ = 8 * CH_KB
YL_C = 0
YL_QA = 2 * CH_SZ
YL_SP = YL_QA + 12416
YL_PF = YL_SP + 34816
YL_M = YL_PF + 4096
YL_R = YL_M + 64
YL_MG, YL_MU, YL_MD = 0, 40960, 81920
YL_H = 131072
YL_ST = YL_H + 2560
YL_G = YL_H + 2688
YL_HH = YL_H + 5376
assert YL_R + 3072 <= 163840
HG = "s7"

def y_program():
    nstamp[0] = 0
    lab("L_Y")
    e(f"s_sub_u32 {J}, {J}, 16")
    e(f"s_and_b32 {HG}, {J}, 3"); e(f"s_lshr_b32 {KC}, {J}, 2")
    e(f"v_bfe_u32 v5, {LANE}, 1, 2"); e("v_mul_u32_u24 v5, 1536, v5")
    e(f"v_lshrrev_b32 v6, 3, {LANE}"); e("v_lshl_add_u32 v5, v6, 5, v5")
    e(f"v_and_b32 v6, 1, {LANE}"); e("v_lshl_add_u32 v15, v6, 4, v5")
    e(f"s_lshl_b32 s9, {X}, 9"); e(f"s_lshl_b32 s10, {KC}, 7"); e("s_add_u32 s9, s9, s10")
    e(f"s_mul_i32 s10, {WAVE}, 43"); e("s_lshr_b32 s10, s10, 8")
    e("s_mul_i32 s11, s10, 6"); e(f"s_sub_u32 s11, {WAVE}, s11")
    e("s_lshl_b32 s14, s10, 2"); e("s_add_u32 s9, s9, s14")
    e("s_mul_i32 s66, s9, 1536"); e("s_lshl_b32 s14, s11, 8"); e("s_add_u32 s66, s66, s14")
    e(f"s_mul_i32 s67, s10, {CH_KB}"); e("s_lshl_b32 s14, s11, 10"); e("s_add_u32 s67, s67, s14")
    kernarg_ready()
    srd(SA, P_CKV, 6291456)
    stamp("y: start", 0xfffff)
    if OPT.get("ystop", 0) == 1: e("s_branch Y_END")
    if not OPT.get("earlytouch", 1): code_touch(120)
    tlb_warm(14)
    ynt = OPT["ynt"]
    SL = 4 * CH_KB
    def chunk_dma(ch):
        sk = uid("YCD")
        e(f"s_cmp_ge_u32 {WAVE}, 12"); e(f"s_cbranch_scc1 {sk}")
        e(f"s_add_u32 s10, s67, {(ch % 4) * SL}"); e(f"s_add_u32 s11, s66, {ch * 16 * 1536}")
        for i in range(2):
            e("s_mov_b32 m0, s10"); e(f"s_add_u32 s10, s10, {2*CH_KB}")
            e(f"buffer_load_dwordx4 v15, {sr(SA)}, s11 offen{' nt' if ynt else ''} lds")
            e(f"s_add_u32 s11, s11, {8*1536}")
        lab(sk)
    chunk_dma(0); chunk_dma(1); chunk_dma(2)
    e(f"v_lshlrev_b32 v5, 2, v0"); e(f"v_add_u32 v5, {YL_PF}, v5"); e("v_mov_b32 v6, 0"); e("ds_write_b32 v5, v6")
    e(f"s_and_b32 s68, {WAVE}, 3"); e(f"s_lshr_b32 s69, {WAVE}, 2")
    e(f"v_lshrrev_b32 v5, 2, {L15}")
    e(f"v_mul_u32_u24 v5, {CH_KB}, v5")
    e(f"v_and_b32 v6, 3, {L15}"); e("v_lshl_add_u32 v5, v6, 5, v5")
    e(f"v_lshrrev_b32 v6, 1, {G}"); e("v_lshl_add_u32 v5, v6, 7, v5")
    e(f"v_and_b32 v6, 1, {G}"); e("v_lshl_add_u32 v5, v6, 4, v5")
    e("s_mul_i32 s9, s69, 1536"); e("v_add_u32 v13, s9, v5")
    e(f"v_mul_u32_u24 v5, {CH_KB}, {G}"); e(f"v_lshl_add_u32 v5, {L15}, 3, v5")
    e(f"s_mul_i32 s9, {WAVE}, 384"); e("v_add_u32 v14, s9, v5")
    e(f"v_add_u32 v8, {2*SL}, v14"); e(f"v_add_u32 v11, {2*SL}, v13")
    for n in range(2):
        e(f"v_add_u32 v{6+n}, {1024*n}, v0")
        e(f"s_mov_b32 s9, 43691")
        e(f"v_mul_lo_u32 v{9+n}, v{6+n}, s9"); e(f"v_lshrrev_b32 v{9+n}, 23, v{9+n}")
        e(f"v_mul_u32_u24 v12, 192, v{9+n}"); e(f"v_sub_u32 v12, v{6+n}, v12")
        e(f"v_mul_u32_u24 v{9+n}, 1552, v{9+n}"); e(f"v_lshl_add_u32 v{9+n}, v12, 3, v{9+n}")
        e(f"v_add_u32 v{9+n}, {YL_QA}, v{9+n}")
        e(f"v_lshlrev_b32 v{6+n}, 4, v{6+n}")
    SF, PVF = 16, 64
    def read_frags(c):
        sb, pb = ("v13", "v14") if (c % 4) < 2 else ("v11", "v8")
        so = (c % 2) * SL
        sk = uid("YSR")
        e(f"s_cmp_lg_u32 s68, {c >> 1}"); e(f"s_cbranch_scc1 {sk}")
        for i in range(6): e(f"ds_read_b128 {vr(SF+4*(6*(c&1)+i),4)}, {sb} offset:{so+256*i}")
        lab(sk)
        for a in range(3):
            b = PVF + ((c >> 1) * 3 + a) * 4 + 2 * (c & 1)
            e(f"ds_read_b64_tr_b16 {vr(b,2)}, {pb} offset:{so+a*128}")
    for c in range(8):
        rem = min(7, c + 2) - c
        e(f"s_waitcnt vmcnt({2*rem})"); barrier()
        if c + 3 <= 7: chunk_dma(c + 3)
        if c == 3: code_touch_range("Y_E2D", 2, 120, 15)
        read_frags(c)
    get_tag()
    hello_publish(120)
    stamp("y: C landed", 9|(1<<16))
    if OPT.get("ystop", 0) == 2:
        barrier(); stamp("y: all landed"); e("s_branch Y_END")
    srd(SA, P_WO, 7864320)
    e(f"v_lshrrev_b32 v5, 5, {LANE}"); e("v_lshlrev_b32 v5, 2, v5"); e(f"v_bfe_u32 v12, {LANE}, 1, 2"); e("v_add_u32 v5, v5, v12")
    e("v_mul_u32_u24 v5, 1280, v5")
    e(f"v_bfe_u32 v12, {LANE}, 3, 2"); e("v_lshl_add_u32 v5, v12, 5, v5")
    e(f"v_and_b32 v12, 1, {LANE}"); e("v_lshl_add_u32 v0, v12, 4, v5")
    e(f"s_mul_i32 s67, {X}, 768"); e(f"s_lshl_b32 s10, {WAVE}, 3"); e("s_add_u32 s67, s67, s10"); e("s_mul_i32 s67, s67, 1280")
    e(f"s_lshl_b32 s10, {J}, 7"); e("s_add_u32 s67, s67, s10")
    e(f"s_lshl_b32 s66, {WAVE}, 10")
    WOS = "%05d" % OPT.get("wos", 11103)
    assert sum(int(c) for c in WOS) == 6
    def wo_point(pt):
        for _ in range(int(WOS[pt])):
            if pt == 2 and OPT.get("wohi", 1): wo_batch_hi("v0")
            else: wo_batch("v0")
    def wo_batch_hi(vreg):
        sk = uid("YWH"); lo = uid("YWL")
        nt_ = ' nt' if OPT.get('wont', 1) else ''
        e(f"s_cmp_ge_u32 {J}, 10"); e(f"s_cbranch_scc1 {sk}")
        e(f"s_cmp_lt_u32 {WAVE}, 8"); e(f"s_cbranch_scc1 {lo}")
        e("s_mov_b32 m0, s66"); e(f"s_sub_u32 s9, s66, {8*1024}"); e(f"s_sub_u32 s10, s67, {64*1280}")
        e(f"buffer_load_dwordx4 {vreg}, {sr(SA)}, s67 offen{nt_} lds")
        e("s_mov_b32 m0, s9"); e("s_nop 0")
        e(f"buffer_load_dwordx4 {vreg}, {sr(SA)}, s10 offen{nt_} lds")
        lab(lo)
        e(f"s_add_u32 s66, s66, {16*1024}"); e(f"s_add_u32 s67, s67, {128*1280}")
        lab(sk)
    def wo_batch(vreg, late=False):
        sk = uid("YWO")
        e(f"s_cmp_ge_u32 {J}, 10"); e(f"s_cbranch_scc1 {sk}")
        e("s_mov_b32 m0, s66"); e(f"s_add_u32 s66, s66, {16*1024}")
        e(f"buffer_load_dwordx4 {vreg}, {sr(SA)}, s67 offen{' nt' if OPT.get('wont', 1) else ''} lds")
        e(f"s_add_u32 s67, s67, {128*1280}")
        lab(sk)
    wo_point(0)
    e(f"s_mul_i32 s9, {HG}, 24576"); e(f"s_add_u32 s9, s9, {WS_QA}")
    e(f"s_cmp_ge_u32 {WAVE}, 8"); e("s_cbranch_scc1 Y_E2B")
    stamp("y: E2 poll start", 1<<16)
    poll([f"buffer_load_dwordx4 {vr(112+4*n,4)}, v{6+n}, {sr(WS)}, s9 offen sc1" for n in range(2)],
         [113, 115, 117, 119], 120)
    stamp("y: E2 poll end", 1<<16); stamp_val("E2 iters", "s13", 1<<16)
    for n in range(2):
        e(f"v_mov_b32 v{113+4*n}, v{114+4*n}")
        e(f"ds_write_b64 v{9+n}, {vr(112+4*n,2)}")
    e("s_branch Y_E2D")
    lab("Y_E2B")
    poll([f"buffer_load_dwordx4 v[112:115], v6, {sr(WS)}, s9 offen sc1"], [113, 115], 120)
    e("v_mov_b32 v113, v114"); e("ds_write_b64 v9, v[112:113]")
    lab("Y_E2D")
    stamp("y: qabs gathered", 9|128)
    barrier()
    stamp("y: after E2 barrier", 8|(1<<16))
    wo_point(1)
    e(f"v_and_b32 v5, 7, {L15}"); e("v_mul_u32_u24 v5, 1552, v5"); e(f"v_lshl_add_u32 v5, {G}, 4, v5")
    e(f"s_mul_i32 s9, s69, 384"); e(f"s_add_u32 s9, s9, {YL_QA}"); e("v_add_u32 v5, s9, v5")
    for i in range(4): e(f"ds_read_b128 {vr(112+4*i,4)}, v5 offset:{64*i}")
    e(f"v_mul_u32_u24 v6, 272, {G}"); e(f"v_lshl_add_u32 v6, {L15}, 4, v6")
    e("s_lshl_b32 s9, s69, 3"); e("s_lshl_b32 s10, s68, 1"); e("s_add_u32 s9, s9, s10"); e("s_mul_i32 s9, s9, 1088")
    e(f"s_add_u32 s9, s9, {YL_SP}"); e("v_add_u32 v6, s9, v6")
    for i in range(6):
        rem = min(6, i + 4) - (i + 1)
        e(f"s_waitcnt lgkmcnt({rem})")
        mfma(8, SF + 4 * i, 112 + 4 * (i % 4), "0" if i == 0 else None)
        mfma(12, SF + 4 * (6 + i), 112 + 4 * (i % 4), "0" if i == 0 else None)
        if i + 4 < 6:
            e(f"ds_read_b128 {vr(112+4*(i%4),4)}, v5 offset:{64*(i+4)}")
    e("s_nop 7")
    e("ds_write_b128 v6, v[8:11]"); e("ds_write_b128 v6, v[12:15] offset:1088")
    barrier()
    stamp("y: S partial done", 10)
    wo_point(2)
    e(f"s_cmp_ge_u32 {WAVE}, 8"); e("s_cbranch_scc1 Y_SMD")
    e(f"v_mul_u32_u24 v5, 1088, {G}")
    e(f"v_bfe_u32 v6, {LANE}, 2, 2"); e("v_mul_u32_u24 v7, 272, v6")
    e(f"v_and_b32 v12, 3, {LANE}"); e("v_lshlrev_b32 v8, 2, v12")
    e("v_add3_u32 v5, v5, v7, v8")
    e(f"s_lshl_b32 s9, {WAVE}, 4"); e(f"s_add_u32 s9, s9, {YL_SP}"); e("v_add_u32 v5, s9, v5")
    for kq in range(4):
        e(f"ds_read_b32 v{112+kq}, v5 offset:{8704*kq}"); e(f"ds_read_b32 v{116+kq}, v5 offset:{8704*kq+4352}")
    e(f"v_lshrrev_b32 v7, 5, {LANE}"); e("v_lshlrev_b32 v7, 10, v7")
    e("v_lshl_add_u32 v7, v6, 8, v7")
    e(f"v_bfe_u32 v8, {LANE}, 4, 1"); e("v_lshl_add_u32 v7, v8, 3, v7")
    e("v_lshl_add_u32 v7, v12, 1, v7")
    e(f"s_lshl_b32 s9, {WAVE}, 4"); e(f"s_add_u32 s9, s9, {YL_PF}"); e("v_add_u32 v7, s9, v7")
    e("s_waitcnt lgkmcnt(0)")
    e("v_add_f32 v112, v112, v113"); e("v_add_f32 v114, v114, v115"); e("v_add_f32 v116, v116, v117"); e("v_add_f32 v118, v118, v119")
    e("v_add_f32 v112, v112, v114"); e("v_add_f32 v114, v116, v118")
    e("v_max_f32 v116, v112, v114")
    wave_allreduce("v_max_f32", 116, 117)
    e("v_sub_f32 v112, v112, v116"); e("v_sub_f32 v114, v114, v116")
    e("v_exp_f32 v112, v112"); e("v_exp_f32 v114, v114"); e("s_nop 0")
    e("v_cvt_pk_bf16_f32 v112, v112, v114")
    e("ds_write_b16 v7, v112"); e("ds_write_b16_d16_hi v7, v112 offset:2048")
    e(f"s_lshl_b32 s9, {WAVE}, 2"); e(f"s_add_u32 s9, s9, {YL_M}"); e("v_mov_b32 v5, s9")
    e("s_mov_b64 exec, 1")
    e("ds_write_b32 v5, v116")
    exec_all()
    lab("Y_SMD")
    barrier()
    stamp("y: P ready", 10)
    wo_point(3)
    e(f"v_lshlrev_b32 v5, 4, {LANE}"); e(f"v_add_u32 v5, {YL_PF}, v5")
    for ks in range(4): e(f"ds_read_b128 {vr(112+4*ks,4)}, v5 offset:{1024*ks}")
    e(f"v_and_b32 v6, 7, {L15}"); e("v_mul_u32_u24 v6, 96, v6"); e(f"v_lshl_add_u32 v6, {G}, 3, v6")
    e(f"s_mul_i32 s9, {WAVE}, 768"); e(f"s_add_u32 s9, s9, {YL_SP}"); e("v_add_u32 v6, s9, v6")
    e(f"v_lshrrev_b32 v7, 3, {LANE}"); e("v_mul_u32_u24 v12, 96, v7"); e(f"v_and_b32 v5, 7, {LANE}"); e("v_mul_u32_u24 v8, 12, v5")
    e("v_add3_u32 v12, v12, v8, s9")
    e("v_mul_u32_u24 v7, 69632, v7"); e("v_lshl_add_u32 v5, v5, 4, v7")
    e(f"s_mul_i32 s9, {HG}, {8*69632}"); e(f"s_lshl_b32 s10, {X}, 2"); e(f"s_add_u32 s10, s10, {KC}")
    e("s_mul_i32 s11, s10, 2176"); e("s_add_u32 s9, s9, s11"); e(f"s_add_u32 s68, s9, {WS_E3 + 2048}")
    e(f"s_lshl_b32 s11, {WAVE}, 7"); e("s_add_u32 s9, s9, s11"); e(f"s_add_u32 s9, s9, {WS_E3}")
    if OPT.get("pvprio", 1):
        for q in range(3):
            sk = uid("PR")
            e(f"s_cmp_lg_u32 s69, {q}"); e(f"s_cbranch_scc1 {sk}"); e(f"s_setprio {3-q}"); lab(sk)
    for ks in range(4):
        e(f"s_waitcnt lgkmcnt({3-ks})")
        for a in range(3):
            mfma(16 + 4 * a, PVF + (ks * 3 + a) * 4, 112 + 4 * ks, "0" if ks == 0 else None)
    e(f"s_cmp_lg_u32 {WAVE}, 15"); e("s_cbranch_scc1 Y_NL")
    for i in range(4): e(f"v_mov_b32 v{32+i}, 0x3f803f80")
    e(f"v_and_b32 v41, 7, {L15}"); e("v_lshlrev_b32 v41, 2, v41"); e(f"v_add_u32 v41, {YL_M}, v41")
    e("ds_read_b32 v40, v41")
    for ks in range(4): mfma(36, 32, 112 + 4 * ks, "0" if ks == 0 else None)
    lab("Y_NL")
    e("s_nop 7")
    stamp("y: PV mfma done", 8)
    for a in range(3):
        e(f"v_cvt_pk_bf16_f32 v{44+2*a}, v{16+4*a}, v{17+4*a}"); e(f"v_cvt_pk_bf16_f32 v{45+2*a}, v{18+4*a}, v{19+4*a}")
    set_exec64(0x00ff00ff00ff00ff)
    for a in range(3): e(f"ds_write_b64 v6, {vr(44+2*a,2)} offset:{32*a}")
    exec_all()
    e("s_waitcnt lgkmcnt(0)")
    e("ds_read2_b32 v[52:53], v12 offset1:1"); e("ds_read_b32 v54, v12 offset:8")
    e("s_waitcnt lgkmcnt(0)")
    e("v_bitop3_b32 v55, v52, v53, v54 bitop3:0x96"); e(f"v_xor_b32 v55, {VTAG}, v55")
    e(f"buffer_store_dwordx4 v[52:55], v5, {sr(WS)}, s9 offen{SCG}")
    e(f"s_cmp_lg_u32 {WAVE}, 15"); e("s_cbranch_scc1 Y_P3D")
    e(f"s_mov_b32 s9, 69632"); e(f"v_mul_lo_u32 v5, {L15}, s9"); e("s_mov_b32 s9, s68")
    e("s_waitcnt lgkmcnt(0)")
    e("v_mov_b32 v56, v40"); e("v_mov_b32 v57, v36"); e("v_mov_b32 v58, 0"); e("v_bitop3_b32 v59, v56, v57, v4 bitop3:0x96")
    e("s_mov_b64 exec, 0xff")
    e(f"buffer_store_dwordx4 v[56:59], v5, {sr(WS)}, s9 offen{SCG}")
    exec_all()
    lab("Y_P3D")
    stamp("y: ctxlat published", 9|16|128|1024)
    if OPT["stamps"] & 16:
        e("s_waitcnt vmcnt(0)"); stamp("y: E3 stores complete", 16); barrier(); stamp("y: all waves stores complete", 16)
    if OPT.get("ystop", 0) == 3: e("s_branch Y_END")
    e(f"s_cmp_ge_u32 {J}, 10"); e("s_cbranch_scc1 Y_MLP")
    if OPT.get("wowait", 1): e("s_waitcnt vmcnt(0)")
    wo_point(4)
    e("s_waitcnt vmcnt(0)")
    code_touch_range("Y_B5", 1, 120, 15)
    stamp("y: wo landed", 1|256)
    barrier()
    e(f"s_cmp_ge_u32 {WAVE}, 12"); e("s_cbranch_scc1 Y_B5")
    e(f"v_lshlrev_b32 v5, 10, {G}"); e(f"v_lshl_add_u32 v5, {L15}, 3, v5")
    e(f"s_lshl_b32 s9, {WAVE}, 13"); e("v_add_u32 v5, s9, v5")
    for ksl in range(2):
        for t in range(4):
            b = 64 + (ksl * 4 + t) * 4
            e(f"ds_read_b64_tr_b16 {vr(b,2)}, v5 offset:{ksl*4096+t*128}")
            e(f"ds_read_b64_tr_b16 {vr(b+2,2)}, v5 offset:{ksl*4096+512+t*128}")
        if ksl == 0: e("s_waitcnt lgkmcnt(0)")
    e(f"v_lshlrev_b32 v5, 4, {LANE}")
    e(f"s_mul_i32 s9, {X}, 12288"); e(f"s_lshl_b32 s10, {WAVE}, 10"); e("s_add_u32 s9, s9, s10")
    e(f"s_add_u32 s9, s9, {WS_E4}")
    e(f"s_mul_i32 s10, s64, 1552"); e("s_lshl_b32 s11, s65, 9"); e("s_add_u32 s10, s10, s11"); e(f"s_add_u32 s10, s10, {YL_QA}")
    e(f"v_lshl_add_u32 v6, {LANE}, 3, s10")
    e(f"v_and_b32 v7, 3, {LANE}"); e("v_mul_u32_u24 v7, 1552, v7"); e(f"v_lshl_add_u32 v7, {G}, 4, v7")
    e(f"s_lshl_b32 s10, {WAVE}, 7"); e(f"s_add_u32 s10, s10, {YL_QA}"); e("v_add_u32 v7, s10, v7")
    e(f"v_lshlrev_b32 v9, 2, {LANE}"); e(f"v_add_u32 v9, {YL_R}, v9")
    e(f"s_lshl_b32 s10, {WAVE}, 8"); e("v_add_u32 v8, s10, v9")
    e(f"v_cmp_eq_u32 s[66:67], 1, {G}"); e(f"v_cmp_eq_u32 s[68:69], 2, {G}"); e(f"v_cmp_eq_u32 s[42:43], 3, {G}")
    stamp("y: E4 poll start", 256)
    poll([f"buffer_load_dwordx4 v[96:99], v5, {sr(WS)}, s9 offen sc1"], [97, 99], 112)
    stamp("y: ctx gathered", 1|128|256|2048)
    stamp_val("E4 iters", "s13", 256)
    e("v_mov_b32 v97, v98")
    e("ds_write_b64 v6, v[96:97]")
    lab("Y_B5")
    barrier()
    stamp("y: after B5", 2048)
    e(f"s_cmp_ge_u32 {WAVE}, 12"); e("s_cbranch_scc1 Y_B6")
    e("ds_read_b128 v[96:99], v7"); e("ds_read_b128 v[104:107], v7 offset:64")
    e("s_waitcnt lgkmcnt(1)")
    for t in range(4): mfma(16 + 4 * t, 96, 64 + 4 * t, "0")
    e("s_waitcnt lgkmcnt(0)")
    for t in range(4): mfma(16 + 4 * t, 104, 64 + 16 + 4 * t)
    e("s_nop 4")
    for t in range(4):
        b = 16 + 4 * t
        e(f"v_add_f32 v{b}, v{b}, v{b+1}"); e(f"v_add_f32 v{b+2}, v{b+2}, v{b+3}")
    for t in range(4):
        b = 16 + 4 * t
        e(f"v_add_f32 v{b}, v{b}, v{b+2}")
    e("v_cndmask_b32 v16, v16, v20, s[66:67]"); e("v_cndmask_b32 v16, v16, v24, s[68:69]"); e("v_cndmask_b32 v16, v16, v28, s[42:43]")
    e("ds_write_b32 v8, v16")
    lab("Y_B6")
    stamp("y: P5 mfma+red done", 2048)
    barrier()
    stamp("y: after B6", 2048)
    e(f"s_cmp_lg_u32 {WAVE}, 0"); e("s_cbranch_scc1 Y_END")
    for i in range(6): e(f"ds_read2st64_b32 {vr(16+2*i,2)}, v9 offset0:{2*i} offset1:{2*i+1}")
    e(f"s_mul_i32 s9, {X}, 2560"); e(f"s_lshl_b32 s10, {J}, 8"); e("s_add_u32 s9, s9, s10")
    e(f"s_add_u32 s9, s9, {WS_E5}")
    e(f"v_lshlrev_b32 v5, 2, {LANE}")
    e("s_waitcnt lgkmcnt(0)")
    for i in range(6): e(f"v_add_f32 v{16+2*i}, v{16+2*i}, v{17+2*i}")
    e("v_add_f32 v16, v16, v18"); e("v_add_f32 v20, v20, v22"); e("v_add_f32 v24, v24, v26")
    e("v_add_f32 v16, v16, v20"); e("v_add_f32 v16, v16, v24")
    e("s_nop 1")
    e("v_mov_b32_dpp v17, v16 quad_perm:[1,1,3,3] row_mask:0xf bank_mask:0xf")
    e("v_cvt_pk_bf16_f32 v16, v16, v17"); e(f"v_mov_b32 v17, {VTAG}")
    set_exec64(0x5555555555555555)
    e(f"buffer_store_dwordx2 v[16:17], v5, {sr(WS)}, s9 offen{SCG}")
    exec_all()
    e("s_branch Y_END")
    lab("Y_MLP")
    e(f"s_mul_i32 s66, {X}, 6"); e(f"s_add_u32 s66, s66, {J}"); e("s_sub_u32 s66, s66, 10")
    srd(SA, P_WG, 1966080); srd(SB, P_WU, 1966080); srd(SC_, P_WD, 1966080); srd(SD, P_X, 1280)
    e(f"v_lshrrev_b32 v5, 4, {LANE}"); e("v_lshlrev_b32 v5, 2, v5"); e(f"v_bfe_u32 v6, {LANE}, 1, 2"); e("v_add_u32 v5, v5, v6")
    e("v_mul_u32_u24 v5, 3072, v5")
    e(f"v_bfe_u32 v6, {LANE}, 3, 1"); e("v_lshl_add_u32 v5, v6, 5, v5")
    e(f"v_and_b32 v6, 1, {LANE}"); e("v_lshl_add_u32 v15, v6, 4, v5")
    e(f"v_bfe_u32 v5, {LANE}, 1, 2"); e("v_mul_u32_u24 v5, 1280, v5")
    e(f"v_lshrrev_b32 v6, 3, {LANE}"); e("v_lshl_add_u32 v5, v6, 5, v5")
    e(f"v_and_b32 v6, 1, {LANE}"); e("v_lshl_add_u32 v14, v6, 4, v5")
    if OPT.get("mlpwait", 0): e("s_waitcnt vmcnt(0)")
    barrier()
    e(f"s_and_b32 s9, {WAVE}, 7")
    e(f"s_mul_i32 s11, s9, {5*16*3072}"); e("s_lshl_b32 s10, s66, 6"); e("s_add_u32 s11, s11, s10")
    e("s_mul_i32 s10, s9, 5120")
    e(f"s_cmp_ge_u32 {WAVE}, 8"); e("s_cbranch_scc1 Y_MU")
    dma_loop(15, SA, 10, 11, 5, 1024, 16 * 3072, OPT.get("mnt", 1))
    e("s_lshl_b32 s11, s66, 5"); e(f"s_lshl_b32 s10, {WAVE}, 2"); e("s_add_u32 s11, s11, s10"); e("s_mul_i32 s11, s11, 1280")
    e(f"s_mul_i32 s10, {WAVE}, 5120"); e(f"s_add_u32 s10, s10, {YL_MD}")
    dma_loop(14, SC_, 10, 11, 5, 1024, 256, OPT["ynt"])
    e("s_branch Y_MW")
    lab("Y_MU")
    e(f"s_add_u32 s10, s10, {YL_MU}")
    dma_loop(15, SB, 10, 11, 5, 1024, 16 * 3072, OPT.get("mnt", 1))
    lab("Y_MW")
    e(f"v_and_b32 v5, 31, {LANE}"); e("v_lshlrev_b32 v5, 3, v5"); e(f"s_lshl_b32 s9, {WAVE}, 8")
    e(f"s_cmp_ge_u32 {WAVE}, 5"); e("s_cbranch_scc1 Y_NX")
    e(f"buffer_load_dwordx2 v[110:111], v5, {sr(SD)}, s9 offen")
    lab("Y_NX")
    e("s_waitcnt vmcnt(0)")
    code_touch_range("Y_MPD", 2, 120, 15)
    stamp("y: mlp landed", 1|1024)
    barrier()
    if OPT.get("ystop", 0) == 4: e("s_branch Y_END")
    e(f"s_cmp_ge_u32 {WAVE}, 10"); e("s_cbranch_scc1 Y_MPD")
    e(f"v_lshlrev_b32 v5, 9, {G}"); e(f"v_lshl_add_u32 v5, {L15}, 3, v5")
    e(f"s_lshl_b32 s9, {WAVE}, 12"); e("v_add_u32 v5, s9, v5")
    for mat, base in ((0, YL_MG), (1, YL_MU)):
        for ksl in range(2):
            for t in range(2):
                b = 16 + mat * 16 + (ksl * 2 + t) * 4
                e(f"ds_read_b64_tr_b16 {vr(b,2)}, v5 offset:{base+ksl*2048+t*128}")
                e(f"ds_read_b64_tr_b16 {vr(b+2,2)}, v5 offset:{base+ksl*2048+256+t*128}")
        e("s_waitcnt lgkmcnt(0)")
    e(f"v_mul_u32_u24 v5, 10240, {G}"); e(f"v_lshl_add_u32 v5, {L15}, 3, v5")
    e(f"s_lshl_b32 s9, {WAVE}, 9"); e(f"s_add_u32 s9, s9, {YL_MD}"); e("v_add_u32 v5, s9, v5")
    for a in range(4):
        e(f"ds_read_b64_tr_b16 {vr(48+4*a,2)}, v5 offset:{128*a}")
        e(f"ds_read_b64_tr_b16 {vr(50+4*a,2)}, v5 offset:{5120+128*a}")
    lab("Y_MPD")
    e(f"v_lshlrev_b32 v9, 2, {LANE}"); e(f"v_add_u32 v9, {YL_G}, v9")
    e(f"s_lshl_b32 s9, {WAVE}, 8"); e("v_add_u32 v8, s9, v9")
    e(f"v_and_b32 v12, 31, {LANE}")
    e(f"s_lshl_b32 s9, {WAVE}, 6"); e(f"s_add_u32 s9, s9, {YL_HH}")
    e("v_lshl_add_u32 v10, v12, 1, s9"); e(f"v_lshl_add_u32 v11, {G}, 4, s9")
    e(f"v_lshlrev_b32 v12, 3, {LANE}")
    e(f"v_mov_b32 v13, {YL_ST}")
    e(f"v_lshlrev_b32 v14, 5, {G}"); e(f"s_lshl_b32 s9, {WAVE}, 8"); e(f"s_add_u32 s9, s9, {YL_H}"); e("v_add_u32 v14, s9, v14")
    e("s_mul_i32 s65, s66, 5120"); e(f"s_lshl_b32 s10, {WAVE}, 9"); e("s_add_u32 s65, s65, s10"); e(f"s_add_u32 s65, s65, {WS_E6}")
    e(f"v_cmp_eq_u32 s[66:67], 1, {G}"); e(f"v_cmp_eq_u32 s[68:69], 2, {G}"); e(f"v_cmp_eq_u32 s[42:43], 3, {G}")
    e(f"s_cmp_ge_u32 {WAVE}, 5"); e("s_cbranch_scc1 Y_MB6")
    e(f"v_and_b32 v6, 31, {LANE}"); e(f"v_lshrrev_b32 v5, 5, {LANE}"); e("v_mul_u32_u24 v5, 10240, v5"); e("v_lshl_add_u32 v5, v6, 4, v5")
    e(f"s_lshl_b32 s9, {WAVE}, 9"); e(f"s_add_u32 s9, s9, {WS_E5}")
    e("s_add_u32 s10, s9, 5120")
    stamp("y: E5 poll start", 4096)
    poll([f"buffer_load_dwordx4 {vr(80+4*i,4)}, v5, {sr(WS)}, {'s9' if i < 2 else 's10'} offen offset:{2560*(i%2)} sc1" for i in range(4)],
         [81, 83, 85, 87, 89, 91, 93, 95], 96)
    stamp("y: E5 poll end", 4096); stamp_val("E5 iters", "s13", 4096)
    for i in range(4):
        b = 80 + 4 * i
        if i == 0:
            e(f"v_lshlrev_b32 v100, 16, v{b}"); e(f"v_and_b32 v101, 0xffff0000, v{b}")
            e(f"v_lshlrev_b32 v102, 16, v{b+2}"); e(f"v_and_b32 v103, 0xffff0000, v{b+2}")
        else:
            e(f"v_lshlrev_b32 v104, 16, v{b}"); e(f"v_and_b32 v105, 0xffff0000, v{b}")
            e(f"v_lshlrev_b32 v106, 16, v{b+2}"); e(f"v_and_b32 v107, 0xffff0000, v{b+2}")
            for k in range(4): e(f"v_add_f32 v{100+k}, v{100+k}, v{104+k}")
    for k in range(4): e(f"v_mov_b32 v{104+k}, v{100+k}")
    e("s_nop 1")
    for k in range(4): e(f"v_permlane32_swap_b32 v{100+k}, v{104+k}")
    e(f"v_lshlrev_b32 v80, 16, v110"); e("v_and_b32 v81, 0xffff0000, v110"); e("v_lshlrev_b32 v82, 16, v111"); e("v_and_b32 v83, 0xffff0000, v111")
    for k in range(4): e(f"v_add_f32 v{100+k}, v{100+k}, v{104+k}")
    for k in range(4): e(f"v_add_f32 v{100+k}, v{100+k}, v{80+k}")
    e("v_lshlrev_b32 v5, 4, v6"); e(f"s_lshl_b32 s9, {WAVE}, 9"); e(f"s_add_u32 s9, s9, {YL_H}"); e("v_add_u32 v5, s9, v5")
    set_exec64(0xffffffff)
    e("ds_write_b128 v5, v[100:103]")
    exec_all()
    e("v_add_f32 v104, v100, v101"); e("v_add_f32 v106, v102, v103"); e("v_mul_f32 v105, v100, v100")
    e("v_add_f32 v104, v104, v106"); e("v_fmac_f32 v105, v101, v101"); e("v_fmac_f32 v105, v102, v102"); e("v_fmac_f32 v105, v103, v103")
    e("s_nop 1")
    row16_allreduce("v_add_f32", 104, 2)
    e("s_nop 1")
    for i in range(2): cross16("v_add_f32", 104 + i, 106)
    e(f"s_lshl_b32 s9, {WAVE}, 3"); e(f"s_add_u32 s9, s9, {YL_ST}"); e("v_mov_b32 v5, s9")
    e("s_mov_b64 exec, 1")
    e("ds_write_b64 v5, v[104:105]")
    exec_all()
    lab("Y_MB6")
    stamp("y: h gathered", 65|128|1024|4096)
    barrier()
    stamp("y: after MB6", 64)
    e(f"s_cmp_ge_u32 {WAVE}, 10"); e("s_cbranch_scc1 Y_MB7")
    e("ds_read_b128 v[80:83], v13"); e("ds_read_b128 v[84:87], v13 offset:16"); e("ds_read_b64 v[88:89], v13 offset:32")
    for ksl in range(2):
        e(f"ds_read_b128 {vr(92+8*ksl,4)}, v14 offset:{128*ksl}")
        e(f"ds_read_b128 {vr(96+8*ksl,4)}, v14 offset:{128*ksl+16}")
    e("s_waitcnt lgkmcnt(4)")
    for a, b in ((82, 83), (84, 85), (86, 87), (88, 89)):
        e(f"v_add_f32 v80, v80, v{a}"); e(f"v_add_f32 v81, v81, v{b}")
    e(f"v_mul_f32 v80, {F(1.0/640.0)}, v80")
    e(f"v_mul_f32 v81, {F(1.0/640.0)}, v81")
    e("v_fma_f32 v81, -v80, v80, v81")
    e("v_max_f32 v81, 0, v81")
    e(f"v_add_f32 v81, {F(1e-5)}, v81")
    e("v_rsq_f32 v81, v81"); e("s_nop 0")
    e("v_mul_f32 v80, v80, v81")
    e("s_waitcnt lgkmcnt(0)")
    for i in range(16): e(f"v_fma_f32 v{92+i}, v{92+i}, v81, -v80")
    for ksl in range(2):
        for i in range(4): e(f"v_cvt_pk_bf16_f32 v{108+4*ksl+i}, v{92+8*ksl+2*i}, v{93+8*ksl+2*i}")
    e("s_nop 1")
    for ksl in range(2):
        for mat in range(2):
            for t in range(2):
                mfma(64 + 8 * mat + 4 * t, 108 + 4 * ksl, 16 + mat * 16 + (ksl * 2 + t) * 4, "0" if ksl == 0 else None)
    e("s_nop 5")
    e("v_cndmask_b32 v64, v64, v68, s[66:67]"); e("v_cndmask_b32 v64, v64, v72, s[68:69]"); e("v_cndmask_b32 v64, v64, v76, s[42:43]")
    e("ds_write_b32 v8, v64")
    lab("Y_MB7")
    stamp("y: P6 done", 64)
    barrier()
    stamp("y: after MB7", 64)
    e(f"s_cmp_ge_u32 {WAVE}, 10"); e("s_cbranch_scc1 Y_END")
    for i in range(5): e(f"ds_read2st64_b32 {vr(80+2*i,2)}, v9 offset0:{2*i} offset1:{2*i+1}")
    e("s_waitcnt lgkmcnt(0)")
    for i in range(5): e(f"v_add_f32 v{80+2*i}, v{80+2*i}, v{81+2*i}")
    e("v_add_f32 v80, v80, v82"); e("v_add_f32 v84, v84, v86"); e("v_add_f32 v80, v80, v88"); e("v_add_f32 v80, v80, v84")
    e("v_mov_b32 v88, v80"); e("s_nop 1")
    e("v_permlane32_swap_b32 v80, v88")
    e("s_nop 1")
    e(f"v_mul_f32 v80, {F(-math.log2(math.e))}, v80"); e("v_exp_f32 v80, v80"); e("s_nop 0")
    e("v_add_f32 v80, 1.0, v80"); e("v_rcp_f32 v80, v80"); e("s_nop 0")
    e("v_mul_f32 v80, v80, v88")
    e("v_cvt_pk_bf16_f32 v80, v80, v80")
    set_exec64(0xffffffff)
    e("ds_write_b16 v10, v80")
    exec_all()
    e("s_waitcnt lgkmcnt(0)")
    e("ds_read_b128 v[80:83], v11")
    e("s_waitcnt lgkmcnt(0)")
    for a in range(4): mfma(84 + 4 * a, 80, 48 + 4 * a, "0")
    e("s_nop 5")
    e("v_cndmask_b32 v84, v84, v88, s[66:67]"); e("v_cndmask_b32 v84, v84, v92, s[68:69]"); e("v_cndmask_b32 v84, v84, v96, s[42:43]")
    e(f"v_mov_b32 v85, {VTAG}")
    e(f"buffer_store_dwordx2 v[84:85], v12, {sr(WS)}, s65 offen{SCG}")
    lab("Y_END")
    stamp("y: end", 65|128|1024|2048|4096)
    stamp_flush(nstamp[0])
    e("s_endpgm")

hdr = f"""; Kernarg layout (104 bytes): d_in[0..9], d_out, d_debug, d_ws
; @launch grid=(256,1,1) block=(1024,1,1) lds=163840
.amdgcn_target "amdgcn-amd-amdhsa--gfx950"
.text
.globl {NAME}_kernel
.p2align 8
.type {NAME}_kernel,@function
{NAME}_kernel:
"""
prologue()
x_program()
y_program()
lab("L_END")
e("s_endpgm")
ftr = f""".section .rodata,"a"
.p2align 6
.amdhsa_kernel {NAME}_kernel
  .amdhsa_next_free_vgpr 128
  .amdhsa_next_free_sgpr 102
  .amdhsa_accum_offset 128
  .amdhsa_group_segment_fixed_size 0
  .amdhsa_kernarg_size 104
  .amdhsa_user_sgpr_count 2
  .amdhsa_user_sgpr_kernarg_segment_ptr 1
  .amdhsa_system_sgpr_workgroup_id_x 1
.end_amdhsa_kernel
"""
open(sys.argv[1], "w").write(hdr + "\n".join(L) + "\n" + ftr)
```

```python
import sys, math, struct
def F(x): return "0x%08x" % struct.unpack("<I", struct.pack("<f", x))[0]
NAME = "sequential_preLN__compressed_kv_cla__glu_gated_glu__decode"

OPT = dict(stamps=0, ynt=1, xnt=1, spin=1 << 16, cpv_early=1, prefetch_code=1)
for a in sys.argv[2:]:
    k, v = a.split("="); OPT[k] = int(v)

L = []
def e(s): L.append("    " + s)
def lab(s): L.append(s + ":")
def cm(s): L.append("    ; " + s)
_uid = [0]
def uid(p):
    _uid[0] += 1
    return f"{p}_{_uid[0]}"

WS_EPOCH = 0
WS_HELLO = 0x1000
WS_E1 = 0x10000
WS_QA = 0x40000
WS_ML = 0x60000
WS_E4 = 0x70000
WS_E5 = 0x90000
WS_E6 = 0x100000
WS_ST = 0x180000
WS_E3 = 0x200000
WS_E1L = 0x600000
WS_SIZE = 0x700000

WAVE, X, J, TAG, H, R = "s3", "s4", "s5", "s6", "s7", "s8"
HH, KC = "s7", "s8"
P_X, P_CKV, P_WQ, P_WUK, P_WUV, P_WO, P_WG, P_WU, P_WD, P_OUT, P_WS = 16, 18, 20, 22, 24, 26, 30, 32, 34, 36, 40
WS, SA, SB, SC_, SD = 44, 48, 52, 56, 60
def sr(b, n=4): return f"s[{b}:{b+n-1}]"
def vr(b, n): return f"v[{b}:{b+n-1}]" if n > 1 else f"v{b}"
STAMP0 = 72
LANE, G, L15, VTAG = "v1", "v2", "v3", "v4"

def srd(b, ptr, size):
    e(f"s_mov_b32 s{b}, s{ptr}")
    e(f"s_mov_b32 s{b+1}, s{ptr+1}")
    e(f"s_mov_b32 s{b+2}, {size}")
    e(f"s_mov_b32 s{b+3}, 0x00020000")

nstamp = [0]
def stamp(name, grp=1):
    if not (OPT["stamps"] & grp): return
    i = nstamp[0]; nstamp[0] += 1
    if OPT.get("pmask", 1) and i >= 6: return
    cm(f"stamp {i}: {name}")
    sk = uid("STK")
    e(f"s_cmp_lg_u32 {WAVE}, {OPT.get('stampwave',0)}"); e(f"s_cbranch_scc1 {sk}")
    if i == 0:
        e("s_memrealtime s[98:99]")
    e(f"s_memtime s[{STAMP0+2*i}:{STAMP0+2*i+1}]")
    e("s_waitcnt lgkmcnt(0)")
    lab(sk)
def stamp_val(name, sreg, grp=1):
    if not (OPT["stamps"] & grp): return
    i = nstamp[0]; nstamp[0] += 1
    if OPT.get("pmask", 1) and i >= 6: return
    cm(f"stamp {i}: VALUE {name}")
    e(f"s_mov_b32 s{STAMP0+2*i}, {sreg}"); e(f"s_mov_b32 s{STAMP0+2*i+1}, 0x7fffffff")
def stamp_flush(n):
    if not OPT["stamps"]: return
    skip = uid("STF")
    e(f"s_cmp_lg_u32 {WAVE}, {OPT.get('stampwave',0)}"); e(f"s_cbranch_scc1 {skip}")
    e("s_mov_b64 exec, 1")
    e("s_lshl_b32 s9, s2, 8"); e(f"s_add_u32 s9, s9, {WS_ST}")
    e("v_mov_b32 v5, 0")
    if OPT.get("pmask", 1): n = min(n, 6)
    for i in range(n):
        e(f"v_mov_b32 v6, s{STAMP0+2*i}"); e(f"v_mov_b32 v7, s{STAMP0+2*i+1}")
        e(f"buffer_store_dwordx2 v[6:7], v5, {sr(WS)}, s9 offen offset:{8*i}")
        e("s_nop 1")
    e("v_mov_b32 v6, s98"); e("v_mov_b32 v7, s99")
    e(f"buffer_store_dwordx2 v[6:7], v5, {sr(WS)}, s9 offen offset:248")
    e("s_nop 1")
    e("v_mov_b32 v6, s96"); e("v_mov_b32 v7, s97")
    e(f"buffer_store_dwordx2 v[6:7], v5, {sr(WS)}, s9 offen offset:240")
    e("s_memrealtime s[96:97]"); e("s_waitcnt lgkmcnt(0)")
    e("v_mov_b32 v6, s96"); e("v_mov_b32 v7, s97")
    e(f"buffer_store_dwordx2 v[6:7], v5, {sr(WS)}, s9 offen offset:232")
    e("s_mov_b64 exec, -1")
    lab(skip)

def barrier():
    e("s_waitcnt lgkmcnt(0)")
    e("s_barrier")

def divmagic(T):
    return {12: (43, 9), 6: (43, 8), 3: (86, 8), 1: (1, 0)}[T]

def dma_pattern(vd, T, S, sp, t0, t1):
    M, sh = divmagic(T)
    e(f"v_lshrrev_b32 v{t0}, 3, {LANE}")
    if sp is not None:
        e(f"s_lshl_b32 s9, {sp}, 3")
        e(f"v_add_u32 v{t0}, s9, v{t0}")
    if T == 1:
        e(f"v_mov_b32 v{t1}, v{t0}")
        e(f"v_mov_b32 v{t0}, 0")
    else:
        e(f"v_mul_u32_u24 v{t1}, {M}, v{t0}")
        e(f"v_lshrrev_b32 v{t1}, {sh}, v{t1}")
        e(f"v_mul_u32_u24 v{vd}, {T}, v{t1}")
        e(f"v_sub_u32 v{t0}, v{t0}, v{vd}")
    e(f"v_lshlrev_b32 v{t1}, 2, v{t1}")
    e(f"v_bfe_u32 v{vd}, {LANE}, 1, 2")
    e(f"v_add_u32 v{t1}, v{t1}, v{vd}")
    e(f"s_mov_b32 s9, {S}")
    e(f"v_mul_lo_u32 v{t1}, v{t1}, s9")
    e(f"v_lshlrev_b32 v{t0}, 5, v{t0}")
    e(f"v_and_b32 v{vd}, 1, {LANE}")
    e(f"v_lshlrev_b32 v{vd}, 4, v{vd}")
    e(f"v_add3_u32 v{vd}, v{vd}, v{t0}, v{t1}")

def dma_loop(vd, srdb, s_m0, s_off, n, step_m, step_s, nt):
    lp = uid("DMA")
    e(f"s_mov_b32 s12, {n}")
    lab(lp)
    e(f"s_mov_b32 m0, s{s_m0}")
    e(f"s_add_u32 s{s_m0}, s{s_m0}, {step_m}")
    e(f"buffer_load_dwordx4 v{vd}, {sr(srdb)}, s{s_off} offen{' nt' if nt else ''} lds")
    e(f"s_add_u32 s{s_off}, s{s_off}, {step_s}")
    e("s_sub_u32 s12, s12, 1")
    e("s_cmp_lg_u32 s12, 0")
    e(f"s_cbranch_scc1 {lp}")

def row16_allreduce(op, v, nregs=1):
    for sh in (8, 4, 2, 1):
        if nregs < 3: e("s_nop 1")
        for i in range(nregs):
            e(f"{op}_dpp v{v+i}, v{v+i}, v{v+i} row_ror:{sh} row_mask:0xf bank_mask:0xf")
def cross16(op, v, t):
    e(f"v_mov_b32 v{t}, v{v}"); e("s_nop 1")
    e(f"v_permlane16_swap_b32 v{v}, v{t}"); e("s_nop 1")
    e(f"{op} v{v}, v{v}, v{t}")
def cross32(op, v, t):
    e(f"v_mov_b32 v{t}, v{v}"); e("s_nop 1")
    e(f"v_permlane32_swap_b32 v{v}, v{t}"); e("s_nop 1")
    e(f"{op} v{v}, v{v}, v{t}")
def wave_allreduce(op, v, t):
    e("s_nop 1")
    row16_allreduce(op, v)
    e("s_nop 1")
    cross16(op, v, t)
    cross32(op, v, t)

MASK0 = 84
def _poll_generic(loads, checks, vt, init=None, sleep=0):
    n = len(loads)
    lp = uid("POLL"); dn = uid("PDONE")
    masked = OPT.get("pmask", 1) and n <= 8
    e("s_mov_b32 s13, 0")
    if masked:
        e("s_mov_b64 s[100:101], exec")
        for i in range(n):
            if init and init[i] is not None:
                e(f"s_mov_b32 s{MASK0+2*i}, {init[i] & 0xffffffff:#x}"); e(f"s_mov_b32 s{MASK0+2*i+1}, {init[i] >> 32:#x}")
            else: e(f"s_mov_b64 s[{MASK0+2*i}:{MASK0+2*i+1}], exec")
    lab(lp)
    for i, s_ in enumerate(loads):
        if masked:
            sk = uid("PSK")
            e(f"s_mov_b64 exec, s[{MASK0+2*i}:{MASK0+2*i+1}]")
            if n > 1: e(f"s_cbranch_execz {sk}")
            e(s_)
            if n > 1: lab(sk)
        else: e(s_)
    e("s_waitcnt vmcnt(0)")
    if masked:
        for i in range(n):
            e(f"s_mov_b64 exec, s[{MASK0+2*i}:{MASK0+2*i+1}]")
            for c in checks[i]: e(c)
            e(f"v_cmp_ne_u32 vcc, 0, v{vt}")
            e(f"s_mov_b64 s[{MASK0+2*i}:{MASK0+2*i+1}], vcc")
            if i == 0: e("s_mov_b64 s[14:15], vcc")
            else: e("s_or_b64 s[14:15], s[14:15], vcc")
        e("s_mov_b64 exec, s[100:101]")
        e("s_add_u32 s13, s13, 1")
        e("s_cmp_eq_u64 s[14:15], 0")
    else:
        for i in range(n):
            for c in checks[i]: e(c.replace(f"v{vt},", f"v{vt+1},", 1).replace(f", v{vt}", f", v{vt+1}") if False else c)
            if i == 0: e(f"v_mov_b32 v{vt+2}, v{vt}")
            else: e(f"v_or_b32 v{vt+2}, v{vt+2}, v{vt}")
        e(f"v_cmp_ne_u32 vcc, 0, v{vt+2}")
        e("s_add_u32 s13, s13, 1")
        e("s_cmp_eq_u64 vcc, 0")
    e(f"s_cbranch_scc1 {dn}")
    if OPT.get("psleep", 0): e(f"s_sleep {OPT['psleep']}")
    elif sleep: e(f"s_sleep {sleep}")
    e(f"s_cmp_lt_u32 s13, {OPT['spin']}")
    e(f"s_cbranch_scc1 {lp}")
    if masked: e("s_mov_b64 exec, s[100:101]")
    lab(dn)

def poll(loads, tagregs, vt):
    per = len(tagregs) // len(loads)
    checks = []
    for i in range(len(loads)):
        tr = tagregs[i*per:(i+1)*per]
        if per == 1: checks.append([f"v_xor_b32 v{vt}, {TAG}, v{tr[0]}"])
        else: checks.append([f"v_xor_b32 v{vt}, {TAG}, v{tr[0]}", f"v_xor_b32 v{vt+1}, {TAG}, v{tr[1]}", f"v_or_b32 v{vt}, v{vt}, v{vt+1}"])
    _poll_generic(loads, checks, vt)

def pollx(loads, bases, vt, init=None, sleep=0):
    checks = [[f"v_bitop3_b32 v{vt}, v{b}, v{b+1}, v{b+2} bitop3:0x96", f"v_bitop3_b32 v{vt}, v{vt}, v{b+3}, {VTAG} bitop3:0x96"] for b in bases]
    _poll_generic(loads, checks, vt, init, sleep=sleep)

def poll2(loadsA, loadsB, tagregs, vt):
    lp = uid("POLL"); dn = uid("PDONE")
    e("s_mov_b32 s13, 0")
    lab(lp)
    for loads in (loadsA, loadsB):
        for s_ in loads: e(s_)
        e("s_waitcnt vmcnt(0)")
        tr = list(tagregs); first = True
        while tr:
            a_, b_ = tr.pop(0), tr.pop(0)
            e(f"v_xor_b32 v{vt+1}, {TAG}, v{a_}"); e(f"v_xor_b32 v{vt+2}, {TAG}, v{b_}")
            if first: e(f"v_or_b32 v{vt}, v{vt+1}, v{vt+2}")
            else: e(f"v_or3_b32 v{vt}, v{vt+1}, v{vt+2}, v{vt}")
            first = False
        e(f"v_cmp_ne_u32 vcc, 0, v{vt}")
        e("s_cmp_eq_u64 vcc, 0")
        e(f"s_cbranch_scc1 {dn}")
    e("s_add_u32 s13, s13, 1")
    e(f"s_cmp_lt_u32 s13, {OPT['spin']}")
    e(f"s_cbranch_scc1 {lp}")
    lab(dn)

def mfma(d, a, b, c=None):
    cs = vr(d, 4) if c is None else c
    e(f"v_mfma_f32_16x16x32_bf16 {vr(d,4)}, {vr(a,4)}, {vr(b,4)}, {cs}")

SCG = " sc1"
EXEC_L15_0 = 0x0001000100010001

def set_exec64(val):
    lo, hi = val & 0xffffffff, val >> 32
    e(f"s_mov_b32 exec_lo, {lo:#x}"); e(f"s_mov_b32 exec_hi, {hi:#x}")
def exec_all(): e("s_mov_b64 exec, -1")

def prologue():
    if OPT["stamps"] or OPT.get("diagx", 0): e("s_memrealtime s[96:97]")
    e("s_cmp_ge_u32 s2, 256")
    e("s_cbranch_scc1 L_END")
    e("s_load_dwordx16 s[16:31], s[0:1], 0")
    e("s_load_dwordx8 s[32:39], s[0:1], 64")
    e("s_load_dwordx2 s[40:41], s[0:1], 96")
    e(f"v_lshrrev_b32 v5, 6, v0")
    e(f"v_and_b32 {LANE}, 63, v0")
    e(f"v_readfirstlane_b32 {WAVE}, v5")
    e(f"v_lshrrev_b32 {G}, 4, {LANE}")
    if OPT.get("earlytouch", 1): code_touch(120)
    e(f"v_and_b32 {L15}, 15, {LANE}")
    e(f"s_and_b32 {X}, s2, 7")
    e(f"s_lshr_b32 {J}, s2, 3")
    e(f"s_mul_i32 s64, {WAVE}, 11"); e("s_lshr_b32 s64, s64, 5")
    e("s_mul_i32 s65, s64, 3"); e(f"s_sub_u32 s65, {WAVE}, s65")
    e(f"s_cmp_ge_u32 {J}, 16")
    e("s_cbranch_scc1 L_Y")

def kernarg_ready():
    e("s_waitcnt lgkmcnt(0)")
    e(f"s_load_dword {TAG}, s[{P_WS}:{P_WS+1}], 0")
    srd(WS, P_WS, WS_SIZE)

def get_tag():
    e("s_waitcnt lgkmcnt(0)")
    e(f"s_mul_i32 {TAG}, {TAG}, 1664525")
    e(f"s_add_u32 {TAG}, {TAG}, 1013904223")
    e(f"v_mov_b32 {VTAG}, {TAG}")

def hello_publish(vt):
    if not OPT.get("local", 1): return
    sk = uid("HEL")
    e(f"s_cmp_lg_u32 {WAVE}, 15"); e(f"s_cbranch_scc1 {sk}")
    e("s_getreg_b32 s9, hwreg(HW_REG_XCC_ID, 0, 4)")
    e(f"s_lshl_b32 s10, {X}, 8"); e("s_lshr_b32 s11, s2, 3"); e("s_lshl_b32 s11, s11, 3"); e("s_add_u32 s10, s10, s11"); e(f"s_add_u32 s10, s10, {WS_HELLO}")
    e(f"v_mov_b32 v{vt}, s9"); e(f"v_mov_b32 v{vt+1}, {TAG}"); e(f"v_mov_b32 v{vt+2}, 0")
    e("s_mov_b64 exec, 1")
    e(f"buffer_store_dwordx2 v[{vt}:{vt+1}], v{vt+2}, {sr(WS)}, s10 offen sc1")
    exec_all()
    lab(sk)

XL_U = 0
XL_UK = 61440
XL_MG, XL_MU, XL_MD = 73728, 94208, 114688
XL_S = 147456
XL_XN = XL_S
XL_Q = XL_S + 1280
XL_CL = XL_S + 2048
CL_RS = 400
XL_CB = XL_S + 14848
XL_W = XL_S + 15232
XL_FLAG = XL_S + 15360
XL_H = XL_S + 2048
XL_ST = XL_S + 4608
XL_G = XL_S + 4736
XL_HH = XL_S + 6144
XL_R2 = XL_S + 6400
XL_R = XL_S + 8192

def st_global(data, voff, soff):
    e(f"buffer_store_dwordx4 {data}, {voff}, {sr(WS)}, {soff} offen sc1")
def st_local(data, voff, soff):
    g = uid("STG"); d = uid("STD")
    e("s_nop 0"); e("v_readfirstlane_b32 s10, v123"); e("s_nop 3")
    e("s_cmp_eq_u32 s10, 1"); e(f"s_cbranch_scc0 {g}")
    e(f"buffer_store_dwordx4 {data}, {voff}, {sr(WS)}, {soff} offen")
    e(f"s_branch {d}")
    lab(g)
    e(f"buffer_store_dwordx4 {data}, {voff}, {sr(WS)}, {soff} offen sc1")
    lab(d)

XL_CX = None
def collect_store(acc, lds_base, soff_code, flavor, lbl):
    e(f"v_cvt_pk_bf16_f32 v124, v{acc}, v{acc+1}"); e(f"v_cvt_pk_bf16_f32 v125, v{acc+2}, v{acc+3}")
    e(f"v_lshlrev_b32 v5, 3, {G}"); e(f"s_lshl_b32 s9, {WAVE}, 5"); e(f"s_add_u32 s9, s9, {lds_base}"); e("v_add_u32 v5, s9, v5")
    set_exec64(EXEC_L15_0)
    e("ds_write_b64 v5, v[124:125]")
    exec_all()
    lab(lbl)
    barrier()
    sk = uid("CST")
    e(f"s_cmp_lg_u32 {WAVE}, 0"); e(f"s_cbranch_scc1 {sk}")
    e(f"v_lshlrev_b32 v5, 3, {LANE}"); e(f"v_add_u32 v6, {lds_base}, v5")
    set_exec64((1 << 48) - 1)
    e("ds_read_b64 v[124:125], v6")
    if flavor is st_local:
        e(f"v_mov_b32 v7, {XL_FLAG}"); e("ds_read_b32 v123, v7")
    soff_code()
    e(f"v_lshlrev_b32 v5, 4, {LANE}")
    e("s_waitcnt lgkmcnt(0)")
    e("v_mov_b32 v126, v125"); e(f"v_mov_b32 v125, {VTAG}"); e(f"v_mov_b32 v127, {VTAG}")
    flavor("v[124:127]", "v5", "s9")
    exec_all()
    lab(sk)

def code_touch(vd, wave=15):
    if not OPT["prefetch_code"]: return
    sk = uid("CT"); pc = uid("PC")
    e(f"s_cmp_lg_u32 {WAVE}, {wave}"); e(f"s_cbranch_scc1 {sk}")
    e("s_getpc_b64 s[10:11]")
    lab(pc)
    e(f"s_sub_u32 s10, s10, {pc}-{NAME}_kernel"); e("s_subb_u32 s11, s11, 0")
    e("s_lshr_b32 s9, s2, 3"); e("s_and_b32 s9, s9, 15"); e("s_lshl_b32 s9, s9, 10")
    e(f"v_lshl_add_u32 v{vd}, {LANE}, 4, s9")
    e(f"s_mov_b32 s9, L_END-{NAME}_kernel-16")
    e(f"v_min_u32 v{vd}, s9, v{vd}")
    e(f"global_load_dwordx4 v[{vd}:{vd+3}], v{vd}, s[10:11]")
    lab(sk)

def code_touch_range(lbl, nkb, vd, wave=15):
    if not OPT.get("retouch", 0): return
    sk = uid("CT"); pc = uid("PC")
    e(f"s_cmp_lg_u32 {WAVE}, {wave}"); e(f"s_cbranch_scc1 {sk}")
    e("s_getpc_b64 s[10:11]")
    lab(pc)
    e(f"s_sub_u32 s10, s10, {pc}-{NAME}_kernel"); e("s_subb_u32 s11, s11, 0")
    e(f"s_mov_b32 s9, {lbl}-{NAME}_kernel")
    e(f"v_lshl_add_u32 v{vd+4}, {LANE}, 4, s9")
    e(f"s_mov_b32 s9, L_END-{NAME}_kernel-16")
    for i in range(nkb):
        e(f"v_min_u32 v{vd+5}, s9, v{vd+4}")
        e(f"global_load_dwordx4 v[{vd}:{vd+3}], v{vd+5}, s[10:11]")
        if i + 1 < nkb: e(f"v_add_u32 v{vd+4}, 1024, v{vd+4}")
    lab(sk)

def tlb_warm(wave):
    if not OPT.get("tlbwarm", 0): return
    sk = uid("TW")
    e(f"s_cmp_lg_u32 {WAVE}, {wave}"); e(f"s_cbranch_scc1 {sk}")
    step = 1 << 20
    lst = [(P_WUV, 9437184), (P_WO, 7864320), (P_WG, 1966080), (P_WU, 1966080), (P_WD, 1966080), (P_WS, WS_SIZE), (P_OUT, 1280)]
    k = 0
    for ptr, size in lst:
        off = 0
        while off < size:
            if off < (1 << 20):
                e(f"s_load_dword s{84 + (k % 8)}, s[{ptr}:{ptr+1}], {off:#x}")
            else:
                e(f"s_mov_b32 s9, {off:#x}")
                e(f"s_load_dword s{84 + (k % 8)}, s[{ptr}:{ptr+1}], s9")
            k += 1; off += step
    lab(sk)

def x_program():
    lab("L_X")
    e(f"s_lshr_b32 s9, {J}, 2"); e(f"s_lshl_b32 {H}, {X}, 2"); e(f"s_add_u32 {H}, {H}, s9")
    e(f"s_and_b32 {R}, {J}, 3")
    dma_pattern(15, 12, 12288, "s65", 17, 18)
    if OPT.get("dmaexp", 0):
        e(f"v_lshrrev_b32 v17, 4, {LANE}"); e("s_lshl_b32 s9, s65, 2"); e("v_add_u32 v17, s9, v17"); e("v_mul_u32_u24 v17, 12288, v17")
        e(f"v_lshl_add_u32 v17, {L15}, 4, v17")
        e(f"v_lshrrev_b32 v18, 3, {LANE}"); e("v_mul_u32_u24 v18, 12288, v18"); e(f"v_and_b32 v15, 7, {LANE}"); e("v_lshl_add_u32 v18, v15, 4, v18"); e("v_add_u32 v18, 256, v18")
        e("s_cmp_eq_u32 s65, 2"); e("s_cselect_b64 vcc, -1, 0"); e("s_nop 1"); e("v_cndmask_b32 v15, v17, v18, vcc")
    e(f"v_cmp_lt_u32 vcc, 23, {LANE}"); e(f"v_subrev_u32 v6, 24, {LANE}"); e("s_nop 0")
    e(f"v_cndmask_b32 v14, {LANE}, v6, vcc"); e("v_lshlrev_b32 v14, 4, v14")
    e("v_mov_b32 v6, 12288"); e("v_cndmask_b32 v6, 0, v6, vcc"); e("v_add_u32 v14, v14, v6")
    e(f"v_lshlrev_b32 v5, 2, {LANE}")
    e(f"s_mul_i32 s10, {R}, 160"); e("s_lshl_b32 s11, s64, 3"); e("s_add_u32 s10, s10, s11")
    e("s_mul_i32 s11, s10, 12288"); e(f"s_mul_i32 s67, {H}, 384"); e("s_add_u32 s11, s11, s67")
    e(f"s_sub_u32 s9, {WAVE}, 12")
    e(f"s_mul_i32 s66, {R}, 192"); e("s_lshl_b32 s10, s9, 1"); e("s_add_u32 s66, s66, s10")
    e("s_mul_i32 s66, s66, 12288"); e("s_add_u32 s66, s66, s67")
    e(f"s_mul_i32 s68, s9, 800"); e(f"s_add_u32 s68, s68, {XL_UK}")
    e(f"s_lshl_b32 s10, {WAVE}, 10")
    kernarg_ready()
    srd(SA, P_WQ, 7864320); srd(SB, P_WUK, 9437184); srd(SC_, P_X, 1280)
    stamp("x: start", 0xfffff)
    sk = uid("XL")
    e(f"s_cmp_lg_u32 {WAVE}, 15"); e(f"s_cbranch_scc1 {sk}")
    for i in range(5):
        e(f"buffer_load_dword v{16+i}, v5, {sr(SC_)}, 0 offen offset:{256*i}")
    e("s_barrier")
    e("s_branch X_LN")
    lab(sk)
    e(f"s_cmp_ge_u32 {WAVE}, 12"); e("s_cbranch_scc1 X_UKD")
    dma_loop(15, SA, 10, 11, 5, 12 * 1024, 32 * 12288, OPT["xnt"])
    e("s_barrier")
    e("s_waitcnt vmcnt(0)")
    e("s_branch X_B1")
    lab("X_UKD")
    e("s_barrier")
    set_exec64((1<<48)-1)
    npre = OPT.get("ukpre", 4)
    dma_loop(14, SB, 68, 66, npre, 3 * 800, 6 * 12288, OPT["xnt"])
    exec_all()
    lab("X_B1")
    get_tag()
    if OPT.get("diagw", 0):
        e("s_memtime s[76:77]"); e("s_waitcnt lgkmcnt(0)")
        e("s_barrier")
        e("s_memtime s[78:79]"); e("s_waitcnt vmcnt(0)"); e("s_memtime s[80:81]"); e("s_waitcnt lgkmcnt(0)")
        e("s_lshl_b32 s9, s2, 10"); e(f"s_lshl_b32 s10, {WAVE}, 6"); e("s_add_u32 s9, s9, s10"); e(f"s_add_u32 s9, s9, {WS_ST}")
        e("s_mov_b64 exec, 1"); e("v_mov_b32 v5, 0")
        for i, b in enumerate((72, 74, 76, 78, 80, 96)):
            e(f"v_mov_b32 v6, s{b}"); e(f"v_mov_b32 v7, s{b+1}")
            e(f"buffer_store_dwordx2 v[6:7], v5, {sr(WS)}, s9 offen offset:{8*i}"); e("s_nop 1")
        e("s_endpgm")
    stamp("x: wq landed", 9|32768)
    barrier()
    stamp("x: after B1", 8)
    e(f"s_cmp_ge_u32 {WAVE}, 12"); e("s_cbranch_scc1 X_UK2")
    e(f"v_mul_u32_u24 v5, 3072, {G}"); e(f"v_lshl_add_u32 v5, {L15}, 3, v5")
    e(f"s_lshl_b32 s9, {WAVE}, 7"); e("v_add_u32 v13, s9, v5")
    e(f"s_mul_i32 s9, {R}, 320"); e(f"s_add_u32 s9, s9, {XL_XN}")
    e(f"v_lshl_add_u32 v6, {G}, 4, s9")
    for ks in range(5):
        e(f"ds_read_b128 {vr(64+4*ks,4)}, v6 offset:{64*ks}")
        e(f"ds_read_b64_tr_b16 {vr(40+4*ks,2)}, v13 offset:{XL_U+ks*12288}")
        e(f"ds_read_b64_tr_b16 {vr(42+4*ks,2)}, v13 offset:{XL_U+ks*12288+1536}")
    e(f"s_lshl_b32 s9, {H}, 2"); e(f"s_add_u32 s9, s9, {R}"); e("s_mul_i32 s9, s9, 1536")
    e(f"s_lshl_b32 s10, {WAVE}, 7"); e("s_add_u32 s9, s9, s10"); e(f"s_add_u32 s9, s9, {WS_E1}")
    e(f"v_lshlrev_b32 v5, 3, {L15}")
    for ks in range(5):
        e(f"s_waitcnt lgkmcnt({3*(4-ks)})")
        mfma(88, 64 + 4 * ks, 40 + 4 * ks, "0" if ks == 0 else None)
    e("s_nop 7")
    e(f"v_mov_b32 v89, {VTAG}")
    e("s_mov_b64 exec, 0xffff")
    if OPT.get("e1dual", 1):
        e(f"s_add_u32 s10, s9, {WS_E1L - WS_E1}")
        e(f"buffer_store_dwordx2 v[88:89], v5, {sr(WS)}, s10 offen")
    e(f"buffer_store_dwordx2 v[88:89], v5, {sr(WS)}, s9 offen{SCG}")
    exec_all()
    stamp("x: q published", 9)
    e("s_branch X_B3")
    lab("X_UK2")
    e(f"s_cmp_eq_u32 {WAVE}, 15"); e("s_cbranch_scc1 X_B3")
    set_exec64((1<<48)-1)
    dma_loop(14, SB, 68, 66, 32 - OPT.get("ukpre", 4), 3 * 800, 6 * 12288, OPT["xnt"])
    exec_all()
    e(f"s_cmp_ge_u32 {WAVE}, 14"); e("s_cbranch_scc1 X_B3W")
    e(f"s_sub_u32 s9, {WAVE}, 12"); e("s_lshl_b32 s9, s9, 6"); e(f"v_add_u32 v5, s9, {LANE}")
    e("v_cmp_gt_u32 vcc, 96, v5"); e("s_and_saveexec_b64 s[42:43], vcc")
    e("v_lshlrev_b32 v6, 4, v5")
    e(f"s_mul_i32 s9, {H}, 6144"); e(f"s_add_u32 s9, s9, {WS_E1}")
    e("s_add_u32 s10, s9, 3072")
    stamp("x: E1 poll start", 8|32768)
    if OPT.get("e1dual", 1):
        e(f"s_add_u32 s11, s9, {WS_E1L - WS_E1}"); e(f"s_add_u32 s69, s10, {WS_E1L - WS_E1}")
        mk = lambda sa, sb: [f"buffer_load_dwordx4 v[92:95], v6, {sr(WS)}, {sa} offen sc1",
                             f"buffer_load_dwordx4 v[96:99], v6, {sr(WS)}, {sa} offen offset:1536 sc1",
                             f"buffer_load_dwordx4 v[100:103], v6, {sr(WS)}, {sb} offen sc1",
                             f"buffer_load_dwordx4 v[104:107], v6, {sr(WS)}, {sb} offen offset:1536 sc1"]
        poll2(mk("s11", "s69"), mk("s9", "s10"), [93, 95, 97, 99, 101, 103, 105, 107], 108)
    else:
        poll([f"buffer_load_dwordx4 v[92:95], v6, {sr(WS)}, s9 offen sc1",
              f"buffer_load_dwordx4 v[96:99], v6, {sr(WS)}, s9 offen offset:1536 sc1",
              f"buffer_load_dwordx4 v[100:103], v6, {sr(WS)}, s10 offen sc1",
              f"buffer_load_dwordx4 v[104:107], v6, {sr(WS)}, s10 offen offset:1536 sc1"],
             [93, 95, 97, 99, 101, 103, 105, 107], 108)
    stamp("x: E1 poll end", 8|32768); stamp_val("E1 iters", "s13", 8)
    e("v_add_f32 v92, v92, v96"); e("v_add_f32 v94, v94, v98")
    e("v_add_f32 v100, v100, v104"); e("v_add_f32 v102, v102, v106")
    e("v_add_f32 v92, v92, v100"); e("v_add_f32 v94, v94, v102")
    qs = 192 ** -0.5 * math.log2(math.e)
    e(f"v_mul_f32 v92, {F(qs)}, v92"); e(f"v_mul_f32 v94, {F(qs)}, v94")
    e("v_cvt_pk_bf16_f32 v92, v92, v94")
    e("v_lshlrev_b32 v6, 2, v5"); e(f"v_add_u32 v6, {XL_Q}, v6")
    e("ds_write_b32 v6, v92")
    e("s_mov_b64 exec, s[42:43]")
    lab("X_B3W")
    e("s_waitcnt vmcnt(0)")
    lab("X_B3")
    barrier()
    stamp("x: q gathered", 9|32768)
    e(f"s_cmp_ge_u32 {WAVE}, 12"); e("s_cbranch_scc1 X_P2B")
    e(f"v_lshlrev_b32 v6, 4, {G}"); e(f"v_add_u32 v6, {XL_Q}, v6")
    e(f"v_lshrrev_b32 v7, 1, {L15}"); e("v_mul_u32_u24 v7, 800, v7")
    e(f"v_and_b32 v8, 1, {L15}"); e("v_mul_u32_u24 v8, 384, v8"); e("v_add_u32 v7, v7, v8")
    e(f"v_lshl_add_u32 v7, {G}, 4, v7")
    e(f"s_mul_i32 s9, {WAVE}, 6400"); e(f"s_add_u32 s9, s9, {XL_UK}"); e("v_add_u32 v7, s9, v7")
    for ks in range(6):
        e(f"ds_read_b128 {vr(16+4*ks,4)}, v7 offset:{64*ks}")
        e(f"ds_read_b128 {vr(64+4*ks,4)}, v6 offset:{64*ks}")
    for ks in range(6):
        e(f"s_waitcnt lgkmcnt({2*(5-ks)})")
        mfma(88, 16 + 4 * ks, 64 + 4 * ks, "0" if ks == 0 else None)
    e("s_nop 7")
    def soff_qa():
        e(f"s_mul_i32 s9, {H}, 3072"); e(f"s_mul_i32 s10, {R}, 768"); e("s_add_u32 s9, s9, s10"); e(f"s_add_u32 s9, s9, {WS_QA}")
    collect_store(88, XL_CB, soff_qa, st_global, "X_P2B")
    stamp("x: qabs published", 9|128|256|32768|(1<<16))
    if OPT.get("xstop", 0) == 1:
        e("s_waitcnt vmcnt(0)"); barrier(); stamp("x: all waves done"); e("s_branch X_END")
    if OPT.get("qawait", 0):
        e("s_waitcnt vmcnt(0)"); barrier()
    srd(SA, P_WUV, 9437184)
    e(f"s_cmp_ge_u32 {WAVE}, 12"); e("s_cbranch_scc1 X_B4")
    e(f"s_mul_i32 s10, {R}, 192"); e("s_lshl_b32 s11, s64, 3"); e("s_add_u32 s10, s10, s11")
    e("s_mul_i32 s11, s10, 12288"); e("s_add_u32 s11, s11, s67")
    e(f"s_lshl_b32 s10, {WAVE}, 10"); e(f"s_add_u32 s10, s10, {XL_U}")
    dma_loop(15, SA, 10, 11, 6, 12 * 1024, 32 * 12288, OPT["xnt"])
    lab("X_B4")
    PFNT = " nt" if OPT.get("pfnt", 0) else ""
    if OPT.get("wopf", 0):
        sk = uid("PFO")
        srd(SB, P_WO, 7864320)
        e(f"s_cmp_eq_u32 {WAVE}, 15"); e(f"s_cbranch_scc1 {sk}")
        e(f"s_mul_i32 s9, {X}, 768"); e(f"s_mul_i32 s10, {J}, 48"); e("s_add_u32 s9, s9, s10"); e("s_mul_i32 s9, s9, 1280")
        e(f"s_lshl_b32 s10, {WAVE}, 12"); e("s_add_u32 s9, s9, s10")
        e(f"v_lshlrev_b32 v8, 4, {LANE}")
        for i in range(4): e(f"buffer_load_dwordx4 v[120:123], v8, {sr(SB)}, s9 offen offset:{1024*i}{PFNT}")
        lab(sk)
    if OPT.get("l2pf", 1):
        srd(SB, P_WG, 1966080); srd(SD, P_WU, 1966080)
        e(f"v_cmp_lt_u32 vcc, 23, {LANE}"); e(f"v_subrev_u32 v7, 24, {LANE}"); e("s_nop 0")
        e(f"v_cndmask_b32 v8, {LANE}, v7, vcc"); e("v_lshlrev_b32 v8, 4, v8")
        e("v_mov_b32 v7, 3072"); e("v_cndmask_b32 v7, 0, v7, vcc"); e("v_add_u32 v8, v8, v7")
        sk = uid("PFG")
        e(f"s_cmp_ge_u32 {WAVE}, 10"); e(f"s_cbranch_scc1 {sk}")
        e(f"s_mul_i32 s9, {J}, 40"); e(f"s_lshl_b32 s10, {WAVE}, 2"); e("s_add_u32 s9, s9, s10"); e("s_mul_i32 s9, s9, 3072")
        e(f"s_mul_i32 s10, {X}, 384"); e("s_add_u32 s9, s9, s10"); e("s_add_u32 s10, s9, 6144")
        set_exec64((1 << 48) - 1)
        e(f"buffer_load_dwordx4 v[120:123], v8, {sr(SB)}, s9 offen{PFNT}"); e(f"buffer_load_dwordx4 v[120:123], v8, {sr(SB)}, s10 offen{PFNT}")
        e(f"buffer_load_dwordx4 v[120:123], v8, {sr(SD)}, s9 offen{PFNT}"); e(f"buffer_load_dwordx4 v[120:123], v8, {sr(SD)}, s10 offen{PFNT}")
        exec_all()
        lab(sk)
        sk = uid("PFD")
        e(f"s_cmp_lt_u32 {WAVE}, 10"); e(f"s_cbranch_scc1 {sk}")
        srd(SB, P_WD, 1966080)
        e(f"s_mul_i32 s9, {X}, 192"); e(f"s_mul_i32 s10, {J}, 12"); e("s_add_u32 s9, s9, s10"); e("s_mul_i32 s9, s9, 1280")
        e(f"s_sub_u32 s10, {WAVE}, 10"); e("s_mul_i32 s10, s10, 2560"); e("s_add_u32 s9, s9, s10")
        e(f"v_lshlrev_b32 v8, 4, {LANE}")
        e(f"buffer_load_dwordx4 v[120:123], v8, {sr(SB)}, s9 offen{PFNT}"); e(f"buffer_load_dwordx4 v[120:123], v8, {sr(SB)}, s9 offen offset:1024{PFNT}")
        set_exec64(0xffffffff)
        e(f"buffer_load_dwordx4 v[120:123], v8, {sr(SB)}, s9 offen offset:2048{PFNT}")
        exec_all()
        lab(sk)
    e(f"v_lshrrev_b32 v8, 5, {LANE}"); e(f"s_lshl_b32 s9, {WAVE}, 1"); e("v_add_u32 v8, s9, v8")
    e(f"v_and_b32 v9, 31, {LANE}")
    e("v_mul_u32_u24 v6, 2176, v8"); e("v_lshl_add_u32 v6, v9, 4, v6")
    e(f"v_mul_u32_u24 v10, {CL_RS}, v8"); e("v_mul_u32_u24 v11, 12, v9"); e("v_add_u32 v10, v10, v11")
    e(f"v_add_u32 v118, {XL_CL}, v10")
    e("s_waitcnt vmcnt(0)")
    code_touch_range("X_NPR", 3, 120, 14)
    stamp("x: burst2 landed", 1|256)
    barrier()
    if OPT.get("xstop", 0) == 2: e("s_branch X_END")
    e(f"s_cmp_ge_u32 {WAVE}, 12"); e("s_cbranch_scc1 X_NPR")
    for ks in range(6):
        e(f"ds_read_b64_tr_b16 {vr(40+4*ks,2)}, v13 offset:{XL_U+ks*12288}")
        e(f"ds_read_b64_tr_b16 {vr(42+4*ks,2)}, v13 offset:{XL_U+ks*12288+1536}")
    lab("X_NPR")
    e(f"v_lshrrev_b32 v16, 2, {L15}"); e(f"v_lshl_add_u32 v16, {G}, 3, v16"); e(f"v_mul_u32_u24 v16, {CL_RS}, v16")
    e(f"v_and_b32 v17, 3, {L15}"); e("v_lshl_add_u32 v16, v17, 3, v16")
    e(f"s_lshl_b32 s9, {WAVE}, 5"); e(f"s_add_u32 s10, s9, {XL_CL}"); e("v_add_u32 v16, s10, v16")
    e(f"v_and_b32 v17, 1, {LANE}"); e("v_lshlrev_b32 v17, 6, v17"); e(f"v_lshl_add_u32 v17, {G}, 4, v17"); e(f"v_add_u32 v17, {XL_W}, v17")
    e(f"v_lshlrev_b32 v18, 1, {L15}"); e(f"s_add_u32 s10, s9, {XL_CB}"); e("v_add_u32 v18, s10, v18")
    e(f"v_lshlrev_b32 v19, 4, {G}"); e(f"v_add_u32 v19, {XL_CB}, v19")
    e(f"s_mul_i32 s9, {H}, 69632"); e(f"s_add_u32 s69, s9, {WS_E3 + 2048}"); e(f"s_lshl_b32 s10, {R}, 9"); e("s_add_u32 s9, s9, s10")
    e(f"s_add_u32 s9, s9, {WS_E3}")
    e(f"s_cmp_eq_u32 {WAVE}, 12"); e("s_cbranch_scc1 X_ML")
    stamp("x: E3 poll start", 16)
    pollx([f"buffer_load_dwordx4 v[96:99], v6, {sr(WS)}, s9 offen sc1"], [96], 108, sleep=OPT.get("e3sleep", 0))
    stamp("x: E3 poll end", 16|2048); stamp_val("E3 iters", "s13", 16)
    e("ds_write2_b32 v118, v96, v97 offset1:1"); e("ds_write_b32 v118, v98 offset:8")
    if OPT.get("local", 1):
        sk = uid("HCK")
        e(f"s_cmp_lg_u32 {WAVE}, 13"); e(f"s_cbranch_scc1 {sk}")
        e(f"v_lshlrev_b32 v5, 3, {LANE}")
        e(f"s_lshl_b32 s10, {X}, 8"); e(f"s_add_u32 s10, s10, {WS_HELLO + 128}")
        e("s_getreg_b32 s11, hwreg(HW_REG_XCC_ID, 0, 4)")
        e("s_mov_b64 exec, 0x3ff")
        e(f"buffer_load_dwordx2 v[100:101], v5, {sr(WS)}, s10 offen sc1")
        e("s_waitcnt vmcnt(0)")
        e("v_xor_b32 v100, s11, v100"); e(f"v_xor_b32 v101, {TAG}, v101"); e("v_or_b32 v100, v100, v101")
        e("v_cmp_ne_u32 vcc, 0, v100")
        e("s_cmp_eq_u64 vcc, 0"); e("s_cselect_b32 s10, 1, 0")
        e("s_mov_b64 exec, 1")
        e(f"v_mov_b32 v100, s10"); e(f"v_mov_b32 v5, {XL_FLAG}"); e("ds_write_b32 v5, v100")
        exec_all()
        lab(sk)
    e("s_branch X_B5")
    lab("X_ML")
    e(f"v_and_b32 v5, 31, {LANE}"); e("v_mul_u32_u24 v5, 2176, v5")
    pollx([f"buffer_load_dwordx4 v[100:103], v6, {sr(WS)}, s9 offen sc1",
           f"buffer_load_dwordx4 v[96:99], v5, {sr(WS)}, s69 offen sc1"], [100, 96], 108, init=[None, 0xffffffff], sleep=OPT.get("e3sleep", 0))
    e("ds_write2_b32 v118, v100, v101 offset1:1"); e("ds_write_b32 v118, v102 offset:8")
    e("v_mov_b32 v98, v96")
    e("s_nop 1"); row16_allreduce("v_max_f32", 98); e("s_nop 1"); cross16("v_max_f32", 98, 99)
    e("v_sub_f32 v96, v96, v98"); e("v_exp_f32 v96, v96"); e("s_nop 0")
    e("v_mul_f32 v97, v96, v97")
    e("s_nop 1"); row16_allreduce("v_add_f32", 97); e("s_nop 1"); cross16("v_add_f32", 97, 99)
    e("v_rcp_f32 v97, v97"); e("s_nop 0")
    e("v_mul_f32 v96, v96, v97")
    e("v_cvt_pk_bf16_f32 v97, v96, v96")
    e("v_and_b32 v98, 0xffff0000, v97")
    e("v_sub_f32 v96, v96, v98")
    e("v_cvt_pk_bf16_f32 v96, v96, v96")
    e(f"v_and_b32 v5, 31, {LANE}"); e("v_lshlrev_b32 v5, 1, v5"); e(f"v_add_u32 v5, {XL_W}, v5")
    set_exec64(0xffffffff)
    e("ds_write_b16 v5, v97"); e("ds_write_b16 v5, v96 offset:64")
    exec_all()
    lab("X_B5")
    barrier()
    stamp("x: E3 gathered", 17|128|256|2048)
    e(f"s_cmp_ge_u32 {WAVE}, 12"); e("s_cbranch_scc1 X_B5b")
    e(f"ds_read_b64_tr_b16 v[96:97], v16"); e(f"ds_read_b64_tr_b16 v[98:99], v16 offset:{4*CL_RS}")
    e("ds_read_b128 v[100:103], v17")
    e("s_waitcnt lgkmcnt(0)")
    mfma(120, 100, 96, "0")
    e("s_nop 7")
    e("v_add_f32 v120, v120, v121")
    e("v_cvt_pk_bf16_f32 v120, v120, v120")
    e("s_mov_b64 exec, 0xffff")
    e("ds_write_b16 v18, v120")
    exec_all()
    lab("X_B5b")
    barrier()
    stamp("x: after B5b", 2048)
    e(f"s_cmp_ge_u32 {WAVE}, 12"); e("s_cbranch_scc1 X_UPD")
    for ks in range(6): e(f"ds_read_b128 {vr(96+4*ks,4)}, v19 offset:{64*ks}")
    for ks in range(6):
        e(f"s_waitcnt lgkmcnt({5-ks})")
        mfma(120, 40 + 4 * ks, 96 + 4 * ks, "0" if ks == 0 else None)
    e("s_nop 7")
    def soff_e4():
        e(f"s_lshl_b32 s9, {X}, 2"); e(f"s_add_u32 s9, s9, {R}"); e("s_mul_i32 s9, s9, 3072")
        e(f"s_and_b32 s10, {H}, 3"); e("s_mul_i32 s10, s10, 768"); e("s_add_u32 s9, s9, s10"); e(f"s_add_u32 s9, s9, {WS_E4}")
    collect_store(120, XL_Q, soff_e4, st_local if OPT.get("local", 1) else st_global, "X_UPD")
    stamp("x: ctx published", 1|128|256|2048)
    e(f"s_cmp_ge_u32 {J}, 5"); e("s_cbranch_scc1 X_END")
    e(f"s_mul_i32 s66, {X}, 5"); e(f"s_add_u32 s66, s66, {J}")
    e(f"s_cmp_ge_u32 {WAVE}, 7"); e("s_cbranch_scc1 X_B9")
    e(f"s_cmp_eq_u32 {WAVE}, 6"); e("s_cbranch_scc1 X_FH")
    e(f"v_lshrrev_b32 v5, 3, {LANE}"); e("v_mul_u32_u24 v5, 5120, v5")
    e(f"v_and_b32 v6, 7, {LANE}"); e("v_lshl_add_u32 v5, v6, 4, v5")
    e(f"s_mul_i32 s9, {WAVE}, 40960"); e("s_lshl_b32 s10, s66, 7"); e("s_add_u32 s9, s9, s10")
    e(f"s_add_u32 s9, s9, {WS_E6}")
    poll([f"buffer_load_dwordx4 v[92:95], v5, {sr(WS)}, s9 offen sc1"], [93, 95], 108)
    e("v_mov_b32 v93, v94")
    e("s_nop 1")
    for i in range(2):
        e(f"v_add_f32_dpp v{92+i}, v{92+i}, v{92+i} row_ror:8 row_mask:0xf bank_mask:0xf")
    for i in range(2):
        cross16("v_add_f32", 92 + i, 96); cross32("v_add_f32", 92 + i, 96)
    e("v_lshlrev_b32 v6, 3, v6"); e(f"s_lshl_b32 s9, {WAVE}, 6"); e(f"s_add_u32 s9, s9, {XL_R2}")
    e("v_add_u32 v6, s9, v6")
    e("s_mov_b64 exec, 0xff")
    e("ds_write_b64 v6, v[92:93]")
    exec_all()
    e("s_branch X_B9")
    lab("X_FH")
    e(f"v_bfe_u32 v5, {LANE}, 2, 3"); e("v_mul_u32_u24 v5, 2560, v5")
    e(f"v_and_b32 v6, 3, {LANE}"); e("v_lshl_add_u32 v5, v6, 4, v5")
    e("s_lshl_b32 s9, s66, 6"); e(f"s_add_u32 s9, s9, {WS_E5}")
    e("v_lshlrev_b32 v7, 3, v6"); e("s_lshl_b32 s10, s66, 5")
    e(f"buffer_load_dwordx2 v[104:105], v7, {sr(SC_)}, s10 offen")
    set_exec64(0xffffffff)
    poll([f"buffer_load_dwordx4 v[92:95], v5, {sr(WS)}, s9 offen sc1"], [93, 95], 108)
    exec_all()
    e("v_lshlrev_b32 v96, 16, v92"); e("v_and_b32 v97, 0xffff0000, v92")
    e("v_lshlrev_b32 v98, 16, v94"); e("v_and_b32 v99, 0xffff0000, v94")
    e("s_nop 1")
    for sh in (4, 8):
        for i in range(4):
            e(f"v_add_f32_dpp v{96+i}, v{96+i}, v{96+i} row_ror:{sh} row_mask:0xf bank_mask:0xf")
    for i in range(4): cross16("v_add_f32", 96 + i, 100)
    e("v_lshlrev_b32 v100, 16, v104"); e("v_and_b32 v101, 0xffff0000, v104")
    e("v_lshlrev_b32 v102, 16, v105"); e("v_and_b32 v103, 0xffff0000, v105")
    for i in range(4): e(f"v_add_f32 v{96+i}, v{96+i}, v{100+i}")
    e("v_lshlrev_b32 v6, 4, v6"); e(f"v_add_u32 v6, {XL_H}, v6")
    e("s_mov_b64 exec, 0xf")
    e("ds_write_b128 v6, v[96:99]")
    exec_all()
    lab("X_B9")
    barrier()
    e(f"s_cmp_lg_u32 {WAVE}, 0"); e("s_cbranch_scc1 X_END")
    e(f"v_lshlrev_b32 v5, 3, {LANE}"); e(f"v_add_u32 v6, {XL_R2}, v5"); e(f"v_add_u32 v7, {XL_H}, v5")
    e("s_mov_b64 exec, 0xff")
    for w in range(6): e(f"ds_read_b64 {vr(92+2*w,2)}, v6 offset:{64*w}")
    e("ds_read_b64 v[116:117], v7")
    srd(SD, P_OUT, 1280)
    e("s_waitcnt lgkmcnt(0)")
    for w in range(1, 6):
        e(f"v_add_f32 v92, v92, v{92+2*w}"); e(f"v_add_f32 v93, v93, v{93+2*w}")
    e("v_add_f32 v92, v92, v116"); e("v_add_f32 v93, v93, v117")
    e("v_cvt_pk_bf16_f32 v92, v92, v93")
    e(f"v_lshlrev_b32 v5, 2, {LANE}"); e("s_lshl_b32 s9, s66, 5")
    e(f"buffer_store_dword v92, v5, {sr(SD)}, s9 offen")
    e("s_cmp_lg_u32 s66, 0"); e("s_cbranch_scc1 X_EP")
    e("s_mov_b64 exec, 1")
    e("v_mov_b32 v5, 0")
    e(f"buffer_store_dword {VTAG}, v5, {sr(WS)}, 0 offen sc1")
    lab("X_EP")
    exec_all()
    lab("X_END")
    stamp("x: end", 1|128|1024)
    stamp_flush(nstamp[0])
    e("s_endpgm")
    lab("X_LN")
    e("s_waitcnt vmcnt(0)")
    for i in range(5):
        e(f"v_lshlrev_b32 v{21+2*i}, 16, v{16+i}")
        e(f"v_and_b32 v{22+2*i}, 0xffff0000, v{16+i}")
    e("v_add_f32 v31, v21, v22")
    for i in range(23, 31): e(f"v_add_f32 v31, v31, v{i}")
    wave_allreduce("v_add_f32", 31, 32)
    e(f"v_mul_f32 v31, {F(1.0/640.0)}, v31")
    for i in range(21, 31): e(f"v_sub_f32 v{i}, v{i}, v31")
    e("v_mul_f32 v33, v21, v21")
    for i in range(22, 31): e(f"v_fmac_f32 v33, v{i}, v{i}")
    wave_allreduce("v_add_f32", 33, 32)
    e(f"v_mov_b32 v32, {F(1e-5)}")
    e(f"v_fmac_f32 v32, {F(1.0/640.0)}, v33")
    e("v_rsq_f32 v32, v32"); e("s_nop 0")
    for i in range(21, 31): e(f"v_mul_f32 v{i}, v{i}, v32")
    for i in range(5): e(f"v_cvt_pk_bf16_f32 v{16+i}, v{21+2*i}, v{22+2*i}")
    e(f"v_add_u32 v5, {XL_XN}, v5")
    for i in range(5): e(f"ds_write_b32 v5, v{16+i} offset:{256*i}")
    e("s_branch X_B1")

CH_KB = 6272
CH_SZ = 8 * CH_KB
YL_C = 0
YL_QA = 2 * CH_SZ
YL_SP = YL_QA + 12416
YL_PF = YL_SP + 34816
YL_M = YL_PF + 4096
YL_R = YL_M + 64
YL_MG, YL_MU, YL_MD = 0, 40960, 81920
YL_H = 131072
YL_ST = YL_H + 2560
YL_G = YL_H + 2688
YL_HH = YL_H + 5376
assert YL_R + 3072 <= 163840
HG = "s7"

def y_program():
    nstamp[0] = 0
    lab("L_Y")
    e(f"s_sub_u32 {J}, {J}, 16")
    e(f"s_and_b32 {HG}, {J}, 3"); e(f"s_lshr_b32 {KC}, {J}, 2")
    e(f"v_bfe_u32 v5, {LANE}, 1, 2"); e("v_mul_u32_u24 v5, 1536, v5")
    e(f"v_lshrrev_b32 v6, 3, {LANE}"); e("v_lshl_add_u32 v5, v6, 5, v5")
    e(f"v_and_b32 v6, 1, {LANE}"); e("v_lshl_add_u32 v15, v6, 4, v5")
    e(f"s_lshl_b32 s9, {X}, 9"); e(f"s_lshl_b32 s10, {KC}, 7"); e("s_add_u32 s9, s9, s10")
    e(f"s_mul_i32 s10, {WAVE}, 43"); e("s_lshr_b32 s10, s10, 8")
    e("s_mul_i32 s11, s10, 6"); e(f"s_sub_u32 s11, {WAVE}, s11")
    e("s_lshl_b32 s14, s10, 2"); e("s_add_u32 s9, s9, s14")
    e("s_mul_i32 s66, s9, 1536"); e("s_lshl_b32 s14, s11, 8"); e("s_add_u32 s66, s66, s14")
    e(f"s_mul_i32 s67, s10, {CH_KB}"); e("s_lshl_b32 s14, s11, 10"); e("s_add_u32 s67, s67, s14")
    kernarg_ready()
    srd(SA, P_CKV, 6291456)
    stamp("y: start", 0xfffff)
    if OPT.get("ystop", 0) == 1: e("s_branch Y_END")
    if not OPT.get("earlytouch", 1): code_touch(120)
    tlb_warm(14)
    ynt = OPT["ynt"]
    SL = 4 * CH_KB
    def chunk_dma(ch):
        sk = uid("YCD")
        e(f"s_cmp_ge_u32 {WAVE}, 12"); e(f"s_cbranch_scc1 {sk}")
        e(f"s_add_u32 s10, s67, {(ch % 4) * SL}"); e(f"s_add_u32 s11, s66, {ch * 16 * 1536}")
        for i in range(2):
            e("s_mov_b32 m0, s10"); e(f"s_add_u32 s10, s10, {2*CH_KB}")
            e(f"buffer_load_dwordx4 v15, {sr(SA)}, s11 offen{' nt' if ynt else ''} lds")
            e(f"s_add_u32 s11, s11, {8*1536}")
        lab(sk)
    chunk_dma(0); chunk_dma(1); chunk_dma(2)
    e(f"v_lshlrev_b32 v5, 2, v0"); e(f"v_add_u32 v5, {YL_PF}, v5"); e("v_mov_b32 v6, 0"); e("ds_write_b32 v5, v6")
    e(f"s_and_b32 s68, {WAVE}, 3"); e(f"s_lshr_b32 s69, {WAVE}, 2")
    e(f"v_lshrrev_b32 v5, 2, {L15}")
    e(f"v_mul_u32_u24 v5, {CH_KB}, v5")
    e(f"v_and_b32 v6, 3, {L15}"); e("v_lshl_add_u32 v5, v6, 5, v5")
    e(f"v_lshrrev_b32 v6, 1, {G}"); e("v_lshl_add_u32 v5, v6, 7, v5")
    e(f"v_and_b32 v6, 1, {G}"); e("v_lshl_add_u32 v5, v6, 4, v5")
    e("s_mul_i32 s9, s69, 1536"); e("v_add_u32 v13, s9, v5")
    e(f"v_mul_u32_u24 v5, {CH_KB}, {G}"); e(f"v_lshl_add_u32 v5, {L15}, 3, v5")
    e(f"s_mul_i32 s9, {WAVE}, 384"); e("v_add_u32 v14, s9, v5")
    e(f"v_add_u32 v8, {2*SL}, v14"); e(f"v_add_u32 v11, {2*SL}, v13")
    for n in range(2):
        e(f"v_add_u32 v{6+n}, {1024*n}, v0")
        e(f"s_mov_b32 s9, 43691")
        e(f"v_mul_lo_u32 v{9+n}, v{6+n}, s9"); e(f"v_lshrrev_b32 v{9+n}, 23, v{9+n}")
        e(f"v_mul_u32_u24 v12, 192, v{9+n}"); e(f"v_sub_u32 v12, v{6+n}, v12")
        e(f"v_mul_u32_u24 v{9+n}, 1552, v{9+n}"); e(f"v_lshl_add_u32 v{9+n}, v12, 3, v{9+n}")
        e(f"v_add_u32 v{9+n}, {YL_QA}, v{9+n}")
        e(f"v_lshlrev_b32 v{6+n}, 4, v{6+n}")
    SF, PVF = 16, 64
    def read_frags(c):
        sb, pb = ("v13", "v14") if (c % 4) < 2 else ("v11", "v8")
        so = (c % 2) * SL
        sk = uid("YSR")
        e(f"s_cmp_lg_u32 s68, {c >> 1}"); e(f"s_cbranch_scc1 {sk}")
        for i in range(6): e(f"ds_read_b128 {vr(SF+4*(6*(c&1)+i),4)}, {sb} offset:{so+256*i}")
        lab(sk)
        for a in range(3):
            b = PVF + ((c >> 1) * 3 + a) * 4 + 2 * (c & 1)
            e(f"ds_read_b64_tr_b16 {vr(b,2)}, {pb} offset:{so+a*128}")
    for c in range(8):
        rem = min(7, c + 2) - c
        e(f"s_waitcnt vmcnt({2*rem})"); barrier()
        if c + 3 <= 7: chunk_dma(c + 3)
        if c == 3: code_touch_range("Y_E2D", 2, 120, 15)
        read_frags(c)
    get_tag()
    hello_publish(120)
    stamp("y: C landed", 9|(1<<16))
    if OPT.get("ystop", 0) == 2:
        barrier(); stamp("y: all landed"); e("s_branch Y_END")
    srd(SA, P_WO, 7864320)
    e(f"v_lshrrev_b32 v5, 5, {LANE}"); e("v_lshlrev_b32 v5, 2, v5"); e(f"v_bfe_u32 v12, {LANE}, 1, 2"); e("v_add_u32 v5, v5, v12")
    e("v_mul_u32_u24 v5, 1280, v5")
    e(f"v_bfe_u32 v12, {LANE}, 3, 2"); e("v_lshl_add_u32 v5, v12, 5, v5")
    e(f"v_and_b32 v12, 1, {LANE}"); e("v_lshl_add_u32 v0, v12, 4, v5")
    e(f"s_mul_i32 s67, {X}, 768"); e(f"s_lshl_b32 s10, {WAVE}, 3"); e("s_add_u32 s67, s67, s10"); e("s_mul_i32 s67, s67, 1280")
    e(f"s_lshl_b32 s10, {J}, 7"); e("s_add_u32 s67, s67, s10")
    e(f"s_lshl_b32 s66, {WAVE}, 10")
    WOS = "%05d" % OPT.get("wos", 11103)
    assert sum(int(c) for c in WOS) == 6
    def wo_point(pt):
        for _ in range(int(WOS[pt])):
            if pt == 2 and OPT.get("wohi", 1): wo_batch_hi("v0")
            else: wo_batch("v0")
    def wo_batch_hi(vreg):
        sk = uid("YWH"); lo = uid("YWL")
        nt_ = ' nt' if OPT.get('wont', 1) else ''
        e(f"s_cmp_ge_u32 {J}, 10"); e(f"s_cbranch_scc1 {sk}")
        e(f"s_cmp_lt_u32 {WAVE}, 8"); e(f"s_cbranch_scc1 {lo}")
        e("s_mov_b32 m0, s66"); e(f"s_sub_u32 s9, s66, {8*1024}"); e(f"s_sub_u32 s10, s67, {64*1280}")
        e(f"buffer_load_dwordx4 {vreg}, {sr(SA)}, s67 offen{nt_} lds")
        e("s_mov_b32 m0, s9"); e("s_nop 0")
        e(f"buffer_load_dwordx4 {vreg}, {sr(SA)}, s10 offen{nt_} lds")
        lab(lo)
        e(f"s_add_u32 s66, s66, {16*1024}"); e(f"s_add_u32 s67, s67, {128*1280}")
        lab(sk)
    def wo_batch(vreg, late=False):
        sk = uid("YWO")
        e(f"s_cmp_ge_u32 {J}, 10"); e(f"s_cbranch_scc1 {sk}")
        e("s_mov_b32 m0, s66"); e(f"s_add_u32 s66, s66, {16*1024}")
        e(f"buffer_load_dwordx4 {vreg}, {sr(SA)}, s67 offen{' nt' if OPT.get('wont', 1) else ''} lds")
        e(f"s_add_u32 s67, s67, {128*1280}")
        lab(sk)
    wo_point(0)
    e(f"s_mul_i32 s9, {HG}, 24576"); e(f"s_add_u32 s9, s9, {WS_QA}")
    e(f"s_cmp_ge_u32 {WAVE}, 8"); e("s_cbranch_scc1 Y_E2B")
    stamp("y: E2 poll start", 1<<16)
    poll([f"buffer_load_dwordx4 {vr(112+4*n,4)}, v{6+n}, {sr(WS)}, s9 offen sc1" for n in range(2)],
         [113, 115, 117, 119], 120)
    stamp("y: E2 poll end", 1<<16); stamp_val("E2 iters", "s13", 1<<16)
    for n in range(2):
        e(f"v_mov_b32 v{113+4*n}, v{114+4*n}")
        e(f"ds_write_b64 v{9+n}, {vr(112+4*n,2)}")
    e("s_branch Y_E2D")
    lab("Y_E2B")
    poll([f"buffer_load_dwordx4 v[112:115], v6, {sr(WS)}, s9 offen sc1"], [113, 115], 120)
    e("v_mov_b32 v113, v114"); e("ds_write_b64 v9, v[112:113]")
    lab("Y_E2D")
    stamp("y: qabs gathered", 9|128)
    barrier()
    stamp("y: after E2 barrier", 8|(1<<16))
    wo_point(1)
    e(f"v_and_b32 v5, 7, {L15}"); e("v_mul_u32_u24 v5, 1552, v5"); e(f"v_lshl_add_u32 v5, {G}, 4, v5")
    e(f"s_mul_i32 s9, s69, 384"); e(f"s_add_u32 s9, s9, {YL_QA}"); e("v_add_u32 v5, s9, v5")
    for i in range(4): e(f"ds_read_b128 {vr(112+4*i,4)}, v5 offset:{64*i}")
    e(f"v_mul_u32_u24 v6, 272, {G}"); e(f"v_lshl_add_u32 v6, {L15}, 4, v6")
    e("s_lshl_b32 s9, s69, 3"); e("s_lshl_b32 s10, s68, 1"); e("s_add_u32 s9, s9, s10"); e("s_mul_i32 s9, s9, 1088")
    e(f"s_add_u32 s9, s9, {YL_SP}"); e("v_add_u32 v6, s9, v6")
    for i in range(6):
        rem = min(6, i + 4) - (i + 1)
        e(f"s_waitcnt lgkmcnt({rem})")
        mfma(8, SF + 4 * i, 112 + 4 * (i % 4), "0" if i == 0 else None)
        mfma(12, SF + 4 * (6 + i), 112 + 4 * (i % 4), "0" if i == 0 else None)
        if i + 4 < 6:
            e(f"ds_read_b128 {vr(112+4*(i%4),4)}, v5 offset:{64*(i+4)}")
    e("s_nop 7")
    e("ds_write_b128 v6, v[8:11]"); e("ds_write_b128 v6, v[12:15] offset:1088")
    barrier()
    stamp("y: S partial done", 10)
    wo_point(2)
    e(f"s_cmp_ge_u32 {WAVE}, 8"); e("s_cbranch_scc1 Y_SMD")
    e(f"v_mul_u32_u24 v5, 1088, {G}")
    e(f"v_bfe_u32 v6, {LANE}, 2, 2"); e("v_mul_u32_u24 v7, 272, v6")
    e(f"v_and_b32 v12, 3, {LANE}"); e("v_lshlrev_b32 v8, 2, v12")
    e("v_add3_u32 v5, v5, v7, v8")
    e(f"s_lshl_b32 s9, {WAVE}, 4"); e(f"s_add_u32 s9, s9, {YL_SP}"); e("v_add_u32 v5, s9, v5")
    for kq in range(4):
        e(f"ds_read_b32 v{112+kq}, v5 offset:{8704*kq}"); e(f"ds_read_b32 v{116+kq}, v5 offset:{8704*kq+4352}")
    e(f"v_lshrrev_b32 v7, 5, {LANE}"); e("v_lshlrev_b32 v7, 10, v7")
    e("v_lshl_add_u32 v7, v6, 8, v7")
    e(f"v_bfe_u32 v8, {LANE}, 4, 1"); e("v_lshl_add_u32 v7, v8, 3, v7")
    e("v_lshl_add_u32 v7, v12, 1, v7")
    e(f"s_lshl_b32 s9, {WAVE}, 4"); e(f"s_add_u32 s9, s9, {YL_PF}"); e("v_add_u32 v7, s9, v7")
    e("s_waitcnt lgkmcnt(0)")
    e("v_add_f32 v112, v112, v113"); e("v_add_f32 v114, v114, v115"); e("v_add_f32 v116, v116, v117"); e("v_add_f32 v118, v118, v119")
    e("v_add_f32 v112, v112, v114"); e("v_add_f32 v114, v116, v118")
    e("v_max_f32 v116, v112, v114")
    wave_allreduce("v_max_f32", 116, 117)
    e("v_sub_f32 v112, v112, v116"); e("v_sub_f32 v114, v114, v116")
    e("v_exp_f32 v112, v112"); e("v_exp_f32 v114, v114"); e("s_nop 0")
    e("v_cvt_pk_bf16_f32 v112, v112, v114")
    e("ds_write_b16 v7, v112"); e("ds_write_b16_d16_hi v7, v112 offset:2048")
    e(f"s_lshl_b32 s9, {WAVE}, 2"); e(f"s_add_u32 s9, s9, {YL_M}"); e("v_mov_b32 v5, s9")
    e("s_mov_b64 exec, 1")
    e("ds_write_b32 v5, v116")
    exec_all()
    lab("Y_SMD")
    barrier()
    stamp("y: P ready", 10)
    wo_point(3)
    e(f"v_lshlrev_b32 v5, 4, {LANE}"); e(f"v_add_u32 v5, {YL_PF}, v5")
    for ks in range(4): e(f"ds_read_b128 {vr(112+4*ks,4)}, v5 offset:{1024*ks}")
    e(f"v_and_b32 v6, 7, {L15}"); e("v_mul_u32_u24 v6, 96, v6"); e(f"v_lshl_add_u32 v6, {G}, 3, v6")
    e(f"s_mul_i32 s9, {WAVE}, 768"); e(f"s_add_u32 s9, s9, {YL_SP}"); e("v_add_u32 v6, s9, v6")
    e(f"v_lshrrev_b32 v7, 3, {LANE}"); e("v_mul_u32_u24 v12, 96, v7"); e(f"v_and_b32 v5, 7, {LANE}"); e("v_mul_u32_u24 v8, 12, v5")
    e("v_add3_u32 v12, v12, v8, s9")
    e("v_mul_u32_u24 v7, 69632, v7"); e("v_lshl_add_u32 v5, v5, 4, v7")
    e(f"s_mul_i32 s9, {HG}, {8*69632}"); e(f"s_lshl_b32 s10, {X}, 2"); e(f"s_add_u32 s10, s10, {KC}")
    e("s_mul_i32 s11, s10, 2176"); e("s_add_u32 s9, s9, s11"); e(f"s_add_u32 s68, s9, {WS_E3 + 2048}")
    e(f"s_lshl_b32 s11, {WAVE}, 7"); e("s_add_u32 s9, s9, s11"); e(f"s_add_u32 s9, s9, {WS_E3}")
    if OPT.get("pvprio", 1):
        for q in range(3):
            sk = uid("PR")
            e(f"s_cmp_lg_u32 s69, {q}"); e(f"s_cbranch_scc1 {sk}"); e(f"s_setprio {3-q}"); lab(sk)
    for ks in range(4):
        e(f"s_waitcnt lgkmcnt({3-ks})")
        for a in range(3):
            mfma(16 + 4 * a, PVF + (ks * 3 + a) * 4, 112 + 4 * ks, "0" if ks == 0 else None)
    e(f"s_cmp_lg_u32 {WAVE}, 15"); e("s_cbranch_scc1 Y_NL")
    for i in range(4): e(f"v_mov_b32 v{32+i}, 0x3f803f80")
    e(f"v_and_b32 v41, 7, {L15}"); e("v_lshlrev_b32 v41, 2, v41"); e(f"v_add_u32 v41, {YL_M}, v41")
    e("ds_read_b32 v40, v41")
    for ks in range(4): mfma(36, 32, 112 + 4 * ks, "0" if ks == 0 else None)
    lab("Y_NL")
    e("s_nop 7")
    stamp("y: PV mfma done", 8)
    for a in range(3):
        e(f"v_cvt_pk_bf16_f32 v{44+2*a}, v{16+4*a}, v{17+4*a}"); e(f"v_cvt_pk_bf16_f32 v{45+2*a}, v{18+4*a}, v{19+4*a}")
    set_exec64(0x00ff00ff00ff00ff)
    for a in range(3): e(f"ds_write_b64 v6, {vr(44+2*a,2)} offset:{32*a}")
    exec_all()
    e("s_waitcnt lgkmcnt(0)")
    e("ds_read2_b32 v[52:53], v12 offset1:1"); e("ds_read_b32 v54, v12 offset:8")
    e("s_waitcnt lgkmcnt(0)")
    e("v_bitop3_b32 v55, v52, v53, v54 bitop3:0x96"); e(f"v_xor_b32 v55, {VTAG}, v55")
    e(f"buffer_store_dwordx4 v[52:55], v5, {sr(WS)}, s9 offen{SCG}")
    e(f"s_cmp_lg_u32 {WAVE}, 15"); e("s_cbranch_scc1 Y_P3D")
    e(f"s_mov_b32 s9, 69632"); e(f"v_mul_lo_u32 v5, {L15}, s9"); e("s_mov_b32 s9, s68")
    e("s_waitcnt lgkmcnt(0)")
    e("v_mov_b32 v56, v40"); e("v_mov_b32 v57, v36"); e("v_mov_b32 v58, 0"); e("v_bitop3_b32 v59, v56, v57, v4 bitop3:0x96")
    e("s_mov_b64 exec, 0xff")
    e(f"buffer_store_dwordx4 v[56:59], v5, {sr(WS)}, s9 offen{SCG}")
    exec_all()
    lab("Y_P3D")
    stamp("y: ctxlat published", 9|16|128|1024)
    if OPT["stamps"] & 16:
        e("s_waitcnt vmcnt(0)"); stamp("y: E3 stores complete", 16); barrier(); stamp("y: all waves stores complete", 16)
    if OPT.get("ystop", 0) == 3: e("s_branch Y_END")
    e(f"s_cmp_ge_u32 {J}, 10"); e("s_cbranch_scc1 Y_MLP")
    if OPT.get("wowait", 1): e("s_waitcnt vmcnt(0)")
    wo_point(4)
    e("s_waitcnt vmcnt(0)")
    code_touch_range("Y_B5", 1, 120, 15)
    stamp("y: wo landed", 1|256)
    barrier()
    e(f"s_cmp_ge_u32 {WAVE}, 12"); e("s_cbranch_scc1 Y_B5")
    e(f"v_lshlrev_b32 v5, 10, {G}"); e(f"v_lshl_add_u32 v5, {L15}, 3, v5")
    e(f"s_lshl_b32 s9, {WAVE}, 13"); e("v_add_u32 v5, s9, v5")
    for ksl in range(2):
        for t in range(4):
            b = 64 + (ksl * 4 + t) * 4
            e(f"ds_read_b64_tr_b16 {vr(b,2)}, v5 offset:{ksl*4096+t*128}")
            e(f"ds_read_b64_tr_b16 {vr(b+2,2)}, v5 offset:{ksl*4096+512+t*128}")
        if ksl == 0: e("s_waitcnt lgkmcnt(0)")
    e(f"v_lshlrev_b32 v5, 4, {LANE}")
    e(f"s_mul_i32 s9, {X}, 12288"); e(f"s_lshl_b32 s10, {WAVE}, 10"); e("s_add_u32 s9, s9, s10")
    e(f"s_add_u32 s9, s9, {WS_E4}")
    e(f"s_mul_i32 s10, s64, 1552"); e("s_lshl_b32 s11, s65, 9"); e("s_add_u32 s10, s10, s11"); e(f"s_add_u32 s10, s10, {YL_QA}")
    e(f"v_lshl_add_u32 v6, {LANE}, 3, s10")
    e(f"v_and_b32 v7, 3, {LANE}"); e("v_mul_u32_u24 v7, 1552, v7"); e(f"v_lshl_add_u32 v7, {G}, 4, v7")
    e(f"s_lshl_b32 s10, {WAVE}, 7"); e(f"s_add_u32 s10, s10, {YL_QA}"); e("v_add_u32 v7, s10, v7")
    e(f"v_lshlrev_b32 v9, 2, {LANE}"); e(f"v_add_u32 v9, {YL_R}, v9")
    e(f"s_lshl_b32 s10, {WAVE}, 8"); e("v_add_u32 v8, s10, v9")
    e(f"v_cmp_eq_u32 s[66:67], 1, {G}"); e(f"v_cmp_eq_u32 s[68:69], 2, {G}"); e(f"v_cmp_eq_u32 s[42:43], 3, {G}")
    stamp("y: E4 poll start", 256)
    poll([f"buffer_load_dwordx4 v[96:99], v5, {sr(WS)}, s9 offen sc1"], [97, 99], 112)
    stamp("y: ctx gathered", 1|128|256|2048)
    stamp_val("E4 iters", "s13", 256)
    e("v_mov_b32 v97, v98")
    e("ds_write_b64 v6, v[96:97]")
    lab("Y_B5")
    barrier()
    stamp("y: after B5", 2048)
    e(f"s_cmp_ge_u32 {WAVE}, 12"); e("s_cbranch_scc1 Y_B6")
    e("ds_read_b128 v[96:99], v7"); e("ds_read_b128 v[104:107], v7 offset:64")
    e("s_waitcnt lgkmcnt(1)")
    for t in range(4): mfma(16 + 4 * t, 96, 64 + 4 * t, "0")
    e("s_waitcnt lgkmcnt(0)")
    for t in range(4): mfma(16 + 4 * t, 104, 64 + 16 + 4 * t)
    e("s_nop 4")
    for t in range(4):
        b = 16 + 4 * t
        e(f"v_add_f32 v{b}, v{b}, v{b+1}"); e(f"v_add_f32 v{b+2}, v{b+2}, v{b+3}")
    for t in range(4):
        b = 16 + 4 * t
        e(f"v_add_f32 v{b}, v{b}, v{b+2}")
    e("v_cndmask_b32 v16, v16, v20, s[66:67]"); e("v_cndmask_b32 v16, v16, v24, s[68:69]"); e("v_cndmask_b32 v16, v16, v28, s[42:43]")
    e("ds_write_b32 v8, v16")
    lab("Y_B6")
    stamp("y: P5 mfma+red done", 2048)
    barrier()
    stamp("y: after B6", 2048)
    e(f"s_cmp_lg_u32 {WAVE}, 0"); e("s_cbranch_scc1 Y_END")
    for i in range(6): e(f"ds_read2st64_b32 {vr(16+2*i,2)}, v9 offset0:{2*i} offset1:{2*i+1}")
    e(f"s_mul_i32 s9, {X}, 2560"); e(f"s_lshl_b32 s10, {J}, 8"); e("s_add_u32 s9, s9, s10")
    e(f"s_add_u32 s9, s9, {WS_E5}")
    e(f"v_lshlrev_b32 v5, 2, {LANE}")
    e("s_waitcnt lgkmcnt(0)")
    for i in range(6): e(f"v_add_f32 v{16+2*i}, v{16+2*i}, v{17+2*i}")
    e("v_add_f32 v16, v16, v18"); e("v_add_f32 v20, v20, v22"); e("v_add_f32 v24, v24, v26")
    e("v_add_f32 v16, v16, v20"); e("v_add_f32 v16, v16, v24")
    e("s_nop 1")
    e("v_mov_b32_dpp v17, v16 quad_perm:[1,1,3,3] row_mask:0xf bank_mask:0xf")
    e("v_cvt_pk_bf16_f32 v16, v16, v17"); e(f"v_mov_b32 v17, {VTAG}")
    set_exec64(0x5555555555555555)
    e(f"buffer_store_dwordx2 v[16:17], v5, {sr(WS)}, s9 offen{SCG}")
    exec_all()
    e("s_branch Y_END")
    lab("Y_MLP")
    e(f"s_mul_i32 s66, {X}, 6"); e(f"s_add_u32 s66, s66, {J}"); e("s_sub_u32 s66, s66, 10")
    srd(SA, P_WG, 1966080); srd(SB, P_WU, 1966080); srd(SC_, P_WD, 1966080); srd(SD, P_X, 1280)
    e(f"v_lshrrev_b32 v5, 4, {LANE}"); e("v_lshlrev_b32 v5, 2, v5"); e(f"v_bfe_u32 v6, {LANE}, 1, 2"); e("v_add_u32 v5, v5, v6")
    e("v_mul_u32_u24 v5, 3072, v5")
    e(f"v_bfe_u32 v6, {LANE}, 3, 1"); e("v_lshl_add_u32 v5, v6, 5, v5")
    e(f"v_and_b32 v6, 1, {LANE}"); e("v_lshl_add_u32 v15, v6, 4, v5")
    e(f"v_bfe_u32 v5, {LANE}, 1, 2"); e("v_mul_u32_u24 v5, 1280, v5")
    e(f"v_lshrrev_b32 v6, 3, {LANE}"); e("v_lshl_add_u32 v5, v6, 5, v5")
    e(f"v_and_b32 v6, 1, {LANE}"); e("v_lshl_add_u32 v14, v6, 4, v5")
    if OPT.get("mlpwait", 0): e("s_waitcnt vmcnt(0)")
    barrier()
    e(f"s_and_b32 s9, {WAVE}, 7")
    e(f"s_mul_i32 s11, s9, {5*16*3072}"); e("s_lshl_b32 s10, s66, 6"); e("s_add_u32 s11, s11, s10")
    e("s_mul_i32 s10, s9, 5120")
    e(f"s_cmp_ge_u32 {WAVE}, 8"); e("s_cbranch_scc1 Y_MU")
    dma_loop(15, SA, 10, 11, 5, 1024, 16 * 3072, OPT.get("mnt", 1))
    e("s_lshl_b32 s11, s66, 5"); e(f"s_lshl_b32 s10, {WAVE}, 2"); e("s_add_u32 s11, s11, s10"); e("s_mul_i32 s11, s11, 1280")
    e(f"s_mul_i32 s10, {WAVE}, 5120"); e(f"s_add_u32 s10, s10, {YL_MD}")
    dma_loop(14, SC_, 10, 11, 5, 1024, 256, OPT["ynt"])
    e("s_branch Y_MW")
    lab("Y_MU")
    e(f"s_add_u32 s10, s10, {YL_MU}")
    dma_loop(15, SB, 10, 11, 5, 1024, 16 * 3072, OPT.get("mnt", 1))
    lab("Y_MW")
    e(f"v_and_b32 v5, 31, {LANE}"); e("v_lshlrev_b32 v5, 3, v5"); e(f"s_lshl_b32 s9, {WAVE}, 8")
    e(f"s_cmp_ge_u32 {WAVE}, 5"); e("s_cbranch_scc1 Y_NX")
    e(f"buffer_load_dwordx2 v[110:111], v5, {sr(SD)}, s9 offen")
    lab("Y_NX")
    e("s_waitcnt vmcnt(0)")
    code_touch_range("Y_MPD", 2, 120, 15)
    stamp("y: mlp landed", 1|1024)
    barrier()
    if OPT.get("ystop", 0) == 4: e("s_branch Y_END")
    e(f"s_cmp_ge_u32 {WAVE}, 10"); e("s_cbranch_scc1 Y_MPD")
    e(f"v_lshlrev_b32 v5, 9, {G}"); e(f"v_lshl_add_u32 v5, {L15}, 3, v5")
    e(f"s_lshl_b32 s9, {WAVE}, 12"); e("v_add_u32 v5, s9, v5")
    for mat, base in ((0, YL_MG), (1, YL_MU)):
        for ksl in range(2):
            for t in range(2):
                b = 16 + mat * 16 + (ksl * 2 + t) * 4
                e(f"ds_read_b64_tr_b16 {vr(b,2)}, v5 offset:{base+ksl*2048+t*128}")
                e(f"ds_read_b64_tr_b16 {vr(b+2,2)}, v5 offset:{base+ksl*2048+256+t*128}")
        e("s_waitcnt lgkmcnt(0)")
    e(f"v_mul_u32_u24 v5, 10240, {G}"); e(f"v_lshl_add_u32 v5, {L15}, 3, v5")
    e(f"s_lshl_b32 s9, {WAVE}, 9"); e(f"s_add_u32 s9, s9, {YL_MD}"); e("v_add_u32 v5, s9, v5")
    for a in range(4):
        e(f"ds_read_b64_tr_b16 {vr(48+4*a,2)}, v5 offset:{128*a}")
        e(f"ds_read_b64_tr_b16 {vr(50+4*a,2)}, v5 offset:{5120+128*a}")
    lab("Y_MPD")
    e(f"v_lshlrev_b32 v9, 2, {LANE}"); e(f"v_add_u32 v9, {YL_G}, v9")
    e(f"s_lshl_b32 s9, {WAVE}, 8"); e("v_add_u32 v8, s9, v9")
    e(f"v_and_b32 v12, 31, {LANE}")
    e(f"s_lshl_b32 s9, {WAVE}, 6"); e(f"s_add_u32 s9, s9, {YL_HH}")
    e("v_lshl_add_u32 v10, v12, 1, s9"); e(f"v_lshl_add_u32 v11, {G}, 4, s9")
    e(f"v_lshlrev_b32 v12, 3, {LANE}")
    e(f"v_mov_b32 v13, {YL_ST}")
    e(f"v_lshlrev_b32 v14, 5, {G}"); e(f"s_lshl_b32 s9, {WAVE}, 8"); e(f"s_add_u32 s9, s9, {YL_H}"); e("v_add_u32 v14, s9, v14")
    e("s_mul_i32 s65, s66, 5120"); e(f"s_lshl_b32 s10, {WAVE}, 9"); e("s_add_u32 s65, s65, s10"); e(f"s_add_u32 s65, s65, {WS_E6}")
    e(f"v_cmp_eq_u32 s[66:67], 1, {G}"); e(f"v_cmp_eq_u32 s[68:69], 2, {G}"); e(f"v_cmp_eq_u32 s[42:43], 3, {G}")
    e(f"s_cmp_ge_u32 {WAVE}, 5"); e("s_cbranch_scc1 Y_MB6")
    e(f"v_and_b32 v6, 31, {LANE}"); e(f"v_lshrrev_b32 v5, 5, {LANE}"); e("v_mul_u32_u24 v5, 10240, v5"); e("v_lshl_add_u32 v5, v6, 4, v5")
    e(f"s_lshl_b32 s9, {WAVE}, 9"); e(f"s_add_u32 s9, s9, {WS_E5}")
    e("s_add_u32 s10, s9, 5120")
    stamp("y: E5 poll start", 4096)
    poll([f"buffer_load_dwordx4 {vr(80+4*i,4)}, v5, {sr(WS)}, {'s9' if i < 2 else 's10'} offen offset:{2560*(i%2)} sc1" for i in range(4)],
         [81, 83, 85, 87, 89, 91, 93, 95], 96)
    stamp("y: E5 poll end", 4096); stamp_val("E5 iters", "s13", 4096)
    for i in range(4):
        b = 80 + 4 * i
        if i == 0:
            e(f"v_lshlrev_b32 v100, 16, v{b}"); e(f"v_and_b32 v101, 0xffff0000, v{b}")
            e(f"v_lshlrev_b32 v102, 16, v{b+2}"); e(f"v_and_b32 v103, 0xffff0000, v{b+2}")
        else:
            e(f"v_lshlrev_b32 v104, 16, v{b}"); e(f"v_and_b32 v105, 0xffff0000, v{b}")
            e(f"v_lshlrev_b32 v106, 16, v{b+2}"); e(f"v_and_b32 v107, 0xffff0000, v{b+2}")
            for k in range(4): e(f"v_add_f32 v{100+k}, v{100+k}, v{104+k}")
    for k in range(4): e(f"v_mov_b32 v{104+k}, v{100+k}")
    e("s_nop 1")
    for k in range(4): e(f"v_permlane32_swap_b32 v{100+k}, v{104+k}")
    e(f"v_lshlrev_b32 v80, 16, v110"); e("v_and_b32 v81, 0xffff0000, v110"); e("v_lshlrev_b32 v82, 16, v111"); e("v_and_b32 v83, 0xffff0000, v111")
    for k in range(4): e(f"v_add_f32 v{100+k}, v{100+k}, v{104+k}")
    for k in range(4): e(f"v_add_f32 v{100+k}, v{100+k}, v{80+k}")
    e("v_lshlrev_b32 v5, 4, v6"); e(f"s_lshl_b32 s9, {WAVE}, 9"); e(f"s_add_u32 s9, s9, {YL_H}"); e("v_add_u32 v5, s9, v5")
    set_exec64(0xffffffff)
    e("ds_write_b128 v5, v[100:103]")
    exec_all()
    e("v_add_f32 v104, v100, v101"); e("v_add_f32 v106, v102, v103"); e("v_mul_f32 v105, v100, v100")
    e("v_add_f32 v104, v104, v106"); e("v_fmac_f32 v105, v101, v101"); e("v_fmac_f32 v105, v102, v102"); e("v_fmac_f32 v105, v103, v103")
    e("s_nop 1")
    row16_allreduce("v_add_f32", 104, 2)
    e("s_nop 1")
    for i in range(2): cross16("v_add_f32", 104 + i, 106)
    e(f"s_lshl_b32 s9, {WAVE}, 3"); e(f"s_add_u32 s9, s9, {YL_ST}"); e("v_mov_b32 v5, s9")
    e("s_mov_b64 exec, 1")
    e("ds_write_b64 v5, v[104:105]")
    exec_all()
    lab("Y_MB6")
    stamp("y: h gathered", 65|128|1024|4096)
    barrier()
    stamp("y: after MB6", 64)
    e(f"s_cmp_ge_u32 {WAVE}, 10"); e("s_cbranch_scc1 Y_MB7")
    e("ds_read_b128 v[80:83], v13"); e("ds_read_b128 v[84:87], v13 offset:16"); e("ds_read_b64 v[88:89], v13 offset:32")
    for ksl in range(2):
        e(f"ds_read_b128 {vr(92+8*ksl,4)}, v14 offset:{128*ksl}")
        e(f"ds_read_b128 {vr(96+8*ksl,4)}, v14 offset:{128*ksl+16}")
    e("s_waitcnt lgkmcnt(4)")
    for a, b in ((82, 83), (84, 85), (86, 87), (88, 89)):
        e(f"v_add_f32 v80, v80, v{a}"); e(f"v_add_f32 v81, v81, v{b}")
    e(f"v_mul_f32 v80, {F(1.0/640.0)}, v80")
    e(f"v_mul_f32 v81, {F(1.0/640.0)}, v81")
    e("v_fma_f32 v81, -v80, v80, v81")
    e("v_max_f32 v81, 0, v81")
    e(f"v_add_f32 v81, {F(1e-5)}, v81")
    e("v_rsq_f32 v81, v81"); e("s_nop 0")
    e("v_mul_f32 v80, v80, v81")
    e("s_waitcnt lgkmcnt(0)")
    for i in range(16): e(f"v_fma_f32 v{92+i}, v{92+i}, v81, -v80")
    for ksl in range(2):
        for i in range(4): e(f"v_cvt_pk_bf16_f32 v{108+4*ksl+i}, v{92+8*ksl+2*i}, v{93+8*ksl+2*i}")
    e("s_nop 1")
    for ksl in range(2):
        for mat in range(2):
            for t in range(2):
                mfma(64 + 8 * mat + 4 * t, 108 + 4 * ksl, 16 + mat * 16 + (ksl * 2 + t) * 4, "0" if ksl == 0 else None)
    e("s_nop 5")
    e("v_cndmask_b32 v64, v64, v68, s[66:67]"); e("v_cndmask_b32 v64, v64, v72, s[68:69]"); e("v_cndmask_b32 v64, v64, v76, s[42:43]")
    e("ds_write_b32 v8, v64")
    lab("Y_MB7")
    stamp("y: P6 done", 64)
    barrier()
    stamp("y: after MB7", 64)
    e(f"s_cmp_ge_u32 {WAVE}, 10"); e("s_cbranch_scc1 Y_END")
    for i in range(5): e(f"ds_read2st64_b32 {vr(80+2*i,2)}, v9 offset0:{2*i} offset1:{2*i+1}")
    e("s_waitcnt lgkmcnt(0)")
    for i in range(5): e(f"v_add_f32 v{80+2*i}, v{80+2*i}, v{81+2*i}")
    e("v_add_f32 v80, v80, v82"); e("v_add_f32 v84, v84, v86"); e("v_add_f32 v80, v80, v88"); e("v_add_f32 v80, v80, v84")
    e("v_mov_b32 v88, v80"); e("s_nop 1")
    e("v_permlane32_swap_b32 v80, v88")
    e("s_nop 1")
    e(f"v_mul_f32 v80, {F(-math.log2(math.e))}, v80"); e("v_exp_f32 v80, v80"); e("s_nop 0")
    e("v_add_f32 v80, 1.0, v80"); e("v_rcp_f32 v80, v80"); e("s_nop 0")
    e("v_mul_f32 v80, v80, v88")
    e("v_cvt_pk_bf16_f32 v80, v80, v80")
    set_exec64(0xffffffff)
    e("ds_write_b16 v10, v80")
    exec_all()
    e("s_waitcnt lgkmcnt(0)")
    e("ds_read_b128 v[80:83], v11")
    e("s_waitcnt lgkmcnt(0)")
    for a in range(4): mfma(84 + 4 * a, 80, 48 + 4 * a, "0")
    e("s_nop 5")
    e("v_cndmask_b32 v84, v84, v88, s[66:67]"); e("v_cndmask_b32 v84, v84, v92, s[68:69]"); e("v_cndmask_b32 v84, v84, v96, s[42:43]")
    e(f"v_mov_b32 v85, {VTAG}")
    e(f"buffer_store_dwordx2 v[84:85], v12, {sr(WS)}, s65 offen{SCG}")
    lab("Y_END")
    stamp("y: end", 65|128|1024|2048|4096)
    stamp_flush(nstamp[0])
    e("s_endpgm")

hdr = f"""; Kernarg layout for this problem (104 bytes, ptrs only, base s[0:1]):
;
; @launch grid=(256,1,1) block=(1024,1,1) lds=163840
.amdgcn_target "amdgcn-amd-amdhsa--gfx950"
.text
.globl {NAME}_kernel
.p2align 8
.type {NAME}_kernel,@function
{NAME}_kernel:
"""
prologue()
x_program()
y_program()
lab("L_END")
e("s_endpgm")
ftr = f""".section .rodata,"a"
.p2align 6
.amdhsa_kernel {NAME}_kernel
  .amdhsa_next_free_vgpr 128
  .amdhsa_next_free_sgpr 102
  .amdhsa_accum_offset 128
  .amdhsa_group_segment_fixed_size 0
  .amdhsa_kernarg_size 104
  .amdhsa_user_sgpr_count 2
  .amdhsa_user_sgpr_kernarg_segment_ptr 1
  .amdhsa_system_sgpr_workgroup_id_x 1
.end_amdhsa_kernel
"""
open(sys.argv[1], "w").write(hdr + "\n".join(L) + "\n" + ftr)
```

```python
import sys, math, struct
def F(x): return "0x%08x" % struct.unpack("<I", struct.pack("<f", x))[0]
NAME = "sequential_preLN__compressed_kv_cla__glu_gated_glu__decode"

OPT = dict(stamps=0, ynt=1, xnt=1, spin=1 << 16, cpv_early=1, prefetch_code=1)
for a in sys.argv[2:]:
    k, v = a.split("="); OPT[k] = int(v)

L = []
def e(s): L.append("    " + s)
def lab(s): L.append(s + ":")
def cm(s): L.append("    ; " + s)
_uid = [0]
def uid(p):
    _uid[0] += 1
    return f"{p}_{_uid[0]}"

WS_EPOCH = 0
WS_HELLO = 0x1000
WS_E1 = 0x10000
WS_QA = 0x40000
WS_ML = 0x60000
WS_E4 = 0x70000
WS_E5 = 0x90000
WS_E6 = 0x100000
WS_ST = 0x180000
WS_E3 = 0x200000
WS_E1L = 0x600000
WS_SIZE = 0x700000

WAVE, X, J, TAG, H, R = "s3", "s4", "s5", "s6", "s7", "s8"
HH, KC = "s7", "s8"
P_X, P_CKV, P_WQ, P_WUK, P_WUV, P_WO, P_WG, P_WU, P_WD, P_OUT, P_WS = 16, 18, 20, 22, 24, 26, 30, 32, 34, 36, 40
WS, SA, SB, SC_, SD = 44, 48, 52, 56, 60
def sr(b, n=4): return f"s[{b}:{b+n-1}]"
def vr(b, n): return f"v[{b}:{b+n-1}]" if n > 1 else f"v{b}"
STAMP0 = 72
LANE, G, L15, VTAG = "v1", "v2", "v3", "v4"

def srd(b, ptr, size):
    e(f"s_mov_b32 s{b}, s{ptr}")
    e(f"s_mov_b32 s{b+1}, s{ptr+1}")
    e(f"s_mov_b32 s{b+2}, {size}")
    e(f"s_mov_b32 s{b+3}, 0x00020000")

nstamp = [0]
def stamp(name, grp=1):
    if not (OPT["stamps"] & grp): return
    i = nstamp[0]; nstamp[0] += 1
    if OPT.get("pmask", 1) and i >= 6: return
    cm(f"stamp {i}: {name}")
    sk = uid("STK")
    e(f"s_cmp_lg_u32 {WAVE}, {OPT.get('stampwave',0)}"); e(f"s_cbranch_scc1 {sk}")
    if i == 0:
        e("s_memrealtime s[98:99]")
    e(f"s_memtime s[{STAMP0+2*i}:{STAMP0+2*i+1}]")
    e("s_waitcnt lgkmcnt(0)")
    lab(sk)
def stamp_val(name, sreg, grp=1):
    if not (OPT["stamps"] & grp): return
    i = nstamp[0]; nstamp[0] += 1
    if OPT.get("pmask", 1) and i >= 6: return
    cm(f"stamp {i}: VALUE {name}")
    e(f"s_mov_b32 s{STAMP0+2*i}, {sreg}"); e(f"s_mov_b32 s{STAMP0+2*i+1}, 0x7fffffff")
def stamp_flush(n):
    if not OPT["stamps"]: return
    skip = uid("STF")
    e(f"s_cmp_lg_u32 {WAVE}, {OPT.get('stampwave',0)}"); e(f"s_cbranch_scc1 {skip}")
    e("s_mov_b64 exec, 1")
    e("s_lshl_b32 s9, s2, 8"); e(f"s_add_u32 s9, s9, {WS_ST}")
    e("v_mov_b32 v5, 0")
    if OPT.get("pmask", 1): n = min(n, 6)
    for i in range(n):
        e(f"v_mov_b32 v6, s{STAMP0+2*i}"); e(f"v_mov_b32 v7, s{STAMP0+2*i+1}")
        e(f"buffer_store_dwordx2 v[6:7], v5, {sr(WS)}, s9 offen offset:{8*i}")
        e("s_nop 1")
    e("v_mov_b32 v6, s98"); e("v_mov_b32 v7, s99")
    e(f"buffer_store_dwordx2 v[6:7], v5, {sr(WS)}, s9 offen offset:248")
    e("s_nop 1")
    e("v_mov_b32 v6, s96"); e("v_mov_b32 v7, s97")
    e(f"buffer_store_dwordx2 v[6:7], v5, {sr(WS)}, s9 offen offset:240")
    e("s_memrealtime s[96:97]"); e("s_waitcnt lgkmcnt(0)")
    e("v_mov_b32 v6, s96"); e("v_mov_b32 v7, s97")
    e(f"buffer_store_dwordx2 v[6:7], v5, {sr(WS)}, s9 offen offset:232")
    e("s_mov_b64 exec, -1")
    lab(skip)

def barrier():
    e("s_waitcnt lgkmcnt(0)")
    e("s_barrier")

def divmagic(T):
    return {12: (43, 9), 6: (43, 8), 3: (86, 8), 1: (1, 0)}[T]

def dma_pattern(vd, T, S, sp, t0, t1):
    M, sh = divmagic(T)
    e(f"v_lshrrev_b32 v{t0}, 3, {LANE}")
    if sp is not None:
        e(f"s_lshl_b32 s9, {sp}, 3")
        e(f"v_add_u32 v{t0}, s9, v{t0}")
    if T == 1:
        e(f"v_mov_b32 v{t1}, v{t0}")
        e(f"v_mov_b32 v{t0}, 0")
    else:
        e(f"v_mul_u32_u24 v{t1}, {M}, v{t0}")
        e(f"v_lshrrev_b32 v{t1}, {sh}, v{t1}")
        e(f"v_mul_u32_u24 v{vd}, {T}, v{t1}")
        e(f"v_sub_u32 v{t0}, v{t0}, v{vd}")
    e(f"v_lshlrev_b32 v{t1}, 2, v{t1}")
    e(f"v_bfe_u32 v{vd}, {LANE}, 1, 2")
    e(f"v_add_u32 v{t1}, v{t1}, v{vd}")
    e(f"s_mov_b32 s9, {S}")
    e(f"v_mul_lo_u32 v{t1}, v{t1}, s9")
    e(f"v_lshlrev_b32 v{t0}, 5, v{t0}")
    e(f"v_and_b32 v{vd}, 1, {LANE}")
    e(f"v_lshlrev_b32 v{vd}, 4, v{vd}")
    e(f"v_add3_u32 v{vd}, v{vd}, v{t0}, v{t1}")

def dma_loop(vd, srdb, s_m0, s_off, n, step_m, step_s, nt):
    lp = uid("DMA")
    e(f"s_mov_b32 s12, {n}")
    lab(lp)
    e(f"s_mov_b32 m0, s{s_m0}")
    e(f"s_add_u32 s{s_m0}, s{s_m0}, {step_m}")
    e(f"buffer_load_dwordx4 v{vd}, {sr(srdb)}, s{s_off} offen{' nt' if nt else ''} lds")
    e(f"s_add_u32 s{s_off}, s{s_off}, {step_s}")
    e("s_sub_u32 s12, s12, 1")
    e("s_cmp_lg_u32 s12, 0")
    e(f"s_cbranch_scc1 {lp}")

def row16_allreduce(op, v, nregs=1):
    for sh in (8, 4, 2, 1):
        if nregs < 3: e("s_nop 1")
        for i in range(nregs):
            e(f"{op}_dpp v{v+i}, v{v+i}, v{v+i} row_ror:{sh} row_mask:0xf bank_mask:0xf")
def cross16(op, v, t):
    e(f"v_mov_b32 v{t}, v{v}"); e("s_nop 1")
    e(f"v_permlane16_swap_b32 v{v}, v{t}"); e("s_nop 1")
    e(f"{op} v{v}, v{v}, v{t}")
def cross32(op, v, t):
    e(f"v_mov_b32 v{t}, v{v}"); e("s_nop 1")
    e(f"v_permlane32_swap_b32 v{v}, v{t}"); e("s_nop 1")
    e(f"{op} v{v}, v{v}, v{t}")
def wave_allreduce(op, v, t):
    e("s_nop 1")
    row16_allreduce(op, v)
    e("s_nop 1")
    cross16(op, v, t)
    cross32(op, v, t)

MASK0 = 84
def _poll_generic(loads, checks, vt, init=None, sleep=0):
    n = len(loads)
    lp = uid("POLL"); dn = uid("PDONE")
    masked = OPT.get("pmask", 1) and n <= 8
    e("s_mov_b32 s13, 0")
    if masked:
        e("s_mov_b64 s[100:101], exec")
        for i in range(n):
            if init and init[i] is not None:
                e(f"s_mov_b32 s{MASK0+2*i}, {init[i] & 0xffffffff:#x}"); e(f"s_mov_b32 s{MASK0+2*i+1}, {init[i] >> 32:#x}")
            else: e(f"s_mov_b64 s[{MASK0+2*i}:{MASK0+2*i+1}], exec")
    lab(lp)
    for i, s_ in enumerate(loads):
        if masked:
            sk = uid("PSK")
            e(f"s_mov_b64 exec, s[{MASK0+2*i}:{MASK0+2*i+1}]")
            if n > 1: e(f"s_cbranch_execz {sk}")
            e(s_)
            if n > 1: lab(sk)
        else: e(s_)
    e("s_waitcnt vmcnt(0)")
    if masked:
        for i in range(n):
            e(f"s_mov_b64 exec, s[{MASK0+2*i}:{MASK0+2*i+1}]")
            for c in checks[i]: e(c)
            e(f"v_cmp_ne_u32 vcc, 0, v{vt}")
            e(f"s_mov_b64 s[{MASK0+2*i}:{MASK0+2*i+1}], vcc")
            if i == 0: e("s_mov_b64 s[14:15], vcc")
            else: e("s_or_b64 s[14:15], s[14:15], vcc")
        e("s_mov_b64 exec, s[100:101]")
        e("s_add_u32 s13, s13, 1")
        e("s_cmp_eq_u64 s[14:15], 0")
    else:
        for i in range(n):
            for c in checks[i]: e(c.replace(f"v{vt},", f"v{vt+1},", 1).replace(f", v{vt}", f", v{vt+1}") if False else c)
            if i == 0: e(f"v_mov_b32 v{vt+2}, v{vt}")
            else: e(f"v_or_b32 v{vt+2}, v{vt+2}, v{vt}")
        e(f"v_cmp_ne_u32 vcc, 0, v{vt+2}")
        e("s_add_u32 s13, s13, 1")
        e("s_cmp_eq_u64 vcc, 0")
    e(f"s_cbranch_scc1 {dn}")
    if OPT.get("psleep", 0): e(f"s_sleep {OPT['psleep']}")
    elif sleep: e(f"s_sleep {sleep}")
    e(f"s_cmp_lt_u32 s13, {OPT['spin']}")
    e(f"s_cbranch_scc1 {lp}")
    if masked: e("s_mov_b64 exec, s[100:101]")
    lab(dn)

def poll(loads, tagregs, vt):
    per = len(tagregs) // len(loads)
    checks = []
    for i in range(len(loads)):
        tr = tagregs[i*per:(i+1)*per]
        if per == 1: checks.append([f"v_xor_b32 v{vt}, {TAG}, v{tr[0]}"])
        else: checks.append([f"v_xor_b32 v{vt}, {TAG}, v{tr[0]}", f"v_xor_b32 v{vt+1}, {TAG}, v{tr[1]}", f"v_or_b32 v{vt}, v{vt}, v{vt+1}"])
    _poll_generic(loads, checks, vt)

def pollx(loads, bases, vt, init=None, sleep=0):
    checks = [[f"v_bitop3_b32 v{vt}, v{b}, v{b+1}, v{b+2} bitop3:0x96", f"v_bitop3_b32 v{vt}, v{vt}, v{b+3}, {VTAG} bitop3:0x96"] for b in bases]
    _poll_generic(loads, checks, vt, init, sleep=sleep)

def poll2(loadsA, loadsB, tagregs, vt):
    lp = uid("POLL"); dn = uid("PDONE")
    e("s_mov_b32 s13, 0")
    lab(lp)
    for loads in (loadsA, loadsB):
        for s_ in loads: e(s_)
        e("s_waitcnt vmcnt(0)")
        tr = list(tagregs); first = True
        while tr:
            a_, b_ = tr.pop(0), tr.pop(0)
            e(f"v_xor_b32 v{vt+1}, {TAG}, v{a_}"); e(f"v_xor_b32 v{vt+2}, {TAG}, v{b_}")
            if first: e(f"v_or_b32 v{vt}, v{vt+1}, v{vt+2}")
            else: e(f"v_or3_b32 v{vt}, v{vt+1}, v{vt+2}, v{vt}")
            first = False
        e(f"v_cmp_ne_u32 vcc, 0, v{vt}")
        e("s_cmp_eq_u64 vcc, 0")
        e(f"s_cbranch_scc1 {dn}")
    e("s_add_u32 s13, s13, 1")
    e(f"s_cmp_lt_u32 s13, {OPT['spin']}")
    e(f"s_cbranch_scc1 {lp}")
    lab(dn)

def mfma(d, a, b, c=None):
    cs = vr(d, 4) if c is None else c
    e(f"v_mfma_f32_16x16x32_bf16 {vr(d,4)}, {vr(a,4)}, {vr(b,4)}, {cs}")

SCG = " sc1"
EXEC_L15_0 = 0x0001000100010001

def set_exec64(val):
    lo, hi = val & 0xffffffff, val >> 32
    e(f"s_mov_b32 exec_lo, {lo:#x}"); e(f"s_mov_b32 exec_hi, {hi:#x}")
def exec_all(): e("s_mov_b64 exec, -1")

def prologue():
    if OPT["stamps"] or OPT.get("diagx", 0): e("s_memrealtime s[96:97]")
    e("s_cmp_ge_u32 s2, 256")
    e("s_cbranch_scc1 L_END")
    e("s_load_dwordx16 s[16:31], s[0:1], 0")
    e("s_load_dwordx8 s[32:39], s[0:1], 64")
    e("s_load_dwordx2 s[40:41], s[0:1], 96")
    e(f"v_lshrrev_b32 v5, 6, v0")
    e(f"v_and_b32 {LANE}, 63, v0")
    e(f"v_readfirstlane_b32 {WAVE}, v5")
    e(f"v_lshrrev_b32 {G}, 4, {LANE}")
    if OPT.get("earlytouch", 1): code_touch(120)
    e(f"v_and_b32 {L15}, 15, {LANE}")
    e(f"s_and_b32 {X}, s2, 7")
    e(f"s_lshr_b32 {J}, s2, 3")
    e(f"s_mul_i32 s64, {WAVE}, 11"); e("s_lshr_b32 s64, s64, 5")
    e("s_mul_i32 s65, s64, 3"); e(f"s_sub_u32 s65, {WAVE}, s65")
    e(f"s_cmp_ge_u32 {J}, 16")
    e("s_cbranch_scc1 L_Y")

def kernarg_ready():
    e("s_waitcnt lgkmcnt(0)")
    e(f"s_load_dword {TAG}, s[{P_WS}:{P_WS+1}], 0")
    srd(WS, P_WS, WS_SIZE)

def get_tag():
    e("s_waitcnt lgkmcnt(0)")
    e(f"s_mul_i32 {TAG}, {TAG}, 1664525")
    e(f"s_add_u32 {TAG}, {TAG}, 1013904223")
    e(f"v_mov_b32 {VTAG}, {TAG}")

def hello_publish(vt):
    if not OPT.get("local", 1): return
    sk = uid("HEL")
    e(f"s_cmp_lg_u32 {WAVE}, 15"); e(f"s_cbranch_scc1 {sk}")
    e("s_getreg_b32 s9, hwreg(HW_REG_XCC_ID, 0, 4)")
    e(f"s_lshl_b32 s10, {X}, 8"); e("s_lshr_b32 s11, s2, 3"); e("s_lshl_b32 s11, s11, 3"); e("s_add_u32 s10, s10, s11"); e(f"s_add_u32 s10, s10, {WS_HELLO}")
    e(f"v_mov_b32 v{vt}, s9"); e(f"v_mov_b32 v{vt+1}, {TAG}"); e(f"v_mov_b32 v{vt+2}, 0")
    e("s_mov_b64 exec, 1")
    e(f"buffer_store_dwordx2 v[{vt}:{vt+1}], v{vt+2}, {sr(WS)}, s10 offen sc1")
    exec_all()
    lab(sk)

XL_U = 0
XL_UK = 61440
XL_MG, XL_MU, XL_MD = 73728, 94208, 114688
XL_S = 147456
XL_XN = XL_S
XL_Q = XL_S + 1280
XL_CL = XL_S + 2048
CL_RS = 400
XL_CB = XL_S + 14848
XL_W = XL_S + 15232
XL_FLAG = XL_S + 15360
XL_H = XL_S + 2048
XL_ST = XL_S + 4608
XL_G = XL_S + 4736
XL_HH = XL_S + 6144
XL_R2 = XL_S + 6400
XL_R = XL_S + 8192

def st_global(data, voff, soff):
    e(f"buffer_store_dwordx4 {data}, {voff}, {sr(WS)}, {soff} offen sc1")
def st_local(data, voff, soff):
    g = uid("STG"); d = uid("STD")
    e("s_nop 0"); e("v_readfirstlane_b32 s10, v123"); e("s_nop 3")
    e("s_cmp_eq_u32 s10, 1"); e(f"s_cbranch_scc0 {g}")
    e(f"buffer_store_dwordx4 {data}, {voff}, {sr(WS)}, {soff} offen")
    e(f"s_branch {d}")
    lab(g)
    e(f"buffer_store_dwordx4 {data}, {voff}, {sr(WS)}, {soff} offen sc1")
    lab(d)

XL_CX = None
def collect_pre(vw, vr_, vo, s_off, lds_base, soff_code, mode16):
    e(f"v_lshlrev_b32 v{vw}, 3, {G}"); e(f"s_lshl_b32 s9, {WAVE}, 5"); e(f"s_add_u32 s9, s9, {lds_base}"); e(f"v_add_u32 v{vw}, s9, v{vw}")
    if mode16: e(f"v_mul_u32_u24 v{vr_}, 12, {LANE}")
    else: e(f"v_lshlrev_b32 v{vr_}, 3, {LANE}")
    e(f"v_add_u32 v{vr_}, {lds_base}, v{vr_}")
    e(f"v_lshlrev_b32 v{vo}, 4, {LANE}")
    soff_code(); e(f"s_mov_b32 {s_off}, s9")

def collect_store(acc, vw, vr_, vo, s_off, flavor, lbl, mode16=False, vflag=None):
    e(f"v_cvt_pk_bf16_f32 v124, v{acc}, v{acc+1}"); e(f"v_cvt_pk_bf16_f32 v125, v{acc+2}, v{acc+3}")
    set_exec64(EXEC_L15_0)
    e(f"ds_write_b64 v{vw}, v[124:125]")
    exec_all()
    lab(lbl)
    barrier()
    sk = uid("CST")
    e(f"s_cmp_lg_u32 {WAVE}, 0"); e(f"s_cbranch_scc1 {sk}")
    if mode16:
        set_exec64(0xffffffff)
        e(f"ds_read2_b32 v[124:125], v{vr_} offset1:1"); e(f"ds_read_b32 v126, v{vr_} offset:8")
        e("s_waitcnt lgkmcnt(0)")
        e("v_bitop3_b32 v127, v124, v125, v126 bitop3:0x96"); e(f"v_xor_b32 v127, {VTAG}, v127")
    else:
        set_exec64((1 << 48) - 1)
        e(f"ds_read_b64 v[124:125], v{vr_}")
        if flavor is st_local: e(f"ds_read_b32 v123, v{vflag}")
        e("s_waitcnt lgkmcnt(0)")
        e("v_mov_b32 v126, v125"); e(f"v_mov_b32 v125, {VTAG}"); e(f"v_mov_b32 v127, {VTAG}")
    flavor("v[124:127]", f"v{vo}", s_off)
    exec_all()
    lab(sk)

def code_touch(vd, wave=15):
    if not OPT["prefetch_code"]: return
    sk = uid("CT"); pc = uid("PC")
    e(f"s_cmp_lg_u32 {WAVE}, {wave}"); e(f"s_cbranch_scc1 {sk}")
    e("s_getpc_b64 s[10:11]")
    lab(pc)
    e(f"s_sub_u32 s10, s10, {pc}-{NAME}_kernel"); e("s_subb_u32 s11, s11, 0")
    e("s_lshr_b32 s9, s2, 3"); e("s_and_b32 s9, s9, 15"); e("s_lshl_b32 s9, s9, 10")
    e(f"v_lshl_add_u32 v{vd}, {LANE}, 4, s9")
    e(f"s_mov_b32 s9, L_END-{NAME}_kernel-16")
    e(f"v_min_u32 v{vd}, s9, v{vd}")
    e(f"global_load_dwordx4 v[{vd}:{vd+3}], v{vd}, s[10:11]")
    lab(sk)

def code_touch_range(lbl, nkb, vd, wave=15):
    if not OPT.get("retouch", 0): return
    sk = uid("CT"); pc = uid("PC")
    e(f"s_cmp_lg_u32 {WAVE}, {wave}"); e(f"s_cbranch_scc1 {sk}")
    e("s_getpc_b64 s[10:11]")
    lab(pc)
    e(f"s_sub_u32 s10, s10, {pc}-{NAME}_kernel"); e("s_subb_u32 s11, s11, 0")
    e(f"s_mov_b32 s9, {lbl}-{NAME}_kernel")
    e(f"v_lshl_add_u32 v{vd+4}, {LANE}, 4, s9")
    e(f"s_mov_b32 s9, L_END-{NAME}_kernel-16")
    for i in range(nkb):
        e(f"v_min_u32 v{vd+5}, s9, v{vd+4}")
        e(f"global_load_dwordx4 v[{vd}:{vd+3}], v{vd+5}, s[10:11]")
        if i + 1 < nkb: e(f"v_add_u32 v{vd+4}, 1024, v{vd+4}")
    lab(sk)

def tlb_warm(wave):
    if not OPT.get("tlbwarm", 0): return
    sk = uid("TW")
    e(f"s_cmp_lg_u32 {WAVE}, {wave}"); e(f"s_cbranch_scc1 {sk}")
    step = 1 << 20
    lst = [(P_WUV, 9437184), (P_WO, 7864320), (P_WG, 1966080), (P_WU, 1966080), (P_WD, 1966080), (P_WS, WS_SIZE), (P_OUT, 1280)]
    k = 0
    for ptr, size in lst:
        off = 0
        while off < size:
            if off < (1 << 20):
                e(f"s_load_dword s{84 + (k % 8)}, s[{ptr}:{ptr+1}], {off:#x}")
            else:
                e(f"s_mov_b32 s9, {off:#x}")
                e(f"s_load_dword s{84 + (k % 8)}, s[{ptr}:{ptr+1}], s9")
            k += 1; off += step
    lab(sk)

def x_program():
    lab("L_X")
    e(f"s_lshr_b32 s9, {J}, 2"); e(f"s_lshl_b32 {H}, {X}, 2"); e(f"s_add_u32 {H}, {H}, s9")
    e(f"s_and_b32 {R}, {J}, 3")
    dma_pattern(15, 12, 12288, "s65", 17, 18)
    if OPT.get("dmaexp", 0):
        e(f"v_lshrrev_b32 v17, 4, {LANE}"); e("s_lshl_b32 s9, s65, 2"); e("v_add_u32 v17, s9, v17"); e("v_mul_u32_u24 v17, 12288, v17")
        e(f"v_lshl_add_u32 v17, {L15}, 4, v17")
        e(f"v_lshrrev_b32 v18, 3, {LANE}"); e("v_mul_u32_u24 v18, 12288, v18"); e(f"v_and_b32 v15, 7, {LANE}"); e("v_lshl_add_u32 v18, v15, 4, v18"); e("v_add_u32 v18, 256, v18")
        e("s_cmp_eq_u32 s65, 2"); e("s_cselect_b64 vcc, -1, 0"); e("s_nop 1"); e("v_cndmask_b32 v15, v17, v18, vcc")
    e(f"v_cmp_lt_u32 vcc, 23, {LANE}"); e(f"v_subrev_u32 v6, 24, {LANE}"); e("s_nop 0")
    e(f"v_cndmask_b32 v14, {LANE}, v6, vcc"); e("v_lshlrev_b32 v14, 4, v14")
    e("v_mov_b32 v6, 12288"); e("v_cndmask_b32 v6, 0, v6, vcc"); e("v_add_u32 v14, v14, v6")
    e(f"v_lshlrev_b32 v5, 2, {LANE}"); e(f"v_lshlrev_b32 v11, 4, {LANE}")
    e(f"s_mul_i32 s10, {R}, 160"); e("s_lshl_b32 s11, s64, 3"); e("s_add_u32 s10, s10, s11")
    e("s_mul_i32 s11, s10, 12288"); e(f"s_mul_i32 s67, {H}, 384"); e("s_add_u32 s11, s11, s67")
    e(f"s_sub_u32 s9, {WAVE}, 12")
    e(f"s_mul_i32 s66, {R}, 192"); e("s_lshl_b32 s10, s9, 1"); e("s_add_u32 s66, s66, s10")
    e("s_mul_i32 s66, s66, 12288"); e("s_add_u32 s66, s66, s67")
    e(f"s_mul_i32 s68, s9, 800"); e(f"s_add_u32 s68, s68, {XL_UK}")
    e(f"s_lshl_b32 s10, {WAVE}, 10")
    kernarg_ready()
    srd(SA, P_WQ, 7864320); srd(SB, P_WUK, 9437184); srd(SC_, P_X, 1280)
    stamp("x: start", 0xfffff)
    sk = uid("XL")
    e(f"s_cmp_lg_u32 {WAVE}, 15"); e(f"s_cbranch_scc1 {sk}")
    for i in range(5):
        e(f"buffer_load_dword v{16+i}, v5, {sr(SC_)}, 0 offen offset:{256*i}")
    e("s_barrier")
    e("s_branch X_LN")
    lab(sk)
    e(f"s_cmp_ge_u32 {WAVE}, 12"); e("s_cbranch_scc1 X_UKD")
    dma_loop(15, SA, 10, 11, 5, 12 * 1024, 32 * 12288, OPT["xnt"])
    e("s_barrier")
    e("s_waitcnt vmcnt(0)")
    e("s_branch X_B1")
    lab("X_UKD")
    e("s_barrier")
    set_exec64((1<<48)-1)
    npre = OPT.get("ukpre", 4)
    dma_loop(14, SB, 68, 66, npre, 3 * 800, 6 * 12288, OPT["xnt"])
    exec_all()
    lab("X_B1")
    get_tag()
    if OPT.get("diagw", 0):
        e("s_memtime s[76:77]"); e("s_waitcnt lgkmcnt(0)")
        e("s_barrier")
        e("s_memtime s[78:79]"); e("s_waitcnt vmcnt(0)"); e("s_memtime s[80:81]"); e("s_waitcnt lgkmcnt(0)")
        e("s_lshl_b32 s9, s2, 10"); e(f"s_lshl_b32 s10, {WAVE}, 6"); e("s_add_u32 s9, s9, s10"); e(f"s_add_u32 s9, s9, {WS_ST}")
        e("s_mov_b64 exec, 1"); e("v_mov_b32 v5, 0")
        for i, b in enumerate((72, 74, 76, 78, 80, 96)):
            e(f"v_mov_b32 v6, s{b}"); e(f"v_mov_b32 v7, s{b+1}")
            e(f"buffer_store_dwordx2 v[6:7], v5, {sr(WS)}, s9 offen offset:{8*i}"); e("s_nop 1")
        e("s_endpgm")
    stamp("x: wq landed", 9|32768)
    barrier()
    stamp("x: after B1", 8)
    e(f"s_cmp_ge_u32 {WAVE}, 12"); e("s_cbranch_scc1 X_UK2")
    e(f"v_mul_u32_u24 v5, 3072, {G}"); e(f"v_lshl_add_u32 v5, {L15}, 3, v5")
    e(f"s_lshl_b32 s9, {WAVE}, 7"); e("v_add_u32 v13, s9, v5")
    e(f"s_mul_i32 s9, {R}, 320"); e(f"s_add_u32 s9, s9, {XL_XN}")
    e(f"v_lshl_add_u32 v6, {G}, 4, s9")
    for ks in range(5):
        e(f"ds_read_b128 {vr(64+4*ks,4)}, v6 offset:{64*ks}")
        e(f"ds_read_b64_tr_b16 {vr(40+4*ks,2)}, v13 offset:{XL_U+ks*12288}")
        e(f"ds_read_b64_tr_b16 {vr(42+4*ks,2)}, v13 offset:{XL_U+ks*12288+1536}")
    e(f"s_lshl_b32 s9, {H}, 2"); e(f"s_add_u32 s9, s9, {R}"); e("s_mul_i32 s9, s9, 1536")
    e(f"s_lshl_b32 s10, {WAVE}, 7"); e("s_add_u32 s9, s9, s10"); e(f"s_add_u32 s9, s9, {WS_E1}")
    e(f"v_lshlrev_b32 v5, 3, {L15}")
    for ks in range(5):
        e(f"s_waitcnt lgkmcnt({3*(4-ks)})")
        mfma(88, 64 + 4 * ks, 40 + 4 * ks, "0" if ks == 0 else None)
    e("s_nop 7")
    e(f"v_mov_b32 v89, {VTAG}")
    e("s_mov_b64 exec, 0xffff")
    if OPT.get("e1dual", 1):
        e(f"s_add_u32 s10, s9, {WS_E1L - WS_E1}")
        e(f"buffer_store_dwordx2 v[88:89], v5, {sr(WS)}, s10 offen")
    e(f"buffer_store_dwordx2 v[88:89], v5, {sr(WS)}, s9 offen{SCG}")
    exec_all()
    stamp("x: q published", 9)
    e(f"v_lshlrev_b32 v8, 4, {G}"); e(f"v_add_u32 v8, {XL_Q}, v8")
    e(f"v_lshrrev_b32 v7, 1, {L15}"); e("v_mul_u32_u24 v7, 800, v7")
    e(f"v_and_b32 v9, 1, {L15}"); e("v_mul_u32_u24 v9, 384, v9"); e("v_add_u32 v7, v7, v9")
    e(f"v_lshl_add_u32 v7, {G}, 4, v7")
    e(f"s_mul_i32 s9, {WAVE}, 6400"); e(f"s_add_u32 s9, s9, {XL_UK}"); e("v_add_u32 v7, s9, v7")
    def soff_qa():
        e(f"s_lshl_b32 s9, {H}, 11"); e(f"s_lshl_b32 s10, {R}, 9"); e("s_add_u32 s9, s9, s10"); e(f"s_add_u32 s9, s9, {WS_QA}")
    collect_pre(9, 10, 11, "s70", XL_CB, soff_qa, True)
    e("s_branch X_B3")
    lab("X_UK2")
    e(f"s_cmp_eq_u32 {WAVE}, 15"); e("s_cbranch_scc1 X_B3")
    set_exec64((1<<48)-1)
    dma_loop(14, SB, 68, 66, 32 - OPT.get("ukpre", 4), 3 * 800, 6 * 12288, OPT["xnt"])
    exec_all()
    e(f"s_cmp_ge_u32 {WAVE}, 14"); e("s_cbranch_scc1 X_B3W")
    e(f"s_sub_u32 s9, {WAVE}, 12"); e("s_lshl_b32 s9, s9, 6"); e(f"v_add_u32 v5, s9, {LANE}")
    e("v_cmp_gt_u32 vcc, 96, v5"); e("s_and_saveexec_b64 s[42:43], vcc")
    e("v_lshlrev_b32 v6, 4, v5")
    e(f"s_mul_i32 s9, {H}, 6144"); e(f"s_add_u32 s9, s9, {WS_E1}")
    e("s_add_u32 s10, s9, 3072")
    stamp("x: E1 poll start", 8|32768)
    if OPT.get("e1dual", 1):
        e(f"s_add_u32 s11, s9, {WS_E1L - WS_E1}"); e(f"s_add_u32 s69, s10, {WS_E1L - WS_E1}")
        mk = lambda sa, sb: [f"buffer_load_dwordx4 v[92:95], v6, {sr(WS)}, {sa} offen sc1",
                             f"buffer_load_dwordx4 v[96:99], v6, {sr(WS)}, {sa} offen offset:1536 sc1",
                             f"buffer_load_dwordx4 v[100:103], v6, {sr(WS)}, {sb} offen sc1",
                             f"buffer_load_dwordx4 v[104:107], v6, {sr(WS)}, {sb} offen offset:1536 sc1"]
        poll2(mk("s11", "s69"), mk("s9", "s10"), [93, 95, 97, 99, 101, 103, 105, 107], 108)
    else:
        poll([f"buffer_load_dwordx4 v[92:95], v6, {sr(WS)}, s9 offen sc1",
              f"buffer_load_dwordx4 v[96:99], v6, {sr(WS)}, s9 offen offset:1536 sc1",
              f"buffer_load_dwordx4 v[100:103], v6, {sr(WS)}, s10 offen sc1",
              f"buffer_load_dwordx4 v[104:107], v6, {sr(WS)}, s10 offen offset:1536 sc1"],
             [93, 95, 97, 99, 101, 103, 105, 107], 108)
    stamp("x: E1 poll end", 8|32768); stamp_val("E1 iters", "s13", 8)
    e("v_add_f32 v92, v92, v96"); e("v_add_f32 v94, v94, v98")
    e("v_add_f32 v100, v100, v104"); e("v_add_f32 v102, v102, v106")
    e("v_add_f32 v92, v92, v100"); e("v_add_f32 v94, v94, v102")
    qs = 192 ** -0.5 * math.log2(math.e)
    e(f"v_mul_f32 v92, {F(qs)}, v92"); e(f"v_mul_f32 v94, {F(qs)}, v94")
    e("v_cvt_pk_bf16_f32 v92, v92, v94")
    e("v_lshlrev_b32 v6, 2, v5"); e(f"v_add_u32 v6, {XL_Q}, v6")
    e("ds_write_b32 v6, v92")
    e("s_mov_b64 exec, s[42:43]")
    lab("X_B3W")
    e("s_waitcnt vmcnt(0)")
    lab("X_B3")
    barrier()
    stamp("x: q gathered", 9|32768)
    e(f"s_cmp_ge_u32 {WAVE}, 12"); e("s_cbranch_scc1 X_P2B")
    for ks in range(6):
        e(f"ds_read_b128 {vr(16+4*ks,4)}, v7 offset:{64*ks}")
        e(f"ds_read_b128 {vr(64+4*ks,4)}, v8 offset:{64*ks}")
    for ks in range(6):
        e(f"s_waitcnt lgkmcnt({2*(5-ks)})")
        mfma(88, 16 + 4 * ks, 64 + 4 * ks, "0" if ks == 0 else None)
    e("s_nop 7")
    collect_store(88, 9, 10, 11, "s70", st_global, "X_P2B", mode16=True)
    stamp("x: qabs published", 9|128|256|32768|(1<<16))
    if OPT.get("xstop", 0) == 1:
        e("s_waitcnt vmcnt(0)"); barrier(); stamp("x: all waves done"); e("s_branch X_END")
    if OPT.get("qawait", 0):
        e("s_waitcnt vmcnt(0)"); barrier()
    srd(SA, P_WUV, 9437184)
    e(f"s_cmp_ge_u32 {WAVE}, 12"); e("s_cbranch_scc1 X_B4")
    e(f"s_mul_i32 s10, {R}, 192"); e("s_lshl_b32 s11, s64, 3"); e("s_add_u32 s10, s10, s11")
    e("s_mul_i32 s11, s10, 12288"); e("s_add_u32 s11, s11, s67")
    e(f"s_lshl_b32 s10, {WAVE}, 10"); e(f"s_add_u32 s10, s10, {XL_U}")
    dma_loop(15, SA, 10, 11, 6, 12 * 1024, 32 * 12288, OPT["xnt"])
    lab("X_B4")
    PFNT = " nt" if OPT.get("pfnt", 0) else ""
    if OPT.get("wopf", 0):
        sk = uid("PFO")
        srd(SB, P_WO, 7864320)
        e(f"s_cmp_eq_u32 {WAVE}, 15"); e(f"s_cbranch_scc1 {sk}")
        e(f"s_mul_i32 s9, {X}, 768"); e(f"s_mul_i32 s10, {J}, 48"); e("s_add_u32 s9, s9, s10"); e("s_mul_i32 s9, s9, 1280")
        e(f"s_lshl_b32 s10, {WAVE}, 12"); e("s_add_u32 s9, s9, s10")
        e(f"v_lshlrev_b32 v8, 4, {LANE}")
        for i in range(4): e(f"buffer_load_dwordx4 v[120:123], v8, {sr(SB)}, s9 offen offset:{1024*i}{PFNT}")
        lab(sk)
    if OPT.get("l2pf", 1):
        srd(SB, P_WG, 1966080); srd(SD, P_WU, 1966080)
        e(f"v_cmp_lt_u32 vcc, 23, {LANE}"); e(f"v_subrev_u32 v7, 24, {LANE}"); e("s_nop 0")
        e(f"v_cndmask_b32 v8, {LANE}, v7, vcc"); e("v_lshlrev_b32 v8, 4, v8")
        e("v_mov_b32 v7, 3072"); e("v_cndmask_b32 v7, 0, v7, vcc"); e("v_add_u32 v8, v8, v7")
        sk = uid("PFG")
        e(f"s_cmp_ge_u32 {WAVE}, 10"); e(f"s_cbranch_scc1 {sk}")
        e(f"s_mul_i32 s9, {J}, 40"); e(f"s_lshl_b32 s10, {WAVE}, 2"); e("s_add_u32 s9, s9, s10"); e("s_mul_i32 s9, s9, 3072")
        e(f"s_mul_i32 s10, {X}, 384"); e("s_add_u32 s9, s9, s10"); e("s_add_u32 s10, s9, 6144")
        set_exec64((1 << 48) - 1)
        e(f"buffer_load_dwordx4 v[120:123], v8, {sr(SB)}, s9 offen{PFNT}"); e(f"buffer_load_dwordx4 v[120:123], v8, {sr(SB)}, s10 offen{PFNT}")
        e(f"buffer_load_dwordx4 v[120:123], v8, {sr(SD)}, s9 offen{PFNT}"); e(f"buffer_load_dwordx4 v[120:123], v8, {sr(SD)}, s10 offen{PFNT}")
        exec_all()
        lab(sk)
        sk = uid("PFD")
        e(f"s_cmp_lt_u32 {WAVE}, 10"); e(f"s_cbranch_scc1 {sk}")
        srd(SB, P_WD, 1966080)
        e(f"s_mul_i32 s9, {X}, 192"); e(f"s_mul_i32 s10, {J}, 12"); e("s_add_u32 s9, s9, s10"); e("s_mul_i32 s9, s9, 1280")
        e(f"s_sub_u32 s10, {WAVE}, 10"); e("s_mul_i32 s10, s10, 2560"); e("s_add_u32 s9, s9, s10")
        e(f"v_lshlrev_b32 v8, 4, {LANE}")
        e(f"buffer_load_dwordx4 v[120:123], v8, {sr(SB)}, s9 offen{PFNT}"); e(f"buffer_load_dwordx4 v[120:123], v8, {sr(SB)}, s9 offen offset:1024{PFNT}")
        set_exec64(0xffffffff)
        e(f"buffer_load_dwordx4 v[120:123], v8, {sr(SB)}, s9 offen offset:2048{PFNT}")
        exec_all()
        lab(sk)
    e(f"v_lshrrev_b32 v8, 5, {LANE}"); e(f"s_lshl_b32 s9, {WAVE}, 1"); e("v_add_u32 v8, s9, v8")
    e(f"v_and_b32 v9, 31, {LANE}")
    e("v_mul_u32_u24 v6, 2176, v8"); e("v_lshl_add_u32 v6, v9, 4, v6")
    e(f"v_mul_u32_u24 v10, {CL_RS}, v8"); e("v_mul_u32_u24 v11, 12, v9"); e("v_add_u32 v10, v10, v11")
    e(f"v_add_u32 v118, {XL_CL}, v10")
    e("s_waitcnt vmcnt(0)")
    code_touch_range("X_NPR", 3, 120, 14)
    stamp("x: burst2 landed", 1|256)
    barrier()
    if OPT.get("xstop", 0) == 2: e("s_branch X_END")
    e(f"s_cmp_ge_u32 {WAVE}, 12"); e("s_cbranch_scc1 X_NPR")
    for ks in range(6):
        e(f"ds_read_b64_tr_b16 {vr(40+4*ks,2)}, v13 offset:{XL_U+ks*12288}")
        e(f"ds_read_b64_tr_b16 {vr(42+4*ks,2)}, v13 offset:{XL_U+ks*12288+1536}")
    lab("X_NPR")
    e(f"v_lshrrev_b32 v16, 2, {L15}"); e(f"v_lshl_add_u32 v16, {G}, 3, v16"); e(f"v_mul_u32_u24 v16, {CL_RS}, v16")
    e(f"v_and_b32 v17, 3, {L15}"); e("v_lshl_add_u32 v16, v17, 3, v16")
    e(f"s_lshl_b32 s9, {WAVE}, 5"); e(f"s_add_u32 s10, s9, {XL_CL}"); e("v_add_u32 v16, s10, v16")
    e(f"v_and_b32 v17, 1, {LANE}"); e("v_lshlrev_b32 v17, 6, v17"); e(f"v_lshl_add_u32 v17, {G}, 4, v17"); e(f"v_add_u32 v17, {XL_W}, v17")
    e(f"v_lshlrev_b32 v18, 1, {L15}"); e(f"s_add_u32 s10, s9, {XL_CB}"); e("v_add_u32 v18, s10, v18")
    e(f"v_lshlrev_b32 v19, 4, {G}"); e(f"v_add_u32 v19, {XL_CB}, v19")
    def soff_e4():
        e(f"s_lshl_b32 s9, {X}, 2"); e(f"s_add_u32 s9, s9, {R}"); e("s_mul_i32 s9, s9, 3072")
        e(f"s_and_b32 s10, {H}, 3"); e("s_mul_i32 s10, s10, 768"); e("s_add_u32 s9, s9, s10"); e(f"s_add_u32 s9, s9, {WS_E4}")
    collect_pre(20, 21, 22, "s70", XL_Q, soff_e4, False)
    e(f"v_mov_b32 v23, {XL_FLAG}")
    e(f"s_mul_i32 s9, {H}, 69632"); e(f"s_add_u32 s69, s9, {WS_E3 + 2048}"); e(f"s_lshl_b32 s10, {R}, 9"); e("s_add_u32 s9, s9, s10")
    e(f"s_add_u32 s9, s9, {WS_E3}")
    e(f"s_cmp_eq_u32 {WAVE}, 12"); e("s_cbranch_scc1 X_ML")
    stamp("x: E3 poll start", 16)
    pollx([f"buffer_load_dwordx4 v[96:99], v6, {sr(WS)}, s9 offen sc1"], [96], 108, sleep=OPT.get("e3sleep", 0))
    stamp("x: E3 poll end", 16|2048); stamp_val("E3 iters", "s13", 16)
    e("ds_write2_b32 v118, v96, v97 offset1:1"); e("ds_write_b32 v118, v98 offset:8")
    if OPT.get("local", 1):
        sk = uid("HCK")
        e(f"s_cmp_lg_u32 {WAVE}, 13"); e(f"s_cbranch_scc1 {sk}")
        e(f"v_lshlrev_b32 v5, 3, {LANE}")
        e(f"s_lshl_b32 s10, {X}, 8"); e(f"s_add_u32 s10, s10, {WS_HELLO + 128}")
        e("s_getreg_b32 s11, hwreg(HW_REG_XCC_ID, 0, 4)")
        e("s_mov_b64 exec, 0x3ff")
        e(f"buffer_load_dwordx2 v[100:101], v5, {sr(WS)}, s10 offen sc1")
        e("s_waitcnt vmcnt(0)")
        e("v_xor_b32 v100, s11, v100"); e(f"v_xor_b32 v101, {TAG}, v101"); e("v_or_b32 v100, v100, v101")
        e("v_cmp_ne_u32 vcc, 0, v100")
        e("s_cmp_eq_u64 vcc, 0"); e("s_cselect_b32 s10, 1, 0")
        e("s_mov_b64 exec, 1")
        e(f"v_mov_b32 v100, s10"); e(f"v_mov_b32 v5, {XL_FLAG}"); e("ds_write_b32 v5, v100")
        exec_all()
        lab(sk)
    e("s_branch X_B5")
    lab("X_ML")
    e(f"v_and_b32 v5, 31, {LANE}"); e("v_mul_u32_u24 v5, 2176, v5")
    pollx([f"buffer_load_dwordx4 v[100:103], v6, {sr(WS)}, s9 offen sc1",
           f"buffer_load_dwordx4 v[96:99], v5, {sr(WS)}, s69 offen sc1"], [100, 96], 108, init=[None, 0xffffffff], sleep=OPT.get("e3sleep", 0))
    e("ds_write2_b32 v118, v100, v101 offset1:1"); e("ds_write_b32 v118, v102 offset:8")
    e("v_mov_b32 v98, v96")
    e("s_nop 1"); row16_allreduce("v_max_f32", 98); e("s_nop 1"); cross16("v_max_f32", 98, 99)
    e("v_sub_f32 v96, v96, v98"); e("v_exp_f32 v96, v96"); e("s_nop 0")
    e("v_mul_f32 v97, v96, v97")
    e("s_nop 1"); row16_allreduce("v_add_f32", 97); e("s_nop 1"); cross16("v_add_f32", 97, 99)
    e("v_rcp_f32 v97, v97"); e("s_nop 0")
    e("v_mul_f32 v96, v96, v97")
    e("v_cvt_pk_bf16_f32 v97, v96, v96")
    e("v_and_b32 v98, 0xffff0000, v97")
    e("v_sub_f32 v96, v96, v98")
    e("v_cvt_pk_bf16_f32 v96, v96, v96")
    e(f"v_and_b32 v5, 31, {LANE}"); e("v_lshlrev_b32 v5, 1, v5"); e(f"v_add_u32 v5, {XL_W}, v5")
    set_exec64(0xffffffff)
    e("ds_write_b16 v5, v97"); e("ds_write_b16 v5, v96 offset:64")
    exec_all()
    lab("X_B5")
    barrier()
    stamp("x: E3 gathered", 17|128|256|2048)
    e(f"s_cmp_ge_u32 {WAVE}, 12"); e("s_cbranch_scc1 X_B5b")
    e(f"ds_read_b64_tr_b16 v[96:97], v16"); e(f"ds_read_b64_tr_b16 v[98:99], v16 offset:{4*CL_RS}")
    e("ds_read_b128 v[100:103], v17")
    e("s_waitcnt lgkmcnt(0)")
    mfma(120, 100, 96, "0")
    e("s_nop 7")
    e("v_add_f32 v120, v120, v121")
    e("v_cvt_pk_bf16_f32 v120, v120, v120")
    e("s_mov_b64 exec, 0xffff")
    e("ds_write_b16 v18, v120")
    exec_all()
    lab("X_B5b")
    barrier()
    stamp("x: after B5b", 2048)
    e(f"s_cmp_ge_u32 {WAVE}, 12"); e("s_cbranch_scc1 X_UPD")
    for ks in range(6): e(f"ds_read_b128 {vr(96+4*ks,4)}, v19 offset:{64*ks}")
    for ks in range(6):
        e(f"s_waitcnt lgkmcnt({5-ks})")
        mfma(120, 40 + 4 * ks, 96 + 4 * ks, "0" if ks == 0 else None)
    e("s_nop 7")
    collect_store(120, 20, 21, 22, "s70", st_local if OPT.get("local", 1) else st_global, "X_UPD", vflag=23)
    stamp("x: ctx published", 1|128|256|2048)
    e(f"s_cmp_ge_u32 {J}, 5"); e("s_cbranch_scc1 X_END")
    e(f"s_mul_i32 s66, {X}, 5"); e(f"s_add_u32 s66, s66, {J}")
    e(f"s_cmp_ge_u32 {WAVE}, 7"); e("s_cbranch_scc1 X_B9")
    e(f"s_cmp_eq_u32 {WAVE}, 6"); e("s_cbranch_scc1 X_FH")
    e(f"v_lshrrev_b32 v5, 3, {LANE}"); e("v_mul_u32_u24 v5, 5120, v5")
    e(f"v_and_b32 v6, 7, {LANE}"); e("v_lshl_add_u32 v5, v6, 4, v5")
    e(f"s_mul_i32 s9, {WAVE}, 40960"); e("s_lshl_b32 s10, s66, 7"); e("s_add_u32 s9, s9, s10")
    e(f"s_add_u32 s9, s9, {WS_E6}")
    poll([f"buffer_load_dwordx4 v[92:95], v5, {sr(WS)}, s9 offen sc1"], [93, 95], 108)
    e("v_mov_b32 v93, v94")
    e("s_nop 1")
    for i in range(2):
        e(f"v_add_f32_dpp v{92+i}, v{92+i}, v{92+i} row_ror:8 row_mask:0xf bank_mask:0xf")
    for i in range(2):
        cross16("v_add_f32", 92 + i, 96); cross32("v_add_f32", 92 + i, 96)
    e("v_lshlrev_b32 v6, 3, v6"); e(f"s_lshl_b32 s9, {WAVE}, 6"); e(f"s_add_u32 s9, s9, {XL_R2}")
    e("v_add_u32 v6, s9, v6")
    e("s_mov_b64 exec, 0xff")
    e("ds_write_b64 v6, v[92:93]")
    exec_all()
    e("s_branch X_B9")
    lab("X_FH")
    e(f"v_bfe_u32 v5, {LANE}, 2, 3"); e("v_mul_u32_u24 v5, 2560, v5")
    e(f"v_and_b32 v6, 3, {LANE}"); e("v_lshl_add_u32 v5, v6, 4, v5")
    e("s_lshl_b32 s9, s66, 6"); e(f"s_add_u32 s9, s9, {WS_E5}")
    e("v_lshlrev_b32 v7, 3, v6"); e("s_lshl_b32 s10, s66, 5")
    e(f"buffer_load_dwordx2 v[104:105], v7, {sr(SC_)}, s10 offen")
    set_exec64(0xffffffff)
    poll([f"buffer_load_dwordx4 v[92:95], v5, {sr(WS)}, s9 offen sc1"], [93, 95], 108)
    exec_all()
    e("v_lshlrev_b32 v96, 16, v92"); e("v_and_b32 v97, 0xffff0000, v92")
    e("v_lshlrev_b32 v98, 16, v94"); e("v_and_b32 v99, 0xffff0000, v94")
    e("s_nop 1")
    for sh in (4, 8):
        for i in range(4):
            e(f"v_add_f32_dpp v{96+i}, v{96+i}, v{96+i} row_ror:{sh} row_mask:0xf bank_mask:0xf")
    for i in range(4): cross16("v_add_f32", 96 + i, 100)
    e("v_lshlrev_b32 v100, 16, v104"); e("v_and_b32 v101, 0xffff0000, v104")
    e("v_lshlrev_b32 v102, 16, v105"); e("v_and_b32 v103, 0xffff0000, v105")
    for i in range(4): e(f"v_add_f32 v{96+i}, v{96+i}, v{100+i}")
    e("v_lshlrev_b32 v6, 4, v6"); e(f"v_add_u32 v6, {XL_H}, v6")
    e("s_mov_b64 exec, 0xf")
    e("ds_write_b128 v6, v[96:99]")
    exec_all()
    lab("X_B9")
    barrier()
    e(f"s_cmp_lg_u32 {WAVE}, 0"); e("s_cbranch_scc1 X_END")
    e(f"v_lshlrev_b32 v5, 3, {LANE}"); e(f"v_add_u32 v6, {XL_R2}, v5"); e(f"v_add_u32 v7, {XL_H}, v5")
    e("s_mov_b64 exec, 0xff")
    for w in range(6): e(f"ds_read_b64 {vr(92+2*w,2)}, v6 offset:{64*w}")
    e("ds_read_b64 v[116:117], v7")
    srd(SD, P_OUT, 1280)
    e("s_waitcnt lgkmcnt(0)")
    for w in range(1, 6):
        e(f"v_add_f32 v92, v92, v{92+2*w}"); e(f"v_add_f32 v93, v93, v{93+2*w}")
    e("v_add_f32 v92, v92, v116"); e("v_add_f32 v93, v93, v117")
    e("v_cvt_pk_bf16_f32 v92, v92, v93")
    e(f"v_lshlrev_b32 v5, 2, {LANE}"); e("s_lshl_b32 s9, s66, 5")
    e(f"buffer_store_dword v92, v5, {sr(SD)}, s9 offen")
    e("s_cmp_lg_u32 s66, 0"); e("s_cbranch_scc1 X_EP")
    e("s_mov_b64 exec, 1")
    e("v_mov_b32 v5, 0")
    e(f"buffer_store_dword {VTAG}, v5, {sr(WS)}, 0 offen sc1")
    lab("X_EP")
    exec_all()
    lab("X_END")
    stamp("x: end", 1|128|1024)
    stamp_flush(nstamp[0])
    e("s_endpgm")
    lab("X_LN")
    e("s_waitcnt vmcnt(0)")
    for i in range(5):
        e(f"v_lshlrev_b32 v{21+2*i}, 16, v{16+i}")
        e(f"v_and_b32 v{22+2*i}, 0xffff0000, v{16+i}")
    e("v_add_f32 v31, v21, v22")
    for i in range(23, 31): e(f"v_add_f32 v31, v31, v{i}")
    wave_allreduce("v_add_f32", 31, 32)
    e(f"v_mul_f32 v31, {F(1.0/640.0)}, v31")
    for i in range(21, 31): e(f"v_sub_f32 v{i}, v{i}, v31")
    e("v_mul_f32 v33, v21, v21")
    for i in range(22, 31): e(f"v_fmac_f32 v33, v{i}, v{i}")
    wave_allreduce("v_add_f32", 33, 32)
    e(f"v_mov_b32 v32, {F(1e-5)}")
    e(f"v_fmac_f32 v32, {F(1.0/640.0)}, v33")
    e("v_rsq_f32 v32, v32"); e("s_nop 0")
    for i in range(21, 31): e(f"v_mul_f32 v{i}, v{i}, v32")
    for i in range(5): e(f"v_cvt_pk_bf16_f32 v{16+i}, v{21+2*i}, v{22+2*i}")
    e(f"v_add_u32 v5, {XL_XN}, v5")
    for i in range(5): e(f"ds_write_b32 v5, v{16+i} offset:{256*i}")
    e("s_branch X_B1")

CH_KB = 6272
CH_SZ = 8 * CH_KB
YL_C = 0
YL_QA = 2 * CH_SZ
YL_SP = YL_QA + 12416
YL_PF = YL_SP + 34816
YL_M = YL_PF + 4096
YL_R = YL_M + 64
YL_MG, YL_MU, YL_MD = 0, 40960, 81920
YL_H = 131072
YL_ST = YL_H + 2560
YL_G = YL_H + 2688
YL_HH = YL_H + 5376
assert YL_R + 3072 <= 163840
HG = "s7"

def y_program():
    nstamp[0] = 0
    lab("L_Y")
    e(f"s_sub_u32 {J}, {J}, 16")
    e(f"s_and_b32 {HG}, {J}, 3"); e(f"s_lshr_b32 {KC}, {J}, 2")
    e(f"v_bfe_u32 v5, {LANE}, 1, 2"); e("v_mul_u32_u24 v5, 1536, v5")
    e(f"v_lshrrev_b32 v6, 3, {LANE}"); e("v_lshl_add_u32 v5, v6, 5, v5")
    e(f"v_and_b32 v6, 1, {LANE}"); e("v_lshl_add_u32 v15, v6, 4, v5")
    e(f"s_lshl_b32 s9, {X}, 9"); e(f"s_lshl_b32 s10, {KC}, 7"); e("s_add_u32 s9, s9, s10")
    e(f"s_mul_i32 s10, {WAVE}, 43"); e("s_lshr_b32 s10, s10, 8")
    e("s_mul_i32 s11, s10, 6"); e(f"s_sub_u32 s11, {WAVE}, s11")
    e("s_lshl_b32 s14, s10, 2"); e("s_add_u32 s9, s9, s14")
    e("s_mul_i32 s66, s9, 1536"); e("s_lshl_b32 s14, s11, 8"); e("s_add_u32 s66, s66, s14")
    e(f"s_mul_i32 s67, s10, {CH_KB}"); e("s_lshl_b32 s14, s11, 10"); e("s_add_u32 s67, s67, s14")
    kernarg_ready()
    srd(SA, P_CKV, 6291456)
    stamp("y: start", 0xfffff)
    if OPT.get("ystop", 0) == 1: e("s_branch Y_END")
    if not OPT.get("earlytouch", 1): code_touch(120)
    tlb_warm(14)
    ynt = OPT["ynt"]
    SL = 4 * CH_KB
    def chunk_dma(ch):
        sk = uid("YCD")
        e(f"s_cmp_ge_u32 {WAVE}, 12"); e(f"s_cbranch_scc1 {sk}")
        e(f"s_add_u32 s10, s67, {(ch % 4) * SL}"); e(f"s_add_u32 s11, s66, {ch * 16 * 1536}")
        for i in range(2):
            e("s_mov_b32 m0, s10"); e(f"s_add_u32 s10, s10, {2*CH_KB}")
            e(f"buffer_load_dwordx4 v15, {sr(SA)}, s11 offen{' nt' if ynt else ''} lds")
            e(f"s_add_u32 s11, s11, {8*1536}")
        lab(sk)
    chunk_dma(0); chunk_dma(1); chunk_dma(2)
    e(f"v_lshlrev_b32 v5, 2, v0"); e(f"v_add_u32 v5, {YL_PF}, v5"); e("v_mov_b32 v6, 0"); e("ds_write_b32 v5, v6")
    e(f"s_and_b32 s68, {WAVE}, 3"); e(f"s_lshr_b32 s69, {WAVE}, 2")
    e(f"v_lshrrev_b32 v5, 2, {L15}")
    e(f"v_mul_u32_u24 v5, {CH_KB}, v5")
    e(f"v_and_b32 v6, 3, {L15}"); e("v_lshl_add_u32 v5, v6, 5, v5")
    e(f"v_lshrrev_b32 v6, 1, {G}"); e("v_lshl_add_u32 v5, v6, 7, v5")
    e(f"v_and_b32 v6, 1, {G}"); e("v_lshl_add_u32 v5, v6, 4, v5")
    e("s_mul_i32 s9, s69, 1536"); e("v_add_u32 v13, s9, v5")
    e(f"v_mul_u32_u24 v5, {CH_KB}, {G}"); e(f"v_lshl_add_u32 v5, {L15}, 3, v5")
    e(f"s_mul_i32 s9, {WAVE}, 384"); e("v_add_u32 v14, s9, v5")
    e(f"v_add_u32 v8, {2*SL}, v14"); e(f"v_add_u32 v11, {2*SL}, v13")
    e(f"v_lshlrev_b32 v6, 4, {LANE}")
    e(f"s_and_b32 s9, {WAVE}, 1"); e("s_lshl_b32 s9, s9, 6"); e(f"v_add_u32 v9, s9, {LANE}"); e("v_mul_u32_u24 v9, 12, v9")
    e(f"s_lshr_b32 s9, {WAVE}, 1"); e("s_mul_i32 s9, s9, 1552"); e(f"s_add_u32 s9, s9, {YL_QA}"); e("v_add_u32 v9, s9, v9")
    SF, PVF = 16, 64
    def read_frags(c):
        sb, pb = ("v13", "v14") if (c % 4) < 2 else ("v11", "v8")
        so = (c % 2) * SL
        sk = uid("YSR")
        e(f"s_cmp_lg_u32 s68, {c >> 1}"); e(f"s_cbranch_scc1 {sk}")
        for i in range(6): e(f"ds_read_b128 {vr(SF+4*(6*(c&1)+i),4)}, {sb} offset:{so+256*i}")
        lab(sk)
        for a in range(3):
            b = PVF + ((c >> 1) * 3 + a) * 4 + 2 * (c & 1)
            e(f"ds_read_b64_tr_b16 {vr(b,2)}, {pb} offset:{so+a*128}")
    for c in range(8):
        rem = min(7, c + 2) - c
        e(f"s_waitcnt vmcnt({2*rem})"); barrier()
        if c + 3 <= 7: chunk_dma(c + 3)
        if c == 3: code_touch_range("Y_E2D", 2, 120, 15)
        read_frags(c)
    get_tag()
    hello_publish(120)
    stamp("y: C landed", 9|(1<<16))
    if OPT.get("ystop", 0) == 2:
        barrier(); stamp("y: all landed"); e("s_branch Y_END")
    srd(SA, P_WO, 7864320)
    e(f"v_lshrrev_b32 v5, 5, {LANE}"); e("v_lshlrev_b32 v5, 2, v5"); e(f"v_bfe_u32 v12, {LANE}, 1, 2"); e("v_add_u32 v5, v5, v12")
    e("v_mul_u32_u24 v5, 1280, v5")
    e(f"v_bfe_u32 v12, {LANE}, 3, 2"); e("v_lshl_add_u32 v5, v12, 5, v5")
    e(f"v_and_b32 v12, 1, {LANE}"); e("v_lshl_add_u32 v0, v12, 4, v5")
    e(f"s_mul_i32 s67, {X}, 768"); e(f"s_lshl_b32 s10, {WAVE}, 3"); e("s_add_u32 s67, s67, s10"); e("s_mul_i32 s67, s67, 1280")
    e(f"s_lshl_b32 s10, {J}, 7"); e("s_add_u32 s67, s67, s10")
    e(f"s_lshl_b32 s66, {WAVE}, 10")
    WOS = "%05d" % OPT.get("wos", 11103)
    assert sum(int(c) for c in WOS) == 6
    def wo_point(pt):
        for _ in range(int(WOS[pt])):
            if pt == 2 and OPT.get("wohi", 1): wo_batch_hi("v0")
            else: wo_batch("v0")
    def wo_batch_hi(vreg):
        sk = uid("YWH"); lo = uid("YWL")
        nt_ = ' nt' if OPT.get('wont', 1) else ''
        e(f"s_cmp_ge_u32 {J}, 10"); e(f"s_cbranch_scc1 {sk}")
        e(f"s_cmp_lt_u32 {WAVE}, 8"); e(f"s_cbranch_scc1 {lo}")
        e("s_mov_b32 m0, s66"); e(f"s_sub_u32 s9, s66, {8*1024}"); e(f"s_sub_u32 s10, s67, {64*1280}")
        e(f"buffer_load_dwordx4 {vreg}, {sr(SA)}, s67 offen{nt_} lds")
        e("s_mov_b32 m0, s9"); e("s_nop 0")
        e(f"buffer_load_dwordx4 {vreg}, {sr(SA)}, s10 offen{nt_} lds")
        lab(lo)
        e(f"s_add_u32 s66, s66, {16*1024}"); e(f"s_add_u32 s67, s67, {128*1280}")
        lab(sk)
    def wo_batch(vreg, late=False):
        sk = uid("YWO")
        e(f"s_cmp_ge_u32 {J}, 10"); e(f"s_cbranch_scc1 {sk}")
        e("s_mov_b32 m0, s66"); e(f"s_add_u32 s66, s66, {16*1024}")
        e(f"buffer_load_dwordx4 {vreg}, {sr(SA)}, s67 offen{' nt' if OPT.get('wont', 1) else ''} lds")
        e(f"s_add_u32 s67, s67, {128*1280}")
        lab(sk)
    e(f"v_and_b32 v7, 7, {L15}"); e("v_mul_u32_u24 v7, 1552, v7"); e(f"v_lshl_add_u32 v7, {G}, 4, v7")
    e(f"s_mul_i32 s9, s69, 384"); e(f"s_add_u32 s9, s9, {YL_QA}"); e("v_add_u32 v7, s9, v7")
    e(f"v_mul_u32_u24 v8, 272, {G}"); e(f"v_lshl_add_u32 v8, {L15}, 4, v8")
    e("s_lshl_b32 s9, s69, 3"); e("s_lshl_b32 s10, s68, 1"); e("s_add_u32 s9, s9, s10"); e("s_mul_i32 s9, s9, 1088")
    e(f"s_add_u32 s9, s9, {YL_SP}"); e("v_add_u32 v8, s9, v8")
    e(f"v_mul_u32_u24 v10, 1088, {G}")
    e(f"v_bfe_u32 v5, {LANE}, 2, 2"); e("v_mul_u32_u24 v11, 272, v5")
    e(f"v_and_b32 v12, 3, {LANE}"); e("v_lshlrev_b32 v13, 2, v12")
    e("v_add3_u32 v10, v10, v11, v13")
    e(f"s_lshl_b32 s9, {WAVE}, 4"); e(f"s_add_u32 s10, s9, {YL_SP}"); e("v_add_u32 v10, s10, v10")
    e(f"v_lshrrev_b32 v11, 5, {LANE}"); e("v_lshlrev_b32 v11, 10, v11")
    e("v_lshl_add_u32 v11, v5, 8, v11")
    e(f"v_bfe_u32 v13, {LANE}, 4, 1"); e("v_lshl_add_u32 v11, v13, 3, v11")
    e("v_lshl_add_u32 v11, v12, 1, v11")
    e(f"s_add_u32 s10, s9, {YL_PF}"); e("v_add_u32 v11, s10, v11")
    e(f"v_and_b32 v13, 7, {L15}"); e("v_mul_u32_u24 v13, 96, v13"); e(f"v_lshl_add_u32 v13, {G}, 3, v13")
    e(f"s_mul_i32 s9, {WAVE}, 768"); e(f"s_add_u32 s9, s9, {YL_SP}"); e("v_add_u32 v13, s9, v13")
    e(f"v_lshrrev_b32 v14, 3, {LANE}"); e("v_mul_u32_u24 v12, 96, v14"); e(f"v_and_b32 v5, 7, {LANE}"); e("v_mul_u32_u24 v15, 12, v5")
    e("v_add3_u32 v12, v12, v15, s9")
    e("v_mul_u32_u24 v14, 69632, v14"); e("v_lshl_add_u32 v14, v5, 4, v14")
    e(f"v_lshlrev_b32 v15, 4, {LANE}"); e(f"v_add_u32 v15, {YL_PF}, v15")
    e(f"s_mul_i32 s70, {HG}, {8*69632}"); e(f"s_lshl_b32 s10, {X}, 2"); e(f"s_add_u32 s10, s10, {KC}")
    e("s_mul_i32 s11, s10, 2176"); e("s_add_u32 s70, s70, s11"); e(f"s_add_u32 s71, s70, {WS_E3 + 2048}")
    e(f"s_lshl_b32 s11, {WAVE}, 7"); e("s_add_u32 s70, s70, s11"); e(f"s_add_u32 s70, s70, {WS_E3}")
    wo_point(0)
    e(f"s_lshl_b32 s9, {HG}, 14"); e(f"s_lshl_b32 s10, {WAVE}, 10"); e("s_add_u32 s9, s9, s10"); e(f"s_add_u32 s9, s9, {WS_QA}")
    stamp("y: E2 poll start", 1<<16)
    pollx([f"buffer_load_dwordx4 v[112:115], v6, {sr(WS)}, s9 offen sc1"], [112], 120)
    stamp("y: E2 poll end", 1<<16); stamp_val("E2 iters", "s13", 1<<16)
    e("ds_write2_b32 v9, v112, v113 offset1:1"); e("ds_write_b32 v9, v114 offset:8")
    lab("Y_E2D")
    stamp("y: qabs gathered", 9|128)
    barrier()
    stamp("y: after E2 barrier", 8|(1<<16))
    wo_point(1)
    for i in range(2): e(f"ds_read_b128 {vr(112+4*i,4)}, v7 offset:{64*i}")
    for i in range(6):
        e(f"s_waitcnt lgkmcnt({1 if i < 5 else 0})")
        mfma(120, SF + 4 * i, 112 + 4 * (i % 2), "0" if i == 0 else None)
        mfma(124, SF + 4 * (6 + i), 112 + 4 * (i % 2), "0" if i == 0 else None)
        if i + 2 < 6:
            e(f"ds_read_b128 {vr(112+4*(i%2),4)}, v7 offset:{64*(i+2)}")
    e("s_nop 7")
    e("ds_write_b128 v8, v[120:123]"); e("ds_write_b128 v8, v[124:127] offset:1088")
    barrier()
    stamp("y: S partial done", 10)
    wo_point(2)
    e(f"s_cmp_ge_u32 {WAVE}, 8"); e("s_cbranch_scc1 Y_SMD")
    for kq in range(4):
        e(f"ds_read_b32 v{112+kq}, v10 offset:{8704*kq}"); e(f"ds_read_b32 v{116+kq}, v10 offset:{8704*kq+4352}")
    e(f"s_lshl_b32 s9, {WAVE}, 2"); e(f"s_add_u32 s9, s9, {YL_M}"); e("v_mov_b32 v5, s9")
    e("s_waitcnt lgkmcnt(0)")
    e("v_add_f32 v112, v112, v113"); e("v_add_f32 v114, v114, v115"); e("v_add_f32 v116, v116, v117"); e("v_add_f32 v118, v118, v119")
    e("v_add_f32 v112, v112, v114"); e("v_add_f32 v114, v116, v118")
    e("v_max_f32 v116, v112, v114")
    wave_allreduce("v_max_f32", 116, 117)
    e("v_sub_f32 v112, v112, v116"); e("v_sub_f32 v114, v114, v116")
    e("v_exp_f32 v112, v112"); e("v_exp_f32 v114, v114"); e("s_nop 0")
    e("v_cvt_pk_bf16_f32 v112, v112, v114")
    e("ds_write_b16 v11, v112"); e("ds_write_b16_d16_hi v11, v112 offset:2048")
    e("s_mov_b64 exec, 1")
    e("ds_write_b32 v5, v116")
    exec_all()
    lab("Y_SMD")
    barrier()
    stamp("y: P ready", 10)
    wo_point(3)
    for ks in range(4): e(f"ds_read_b128 {vr(112+4*ks,4)}, v15 offset:{1024*ks}")
    if OPT.get("pvprio", 1):
        for q in range(3):
            sk = uid("PR")
            e(f"s_cmp_lg_u32 s69, {q}"); e(f"s_cbranch_scc1 {sk}"); e(f"s_setprio {3-q}"); lab(sk)
    for ks in range(4):
        e(f"s_waitcnt lgkmcnt({3-ks})")
        for a in range(3):
            mfma(16 + 4 * a, PVF + (ks * 3 + a) * 4, 112 + 4 * ks, "0" if ks == 0 else None)
    e(f"s_cmp_lg_u32 {WAVE}, 15"); e("s_cbranch_scc1 Y_NL")
    for i in range(4): e(f"v_mov_b32 v{32+i}, 0x3f803f80")
    e(f"v_and_b32 v41, 7, {L15}"); e("v_lshlrev_b32 v41, 2, v41"); e(f"v_add_u32 v41, {YL_M}, v41")
    e("ds_read_b32 v40, v41")
    for ks in range(4): mfma(36, 32, 112 + 4 * ks, "0" if ks == 0 else None)
    lab("Y_NL")
    e("s_nop 7")
    stamp("y: PV mfma done", 8)
    for a in range(3):
        e(f"v_cvt_pk_bf16_f32 v{44+2*a}, v{16+4*a}, v{17+4*a}"); e(f"v_cvt_pk_bf16_f32 v{45+2*a}, v{18+4*a}, v{19+4*a}")
    set_exec64(0x00ff00ff00ff00ff)
    for a in range(3): e(f"ds_write_b64 v13, {vr(44+2*a,2)} offset:{32*a}")
    exec_all()
    e("s_waitcnt lgkmcnt(0)")
    e("ds_read2_b32 v[52:53], v12 offset1:1"); e("ds_read_b32 v54, v12 offset:8")
    e("s_waitcnt lgkmcnt(0)")
    e("v_bitop3_b32 v55, v52, v53, v54 bitop3:0x96"); e(f"v_xor_b32 v55, {VTAG}, v55")
    e(f"buffer_store_dwordx4 v[52:55], v14, {sr(WS)}, s70 offen{SCG}")
    e(f"s_cmp_lg_u32 {WAVE}, 15"); e("s_cbranch_scc1 Y_P3D")
    e(f"s_mov_b32 s9, 69632"); e(f"v_mul_lo_u32 v5, {L15}, s9"); e("s_mov_b32 s9, s71")
    e("s_waitcnt lgkmcnt(0)")
    e("v_mov_b32 v56, v40"); e("v_mov_b32 v57, v36"); e("v_mov_b32 v58, 0"); e("v_bitop3_b32 v59, v56, v57, v4 bitop3:0x96")
    e("s_mov_b64 exec, 0xff")
    e(f"buffer_store_dwordx4 v[56:59], v5, {sr(WS)}, s9 offen{SCG}")
    exec_all()
    lab("Y_P3D")
    stamp("y: ctxlat published", 9|16|128|1024)
    if OPT["stamps"] & 16:
        e("s_waitcnt vmcnt(0)"); stamp("y: E3 stores complete", 16); barrier(); stamp("y: all waves stores complete", 16)
    if OPT.get("ystop", 0) == 3: e("s_branch Y_END")
    e(f"s_cmp_ge_u32 {J}, 10"); e("s_cbranch_scc1 Y_MLP")
    if OPT.get("wowait", 1): e("s_waitcnt vmcnt(0)")
    wo_point(4)
    e("s_waitcnt vmcnt(0)")
    code_touch_range("Y_B5", 1, 120, 15)
    stamp("y: wo landed", 1|256)
    barrier()
    e(f"s_cmp_ge_u32 {WAVE}, 12"); e("s_cbranch_scc1 Y_B5")
    e(f"v_lshlrev_b32 v5, 10, {G}"); e(f"v_lshl_add_u32 v5, {L15}, 3, v5")
    e(f"s_lshl_b32 s9, {WAVE}, 13"); e("v_add_u32 v5, s9, v5")
    for ksl in range(2):
        for t in range(4):
            b = 64 + (ksl * 4 + t) * 4
            e(f"ds_read_b64_tr_b16 {vr(b,2)}, v5 offset:{ksl*4096+t*128}")
            e(f"ds_read_b64_tr_b16 {vr(b+2,2)}, v5 offset:{ksl*4096+512+t*128}")
        if ksl == 0: e("s_waitcnt lgkmcnt(0)")
    e(f"v_lshlrev_b32 v5, 4, {LANE}")
    e(f"s_mul_i32 s9, {X}, 12288"); e(f"s_lshl_b32 s10, {WAVE}, 10"); e("s_add_u32 s9, s9, s10")
    e(f"s_add_u32 s9, s9, {WS_E4}")
    e(f"s_mul_i32 s10, s64, 1552"); e("s_lshl_b32 s11, s65, 9"); e("s_add_u32 s10, s10, s11"); e(f"s_add_u32 s10, s10, {YL_QA}")
    e(f"v_lshl_add_u32 v6, {LANE}, 3, s10")
    e(f"v_and_b32 v7, 3, {LANE}"); e("v_mul_u32_u24 v7, 1552, v7"); e(f"v_lshl_add_u32 v7, {G}, 4, v7")
    e(f"s_lshl_b32 s10, {WAVE}, 7"); e(f"s_add_u32 s10, s10, {YL_QA}"); e("v_add_u32 v7, s10, v7")
    e(f"v_lshlrev_b32 v9, 2, {LANE}"); e(f"v_add_u32 v9, {YL_R}, v9")
    e(f"s_lshl_b32 s10, {WAVE}, 8"); e("v_add_u32 v8, s10, v9")
    e(f"v_cmp_eq_u32 s[66:67], 1, {G}"); e(f"v_cmp_eq_u32 s[68:69], 2, {G}"); e(f"v_cmp_eq_u32 s[42:43], 3, {G}")
    stamp("y: E4 poll start", 256)
    poll([f"buffer_load_dwordx4 v[96:99], v5, {sr(WS)}, s9 offen sc1"], [97, 99], 112)
    stamp("y: ctx gathered", 1|128|256|2048)
    stamp_val("E4 iters", "s13", 256)
    e("v_mov_b32 v97, v98")
    e("ds_write_b64 v6, v[96:97]")
    lab("Y_B5")
    barrier()
    stamp("y: after B5", 2048)
    e(f"s_cmp_ge_u32 {WAVE}, 12"); e("s_cbranch_scc1 Y_B6")
    e("ds_read_b128 v[96:99], v7"); e("ds_read_b128 v[104:107], v7 offset:64")
    e("s_waitcnt lgkmcnt(1)")
    for t in range(4): mfma(16 + 4 * t, 96, 64 + 4 * t, "0")
    e("s_waitcnt lgkmcnt(0)")
    for t in range(4): mfma(16 + 4 * t, 104, 64 + 16 + 4 * t)
    e("s_nop 4")
    for t in range(4):
        b = 16 + 4 * t
        e(f"v_add_f32 v{b}, v{b}, v{b+1}"); e(f"v_add_f32 v{b+2}, v{b+2}, v{b+3}")
    for t in range(4):
        b = 16 + 4 * t
        e(f"v_add_f32 v{b}, v{b}, v{b+2}")
    e("v_cndmask_b32 v16, v16, v20, s[66:67]"); e("v_cndmask_b32 v16, v16, v24, s[68:69]"); e("v_cndmask_b32 v16, v16, v28, s[42:43]")
    e("ds_write_b32 v8, v16")
    lab("Y_B6")
    stamp("y: P5 mfma+red done", 2048)
    barrier()
    stamp("y: after B6", 2048)
    e(f"s_cmp_lg_u32 {WAVE}, 0"); e("s_cbranch_scc1 Y_END")
    for i in range(6): e(f"ds_read2st64_b32 {vr(16+2*i,2)}, v9 offset0:{2*i} offset1:{2*i+1}")
    e(f"s_mul_i32 s9, {X}, 2560"); e(f"s_lshl_b32 s10, {J}, 8"); e("s_add_u32 s9, s9, s10")
    e(f"s_add_u32 s9, s9, {WS_E5}")
    e(f"v_lshlrev_b32 v5, 2, {LANE}")
    e("s_waitcnt lgkmcnt(0)")
    for i in range(6): e(f"v_add_f32 v{16+2*i}, v{16+2*i}, v{17+2*i}")
    e("v_add_f32 v16, v16, v18"); e("v_add_f32 v20, v20, v22"); e("v_add_f32 v24, v24, v26")
    e("v_add_f32 v16, v16, v20"); e("v_add_f32 v16, v16, v24")
    e("s_nop 1")
    e("v_mov_b32_dpp v17, v16 quad_perm:[1,1,3,3] row_mask:0xf bank_mask:0xf")
    e("v_cvt_pk_bf16_f32 v16, v16, v17"); e(f"v_mov_b32 v17, {VTAG}")
    set_exec64(0x5555555555555555)
    e(f"buffer_store_dwordx2 v[16:17], v5, {sr(WS)}, s9 offen{SCG}")
    exec_all()
    e("s_branch Y_END")
    lab("Y_MLP")
    e(f"s_mul_i32 s66, {X}, 6"); e(f"s_add_u32 s66, s66, {J}"); e("s_sub_u32 s66, s66, 10")
    srd(SA, P_WG, 1966080); srd(SB, P_WU, 1966080); srd(SC_, P_WD, 1966080); srd(SD, P_X, 1280)
    e(f"v_lshrrev_b32 v5, 4, {LANE}"); e("v_lshlrev_b32 v5, 2, v5"); e(f"v_bfe_u32 v6, {LANE}, 1, 2"); e("v_add_u32 v5, v5, v6")
    e("v_mul_u32_u24 v5, 3072, v5")
    e(f"v_bfe_u32 v6, {LANE}, 3, 1"); e("v_lshl_add_u32 v5, v6, 5, v5")
    e(f"v_and_b32 v6, 1, {LANE}"); e("v_lshl_add_u32 v15, v6, 4, v5")
    e(f"v_bfe_u32 v5, {LANE}, 1, 2"); e("v_mul_u32_u24 v5, 1280, v5")
    e(f"v_lshrrev_b32 v6, 3, {LANE}"); e("v_lshl_add_u32 v5, v6, 5, v5")
    e(f"v_and_b32 v6, 1, {LANE}"); e("v_lshl_add_u32 v14, v6, 4, v5")
    if OPT.get("mlpwait", 0): e("s_waitcnt vmcnt(0)")
    barrier()
    e(f"s_and_b32 s9, {WAVE}, 7")
    e(f"s_mul_i32 s11, s9, {5*16*3072}"); e("s_lshl_b32 s10, s66, 6"); e("s_add_u32 s11, s11, s10")
    e("s_mul_i32 s10, s9, 5120")
    e(f"s_cmp_ge_u32 {WAVE}, 8"); e("s_cbranch_scc1 Y_MU")
    dma_loop(15, SA, 10, 11, 5, 1024, 16 * 3072, OPT.get("mnt", 1))
    e("s_lshl_b32 s11, s66, 5"); e(f"s_lshl_b32 s10, {WAVE}, 2"); e("s_add_u32 s11, s11, s10"); e("s_mul_i32 s11, s11, 1280")
    e(f"s_mul_i32 s10, {WAVE}, 5120"); e(f"s_add_u32 s10, s10, {YL_MD}")
    dma_loop(14, SC_, 10, 11, 5, 1024, 256, OPT["ynt"])
    e("s_branch Y_MW")
    lab("Y_MU")
    e(f"s_add_u32 s10, s10, {YL_MU}")
    dma_loop(15, SB, 10, 11, 5, 1024, 16 * 3072, OPT.get("mnt", 1))
    lab("Y_MW")
    e(f"v_and_b32 v5, 31, {LANE}"); e("v_lshlrev_b32 v5, 3, v5"); e(f"s_lshl_b32 s9, {WAVE}, 8")
    e(f"s_cmp_ge_u32 {WAVE}, 5"); e("s_cbranch_scc1 Y_NX")
    e(f"buffer_load_dwordx2 v[110:111], v5, {sr(SD)}, s9 offen")
    lab("Y_NX")
    e("s_waitcnt vmcnt(0)")
    code_touch_range("Y_MPD", 2, 120, 15)
    stamp("y: mlp landed", 1|1024)
    barrier()
    if OPT.get("ystop", 0) == 4: e("s_branch Y_END")
    e(f"s_cmp_ge_u32 {WAVE}, 10"); e("s_cbranch_scc1 Y_MPD")
    e(f"v_lshlrev_b32 v5, 9, {G}"); e(f"v_lshl_add_u32 v5, {L15}, 3, v5")
    e(f"s_lshl_b32 s9, {WAVE}, 12"); e("v_add_u32 v5, s9, v5")
    for mat, base in ((0, YL_MG), (1, YL_MU)):
        for ksl in range(2):
            for t in range(2):
                b = 16 + mat * 16 + (ksl * 2 + t) * 4
                e(f"ds_read_b64_tr_b16 {vr(b,2)}, v5 offset:{base+ksl*2048+t*128}")
                e(f"ds_read_b64_tr_b16 {vr(b+2,2)}, v5 offset:{base+ksl*2048+256+t*128}")
        e("s_waitcnt lgkmcnt(0)")
    e(f"v_mul_u32_u24 v5, 10240, {G}"); e(f"v_lshl_add_u32 v5, {L15}, 3, v5")
    e(f"s_lshl_b32 s9, {WAVE}, 9"); e(f"s_add_u32 s9, s9, {YL_MD}"); e("v_add_u32 v5, s9, v5")
    for a in range(4):
        e(f"ds_read_b64_tr_b16 {vr(48+4*a,2)}, v5 offset:{128*a}")
        e(f"ds_read_b64_tr_b16 {vr(50+4*a,2)}, v5 offset:{5120+128*a}")
    lab("Y_MPD")
    e(f"v_lshlrev_b32 v9, 2, {LANE}"); e(f"v_add_u32 v9, {YL_G}, v9")
    e(f"s_lshl_b32 s9, {WAVE}, 8"); e("v_add_u32 v8, s9, v9")
    e(f"v_and_b32 v12, 31, {LANE}")
    e(f"s_lshl_b32 s9, {WAVE}, 6"); e(f"s_add_u32 s9, s9, {YL_HH}")
    e("v_lshl_add_u32 v10, v12, 1, s9"); e(f"v_lshl_add_u32 v11, {G}, 4, s9")
    e(f"v_lshlrev_b32 v12, 3, {LANE}")
    e(f"v_mov_b32 v13, {YL_ST}")
    e(f"v_lshlrev_b32 v14, 5, {G}"); e(f"s_lshl_b32 s9, {WAVE}, 8"); e(f"s_add_u32 s9, s9, {YL_H}"); e("v_add_u32 v14, s9, v14")
    e("s_mul_i32 s65, s66, 5120"); e(f"s_lshl_b32 s10, {WAVE}, 9"); e("s_add_u32 s65, s65, s10"); e(f"s_add_u32 s65, s65, {WS_E6}")
    e(f"v_cmp_eq_u32 s[66:67], 1, {G}"); e(f"v_cmp_eq_u32 s[68:69], 2, {G}"); e(f"v_cmp_eq_u32 s[42:43], 3, {G}")
    e(f"s_cmp_ge_u32 {WAVE}, 5"); e("s_cbranch_scc1 Y_MB6")
    e(f"v_and_b32 v6, 31, {LANE}"); e(f"v_lshrrev_b32 v5, 5, {LANE}"); e("v_mul_u32_u24 v5, 10240, v5"); e("v_lshl_add_u32 v5, v6, 4, v5")
    e(f"s_lshl_b32 s9, {WAVE}, 9"); e(f"s_add_u32 s9, s9, {WS_E5}")
    e("s_add_u32 s10, s9, 5120")
    stamp("y: E5 poll start", 4096)
    poll([f"buffer_load_dwordx4 {vr(80+4*i,4)}, v5, {sr(WS)}, {'s9' if i < 2 else 's10'} offen offset:{2560*(i%2)} sc1" for i in range(4)],
         [81, 83, 85, 87, 89, 91, 93, 95], 96)
    stamp("y: E5 poll end", 4096); stamp_val("E5 iters", "s13", 4096)
    for i in range(4):
        b = 80 + 4 * i
        if i == 0:
            e(f"v_lshlrev_b32 v100, 16, v{b}"); e(f"v_and_b32 v101, 0xffff0000, v{b}")
            e(f"v_lshlrev_b32 v102, 16, v{b+2}"); e(f"v_and_b32 v103, 0xffff0000, v{b+2}")
        else:
            e(f"v_lshlrev_b32 v104, 16, v{b}"); e(f"v_and_b32 v105, 0xffff0000, v{b}")
            e(f"v_lshlrev_b32 v106, 16, v{b+2}"); e(f"v_and_b32 v107, 0xffff0000, v{b+2}")
            for k in range(4): e(f"v_add_f32 v{100+k}, v{100+k}, v{104+k}")
    for k in range(4): e(f"v_mov_b32 v{104+k}, v{100+k}")
    e("s_nop 1")
    for k in range(4): e(f"v_permlane32_swap_b32 v{100+k}, v{104+k}")
    e(f"v_lshlrev_b32 v80, 16, v110"); e("v_and_b32 v81, 0xffff0000, v110"); e("v_lshlrev_b32 v82, 16, v111"); e("v_and_b32 v83, 0xffff0000, v111")
    for k in range(4): e(f"v_add_f32 v{100+k}, v{100+k}, v{104+k}")
    for k in range(4): e(f"v_add_f32 v{100+k}, v{100+k}, v{80+k}")
    e("v_lshlrev_b32 v5, 4, v6"); e(f"s_lshl_b32 s9, {WAVE}, 9"); e(f"s_add_u32 s9, s9, {YL_H}"); e("v_add_u32 v5, s9, v5")
    set_exec64(0xffffffff)
    e("ds_write_b128 v5, v[100:103]")
    exec_all()
    e("v_add_f32 v104, v100, v101"); e("v_add_f32 v106, v102, v103"); e("v_mul_f32 v105, v100, v100")
    e("v_add_f32 v104, v104, v106"); e("v_fmac_f32 v105, v101, v101"); e("v_fmac_f32 v105, v102, v102"); e("v_fmac_f32 v105, v103, v103")
    e("s_nop 1")
    row16_allreduce("v_add_f32", 104, 2)
    e("s_nop 1")
    for i in range(2): cross16("v_add_f32", 104 + i, 106)
    e(f"s_lshl_b32 s9, {WAVE}, 3"); e(f"s_add_u32 s9, s9, {YL_ST}"); e("v_mov_b32 v5, s9")
    e("s_mov_b64 exec, 1")
    e("ds_write_b64 v5, v[104:105]")
    exec_all()
    lab("Y_MB6")
    stamp("y: h gathered", 65|128|1024|4096)
    barrier()
    stamp("y: after MB6", 64)
    e(f"s_cmp_ge_u32 {WAVE}, 10"); e("s_cbranch_scc1 Y_MB7")
    e("ds_read_b128 v[80:83], v13"); e("ds_read_b128 v[84:87], v13 offset:16"); e("ds_read_b64 v[88:89], v13 offset:32")
    for ksl in range(2):
        e(f"ds_read_b128 {vr(92+8*ksl,4)}, v14 offset:{128*ksl}")
        e(f"ds_read_b128 {vr(96+8*ksl,4)}, v14 offset:{128*ksl+16}")
    e("s_waitcnt lgkmcnt(4)")
    for a, b in ((82, 83), (84, 85), (86, 87), (88, 89)):
        e(f"v_add_f32 v80, v80, v{a}"); e(f"v_add_f32 v81, v81, v{b}")
    e(f"v_mul_f32 v80, {F(1.0/640.0)}, v80")
    e(f"v_mul_f32 v81, {F(1.0/640.0)}, v81")
    e("v_fma_f32 v81, -v80, v80, v81")
    e("v_max_f32 v81, 0, v81")
    e(f"v_add_f32 v81, {F(1e-5)}, v81")
    e("v_rsq_f32 v81, v81"); e("s_nop 0")
    e("v_mul_f32 v80, v80, v81")
    e("s_waitcnt lgkmcnt(0)")
    for i in range(16): e(f"v_fma_f32 v{92+i}, v{92+i}, v81, -v80")
    for ksl in range(2):
        for i in range(4): e(f"v_cvt_pk_bf16_f32 v{108+4*ksl+i}, v{92+8*ksl+2*i}, v{93+8*ksl+2*i}")
    e("s_nop 1")
    for ksl in range(2):
        for mat in range(2):
            for t in range(2):
                mfma(64 + 8 * mat + 4 * t, 108 + 4 * ksl, 16 + mat * 16 + (ksl * 2 + t) * 4, "0" if ksl == 0 else None)
    e("s_nop 5")
    e("v_cndmask_b32 v64, v64, v68, s[66:67]"); e("v_cndmask_b32 v64, v64, v72, s[68:69]"); e("v_cndmask_b32 v64, v64, v76, s[42:43]")
    e("ds_write_b32 v8, v64")
    lab("Y_MB7")
    stamp("y: P6 done", 64)
    barrier()
    stamp("y: after MB7", 64)
    e(f"s_cmp_ge_u32 {WAVE}, 10"); e("s_cbranch_scc1 Y_END")
    for i in range(5): e(f"ds_read2st64_b32 {vr(80+2*i,2)}, v9 offset0:{2*i} offset1:{2*i+1}")
    e("s_waitcnt lgkmcnt(0)")
    for i in range(5): e(f"v_add_f32 v{80+2*i}, v{80+2*i}, v{81+2*i}")
    e("v_add_f32 v80, v80, v82"); e("v_add_f32 v84, v84, v86"); e("v_add_f32 v80, v80, v88"); e("v_add_f32 v80, v80, v84")
    e("v_mov_b32 v88, v80"); e("s_nop 1")
    e("v_permlane32_swap_b32 v80, v88")
    e("s_nop 1")
    e(f"v_mul_f32 v80, {F(-math.log2(math.e))}, v80"); e("v_exp_f32 v80, v80"); e("s_nop 0")
    e("v_add_f32 v80, 1.0, v80"); e("v_rcp_f32 v80, v80"); e("s_nop 0")
    e("v_mul_f32 v80, v80, v88")
    e("v_cvt_pk_bf16_f32 v80, v80, v80")
    set_exec64(0xffffffff)
    e("ds_write_b16 v10, v80")
    exec_all()
    e("s_waitcnt lgkmcnt(0)")
    e("ds_read_b128 v[80:83], v11")
    e("s_waitcnt lgkmcnt(0)")
    for a in range(4): mfma(84 + 4 * a, 80, 48 + 4 * a, "0")
    e("s_nop 5")
    e("v_cndmask_b32 v84, v84, v88, s[66:67]"); e("v_cndmask_b32 v84, v84, v92, s[68:69]"); e("v_cndmask_b32 v84, v84, v96, s[42:43]")
    e(f"v_mov_b32 v85, {VTAG}")
    e(f"buffer_store_dwordx2 v[84:85], v12, {sr(WS)}, s65 offen{SCG}")
    lab("Y_END")
    stamp("y: end", 65|128|1024|2048|4096)
    stamp_flush(nstamp[0])
    e("s_endpgm")

hdr = f"""; Kernarg layout for this problem (104 bytes, ptrs only, base s[0:1]):
;
; @launch grid=(256,1,1) block=(1024,1,1) lds=163840
.amdgcn_target "amdgcn-amd-amdhsa--gfx950"
.text
.globl {NAME}_kernel
.p2align 8
.type {NAME}_kernel,@function
{NAME}_kernel:
"""
prologue()
x_program()
y_program()
lab("L_END")
e("s_endpgm")
ftr = f""".section .rodata,"a"
.p2align 6
.amdhsa_kernel {NAME}_kernel
  .amdhsa_next_free_vgpr 128
  .amdhsa_next_free_sgpr 102
  .amdhsa_accum_offset 128
  .amdhsa_group_segment_fixed_size 0
  .amdhsa_kernarg_size 104
  .amdhsa_user_sgpr_count 2
  .amdhsa_user_sgpr_kernarg_segment_ptr 1
  .amdhsa_system_sgpr_workgroup_id_x 1
.end_amdhsa_kernel
"""
open(sys.argv[1], "w").write(hdr + "\n".join(L) + "\n" + ftr)
```

```python
import sys, math, struct
def F(x): return "0x%08x" % struct.unpack("<I", struct.pack("<f", x))[0]
NAME = "sequential_preLN__compressed_kv_cla__glu_gated_glu__decode"

OPT = dict(stamps=0, ynt=1, xnt=1, spin=1 << 16, cpv_early=1, prefetch_code=1)
for a in sys.argv[2:]:
    k, v = a.split("="); OPT[k] = int(v)

L = []
def e(s): L.append("    " + s)
def lab(s): L.append(s + ":")
def cm(s): L.append("    ; " + s)
_uid = [0]
def uid(p):
    _uid[0] += 1
    return f"{p}_{_uid[0]}"

WS_EPOCH = 0
WS_HELLO = 0x1000
WS_E1 = 0x10000
WS_QA = 0x40000
WS_ML = 0x60000
WS_E4 = 0x70000
WS_E5 = 0x90000
WS_E6 = 0x100000
WS_ST = 0x180000
WS_E3 = 0x200000
WS_E1L = 0x600000
WS_SIZE = 0x700000

WAVE, X, J, TAG, H, R = "s3", "s4", "s5", "s6", "s7", "s8"
HH, KC = "s7", "s8"
P_X, P_CKV, P_WQ, P_WUK, P_WUV, P_WO, P_WG, P_WU, P_WD, P_OUT, P_WS = 16, 18, 20, 22, 24, 26, 30, 32, 34, 36, 40
WS, SA, SB, SC_, SD = 44, 48, 52, 56, 60
def sr(b, n=4): return f"s[{b}:{b+n-1}]"
def vr(b, n): return f"v[{b}:{b+n-1}]" if n > 1 else f"v{b}"
STAMP0 = 72
LANE, G, L15, VTAG = "v1", "v2", "v3", "v4"

def srd(b, ptr, size):
    e(f"s_mov_b32 s{b}, s{ptr}")
    e(f"s_mov_b32 s{b+1}, s{ptr+1}")
    e(f"s_mov_b32 s{b+2}, {size}")
    e(f"s_mov_b32 s{b+3}, 0x00020000")

nstamp = [0]
def stamp(name, grp=1):
    if not (OPT["stamps"] & grp): return
    i = nstamp[0]; nstamp[0] += 1
    if OPT.get("pmask", 1) and i >= 6: return
    cm(f"stamp {i}: {name}")
    sk = uid("STK")
    e(f"s_cmp_lg_u32 {WAVE}, {OPT.get('stampwave',0)}"); e(f"s_cbranch_scc1 {sk}")
    if i == 0:
        e("s_memrealtime s[98:99]")
    e(f"s_memtime s[{STAMP0+2*i}:{STAMP0+2*i+1}]")
    e("s_waitcnt lgkmcnt(0)")
    lab(sk)
def stamp_val(name, sreg, grp=1):
    if not (OPT["stamps"] & grp): return
    i = nstamp[0]; nstamp[0] += 1
    if OPT.get("pmask", 1) and i >= 6: return
    cm(f"stamp {i}: VALUE {name}")
    e(f"s_mov_b32 s{STAMP0+2*i}, {sreg}"); e(f"s_mov_b32 s{STAMP0+2*i+1}, 0x7fffffff")
def stamp_flush(n):
    if not OPT["stamps"]: return
    skip = uid("STF")
    e(f"s_cmp_lg_u32 {WAVE}, {OPT.get('stampwave',0)}"); e(f"s_cbranch_scc1 {skip}")
    e("s_mov_b64 exec, 1")
    e("s_lshl_b32 s9, s2, 8"); e(f"s_add_u32 s9, s9, {WS_ST}")
    e("v_mov_b32 v5, 0")
    if OPT.get("pmask", 1): n = min(n, 6)
    for i in range(n):
        e(f"v_mov_b32 v6, s{STAMP0+2*i}"); e(f"v_mov_b32 v7, s{STAMP0+2*i+1}")
        e(f"buffer_store_dwordx2 v[6:7], v5, {sr(WS)}, s9 offen offset:{8*i}")
        e("s_nop 1")
    e("v_mov_b32 v6, s98"); e("v_mov_b32 v7, s99")
    e(f"buffer_store_dwordx2 v[6:7], v5, {sr(WS)}, s9 offen offset:248")
    e("s_nop 1")
    e("v_mov_b32 v6, s96"); e("v_mov_b32 v7, s97")
    e(f"buffer_store_dwordx2 v[6:7], v5, {sr(WS)}, s9 offen offset:240")
    e("s_memrealtime s[96:97]"); e("s_waitcnt lgkmcnt(0)")
    e("v_mov_b32 v6, s96"); e("v_mov_b32 v7, s97")
    e(f"buffer_store_dwordx2 v[6:7], v5, {sr(WS)}, s9 offen offset:232")
    e("s_mov_b64 exec, -1")
    lab(skip)

def barrier():
    e("s_waitcnt lgkmcnt(0)")
    e("s_barrier")

def divmagic(T):
    return {12: (43, 9), 6: (43, 8), 3: (86, 8), 1: (1, 0)}[T]

def dma_pattern(vd, T, S, sp, t0, t1):
    M, sh = divmagic(T)
    e(f"v_lshrrev_b32 v{t0}, 3, {LANE}")
    if sp is not None:
        e(f"s_lshl_b32 s9, {sp}, 3")
        e(f"v_add_u32 v{t0}, s9, v{t0}")
    if T == 1:
        e(f"v_mov_b32 v{t1}, v{t0}")
        e(f"v_mov_b32 v{t0}, 0")
    else:
        e(f"v_mul_u32_u24 v{t1}, {M}, v{t0}")
        e(f"v_lshrrev_b32 v{t1}, {sh}, v{t1}")
        e(f"v_mul_u32_u24 v{vd}, {T}, v{t1}")
        e(f"v_sub_u32 v{t0}, v{t0}, v{vd}")
    e(f"v_lshlrev_b32 v{t1}, 2, v{t1}")
    e(f"v_bfe_u32 v{vd}, {LANE}, 1, 2")
    e(f"v_add_u32 v{t1}, v{t1}, v{vd}")
    e(f"s_mov_b32 s9, {S}")
    e(f"v_mul_lo_u32 v{t1}, v{t1}, s9")
    e(f"v_lshlrev_b32 v{t0}, 5, v{t0}")
    e(f"v_and_b32 v{vd}, 1, {LANE}")
    e(f"v_lshlrev_b32 v{vd}, 4, v{vd}")
    e(f"v_add3_u32 v{vd}, v{vd}, v{t0}, v{t1}")

def dma_loop(vd, srdb, s_m0, s_off, n, step_m, step_s, nt):
    lp = uid("DMA")
    e(f"s_mov_b32 s12, {n}")
    lab(lp)
    e(f"s_mov_b32 m0, s{s_m0}")
    e(f"s_add_u32 s{s_m0}, s{s_m0}, {step_m}")
    e(f"buffer_load_dwordx4 v{vd}, {sr(srdb)}, s{s_off} offen{' nt' if nt else ''} lds")
    e(f"s_add_u32 s{s_off}, s{s_off}, {step_s}")
    e("s_sub_u32 s12, s12, 1")
    e("s_cmp_lg_u32 s12, 0")
    e(f"s_cbranch_scc1 {lp}")

def row16_allreduce(op, v, nregs=1):
    for sh in (8, 4, 2, 1):
        if nregs < 3: e("s_nop 1")
        for i in range(nregs):
            e(f"{op}_dpp v{v+i}, v{v+i}, v{v+i} row_ror:{sh} row_mask:0xf bank_mask:0xf")
def cross16(op, v, t):
    e(f"v_mov_b32 v{t}, v{v}"); e("s_nop 1")
    e(f"v_permlane16_swap_b32 v{v}, v{t}"); e("s_nop 1")
    e(f"{op} v{v}, v{v}, v{t}")
def cross32(op, v, t):
    e(f"v_mov_b32 v{t}, v{v}"); e("s_nop 1")
    e(f"v_permlane32_swap_b32 v{v}, v{t}"); e("s_nop 1")
    e(f"{op} v{v}, v{v}, v{t}")
def wave_allreduce(op, v, t):
    e("s_nop 1")
    row16_allreduce(op, v)
    e("s_nop 1")
    cross16(op, v, t)
    cross32(op, v, t)

MASK0 = 84
def _poll_generic(loads, checks, vt, init=None, sleep=0):
    n = len(loads)
    lp = uid("POLL"); dn = uid("PDONE")
    masked = OPT.get("pmask", 1) and n <= 8
    e("s_mov_b32 s13, 0")
    if masked:
        e("s_mov_b64 s[100:101], exec")
        for i in range(n):
            if init and init[i] is not None:
                e(f"s_mov_b32 s{MASK0+2*i}, {init[i] & 0xffffffff:#x}"); e(f"s_mov_b32 s{MASK0+2*i+1}, {init[i] >> 32:#x}")
            else: e(f"s_mov_b64 s[{MASK0+2*i}:{MASK0+2*i+1}], exec")
    lab(lp)
    for i, s_ in enumerate(loads):
        if masked:
            sk = uid("PSK")
            e(f"s_mov_b64 exec, s[{MASK0+2*i}:{MASK0+2*i+1}]")
            if n > 1: e(f"s_cbranch_execz {sk}")
            e(s_)
            if n > 1: lab(sk)
        else: e(s_)
    e("s_waitcnt vmcnt(0)")
    if masked:
        for i in range(n):
            e(f"s_mov_b64 exec, s[{MASK0+2*i}:{MASK0+2*i+1}]")
            for c in checks[i]: e(c)
            e(f"v_cmp_ne_u32 vcc, 0, v{vt}")
            e(f"s_mov_b64 s[{MASK0+2*i}:{MASK0+2*i+1}], vcc")
            if i == 0: e("s_mov_b64 s[14:15], vcc")
            else: e("s_or_b64 s[14:15], s[14:15], vcc")
        e("s_mov_b64 exec, s[100:101]")
        e("s_add_u32 s13, s13, 1")
        e("s_cmp_eq_u64 s[14:15], 0")
    else:
        for i in range(n):
            for c in checks[i]: e(c.replace(f"v{vt},", f"v{vt+1},", 1).replace(f", v{vt}", f", v{vt+1}") if False else c)
            if i == 0: e(f"v_mov_b32 v{vt+2}, v{vt}")
            else: e(f"v_or_b32 v{vt+2}, v{vt+2}, v{vt}")
        e(f"v_cmp_ne_u32 vcc, 0, v{vt+2}")
        e("s_add_u32 s13, s13, 1")
        e("s_cmp_eq_u64 vcc, 0")
    e(f"s_cbranch_scc1 {dn}")
    if OPT.get("psleep", 0): e(f"s_sleep {OPT['psleep']}")
    elif sleep: e(f"s_sleep {sleep}")
    e(f"s_cmp_lt_u32 s13, {OPT['spin']}")
    e(f"s_cbranch_scc1 {lp}")
    if masked: e("s_mov_b64 exec, s[100:101]")
    lab(dn)

def poll(loads, tagregs, vt):
    per = len(tagregs) // len(loads)
    checks = []
    for i in range(len(loads)):
        tr = tagregs[i*per:(i+1)*per]
        if per == 1: checks.append([f"v_xor_b32 v{vt}, {TAG}, v{tr[0]}"])
        else: checks.append([f"v_xor_b32 v{vt}, {TAG}, v{tr[0]}", f"v_xor_b32 v{vt+1}, {TAG}, v{tr[1]}", f"v_or_b32 v{vt}, v{vt}, v{vt+1}"])
    _poll_generic(loads, checks, vt)

def pollx(loads, bases, vt, init=None, sleep=0):
    checks = [[f"v_bitop3_b32 v{vt}, v{b}, v{b+1}, v{b+2} bitop3:0x96", f"v_bitop3_b32 v{vt}, v{vt}, v{b+3}, {VTAG} bitop3:0x96"] for b in bases]
    _poll_generic(loads, checks, vt, init, sleep=sleep)

def poll2(loadsA, loadsB, tagregs, vt):
    lp = uid("POLL"); dn = uid("PDONE")
    e("s_mov_b32 s13, 0")
    lab(lp)
    for loads in (loadsA, loadsB):
        for s_ in loads: e(s_)
        e("s_waitcnt vmcnt(0)")
        tr = list(tagregs); first = True
        while tr:
            a_, b_ = tr.pop(0), tr.pop(0)
            e(f"v_xor_b32 v{vt+1}, {TAG}, v{a_}"); e(f"v_xor_b32 v{vt+2}, {TAG}, v{b_}")
            if first: e(f"v_or_b32 v{vt}, v{vt+1}, v{vt+2}")
            else: e(f"v_or3_b32 v{vt}, v{vt+1}, v{vt+2}, v{vt}")
            first = False
        e(f"v_cmp_ne_u32 vcc, 0, v{vt}")
        e("s_cmp_eq_u64 vcc, 0")
        e(f"s_cbranch_scc1 {dn}")
    e("s_add_u32 s13, s13, 1")
    e(f"s_cmp_lt_u32 s13, {OPT['spin']}")
    e(f"s_cbranch_scc1 {lp}")
    lab(dn)

def mfma(d, a, b, c=None):
    cs = vr(d, 4) if c is None else c
    e(f"v_mfma_f32_16x16x32_bf16 {vr(d,4)}, {vr(a,4)}, {vr(b,4)}, {cs}")

SCG = " sc1"
EXEC_L15_0 = 0x0001000100010001

def set_exec64(val):
    lo, hi = val & 0xffffffff, val >> 32
    e(f"s_mov_b32 exec_lo, {lo:#x}"); e(f"s_mov_b32 exec_hi, {hi:#x}")
def exec_all(): e("s_mov_b64 exec, -1")

def prologue():
    if OPT["stamps"] or OPT.get("diagx", 0): e("s_memrealtime s[96:97]")
    e("s_cmp_ge_u32 s2, 256")
    e("s_cbranch_scc1 L_END")
    e("s_load_dwordx16 s[16:31], s[0:1], 0")
    e("s_load_dwordx8 s[32:39], s[0:1], 64")
    e("s_load_dwordx2 s[40:41], s[0:1], 96")
    e(f"v_lshrrev_b32 v5, 6, v0")
    e(f"v_and_b32 {LANE}, 63, v0")
    e(f"v_readfirstlane_b32 {WAVE}, v5")
    e(f"v_lshrrev_b32 {G}, 4, {LANE}")
    if OPT.get("earlytouch", 1): code_touch(120)
    e(f"v_and_b32 {L15}, 15, {LANE}")
    e(f"s_and_b32 {X}, s2, 7")
    e(f"s_lshr_b32 {J}, s2, 3")
    e(f"s_mul_i32 s64, {WAVE}, 11"); e("s_lshr_b32 s64, s64, 5")
    e("s_mul_i32 s65, s64, 3"); e(f"s_sub_u32 s65, {WAVE}, s65")
    e(f"s_cmp_ge_u32 {J}, 16")
    e("s_cbranch_scc1 L_Y")

def kernarg_ready():
    e("s_waitcnt lgkmcnt(0)")
    if OPT.get("wsoff", 0):
        e(f"s_add_u32 s{P_WS}, s{P_WS}, {OPT['wsoff'] << 20:#x}"); e(f"s_addc_u32 s{P_WS+1}, s{P_WS+1}, 0")
    e(f"s_load_dword {TAG}, s[{P_WS}:{P_WS+1}], 0")
    srd(WS, P_WS, WS_SIZE)

def get_tag():
    e("s_waitcnt lgkmcnt(0)")
    e(f"s_mul_i32 {TAG}, {TAG}, 1664525")
    e(f"s_add_u32 {TAG}, {TAG}, 1013904223")
    e(f"v_mov_b32 {VTAG}, {TAG}")

def hello_publish(vt):
    if not OPT.get("local", 1): return
    sk = uid("HEL")
    e(f"s_cmp_lg_u32 {WAVE}, 15"); e(f"s_cbranch_scc1 {sk}")
    e("s_getreg_b32 s9, hwreg(HW_REG_XCC_ID, 0, 4)")
    e(f"s_lshl_b32 s10, {X}, 8"); e("s_lshr_b32 s11, s2, 3"); e("s_lshl_b32 s11, s11, 3"); e("s_add_u32 s10, s10, s11"); e(f"s_add_u32 s10, s10, {WS_HELLO}")
    e(f"v_mov_b32 v{vt}, s9"); e(f"v_mov_b32 v{vt+1}, {TAG}"); e(f"v_mov_b32 v{vt+2}, 0")
    e("s_mov_b64 exec, 1")
    e(f"buffer_store_dwordx2 v[{vt}:{vt+1}], v{vt+2}, {sr(WS)}, s10 offen sc1")
    exec_all()
    lab(sk)

XL_U = 0
XL_UK = 61440
XL_MG, XL_MU, XL_MD = 73728, 94208, 114688
XL_S = 147456
XL_XN = XL_S
XL_Q = XL_S + 1280
XL_CL = XL_S + 2048
CL_RS = 400
XL_CB = XL_S + 14848
XL_W = XL_S + 15232
XL_FLAG = XL_S + 15360
XL_H = XL_S + 2048
XL_ST = XL_S + 4608
XL_G = XL_S + 4736
XL_HH = XL_S + 6144
XL_R2 = XL_S + 6400
XL_R = XL_S + 8192

def st_global(data, voff, soff):
    e(f"buffer_store_dwordx4 {data}, {voff}, {sr(WS)}, {soff} offen sc1")
def st_local(data, voff, soff):
    g = uid("STG"); d = uid("STD")
    e("s_nop 0"); e("v_readfirstlane_b32 s10, v123"); e("s_nop 3")
    e("s_cmp_eq_u32 s10, 1"); e(f"s_cbranch_scc0 {g}")
    e(f"buffer_store_dwordx4 {data}, {voff}, {sr(WS)}, {soff} offen")
    e(f"s_branch {d}")
    lab(g)
    e(f"buffer_store_dwordx4 {data}, {voff}, {sr(WS)}, {soff} offen sc1")
    lab(d)

XL_CX = None
def collect_pre(vw, vr_, vo, s_off, lds_base, soff_code, mode16):
    e(f"v_lshlrev_b32 v{vw}, 3, {G}"); e(f"s_lshl_b32 s9, {WAVE}, 5"); e(f"s_add_u32 s9, s9, {lds_base}"); e(f"v_add_u32 v{vw}, s9, v{vw}")
    if mode16: e(f"v_mul_u32_u24 v{vr_}, 12, {LANE}")
    else: e(f"v_lshlrev_b32 v{vr_}, 3, {LANE}")
    e(f"v_add_u32 v{vr_}, {lds_base}, v{vr_}")
    e(f"v_lshlrev_b32 v{vo}, 4, {LANE}")
    soff_code(); e(f"s_mov_b32 {s_off}, s9")

def collect_store(acc, vw, vr_, vo, s_off, flavor, lbl, mode16=False, vflag=None):
    e(f"v_cvt_pk_bf16_f32 v124, v{acc}, v{acc+1}"); e(f"v_cvt_pk_bf16_f32 v125, v{acc+2}, v{acc+3}")
    set_exec64(EXEC_L15_0)
    e(f"ds_write_b64 v{vw}, v[124:125]")
    exec_all()
    lab(lbl)
    barrier()
    sk = uid("CST")
    e(f"s_cmp_lg_u32 {WAVE}, 0"); e(f"s_cbranch_scc1 {sk}")
    if mode16:
        set_exec64(0xffffffff)
        e(f"ds_read2_b32 v[124:125], v{vr_} offset1:1"); e(f"ds_read_b32 v126, v{vr_} offset:8")
        e("s_waitcnt lgkmcnt(0)")
        e("v_bitop3_b32 v127, v124, v125, v126 bitop3:0x96"); e(f"v_xor_b32 v127, {VTAG}, v127")
    else:
        set_exec64((1 << 48) - 1)
        e(f"ds_read_b64 v[124:125], v{vr_}")
        if flavor is st_local: e(f"ds_read_b32 v123, v{vflag}")
        e("s_waitcnt lgkmcnt(0)")
        e("v_mov_b32 v126, v125"); e(f"v_mov_b32 v125, {VTAG}"); e(f"v_mov_b32 v127, {VTAG}")
    flavor("v[124:127]", f"v{vo}", s_off)
    exec_all()
    lab(sk)

def code_touch(vd, wave=15):
    if not OPT["prefetch_code"]: return
    sk = uid("CT"); pc = uid("PC")
    e(f"s_cmp_lg_u32 {WAVE}, {wave}"); e(f"s_cbranch_scc1 {sk}")
    e("s_getpc_b64 s[10:11]")
    lab(pc)
    e(f"s_sub_u32 s10, s10, {pc}-{NAME}_kernel"); e("s_subb_u32 s11, s11, 0")
    e("s_lshr_b32 s9, s2, 3"); e("s_and_b32 s9, s9, 15"); e("s_lshl_b32 s9, s9, 10")
    e(f"v_lshl_add_u32 v{vd}, {LANE}, 4, s9")
    e(f"s_mov_b32 s9, L_END-{NAME}_kernel-16")
    e(f"v_min_u32 v{vd}, s9, v{vd}")
    e(f"global_load_dwordx4 v[{vd}:{vd+3}], v{vd}, s[10:11]")
    lab(sk)

def code_touch_range(lbl, nkb, vd, wave=15):
    if not OPT.get("retouch", 0): return
    sk = uid("CT"); pc = uid("PC")
    e(f"s_cmp_lg_u32 {WAVE}, {wave}"); e(f"s_cbranch_scc1 {sk}")
    e("s_getpc_b64 s[10:11]")
    lab(pc)
    e(f"s_sub_u32 s10, s10, {pc}-{NAME}_kernel"); e("s_subb_u32 s11, s11, 0")
    e(f"s_mov_b32 s9, {lbl}-{NAME}_kernel")
    e(f"v_lshl_add_u32 v{vd+4}, {LANE}, 4, s9")
    e(f"s_mov_b32 s9, L_END-{NAME}_kernel-16")
    for i in range(nkb):
        e(f"v_min_u32 v{vd+5}, s9, v{vd+4}")
        e(f"global_load_dwordx4 v[{vd}:{vd+3}], v{vd+5}, s[10:11]")
        if i + 1 < nkb: e(f"v_add_u32 v{vd+4}, 1024, v{vd+4}")
    lab(sk)

def tlb_warm(wave):
    if not OPT.get("tlbwarm", 0): return
    sk = uid("TW")
    e(f"s_cmp_lg_u32 {WAVE}, {wave}"); e(f"s_cbranch_scc1 {sk}")
    step = 1 << 20
    lst = [(P_WUV, 9437184), (P_WO, 7864320), (P_WG, 1966080), (P_WU, 1966080), (P_WD, 1966080), (P_WS, WS_SIZE), (P_OUT, 1280)]
    k = 0
    for ptr, size in lst:
        off = 0
        while off < size:
            if off < (1 << 20):
                e(f"s_load_dword s{84 + (k % 8)}, s[{ptr}:{ptr+1}], {off:#x}")
            else:
                e(f"s_mov_b32 s9, {off:#x}")
                e(f"s_load_dword s{84 + (k % 8)}, s[{ptr}:{ptr+1}], s9")
            k += 1; off += step
    lab(sk)

def x_program():
    lab("L_X")
    e(f"s_lshr_b32 s9, {J}, 2"); e(f"s_lshl_b32 {H}, {X}, 2"); e(f"s_add_u32 {H}, {H}, s9")
    e(f"s_and_b32 {R}, {J}, 3")
    dma_pattern(15, 12, 12288, "s65", 17, 18)
    if OPT.get("dmaexp", 0):
        e(f"v_lshrrev_b32 v17, 4, {LANE}"); e("s_lshl_b32 s9, s65, 2"); e("v_add_u32 v17, s9, v17"); e("v_mul_u32_u24 v17, 12288, v17")
        e(f"v_lshl_add_u32 v17, {L15}, 4, v17")
        e(f"v_lshrrev_b32 v18, 3, {LANE}"); e("v_mul_u32_u24 v18, 12288, v18"); e(f"v_and_b32 v15, 7, {LANE}"); e("v_lshl_add_u32 v18, v15, 4, v18"); e("v_add_u32 v18, 256, v18")
        e("s_cmp_eq_u32 s65, 2"); e("s_cselect_b64 vcc, -1, 0"); e("s_nop 1"); e("v_cndmask_b32 v15, v17, v18, vcc")
    e(f"v_cmp_lt_u32 vcc, 23, {LANE}"); e(f"v_subrev_u32 v6, 24, {LANE}"); e("s_nop 0")
    e(f"v_cndmask_b32 v14, {LANE}, v6, vcc"); e("v_lshlrev_b32 v14, 4, v14")
    e("v_mov_b32 v6, 12288"); e("v_cndmask_b32 v6, 0, v6, vcc"); e("v_add_u32 v14, v14, v6")
    e(f"v_lshlrev_b32 v5, 2, {LANE}"); e(f"v_lshlrev_b32 v11, 4, {LANE}")
    e(f"s_mul_i32 s10, {R}, 160"); e("s_lshl_b32 s11, s64, 3"); e("s_add_u32 s10, s10, s11")
    e("s_mul_i32 s11, s10, 12288"); e(f"s_mul_i32 s67, {H}, 384"); e("s_add_u32 s11, s11, s67")
    e(f"s_sub_u32 s9, {WAVE}, 12")
    e(f"s_mul_i32 s66, {R}, 192"); e("s_lshl_b32 s10, s9, 1"); e("s_add_u32 s66, s66, s10")
    e("s_mul_i32 s66, s66, 12288"); e("s_add_u32 s66, s66, s67")
    e(f"s_mul_i32 s68, s9, 800"); e(f"s_add_u32 s68, s68, {XL_UK}")
    e(f"s_lshl_b32 s10, {WAVE}, 10")
    kernarg_ready()
    srd(SA, P_WQ, 7864320); srd(SB, P_WUK, 9437184); srd(SC_, P_X, 1280)
    stamp("x: start", 0xfffff)
    sk = uid("XL")
    e(f"s_cmp_lg_u32 {WAVE}, 15"); e(f"s_cbranch_scc1 {sk}")
    for i in range(5):
        e(f"buffer_load_dword v{16+i}, v5, {sr(SC_)}, 0 offen offset:{256*i}")
    e("s_barrier")
    e("s_branch X_LN")
    lab(sk)
    e(f"s_cmp_ge_u32 {WAVE}, 12"); e("s_cbranch_scc1 X_UKD")
    dma_loop(15, SA, 10, 11, 5, 12 * 1024, 32 * 12288, OPT["xnt"])
    e("s_barrier")
    e("s_waitcnt vmcnt(0)")
    e("s_branch X_B1")
    lab("X_UKD")
    e("s_barrier")
    set_exec64((1<<48)-1)
    npre = OPT.get("ukpre", 4)
    dma_loop(14, SB, 68, 66, npre, 3 * 800, 6 * 12288, OPT["xnt"])
    exec_all()
    lab("X_B1")
    get_tag()
    if OPT.get("diagw", 0):
        e("s_memtime s[76:77]"); e("s_waitcnt lgkmcnt(0)")
        e("s_barrier")
        e("s_memtime s[78:79]"); e("s_waitcnt vmcnt(0)"); e("s_memtime s[80:81]"); e("s_waitcnt lgkmcnt(0)")
        e("s_lshl_b32 s9, s2, 10"); e(f"s_lshl_b32 s10, {WAVE}, 6"); e("s_add_u32 s9, s9, s10"); e(f"s_add_u32 s9, s9, {WS_ST}")
        e("s_mov_b64 exec, 1"); e("v_mov_b32 v5, 0")
        for i, b in enumerate((72, 74, 76, 78, 80, 96)):
            e(f"v_mov_b32 v6, s{b}"); e(f"v_mov_b32 v7, s{b+1}")
            e(f"buffer_store_dwordx2 v[6:7], v5, {sr(WS)}, s9 offen offset:{8*i}"); e("s_nop 1")
        e("s_endpgm")
    stamp("x: wq landed", 9|32768)
    barrier()
    stamp("x: after B1", 8)
    e(f"s_cmp_ge_u32 {WAVE}, 12"); e("s_cbranch_scc1 X_UK2")
    e(f"v_mul_u32_u24 v5, 3072, {G}"); e(f"v_lshl_add_u32 v5, {L15}, 3, v5")
    e(f"s_lshl_b32 s9, {WAVE}, 7"); e("v_add_u32 v13, s9, v5")
    e(f"s_mul_i32 s9, {R}, 320"); e(f"s_add_u32 s9, s9, {XL_XN}")
    e(f"v_lshl_add_u32 v6, {G}, 4, s9")
    for ks in range(5):
        e(f"ds_read_b128 {vr(64+4*ks,4)}, v6 offset:{64*ks}")
        e(f"ds_read_b64_tr_b16 {vr(40+4*ks,2)}, v13 offset:{XL_U+ks*12288}")
        e(f"ds_read_b64_tr_b16 {vr(42+4*ks,2)}, v13 offset:{XL_U+ks*12288+1536}")
    e(f"s_lshl_b32 s9, {H}, 2"); e(f"s_add_u32 s9, s9, {R}"); e("s_mul_i32 s9, s9, 1536")
    e(f"s_lshl_b32 s10, {WAVE}, 7"); e("s_add_u32 s9, s9, s10"); e(f"s_add_u32 s9, s9, {WS_E1}")
    e(f"v_lshlrev_b32 v5, 3, {L15}")
    for ks in range(5):
        e(f"s_waitcnt lgkmcnt({3*(4-ks)})")
        mfma(88, 64 + 4 * ks, 40 + 4 * ks, "0" if ks == 0 else None)
    e("s_nop 7")
    e(f"v_mov_b32 v89, {VTAG}")
    e("s_mov_b64 exec, 0xffff")
    if OPT.get("e1dual", 1):
        e(f"s_add_u32 s10, s9, {WS_E1L - WS_E1}")
        e(f"buffer_store_dwordx2 v[88:89], v5, {sr(WS)}, s10 offen")
    e(f"buffer_store_dwordx2 v[88:89], v5, {sr(WS)}, s9 offen{SCG}")
    exec_all()
    stamp("x: q published", 9)
    e(f"v_lshlrev_b32 v8, 4, {G}"); e(f"v_add_u32 v8, {XL_Q}, v8")
    e(f"v_lshrrev_b32 v7, 1, {L15}"); e("v_mul_u32_u24 v7, 800, v7")
    e(f"v_and_b32 v9, 1, {L15}"); e("v_mul_u32_u24 v9, 384, v9"); e("v_add_u32 v7, v7, v9")
    e(f"v_lshl_add_u32 v7, {G}, 4, v7")
    e(f"s_mul_i32 s9, {WAVE}, 6400"); e(f"s_add_u32 s9, s9, {XL_UK}"); e("v_add_u32 v7, s9, v7")
    def soff_qa():
        e(f"s_lshl_b32 s9, {H}, 11"); e(f"s_lshl_b32 s10, {R}, 9"); e("s_add_u32 s9, s9, s10"); e(f"s_add_u32 s9, s9, {WS_QA}")
    collect_pre(9, 10, 11, "s70", XL_CB, soff_qa, True)
    e("s_branch X_B3")
    lab("X_UK2")
    e(f"s_cmp_eq_u32 {WAVE}, 15"); e("s_cbranch_scc1 X_B3")
    set_exec64((1<<48)-1)
    dma_loop(14, SB, 68, 66, 32 - OPT.get("ukpre", 4), 3 * 800, 6 * 12288, OPT["xnt"])
    exec_all()
    e(f"s_cmp_ge_u32 {WAVE}, 14"); e("s_cbranch_scc1 X_B3W")
    e(f"s_sub_u32 s9, {WAVE}, 12"); e("s_lshl_b32 s9, s9, 6"); e(f"v_add_u32 v5, s9, {LANE}")
    e("v_cmp_gt_u32 vcc, 96, v5"); e("s_and_saveexec_b64 s[42:43], vcc")
    e("v_lshlrev_b32 v6, 4, v5")
    e(f"s_mul_i32 s9, {H}, 6144"); e(f"s_add_u32 s9, s9, {WS_E1}")
    e("s_add_u32 s10, s9, 3072")
    stamp("x: E1 poll start", 8|32768)
    if OPT.get("e1dual", 1):
        e(f"s_add_u32 s11, s9, {WS_E1L - WS_E1}"); e(f"s_add_u32 s69, s10, {WS_E1L - WS_E1}")
        mk = lambda sa, sb: [f"buffer_load_dwordx4 v[92:95], v6, {sr(WS)}, {sa} offen sc1",
                             f"buffer_load_dwordx4 v[96:99], v6, {sr(WS)}, {sa} offen offset:1536 sc1",
                             f"buffer_load_dwordx4 v[100:103], v6, {sr(WS)}, {sb} offen sc1",
                             f"buffer_load_dwordx4 v[104:107], v6, {sr(WS)}, {sb} offen offset:1536 sc1"]
        poll2(mk("s11", "s69"), mk("s9", "s10"), [93, 95, 97, 99, 101, 103, 105, 107], 108)
    else:
        poll([f"buffer_load_dwordx4 v[92:95], v6, {sr(WS)}, s9 offen sc1",
              f"buffer_load_dwordx4 v[96:99], v6, {sr(WS)}, s9 offen offset:1536 sc1",
              f"buffer_load_dwordx4 v[100:103], v6, {sr(WS)}, s10 offen sc1",
              f"buffer_load_dwordx4 v[104:107], v6, {sr(WS)}, s10 offen offset:1536 sc1"],
             [93, 95, 97, 99, 101, 103, 105, 107], 108)
    stamp("x: E1 poll end", 8|32768); stamp_val("E1 iters", "s13", 8)
    e("v_add_f32 v92, v92, v96"); e("v_add_f32 v94, v94, v98")
    e("v_add_f32 v100, v100, v104"); e("v_add_f32 v102, v102, v106")
    e("v_add_f32 v92, v92, v100"); e("v_add_f32 v94, v94, v102")
    qs = 192 ** -0.5 * math.log2(math.e)
    e(f"v_mul_f32 v92, {F(qs)}, v92"); e(f"v_mul_f32 v94, {F(qs)}, v94")
    e("v_cvt_pk_bf16_f32 v92, v92, v94")
    e("v_lshlrev_b32 v6, 2, v5"); e(f"v_add_u32 v6, {XL_Q}, v6")
    e("ds_write_b32 v6, v92")
    e("s_mov_b64 exec, s[42:43]")
    lab("X_B3W")
    e("s_waitcnt vmcnt(0)")
    lab("X_B3")
    barrier()
    stamp("x: q gathered", 9|32768)
    e(f"s_cmp_ge_u32 {WAVE}, 12"); e("s_cbranch_scc1 X_P2B")
    for ks in range(6):
        e(f"ds_read_b128 {vr(16+4*ks,4)}, v7 offset:{64*ks}")
        e(f"ds_read_b128 {vr(64+4*ks,4)}, v8 offset:{64*ks}")
    for ks in range(6):
        e(f"s_waitcnt lgkmcnt({2*(5-ks)})")
        mfma(88, 16 + 4 * ks, 64 + 4 * ks, "0" if ks == 0 else None)
    e("s_nop 7")
    collect_store(88, 9, 10, 11, "s70", st_global, "X_P2B", mode16=True)
    stamp("x: qabs published", 9|128|256|32768|(1<<16))
    if OPT.get("xstop", 0) == 1:
        e("s_waitcnt vmcnt(0)"); barrier(); stamp("x: all waves done"); e("s_branch X_END")
    if OPT.get("qawait", 0):
        e("s_waitcnt vmcnt(0)"); barrier()
    srd(SA, P_WUV, 9437184)
    e(f"s_cmp_ge_u32 {WAVE}, 12"); e("s_cbranch_scc1 X_B4")
    e(f"s_mul_i32 s10, {R}, 192"); e("s_lshl_b32 s11, s64, 3"); e("s_add_u32 s10, s10, s11")
    e("s_mul_i32 s11, s10, 12288"); e("s_add_u32 s11, s11, s67")
    e(f"s_lshl_b32 s10, {WAVE}, 10"); e(f"s_add_u32 s10, s10, {XL_U}")
    dma_loop(15, SA, 10, 11, 6, 12 * 1024, 32 * 12288, OPT["xnt"])
    lab("X_B4")
    PFNT = " nt" if OPT.get("pfnt", 0) else ""
    if OPT.get("wopf", 0):
        sk = uid("PFO")
        srd(SB, P_WO, 7864320)
        e(f"s_cmp_eq_u32 {WAVE}, 15"); e(f"s_cbranch_scc1 {sk}")
        e(f"s_mul_i32 s9, {X}, 768"); e(f"s_mul_i32 s10, {J}, 48"); e("s_add_u32 s9, s9, s10"); e("s_mul_i32 s9, s9, 1280")
        e(f"s_lshl_b32 s10, {WAVE}, 12"); e("s_add_u32 s9, s9, s10")
        e(f"v_lshlrev_b32 v8, 4, {LANE}")
        for i in range(4): e(f"buffer_load_dwordx4 v[120:123], v8, {sr(SB)}, s9 offen offset:{1024*i}{PFNT}")
        lab(sk)
    if OPT.get("l2pf", 1):
        srd(SB, P_WG, 1966080); srd(SD, P_WU, 1966080)
        e(f"v_cmp_lt_u32 vcc, 23, {LANE}"); e(f"v_subrev_u32 v7, 24, {LANE}"); e("s_nop 0")
        e(f"v_cndmask_b32 v8, {LANE}, v7, vcc"); e("v_lshlrev_b32 v8, 4, v8")
        e("v_mov_b32 v7, 3072"); e("v_cndmask_b32 v7, 0, v7, vcc"); e("v_add_u32 v8, v8, v7")
        sk = uid("PFG")
        e(f"s_cmp_ge_u32 {WAVE}, 10"); e(f"s_cbranch_scc1 {sk}")
        e(f"s_mul_i32 s9, {J}, 40"); e(f"s_lshl_b32 s10, {WAVE}, 2"); e("s_add_u32 s9, s9, s10"); e("s_mul_i32 s9, s9, 3072")
        e(f"s_mul_i32 s10, {X}, 384"); e("s_add_u32 s9, s9, s10"); e("s_add_u32 s10, s9, 6144")
        set_exec64((1 << 48) - 1)
        e(f"buffer_load_dwordx4 v[120:123], v8, {sr(SB)}, s9 offen{PFNT}"); e(f"buffer_load_dwordx4 v[120:123], v8, {sr(SB)}, s10 offen{PFNT}")
        e(f"buffer_load_dwordx4 v[120:123], v8, {sr(SD)}, s9 offen{PFNT}"); e(f"buffer_load_dwordx4 v[120:123], v8, {sr(SD)}, s10 offen{PFNT}")
        exec_all()
        lab(sk)
        sk = uid("PFD")
        e(f"s_cmp_lt_u32 {WAVE}, 10"); e(f"s_cbranch_scc1 {sk}")
        srd(SB, P_WD, 1966080)
        e(f"s_mul_i32 s9, {X}, 192"); e(f"s_mul_i32 s10, {J}, 12"); e("s_add_u32 s9, s9, s10"); e("s_mul_i32 s9, s9, 1280")
        e(f"s_sub_u32 s10, {WAVE}, 10"); e("s_mul_i32 s10, s10, 2560"); e("s_add_u32 s9, s9, s10")
        e(f"v_lshlrev_b32 v8, 4, {LANE}")
        e(f"buffer_load_dwordx4 v[120:123], v8, {sr(SB)}, s9 offen{PFNT}"); e(f"buffer_load_dwordx4 v[120:123], v8, {sr(SB)}, s9 offen offset:1024{PFNT}")
        set_exec64(0xffffffff)
        e(f"buffer_load_dwordx4 v[120:123], v8, {sr(SB)}, s9 offen offset:2048{PFNT}")
        exec_all()
        lab(sk)
    e(f"v_lshrrev_b32 v8, 5, {LANE}"); e(f"s_lshl_b32 s9, {WAVE}, 1"); e("v_add_u32 v8, s9, v8")
    e(f"v_and_b32 v9, 31, {LANE}")
    e("v_mul_u32_u24 v6, 2176, v8"); e("v_lshl_add_u32 v6, v9, 4, v6")
    e(f"v_mul_u32_u24 v10, {CL_RS}, v8"); e("v_mul_u32_u24 v11, 12, v9"); e("v_add_u32 v10, v10, v11")
    e(f"v_add_u32 v118, {XL_CL}, v10")
    e("s_waitcnt vmcnt(0)")
    code_touch_range("X_NPR", 3, 120, 14)
    stamp("x: burst2 landed", 1|256)
    barrier()
    if OPT.get("xstop", 0) == 2: e("s_branch X_END")
    e(f"s_cmp_ge_u32 {WAVE}, 12"); e("s_cbranch_scc1 X_NPR")
    for ks in range(6):
        e(f"ds_read_b64_tr_b16 {vr(40+4*ks,2)}, v13 offset:{XL_U+ks*12288}")
        e(f"ds_read_b64_tr_b16 {vr(42+4*ks,2)}, v13 offset:{XL_U+ks*12288+1536}")
    lab("X_NPR")
    e(f"v_lshrrev_b32 v16, 2, {L15}"); e(f"v_lshl_add_u32 v16, {G}, 3, v16"); e(f"v_mul_u32_u24 v16, {CL_RS}, v16")
    e(f"v_and_b32 v17, 3, {L15}"); e("v_lshl_add_u32 v16, v17, 3, v16")
    e(f"s_lshl_b32 s9, {WAVE}, 5"); e(f"s_add_u32 s10, s9, {XL_CL}"); e("v_add_u32 v16, s10, v16")
    e(f"v_and_b32 v17, 1, {LANE}"); e("v_lshlrev_b32 v17, 6, v17"); e(f"v_lshl_add_u32 v17, {G}, 4, v17"); e(f"v_add_u32 v17, {XL_W}, v17")
    e(f"v_lshlrev_b32 v18, 1, {L15}"); e(f"s_add_u32 s10, s9, {XL_CB}"); e("v_add_u32 v18, s10, v18")
    e(f"v_lshlrev_b32 v19, 4, {G}"); e(f"v_add_u32 v19, {XL_CB}, v19")
    def soff_e4():
        e(f"s_lshl_b32 s9, {X}, 2"); e(f"s_add_u32 s9, s9, {R}"); e("s_mul_i32 s9, s9, 3072")
        e(f"s_and_b32 s10, {H}, 3"); e("s_mul_i32 s10, s10, 768"); e("s_add_u32 s9, s9, s10"); e(f"s_add_u32 s9, s9, {WS_E4}")
    collect_pre(20, 21, 22, "s70", XL_Q, soff_e4, False)
    e(f"v_mov_b32 v23, {XL_FLAG}")
    e(f"s_mul_i32 s9, {H}, 69632"); e(f"s_add_u32 s69, s9, {WS_E3 + 2048}"); e(f"s_lshl_b32 s10, {R}, 9"); e("s_add_u32 s9, s9, s10")
    e(f"s_add_u32 s9, s9, {WS_E3}")
    e(f"s_cmp_eq_u32 {WAVE}, 12"); e("s_cbranch_scc1 X_ML")
    stamp("x: E3 poll start", 16)
    pollx([f"buffer_load_dwordx4 v[96:99], v6, {sr(WS)}, s9 offen sc1"], [96], 108, sleep=OPT.get("e3sleep", 0))
    stamp("x: E3 poll end", 16|2048); stamp_val("E3 iters", "s13", 16)
    e("ds_write2_b32 v118, v96, v97 offset1:1"); e("ds_write_b32 v118, v98 offset:8")
    if OPT.get("local", 1):
        sk = uid("HCK")
        e(f"s_cmp_lg_u32 {WAVE}, 13"); e(f"s_cbranch_scc1 {sk}")
        e(f"v_lshlrev_b32 v5, 3, {LANE}")
        e(f"s_lshl_b32 s10, {X}, 8"); e(f"s_add_u32 s10, s10, {WS_HELLO + 128}")
        e("s_getreg_b32 s11, hwreg(HW_REG_XCC_ID, 0, 4)")
        e("s_mov_b64 exec, 0x3ff")
        e(f"buffer_load_dwordx2 v[100:101], v5, {sr(WS)}, s10 offen sc1")
        e("s_waitcnt vmcnt(0)")
        e("v_xor_b32 v100, s11, v100"); e(f"v_xor_b32 v101, {TAG}, v101"); e("v_or_b32 v100, v100, v101")
        e("v_cmp_ne_u32 vcc, 0, v100")
        e("s_cmp_eq_u64 vcc, 0"); e("s_cselect_b32 s10, 1, 0")
        e("s_mov_b64 exec, 1")
        e(f"v_mov_b32 v100, s10"); e(f"v_mov_b32 v5, {XL_FLAG}"); e("ds_write_b32 v5, v100")
        exec_all()
        lab(sk)
    e("s_branch X_B5")
    lab("X_ML")
    e(f"v_and_b32 v5, 31, {LANE}"); e("v_mul_u32_u24 v5, 2176, v5")
    pollx([f"buffer_load_dwordx4 v[100:103], v6, {sr(WS)}, s9 offen sc1",
           f"buffer_load_dwordx4 v[96:99], v5, {sr(WS)}, s69 offen sc1"], [100, 96], 108, init=[None, 0xffffffff], sleep=OPT.get("e3sleep", 0))
    e("ds_write2_b32 v118, v100, v101 offset1:1"); e("ds_write_b32 v118, v102 offset:8")
    e("v_mov_b32 v98, v96")
    e("s_nop 1"); row16_allreduce("v_max_f32", 98); e("s_nop 1"); cross16("v_max_f32", 98, 99)
    e("v_sub_f32 v96, v96, v98"); e("v_exp_f32 v96, v96"); e("s_nop 0")
    e("v_mul_f32 v97, v96, v97")
    e("s_nop 1"); row16_allreduce("v_add_f32", 97); e("s_nop 1"); cross16("v_add_f32", 97, 99)
    e("v_rcp_f32 v97, v97"); e("s_nop 0")
    e("v_mul_f32 v96, v96, v97")
    e("v_cvt_pk_bf16_f32 v97, v96, v96")
    e("v_and_b32 v98, 0xffff0000, v97")
    e("v_sub_f32 v96, v96, v98")
    e("v_cvt_pk_bf16_f32 v96, v96, v96")
    e(f"v_and_b32 v5, 31, {LANE}"); e("v_lshlrev_b32 v5, 1, v5"); e(f"v_add_u32 v5, {XL_W}, v5")
    set_exec64(0xffffffff)
    e("ds_write_b16 v5, v97"); e("ds_write_b16 v5, v96 offset:64")
    exec_all()
    lab("X_B5")
    barrier()
    stamp("x: E3 gathered", 17|128|256|2048)
    e(f"s_cmp_ge_u32 {WAVE}, 12"); e("s_cbranch_scc1 X_B5b")
    e(f"ds_read_b64_tr_b16 v[96:97], v16"); e(f"ds_read_b64_tr_b16 v[98:99], v16 offset:{4*CL_RS}")
    e("ds_read_b128 v[100:103], v17")
    e("s_waitcnt lgkmcnt(0)")
    mfma(120, 100, 96, "0")
    e("s_nop 7")
    e("v_add_f32 v120, v120, v121")
    e("v_cvt_pk_bf16_f32 v120, v120, v120")
    e("s_mov_b64 exec, 0xffff")
    e("ds_write_b16 v18, v120")
    exec_all()
    lab("X_B5b")
    barrier()
    stamp("x: after B5b", 2048)
    e(f"s_cmp_ge_u32 {WAVE}, 12"); e("s_cbranch_scc1 X_UPD")
    for ks in range(6): e(f"ds_read_b128 {vr(96+4*ks,4)}, v19 offset:{64*ks}")
    for ks in range(6):
        e(f"s_waitcnt lgkmcnt({5-ks})")
        mfma(120, 40 + 4 * ks, 96 + 4 * ks, "0" if ks == 0 else None)
    e("s_nop 7")
    collect_store(120, 20, 21, 22, "s70", st_local if OPT.get("local", 1) else st_global, "X_UPD", vflag=23)
    stamp("x: ctx published", 1|128|256|2048)
    e(f"s_cmp_ge_u32 {J}, 5"); e("s_cbranch_scc1 X_END")
    e(f"s_mul_i32 s66, {X}, 5"); e(f"s_add_u32 s66, s66, {J}")
    e(f"s_cmp_ge_u32 {WAVE}, 7"); e("s_cbranch_scc1 X_B9")
    e(f"s_cmp_eq_u32 {WAVE}, 6"); e("s_cbranch_scc1 X_FH")
    e(f"v_lshrrev_b32 v5, 3, {LANE}"); e("v_mul_u32_u24 v5, 5120, v5")
    e(f"v_and_b32 v6, 7, {LANE}"); e("v_lshl_add_u32 v5, v6, 4, v5")
    e(f"s_mul_i32 s9, {WAVE}, 40960"); e("s_lshl_b32 s10, s66, 7"); e("s_add_u32 s9, s9, s10")
    e(f"s_add_u32 s9, s9, {WS_E6}")
    poll([f"buffer_load_dwordx4 v[92:95], v5, {sr(WS)}, s9 offen sc1"], [93, 95], 108)
    e("v_mov_b32 v93, v94")
    e("s_nop 1")
    for i in range(2):
        e(f"v_add_f32_dpp v{92+i}, v{92+i}, v{92+i} row_ror:8 row_mask:0xf bank_mask:0xf")
    for i in range(2):
        cross16("v_add_f32", 92 + i, 96); cross32("v_add_f32", 92 + i, 96)
    e("v_lshlrev_b32 v6, 3, v6"); e(f"s_lshl_b32 s9, {WAVE}, 6"); e(f"s_add_u32 s9, s9, {XL_R2}")
    e("v_add_u32 v6, s9, v6")
    e("s_mov_b64 exec, 0xff")
    e("ds_write_b64 v6, v[92:93]")
    exec_all()
    e("s_branch X_B9")
    lab("X_FH")
    e(f"v_bfe_u32 v5, {LANE}, 2, 3"); e("v_mul_u32_u24 v5, 2560, v5")
    e(f"v_and_b32 v6, 3, {LANE}"); e("v_lshl_add_u32 v5, v6, 4, v5")
    e("s_lshl_b32 s9, s66, 6"); e(f"s_add_u32 s9, s9, {WS_E5}")
    e("v_lshlrev_b32 v7, 3, v6"); e("s_lshl_b32 s10, s66, 5")
    e(f"buffer_load_dwordx2 v[104:105], v7, {sr(SC_)}, s10 offen")
    set_exec64(0xffffffff)
    poll([f"buffer_load_dwordx4 v[92:95], v5, {sr(WS)}, s9 offen sc1"], [93, 95], 108)
    exec_all()
    e("v_lshlrev_b32 v96, 16, v92"); e("v_and_b32 v97, 0xffff0000, v92")
    e("v_lshlrev_b32 v98, 16, v94"); e("v_and_b32 v99, 0xffff0000, v94")
    e("s_nop 1")
    for sh in (4, 8):
        for i in range(4):
            e(f"v_add_f32_dpp v{96+i}, v{96+i}, v{96+i} row_ror:{sh} row_mask:0xf bank_mask:0xf")
    for i in range(4): cross16("v_add_f32", 96 + i, 100)
    e("v_lshlrev_b32 v100, 16, v104"); e("v_and_b32 v101, 0xffff0000, v104")
    e("v_lshlrev_b32 v102, 16, v105"); e("v_and_b32 v103, 0xffff0000, v105")
    for i in range(4): e(f"v_add_f32 v{96+i}, v{96+i}, v{100+i}")
    e("v_lshlrev_b32 v6, 4, v6"); e(f"v_add_u32 v6, {XL_H}, v6")
    e("s_mov_b64 exec, 0xf")
    e("ds_write_b128 v6, v[96:99]")
    exec_all()
    lab("X_B9")
    barrier()
    e(f"s_cmp_lg_u32 {WAVE}, 0"); e("s_cbranch_scc1 X_END")
    e(f"v_lshlrev_b32 v5, 3, {LANE}"); e(f"v_add_u32 v6, {XL_R2}, v5"); e(f"v_add_u32 v7, {XL_H}, v5")
    e("s_mov_b64 exec, 0xff")
    for w in range(6): e(f"ds_read_b64 {vr(92+2*w,2)}, v6 offset:{64*w}")
    e("ds_read_b64 v[116:117], v7")
    srd(SD, P_OUT, 1280)
    e("s_waitcnt lgkmcnt(0)")
    for w in range(1, 6):
        e(f"v_add_f32 v92, v92, v{92+2*w}"); e(f"v_add_f32 v93, v93, v{93+2*w}")
    e("v_add_f32 v92, v92, v116"); e("v_add_f32 v93, v93, v117")
    e("v_cvt_pk_bf16_f32 v92, v92, v93")
    e(f"v_lshlrev_b32 v5, 2, {LANE}"); e("s_lshl_b32 s9, s66, 5")
    e(f"buffer_store_dword v92, v5, {sr(SD)}, s9 offen")
    e("s_cmp_lg_u32 s66, 0"); e("s_cbranch_scc1 X_EP")
    e("s_mov_b64 exec, 1")
    e("v_mov_b32 v5, 0")
    e(f"buffer_store_dword {VTAG}, v5, {sr(WS)}, 0 offen sc1")
    lab("X_EP")
    exec_all()
    lab("X_END")
    stamp("x: end", 1|128|1024)
    stamp_flush(nstamp[0])
    e("s_endpgm")
    lab("X_LN")
    e("s_waitcnt vmcnt(0)")
    for i in range(5):
        e(f"v_lshlrev_b32 v{21+2*i}, 16, v{16+i}")
        e(f"v_and_b32 v{22+2*i}, 0xffff0000, v{16+i}")
    e("v_add_f32 v31, v21, v22")
    for i in range(23, 31): e(f"v_add_f32 v31, v31, v{i}")
    wave_allreduce("v_add_f32", 31, 32)
    e(f"v_mul_f32 v31, {F(1.0/640.0)}, v31")
    for i in range(21, 31): e(f"v_sub_f32 v{i}, v{i}, v31")
    e("v_mul_f32 v33, v21, v21")
    for i in range(22, 31): e(f"v_fmac_f32 v33, v{i}, v{i}")
    wave_allreduce("v_add_f32", 33, 32)
    e(f"v_mov_b32 v32, {F(1e-5)}")
    e(f"v_fmac_f32 v32, {F(1.0/640.0)}, v33")
    e("v_rsq_f32 v32, v32"); e("s_nop 0")
    for i in range(21, 31): e(f"v_mul_f32 v{i}, v{i}, v32")
    for i in range(5): e(f"v_cvt_pk_bf16_f32 v{16+i}, v{21+2*i}, v{22+2*i}")
    e(f"v_add_u32 v5, {XL_XN}, v5")
    for i in range(5): e(f"ds_write_b32 v5, v{16+i} offset:{256*i}")
    e("s_branch X_B1")

CH_KB = 6272
CH_SZ = 8 * CH_KB
YL_C = 0
YL_QA = 2 * CH_SZ
YL_SP = YL_QA + 12416
YL_PF = YL_SP + 34816
YL_M = YL_PF + 4096
YL_R = YL_M + 64
YL_MG, YL_MU, YL_MD = 0, 40960, 81920
YL_H = 131072
YL_ST = YL_H + 2560
YL_G = YL_H + 2688
YL_HH = YL_H + 5376
assert YL_R + 3072 <= 163840
HG = "s7"

def y_program():
    nstamp[0] = 0
    lab("L_Y")
    e(f"s_sub_u32 {J}, {J}, 16")
    e(f"s_and_b32 {HG}, {J}, 3"); e(f"s_lshr_b32 {KC}, {J}, 2")
    e(f"v_bfe_u32 v5, {LANE}, 1, 2"); e("v_mul_u32_u24 v5, 1536, v5")
    e(f"v_lshrrev_b32 v6, 3, {LANE}"); e("v_lshl_add_u32 v5, v6, 5, v5")
    e(f"v_and_b32 v6, 1, {LANE}"); e("v_lshl_add_u32 v15, v6, 4, v5")
    e(f"s_lshl_b32 s9, {X}, 9"); e(f"s_lshl_b32 s10, {KC}, 7"); e("s_add_u32 s9, s9, s10")
    e(f"s_mul_i32 s10, {WAVE}, 43"); e("s_lshr_b32 s10, s10, 8")
    e("s_mul_i32 s11, s10, 6"); e(f"s_sub_u32 s11, {WAVE}, s11")
    e("s_lshl_b32 s14, s10, 2"); e("s_add_u32 s9, s9, s14")
    e("s_mul_i32 s66, s9, 1536"); e("s_lshl_b32 s14, s11, 8"); e("s_add_u32 s66, s66, s14")
    e(f"s_mul_i32 s67, s10, {CH_KB}"); e("s_lshl_b32 s14, s11, 10"); e("s_add_u32 s67, s67, s14")
    kernarg_ready()
    srd(SA, P_CKV, 6291456)
    stamp("y: start", 0xfffff)
    if OPT.get("ystop", 0) == 1: e("s_branch Y_END")
    if not OPT.get("earlytouch", 1): code_touch(120)
    tlb_warm(14)
    ynt = OPT["ynt"]
    SL = 4 * CH_KB
    def chunk_dma(ch):
        sk = uid("YCD")
        e(f"s_cmp_ge_u32 {WAVE}, 12"); e(f"s_cbranch_scc1 {sk}")
        e(f"s_add_u32 s10, s67, {(ch % 4) * SL}"); e(f"s_add_u32 s11, s66, {ch * 16 * 1536}")
        for i in range(2):
            e("s_mov_b32 m0, s10"); e(f"s_add_u32 s10, s10, {2*CH_KB}")
            e(f"buffer_load_dwordx4 v15, {sr(SA)}, s11 offen{' nt' if ynt else ''} lds")
            e(f"s_add_u32 s11, s11, {8*1536}")
        lab(sk)
    if OPT.get("ukpf", 0):
        nrows = OPT.get("ukpf")
        srd(SB, P_WUK, 9437184)
        e(f"v_cmp_lt_u32 vcc, 23, {LANE}"); e(f"v_subrev_u32 v12, 24, {LANE}"); e("s_nop 0")
        e(f"v_cndmask_b32 v13, {LANE}, v12, vcc"); e("v_lshlrev_b32 v13, 4, v13")
        e("v_mov_b32 v12, 12288"); e("v_cndmask_b32 v12, 0, v12, vcc"); e("v_add_u32 v13, v13, v12")
        e(f"s_and_b32 s9, {J}, 3"); e("s_mul_i32 s9, s9, 192"); e(f"s_add_u32 s9, s9, {192 - nrows}"); e(f"s_lshl_b32 s10, {WAVE}, 1"); e("s_add_u32 s9, s9, s10")
        e("s_mul_i32 s9, s9, 12288")
        e(f"s_lshr_b32 s10, {J}, 2"); e(f"s_lshl_b32 s11, {X}, 2"); e("s_add_u32 s10, s10, s11"); e("s_mul_i32 s10, s10, 384"); e("s_add_u32 s9, s9, s10")
        set_exec64((1 << 48) - 1)
        for i in range(nrows // 32):
            e(f"buffer_load_dwordx4 v[124:127], v13, {sr(SB)}, s9 offen{' nt' if OPT.get('ukpfnt', 0) else ''}")
            if i + 1 < nrows // 32: e(f"s_add_u32 s9, s9, {32*12288}")
        exec_all()
    chunk_dma(0); chunk_dma(1); chunk_dma(2)
    e(f"v_lshlrev_b32 v5, 2, v0"); e(f"v_add_u32 v5, {YL_PF}, v5"); e("v_mov_b32 v6, 0"); e("ds_write_b32 v5, v6")
    e(f"s_and_b32 s68, {WAVE}, 3"); e(f"s_lshr_b32 s69, {WAVE}, 2")
    e(f"v_lshrrev_b32 v5, 2, {L15}")
    e(f"v_mul_u32_u24 v5, {CH_KB}, v5")
    e(f"v_and_b32 v6, 3, {L15}"); e("v_lshl_add_u32 v5, v6, 5, v5")
    e(f"v_lshrrev_b32 v6, 1, {G}"); e("v_lshl_add_u32 v5, v6, 7, v5")
    e(f"v_and_b32 v6, 1, {G}"); e("v_lshl_add_u32 v5, v6, 4, v5")
    e("s_mul_i32 s9, s69, 1536"); e("v_add_u32 v13, s9, v5")
    e(f"v_mul_u32_u24 v5, {CH_KB}, {G}"); e(f"v_lshl_add_u32 v5, {L15}, 3, v5")
    e(f"s_mul_i32 s9, {WAVE}, 384"); e("v_add_u32 v14, s9, v5")
    e(f"v_add_u32 v8, {2*SL}, v14"); e(f"v_add_u32 v11, {2*SL}, v13")
    e(f"v_lshlrev_b32 v6, 4, {LANE}")
    e(f"s_and_b32 s9, {WAVE}, 1"); e("s_lshl_b32 s9, s9, 6"); e(f"v_add_u32 v9, s9, {LANE}"); e("v_mul_u32_u24 v9, 12, v9")
    e(f"s_lshr_b32 s9, {WAVE}, 1"); e("s_mul_i32 s9, s9, 1552"); e(f"s_add_u32 s9, s9, {YL_QA}"); e("v_add_u32 v9, s9, v9")
    SF, PVF = 16, 64
    def read_frags(c):
        sb, pb = ("v13", "v14") if (c % 4) < 2 else ("v11", "v8")
        so = (c % 2) * SL
        sk = uid("YSR")
        e(f"s_cmp_lg_u32 s68, {c >> 1}"); e(f"s_cbranch_scc1 {sk}")
        for i in range(6): e(f"ds_read_b128 {vr(SF+4*(6*(c&1)+i),4)}, {sb} offset:{so+256*i}")
        lab(sk)
        for a in range(3):
            b = PVF + ((c >> 1) * 3 + a) * 4 + 2 * (c & 1)
            e(f"ds_read_b64_tr_b16 {vr(b,2)}, {pb} offset:{so+a*128}")
    for c in range(8):
        rem = min(7, c + 2) - c
        e(f"s_waitcnt vmcnt({2*rem})"); barrier()
        if c + 3 <= 7: chunk_dma(c + 3)
        if c == 3: code_touch_range("Y_E2D", 2, 120, 15)
        read_frags(c)
    get_tag()
    hello_publish(120)
    stamp("y: C landed", 9|(1<<16))
    if OPT.get("ystop", 0) == 2:
        barrier(); stamp("y: all landed"); e("s_branch Y_END")
    srd(SA, P_WO, 7864320)
    e(f"v_lshrrev_b32 v5, 5, {LANE}"); e("v_lshlrev_b32 v5, 2, v5"); e(f"v_bfe_u32 v12, {LANE}, 1, 2"); e("v_add_u32 v5, v5, v12")
    e("v_mul_u32_u24 v5, 1280, v5")
    e(f"v_bfe_u32 v12, {LANE}, 3, 2"); e("v_lshl_add_u32 v5, v12, 5, v5")
    e(f"v_and_b32 v12, 1, {LANE}"); e("v_lshl_add_u32 v0, v12, 4, v5")
    e(f"s_mul_i32 s67, {X}, 768"); e(f"s_lshl_b32 s10, {WAVE}, 3"); e("s_add_u32 s67, s67, s10"); e("s_mul_i32 s67, s67, 1280")
    e(f"s_lshl_b32 s10, {J}, 7"); e("s_add_u32 s67, s67, s10")
    e(f"s_lshl_b32 s66, {WAVE}, 10")
    WOS = "%05d" % OPT.get("wos", 11103)
    assert sum(int(c) for c in WOS) == 6
    def wo_point(pt):
        for _ in range(int(WOS[pt])):
            if pt == 2 and OPT.get("wohi", 1): wo_batch_hi("v0")
            else: wo_batch("v0")
    def wo_batch_hi(vreg):
        sk = uid("YWH"); lo = uid("YWL")
        nt_ = ' nt' if OPT.get('wont', 1) else ''
        e(f"s_cmp_ge_u32 {J}, 10"); e(f"s_cbranch_scc1 {sk}")
        e(f"s_cmp_lt_u32 {WAVE}, 8"); e(f"s_cbranch_scc1 {lo}")
        e("s_mov_b32 m0, s66"); e(f"s_sub_u32 s9, s66, {8*1024}"); e(f"s_sub_u32 s10, s67, {64*1280}")
        e(f"buffer_load_dwordx4 {vreg}, {sr(SA)}, s67 offen{nt_} lds")
        e("s_mov_b32 m0, s9"); e("s_nop 0")
        e(f"buffer_load_dwordx4 {vreg}, {sr(SA)}, s10 offen{nt_} lds")
        lab(lo)
        e(f"s_add_u32 s66, s66, {16*1024}"); e(f"s_add_u32 s67, s67, {128*1280}")
        lab(sk)
    def wo_batch(vreg, late=False):
        sk = uid("YWO")
        e(f"s_cmp_ge_u32 {J}, 10"); e(f"s_cbranch_scc1 {sk}")
        e("s_mov_b32 m0, s66"); e(f"s_add_u32 s66, s66, {16*1024}")
        e(f"buffer_load_dwordx4 {vreg}, {sr(SA)}, s67 offen{' nt' if OPT.get('wont', 1) else ''} lds")
        e(f"s_add_u32 s67, s67, {128*1280}")
        lab(sk)
    e(f"v_and_b32 v7, 7, {L15}"); e("v_mul_u32_u24 v7, 1552, v7"); e(f"v_lshl_add_u32 v7, {G}, 4, v7")
    e(f"s_mul_i32 s9, s69, 384"); e(f"s_add_u32 s9, s9, {YL_QA}"); e("v_add_u32 v7, s9, v7")
    e(f"v_mul_u32_u24 v8, 272, {G}"); e(f"v_lshl_add_u32 v8, {L15}, 4, v8")
    e("s_lshl_b32 s9, s69, 3"); e("s_lshl_b32 s10, s68, 1"); e("s_add_u32 s9, s9, s10"); e("s_mul_i32 s9, s9, 1088")
    e(f"s_add_u32 s9, s9, {YL_SP}"); e("v_add_u32 v8, s9, v8")
    e(f"v_mul_u32_u24 v10, 1088, {G}")
    e(f"v_bfe_u32 v5, {LANE}, 2, 2"); e("v_mul_u32_u24 v11, 272, v5")
    e(f"v_and_b32 v12, 3, {LANE}"); e("v_lshlrev_b32 v13, 2, v12")
    e("v_add3_u32 v10, v10, v11, v13")
    e(f"s_lshl_b32 s9, {WAVE}, 4"); e(f"s_add_u32 s10, s9, {YL_SP}"); e("v_add_u32 v10, s10, v10")
    e(f"v_lshrrev_b32 v11, 5, {LANE}"); e("v_lshlrev_b32 v11, 10, v11")
    e("v_lshl_add_u32 v11, v5, 8, v11")
    e(f"v_bfe_u32 v13, {LANE}, 4, 1"); e("v_lshl_add_u32 v11, v13, 3, v11")
    e("v_lshl_add_u32 v11, v12, 1, v11")
    e(f"s_add_u32 s10, s9, {YL_PF}"); e("v_add_u32 v11, s10, v11")
    e(f"v_and_b32 v13, 7, {L15}"); e("v_mul_u32_u24 v13, 96, v13"); e(f"v_lshl_add_u32 v13, {G}, 3, v13")
    e(f"s_mul_i32 s9, {WAVE}, 768"); e(f"s_add_u32 s9, s9, {YL_SP}"); e("v_add_u32 v13, s9, v13")
    e(f"v_lshrrev_b32 v14, 3, {LANE}"); e("v_mul_u32_u24 v12, 96, v14"); e(f"v_and_b32 v5, 7, {LANE}"); e("v_mul_u32_u24 v15, 12, v5")
    e("v_add3_u32 v12, v12, v15, s9")
    e("v_mul_u32_u24 v14, 69632, v14"); e("v_lshl_add_u32 v14, v5, 4, v14")
    e(f"v_lshlrev_b32 v15, 4, {LANE}"); e(f"v_add_u32 v15, {YL_PF}, v15")
    e(f"s_mul_i32 s70, {HG}, {8*69632}"); e(f"s_lshl_b32 s10, {X}, 2"); e(f"s_add_u32 s10, s10, {KC}")
    e("s_mul_i32 s11, s10, 2176"); e("s_add_u32 s70, s70, s11"); e(f"s_add_u32 s71, s70, {WS_E3 + 2048}")
    e(f"s_lshl_b32 s11, {WAVE}, 7"); e("s_add_u32 s70, s70, s11"); e(f"s_add_u32 s70, s70, {WS_E3}")
    wo_point(0)
    e(f"s_lshl_b32 s9, {HG}, 14"); e(f"s_lshl_b32 s10, {WAVE}, 10"); e("s_add_u32 s9, s9, s10"); e(f"s_add_u32 s9, s9, {WS_QA}")
    stamp("y: E2 poll start", 1<<16)
    pollx([f"buffer_load_dwordx4 v[112:115], v6, {sr(WS)}, s9 offen sc1"], [112], 120)
    stamp("y: E2 poll end", 1<<16); stamp_val("E2 iters", "s13", 1<<16)
    e("ds_write2_b32 v9, v112, v113 offset1:1"); e("ds_write_b32 v9, v114 offset:8")
    lab("Y_E2D")
    stamp("y: qabs gathered", 9|128)
    barrier()
    stamp("y: after E2 barrier", 8|(1<<16))
    wo_point(1)
    for i in range(2): e(f"ds_read_b128 {vr(112+4*i,4)}, v7 offset:{64*i}")
    for i in range(6):
        e(f"s_waitcnt lgkmcnt({1 if i < 5 else 0})")
        mfma(120, SF + 4 * i, 112 + 4 * (i % 2), "0" if i == 0 else None)
        mfma(124, SF + 4 * (6 + i), 112 + 4 * (i % 2), "0" if i == 0 else None)
        if i + 2 < 6:
            e(f"ds_read_b128 {vr(112+4*(i%2),4)}, v7 offset:{64*(i+2)}")
    e("s_nop 7")
    e("ds_write_b128 v8, v[120:123]"); e("ds_write_b128 v8, v[124:127] offset:1088")
    barrier()
    stamp("y: S partial done", 10)
    wo_point(2)
    e(f"s_cmp_ge_u32 {WAVE}, 8"); e("s_cbranch_scc1 Y_SMD")
    for kq in range(4):
        e(f"ds_read_b32 v{112+kq}, v10 offset:{8704*kq}"); e(f"ds_read_b32 v{116+kq}, v10 offset:{8704*kq+4352}")
    e(f"s_lshl_b32 s9, {WAVE}, 2"); e(f"s_add_u32 s9, s9, {YL_M}"); e("v_mov_b32 v5, s9")
    e("s_waitcnt lgkmcnt(0)")
    e("v_add_f32 v112, v112, v113"); e("v_add_f32 v114, v114, v115"); e("v_add_f32 v116, v116, v117"); e("v_add_f32 v118, v118, v119")
    e("v_add_f32 v112, v112, v114"); e("v_add_f32 v114, v116, v118")
    e("v_max_f32 v116, v112, v114")
    wave_allreduce("v_max_f32", 116, 117)
    e("v_sub_f32 v112, v112, v116"); e("v_sub_f32 v114, v114, v116")
    e("v_exp_f32 v112, v112"); e("v_exp_f32 v114, v114"); e("s_nop 0")
    e("v_cvt_pk_bf16_f32 v112, v112, v114")
    e("ds_write_b16 v11, v112"); e("ds_write_b16_d16_hi v11, v112 offset:2048")
    e("s_mov_b64 exec, 1")
    e("ds_write_b32 v5, v116")
    exec_all()
    lab("Y_SMD")
    barrier()
    stamp("y: P ready", 10)
    wo_point(3)
    for ks in range(4): e(f"ds_read_b128 {vr(112+4*ks,4)}, v15 offset:{1024*ks}")
    if OPT.get("pvprio", 1):
        for q in range(3):
            sk = uid("PR")
            e(f"s_cmp_lg_u32 s69, {q}"); e(f"s_cbranch_scc1 {sk}"); e(f"s_setprio {3-q}"); lab(sk)
    for ks in range(4):
        e(f"s_waitcnt lgkmcnt({3-ks})")
        for a in range(3):
            mfma(16 + 4 * a, PVF + (ks * 3 + a) * 4, 112 + 4 * ks, "0" if ks == 0 else None)
    e(f"s_cmp_lg_u32 {WAVE}, 15"); e("s_cbranch_scc1 Y_NL")
    for i in range(4): e(f"v_mov_b32 v{32+i}, 0x3f803f80")
    e(f"v_and_b32 v41, 7, {L15}"); e("v_lshlrev_b32 v41, 2, v41"); e(f"v_add_u32 v41, {YL_M}, v41")
    e("ds_read_b32 v40, v41")
    for ks in range(4): mfma(36, 32, 112 + 4 * ks, "0" if ks == 0 else None)
    lab("Y_NL")
    e("s_nop 7")
    stamp("y: PV mfma done", 8)
    for a in range(3):
        e(f"v_cvt_pk_bf16_f32 v{44+2*a}, v{16+4*a}, v{17+4*a}"); e(f"v_cvt_pk_bf16_f32 v{45+2*a}, v{18+4*a}, v{19+4*a}")
    set_exec64(0x00ff00ff00ff00ff)
    for a in range(3): e(f"ds_write_b64 v13, {vr(44+2*a,2)} offset:{32*a}")
    exec_all()
    e("s_waitcnt lgkmcnt(0)")
    e("ds_read2_b32 v[52:53], v12 offset1:1"); e("ds_read_b32 v54, v12 offset:8")
    e("s_waitcnt lgkmcnt(0)")
    e("v_bitop3_b32 v55, v52, v53, v54 bitop3:0x96"); e(f"v_xor_b32 v55, {VTAG}, v55")
    e(f"buffer_store_dwordx4 v[52:55], v14, {sr(WS)}, s70 offen{SCG}")
    e(f"s_cmp_lg_u32 {WAVE}, 15"); e("s_cbranch_scc1 Y_P3D")
    e(f"s_mov_b32 s9, 69632"); e(f"v_mul_lo_u32 v5, {L15}, s9"); e("s_mov_b32 s9, s71")
    e("s_waitcnt lgkmcnt(0)")
    e("v_mov_b32 v56, v40"); e("v_mov_b32 v57, v36"); e("v_mov_b32 v58, 0"); e("v_bitop3_b32 v59, v56, v57, v4 bitop3:0x96")
    e("s_mov_b64 exec, 0xff")
    e(f"buffer_store_dwordx4 v[56:59], v5, {sr(WS)}, s9 offen{SCG}")
    exec_all()
    lab("Y_P3D")
    stamp("y: ctxlat published", 9|16|128|1024)
    if OPT["stamps"] & 16:
        e("s_waitcnt vmcnt(0)"); stamp("y: E3 stores complete", 16); barrier(); stamp("y: all waves stores complete", 16)
    if OPT.get("ystop", 0) == 3: e("s_branch Y_END")
    e(f"s_cmp_ge_u32 {J}, 10"); e("s_cbranch_scc1 Y_MLP")
    if OPT.get("wowait", 1): e("s_waitcnt vmcnt(0)")
    wo_point(4)
    e("s_waitcnt vmcnt(0)")
    code_touch_range("Y_B5", 1, 120, 15)
    stamp("y: wo landed", 1|256)
    barrier()
    e(f"s_cmp_ge_u32 {WAVE}, 12"); e("s_cbranch_scc1 Y_B5")
    e(f"v_lshlrev_b32 v5, 10, {G}"); e(f"v_lshl_add_u32 v5, {L15}, 3, v5")
    e(f"s_lshl_b32 s9, {WAVE}, 13"); e("v_add_u32 v5, s9, v5")
    for ksl in range(2):
        for t in range(4):
            b = 64 + (ksl * 4 + t) * 4
            e(f"ds_read_b64_tr_b16 {vr(b,2)}, v5 offset:{ksl*4096+t*128}")
            e(f"ds_read_b64_tr_b16 {vr(b+2,2)}, v5 offset:{ksl*4096+512+t*128}")
        if ksl == 0: e("s_waitcnt lgkmcnt(0)")
    e(f"v_lshlrev_b32 v5, 4, {LANE}")
    e(f"s_mul_i32 s9, {X}, 12288"); e(f"s_lshl_b32 s10, {WAVE}, 10"); e("s_add_u32 s9, s9, s10")
    e(f"s_add_u32 s9, s9, {WS_E4}")
    e(f"s_mul_i32 s10, s64, 1552"); e("s_lshl_b32 s11, s65, 9"); e("s_add_u32 s10, s10, s11"); e(f"s_add_u32 s10, s10, {YL_QA}")
    e(f"v_lshl_add_u32 v6, {LANE}, 3, s10")
    e(f"v_and_b32 v7, 3, {LANE}"); e("v_mul_u32_u24 v7, 1552, v7"); e(f"v_lshl_add_u32 v7, {G}, 4, v7")
    e(f"s_lshl_b32 s10, {WAVE}, 7"); e(f"s_add_u32 s10, s10, {YL_QA}"); e("v_add_u32 v7, s10, v7")
    e(f"v_lshlrev_b32 v9, 2, {LANE}"); e(f"v_add_u32 v9, {YL_R}, v9")
    e(f"s_lshl_b32 s10, {WAVE}, 8"); e("v_add_u32 v8, s10, v9")
    e(f"v_cmp_eq_u32 s[66:67], 1, {G}"); e(f"v_cmp_eq_u32 s[68:69], 2, {G}"); e(f"v_cmp_eq_u32 s[42:43], 3, {G}")
    stamp("y: E4 poll start", 256)
    poll([f"buffer_load_dwordx4 v[96:99], v5, {sr(WS)}, s9 offen sc1"], [97, 99], 112)
    stamp("y: ctx gathered", 1|128|256|2048)
    stamp_val("E4 iters", "s13", 256)
    e("v_mov_b32 v97, v98")
    e("ds_write_b64 v6, v[96:97]")
    lab("Y_B5")
    barrier()
    stamp("y: after B5", 2048)
    e(f"s_cmp_ge_u32 {WAVE}, 12"); e("s_cbranch_scc1 Y_B6")
    e("ds_read_b128 v[96:99], v7"); e("ds_read_b128 v[104:107], v7 offset:64")
    e("s_waitcnt lgkmcnt(1)")
    for t in range(4): mfma(16 + 4 * t, 96, 64 + 4 * t, "0")
    e("s_waitcnt lgkmcnt(0)")
    for t in range(4): mfma(16 + 4 * t, 104, 64 + 16 + 4 * t)
    e("s_nop 4")
    for t in range(4):
        b = 16 + 4 * t
        e(f"v_add_f32 v{b}, v{b}, v{b+1}"); e(f"v_add_f32 v{b+2}, v{b+2}, v{b+3}")
    for t in range(4):
        b = 16 + 4 * t
        e(f"v_add_f32 v{b}, v{b}, v{b+2}")
    e("v_cndmask_b32 v16, v16, v20, s[66:67]"); e("v_cndmask_b32 v16, v16, v24, s[68:69]"); e("v_cndmask_b32 v16, v16, v28, s[42:43]")
    e("ds_write_b32 v8, v16")
    lab("Y_B6")
    stamp("y: P5 mfma+red done", 2048)
    barrier()
    stamp("y: after B6", 2048)
    e(f"s_cmp_lg_u32 {WAVE}, 0"); e("s_cbranch_scc1 Y_END")
    for i in range(6): e(f"ds_read2st64_b32 {vr(16+2*i,2)}, v9 offset0:{2*i} offset1:{2*i+1}")
    e(f"s_mul_i32 s9, {X}, 2560"); e(f"s_lshl_b32 s10, {J}, 8"); e("s_add_u32 s9, s9, s10")
    e(f"s_add_u32 s9, s9, {WS_E5}")
    e(f"v_lshlrev_b32 v5, 2, {LANE}")
    e("s_waitcnt lgkmcnt(0)")
    for i in range(6): e(f"v_add_f32 v{16+2*i}, v{16+2*i}, v{17+2*i}")
    e("v_add_f32 v16, v16, v18"); e("v_add_f32 v20, v20, v22"); e("v_add_f32 v24, v24, v26")
    e("v_add_f32 v16, v16, v20"); e("v_add_f32 v16, v16, v24")
    e("s_nop 1")
    e("v_mov_b32_dpp v17, v16 quad_perm:[1,1,3,3] row_mask:0xf bank_mask:0xf")
    e("v_cvt_pk_bf16_f32 v16, v16, v17"); e(f"v_mov_b32 v17, {VTAG}")
    set_exec64(0x5555555555555555)
    e(f"buffer_store_dwordx2 v[16:17], v5, {sr(WS)}, s9 offen{SCG}")
    exec_all()
    e("s_branch Y_END")
    lab("Y_MLP")
    e(f"s_mul_i32 s66, {X}, 6"); e(f"s_add_u32 s66, s66, {J}"); e("s_sub_u32 s66, s66, 10")
    srd(SA, P_WG, 1966080); srd(SB, P_WU, 1966080); srd(SC_, P_WD, 1966080); srd(SD, P_X, 1280)
    e(f"v_lshrrev_b32 v5, 4, {LANE}"); e("v_lshlrev_b32 v5, 2, v5"); e(f"v_bfe_u32 v6, {LANE}, 1, 2"); e("v_add_u32 v5, v5, v6")
    e("v_mul_u32_u24 v5, 3072, v5")
    e(f"v_bfe_u32 v6, {LANE}, 3, 1"); e("v_lshl_add_u32 v5, v6, 5, v5")
    e(f"v_and_b32 v6, 1, {LANE}"); e("v_lshl_add_u32 v15, v6, 4, v5")
    e(f"v_bfe_u32 v5, {LANE}, 1, 2"); e("v_mul_u32_u24 v5, 1280, v5")
    e(f"v_lshrrev_b32 v6, 3, {LANE}"); e("v_lshl_add_u32 v5, v6, 5, v5")
    e(f"v_and_b32 v6, 1, {LANE}"); e("v_lshl_add_u32 v14, v6, 4, v5")
    if OPT.get("mlpwait", 0): e("s_waitcnt vmcnt(0)")
    barrier()
    e(f"s_and_b32 s9, {WAVE}, 7")
    e(f"s_mul_i32 s11, s9, {5*16*3072}"); e("s_lshl_b32 s10, s66, 6"); e("s_add_u32 s11, s11, s10")
    e("s_mul_i32 s10, s9, 5120")
    e(f"s_cmp_ge_u32 {WAVE}, 8"); e("s_cbranch_scc1 Y_MU")
    dma_loop(15, SA, 10, 11, 5, 1024, 16 * 3072, OPT.get("mnt", 1))
    e("s_lshl_b32 s11, s66, 5"); e(f"s_lshl_b32 s10, {WAVE}, 2"); e("s_add_u32 s11, s11, s10"); e("s_mul_i32 s11, s11, 1280")
    e(f"s_mul_i32 s10, {WAVE}, 5120"); e(f"s_add_u32 s10, s10, {YL_MD}")
    dma_loop(14, SC_, 10, 11, 5, 1024, 256, OPT["ynt"])
    e("s_branch Y_MW")
    lab("Y_MU")
    e(f"s_add_u32 s10, s10, {YL_MU}")
    dma_loop(15, SB, 10, 11, 5, 1024, 16 * 3072, OPT.get("mnt", 1))
    lab("Y_MW")
    e(f"v_and_b32 v5, 31, {LANE}"); e("v_lshlrev_b32 v5, 3, v5"); e(f"s_lshl_b32 s9, {WAVE}, 8")
    e(f"s_cmp_ge_u32 {WAVE}, 5"); e("s_cbranch_scc1 Y_NX")
    e(f"buffer_load_dwordx2 v[110:111], v5, {sr(SD)}, s9 offen")
    lab("Y_NX")
    e("s_waitcnt vmcnt(0)")
    code_touch_range("Y_MPD", 2, 120, 15)
    stamp("y: mlp landed", 1|1024)
    barrier()
    if OPT.get("ystop", 0) == 4: e("s_branch Y_END")
    e(f"s_cmp_ge_u32 {WAVE}, 10"); e("s_cbranch_scc1 Y_MPD")
    e(f"v_lshlrev_b32 v5, 9, {G}"); e(f"v_lshl_add_u32 v5, {L15}, 3, v5")
    e(f"s_lshl_b32 s9, {WAVE}, 12"); e("v_add_u32 v5, s9, v5")
    for mat, base in ((0, YL_MG), (1, YL_MU)):
        for ksl in range(2):
            for t in range(2):
                b = 16 + mat * 16 + (ksl * 2 + t) * 4
                e(f"ds_read_b64_tr_b16 {vr(b,2)}, v5 offset:{base+ksl*2048+t*128}")
                e(f"ds_read_b64_tr_b16 {vr(b+2,2)}, v5 offset:{base+ksl*2048+256+t*128}")
        e("s_waitcnt lgkmcnt(0)")
    e(f"v_mul_u32_u24 v5, 10240, {G}"); e(f"v_lshl_add_u32 v5, {L15}, 3, v5")
    e(f"s_lshl_b32 s9, {WAVE}, 9"); e(f"s_add_u32 s9, s9, {YL_MD}"); e("v_add_u32 v5, s9, v5")
    for a in range(4):
        e(f"ds_read_b64_tr_b16 {vr(48+4*a,2)}, v5 offset:{128*a}")
        e(f"ds_read_b64_tr_b16 {vr(50+4*a,2)}, v5 offset:{5120+128*a}")
    lab("Y_MPD")
    e(f"v_lshlrev_b32 v9, 2, {LANE}"); e(f"v_add_u32 v9, {YL_G}, v9")
    e(f"s_lshl_b32 s9, {WAVE}, 8"); e("v_add_u32 v8, s9, v9")
    e(f"v_and_b32 v12, 31, {LANE}")
    e(f"s_lshl_b32 s9, {WAVE}, 6"); e(f"s_add_u32 s9, s9, {YL_HH}")
    e("v_lshl_add_u32 v10, v12, 1, s9"); e(f"v_lshl_add_u32 v11, {G}, 4, s9")
    e(f"v_lshlrev_b32 v12, 3, {LANE}")
    e(f"v_mov_b32 v13, {YL_ST}")
    e(f"v_lshlrev_b32 v14, 5, {G}"); e(f"s_lshl_b32 s9, {WAVE}, 8"); e(f"s_add_u32 s9, s9, {YL_H}"); e("v_add_u32 v14, s9, v14")
    e("s_mul_i32 s65, s66, 5120"); e(f"s_lshl_b32 s10, {WAVE}, 9"); e("s_add_u32 s65, s65, s10"); e(f"s_add_u32 s65, s65, {WS_E6}")
    e(f"v_cmp_eq_u32 s[66:67], 1, {G}"); e(f"v_cmp_eq_u32 s[68:69], 2, {G}"); e(f"v_cmp_eq_u32 s[42:43], 3, {G}")
    e(f"s_cmp_ge_u32 {WAVE}, 5"); e("s_cbranch_scc1 Y_MB6")
    e(f"v_and_b32 v6, 31, {LANE}"); e(f"v_lshrrev_b32 v5, 5, {LANE}"); e("v_mul_u32_u24 v5, 10240, v5"); e("v_lshl_add_u32 v5, v6, 4, v5")
    e(f"s_lshl_b32 s9, {WAVE}, 9"); e(f"s_add_u32 s9, s9, {WS_E5}")
    e("s_add_u32 s10, s9, 5120")
    stamp("y: E5 poll start", 4096)
    poll([f"buffer_load_dwordx4 {vr(80+4*i,4)}, v5, {sr(WS)}, {'s9' if i < 2 else 's10'} offen offset:{2560*(i%2)} sc1" for i in range(4)],
         [81, 83, 85, 87, 89, 91, 93, 95], 96)
    stamp("y: E5 poll end", 4096); stamp_val("E5 iters", "s13", 4096)
    for i in range(4):
        b = 80 + 4 * i
        if i == 0:
            e(f"v_lshlrev_b32 v100, 16, v{b}"); e(f"v_and_b32 v101, 0xffff0000, v{b}")
            e(f"v_lshlrev_b32 v102, 16, v{b+2}"); e(f"v_and_b32 v103, 0xffff0000, v{b+2}")
        else:
            e(f"v_lshlrev_b32 v104, 16, v{b}"); e(f"v_and_b32 v105, 0xffff0000, v{b}")
            e(f"v_lshlrev_b32 v106, 16, v{b+2}"); e(f"v_and_b32 v107, 0xffff0000, v{b+2}")
            for k in range(4): e(f"v_add_f32 v{100+k}, v{100+k}, v{104+k}")
    for k in range(4): e(f"v_mov_b32 v{104+k}, v{100+k}")
    e("s_nop 1")
    for k in range(4): e(f"v_permlane32_swap_b32 v{100+k}, v{104+k}")
    e(f"v_lshlrev_b32 v80, 16, v110"); e("v_and_b32 v81, 0xffff0000, v110"); e("v_lshlrev_b32 v82, 16, v111"); e("v_and_b32 v83, 0xffff0000, v111")
    for k in range(4): e(f"v_add_f32 v{100+k}, v{100+k}, v{104+k}")
    for k in range(4): e(f"v_add_f32 v{100+k}, v{100+k}, v{80+k}")
    e("v_lshlrev_b32 v5, 4, v6"); e(f"s_lshl_b32 s9, {WAVE}, 9"); e(f"s_add_u32 s9, s9, {YL_H}"); e("v_add_u32 v5, s9, v5")
    set_exec64(0xffffffff)
    e("ds_write_b128 v5, v[100:103]")
    exec_all()
    e("v_add_f32 v104, v100, v101"); e("v_add_f32 v106, v102, v103"); e("v_mul_f32 v105, v100, v100")
    e("v_add_f32 v104, v104, v106"); e("v_fmac_f32 v105, v101, v101"); e("v_fmac_f32 v105, v102, v102"); e("v_fmac_f32 v105, v103, v103")
    e("s_nop 1")
    row16_allreduce("v_add_f32", 104, 2)
    e("s_nop 1")
    for i in range(2): cross16("v_add_f32", 104 + i, 106)
    e(f"s_lshl_b32 s9, {WAVE}, 3"); e(f"s_add_u32 s9, s9, {YL_ST}"); e("v_mov_b32 v5, s9")
    e("s_mov_b64 exec, 1")
    e("ds_write_b64 v5, v[104:105]")
    exec_all()
    lab("Y_MB6")
    stamp("y: h gathered", 65|128|1024|4096)
    barrier()
    stamp("y: after MB6", 64)
    e(f"s_cmp_ge_u32 {WAVE}, 10"); e("s_cbranch_scc1 Y_MB7")
    e("ds_read_b128 v[80:83], v13"); e("ds_read_b128 v[84:87], v13 offset:16"); e("ds_read_b64 v[88:89], v13 offset:32")
    for ksl in range(2):
        e(f"ds_read_b128 {vr(92+8*ksl,4)}, v14 offset:{128*ksl}")
        e(f"ds_read_b128 {vr(96+8*ksl,4)}, v14 offset:{128*ksl+16}")
    e("s_waitcnt lgkmcnt(4)")
    for a, b in ((82, 83), (84, 85), (86, 87), (88, 89)):
        e(f"v_add_f32 v80, v80, v{a}"); e(f"v_add_f32 v81, v81, v{b}")
    e(f"v_mul_f32 v80, {F(1.0/640.0)}, v80")
    e(f"v_mul_f32 v81, {F(1.0/640.0)}, v81")
    e("v_fma_f32 v81, -v80, v80, v81")
    e("v_max_f32 v81, 0, v81")
    e(f"v_add_f32 v81, {F(1e-5)}, v81")
    e("v_rsq_f32 v81, v81"); e("s_nop 0")
    e("v_mul_f32 v80, v80, v81")
    e("s_waitcnt lgkmcnt(0)")
    for i in range(16): e(f"v_fma_f32 v{92+i}, v{92+i}, v81, -v80")
    for ksl in range(2):
        for i in range(4): e(f"v_cvt_pk_bf16_f32 v{108+4*ksl+i}, v{92+8*ksl+2*i}, v{93+8*ksl+2*i}")
    e("s_nop 1")
    for ksl in range(2):
        for mat in range(2):
            for t in range(2):
                mfma(64 + 8 * mat + 4 * t, 108 + 4 * ksl, 16 + mat * 16 + (ksl * 2 + t) * 4, "0" if ksl == 0 else None)
    e("s_nop 5")
    e("v_cndmask_b32 v64, v64, v68, s[66:67]"); e("v_cndmask_b32 v64, v64, v72, s[68:69]"); e("v_cndmask_b32 v64, v64, v76, s[42:43]")
    e("ds_write_b32 v8, v64")
    lab("Y_MB7")
    stamp("y: P6 done", 64)
    barrier()
    stamp("y: after MB7", 64)
    e(f"s_cmp_ge_u32 {WAVE}, 10"); e("s_cbranch_scc1 Y_END")
    for i in range(5): e(f"ds_read2st64_b32 {vr(80+2*i,2)}, v9 offset0:{2*i} offset1:{2*i+1}")
    e("s_waitcnt lgkmcnt(0)")
    for i in range(5): e(f"v_add_f32 v{80+2*i}, v{80+2*i}, v{81+2*i}")
    e("v_add_f32 v80, v80, v82"); e("v_add_f32 v84, v84, v86"); e("v_add_f32 v80, v80, v88"); e("v_add_f32 v80, v80, v84")
    e("v_mov_b32 v88, v80"); e("s_nop 1")
    e("v_permlane32_swap_b32 v80, v88")
    e("s_nop 1")
    e(f"v_mul_f32 v80, {F(-math.log2(math.e))}, v80"); e("v_exp_f32 v80, v80"); e("s_nop 0")
    e("v_add_f32 v80, 1.0, v80"); e("v_rcp_f32 v80, v80"); e("s_nop 0")
    e("v_mul_f32 v80, v80, v88")
    e("v_cvt_pk_bf16_f32 v80, v80, v80")
    set_exec64(0xffffffff)
    e("ds_write_b16 v10, v80")
    exec_all()
    e("s_waitcnt lgkmcnt(0)")
    e("ds_read_b128 v[80:83], v11")
    e("s_waitcnt lgkmcnt(0)")
    for a in range(4): mfma(84 + 4 * a, 80, 48 + 4 * a, "0")
    e("s_nop 5")
    e("v_cndmask_b32 v84, v84, v88, s[66:67]"); e("v_cndmask_b32 v84, v84, v92, s[68:69]"); e("v_cndmask_b32 v84, v84, v96, s[42:43]")
    e(f"v_mov_b32 v85, {VTAG}")
    e(f"buffer_store_dwordx2 v[84:85], v12, {sr(WS)}, s65 offen{SCG}")
    lab("Y_END")
    stamp("y: end", 65|128|1024|2048|4096)
    stamp_flush(nstamp[0])
    e("s_endpgm")

hdr = f"""; Kernarg layout for this problem (104 bytes, ptrs only, base s[0:1]):
;
; @launch grid=(256,1,1) block=(1024,1,1) lds=163840
.amdgcn_target "amdgcn-amd-amdhsa--gfx950"
.text
.globl {NAME}_kernel
.p2align 8
.type {NAME}_kernel,@function
{NAME}_kernel:
"""
prologue()
x_program()
y_program()
lab("L_END")
e("s_endpgm")
ftr = f""".section .rodata,"a"
.p2align 6
.amdhsa_kernel {NAME}_kernel
  .amdhsa_next_free_vgpr 128
  .amdhsa_next_free_sgpr 102
  .amdhsa_accum_offset 128
  .amdhsa_group_segment_fixed_size 0
  .amdhsa_kernarg_size 104
  .amdhsa_user_sgpr_count 2
  .amdhsa_user_sgpr_kernarg_segment_ptr 1
  .amdhsa_system_sgpr_workgroup_id_x 1
.end_amdhsa_kernel
"""
open(sys.argv[1], "w").write(hdr + "\n".join(L) + "\n" + ftr)
```
